```python
import torch

def _softmax(x, axis=-1):
    return torch.softmax(x, dim=axis)
def _gelu(x):
    return torch.nn.functional.gelu(x, approximate="tanh")
def _silu(x):
    return torch.nn.functional.silu(x)
def _sigmoid(x):
    return torch.sigmoid(x)
def _layernorm(x, axis=-1, eps=1e-5):
    m = x.mean(dim=axis, keepdim=True)
    v = x.var(dim=axis, keepdim=True, unbiased=False)
    return (x - m) / torch.sqrt(v + eps)
def _scatter_add(tgt, idx, src, axis=0):
    return tgt.clone().index_add_(axis, idx, src)
def _segment_sum(src, seg, n):
    out = torch.zeros((n,) + src.shape[1:], dtype=src.dtype)
    return out.index_add_(0, seg, src)
def _pad(x, pw):
    flat = tuple(v for pair in reversed(pw) for v in pair)
    return torch.nn.functional.pad(x, flat)

kernel_name = 'interleave_layers__sliding_local_dilated__ssm_conv_h3__prompt'

def setup_inputs():

    _w = (lambda a: (lambda t: t.to(torch.bfloat16) if t.is_floating_point() else t)(torch.as_tensor(a)))
    def _A_setup():
        B, S, D = 1, 2048, 512
        return {
            "x": _w((lambda *s: torch.randn(*s, dtype=torch.bfloat16) * 0.05)(B, S, D)),
            "wqkv": _w((lambda *s: torch.randn(*s, dtype=torch.bfloat16) * 0.05)(D, 3 * D)),
            "wo": _w((lambda *s: torch.randn(*s, dtype=torch.bfloat16) * 0.05)(D, D)),
        }
    _A_in = _A_setup()

    def _B_setup():
        B, S, D = 1, 2048, 512
        ks = 4
        return {
            "q": _w((lambda *s: torch.randn(*s, dtype=torch.bfloat16) * 0.05)(B, S, D)),
            "k": _w((lambda *s: torch.randn(*s, dtype=torch.bfloat16) * 0.4)(B, S, D)),
            "v": _w((lambda *s: torch.randn(*s, dtype=torch.bfloat16) * 0.4)(B, S, D)),
            "shift_k": _w((lambda *s: torch.randn(*s, dtype=torch.bfloat16) * 0.4)(D, ks) * 0.5),
            "ssm_k": _w((lambda *s: torch.randn(*s, dtype=torch.bfloat16) * 0.8)(D, S) * (1.0 / S ** 0.5)),
            "ssm_D": _w((lambda *s: torch.randn(*s, dtype=torch.bfloat16) * 0.4)(D)),
        }
    _B_in = _B_setup()

    return {
        "A_x": _A_in["x"],
        "A_wqkv": _A_in["wqkv"],
        "A_wo": _A_in["wo"],
        "B_q": _B_in["q"],
        "B_k": _B_in["k"],
        "B_v": _B_in["v"],
        "B_shift_k": _B_in["shift_k"],
        "B_ssm_k": _B_in["ssm_k"],
        "B_ssm_D": _B_in["ssm_D"],
    }

def reference(A_x, A_wqkv, A_wo, B_q, B_k, B_v, B_shift_k, B_ssm_k, B_ssm_D):
    def _A_ref(x, wqkv, wo):
        B, S, D = x.shape
        H = 32; Dh = D // H
        W, dil = 8, 2
        qkv = (lambda x, *d: x.permute(*d))((x @ wqkv).reshape(B, S, 3, H, Dh), 2, 0, 3, 1, 4)
        q, k, v = qkv[0], qkv[1], qkv[2]
        scale = Dh ** -0.5
        pos = torch.arange(S)
        off = torch.arange(W) * dil
        idx = pos[:, None] - off[None, :]
        mask = idx >= 0
        idx_c = torch.where(mask, idx, 0).reshape(-1)
        kg = k[:, :, idx_c, :].reshape(B, H, S, W, Dh)
        vg = v[:, :, idx_c, :].reshape(B, H, S, W, Dh)
        logits = torch.einsum("bhsd,bhswd->bhsw", q, kg) * scale
        logits = torch.where(mask[None, None, :, :], logits, -1e9)
        attn = _softmax(logits, axis=-1)
        o = torch.einsum("bhsw,bhswd->bhsd", attn, vg)
        return (lambda x, *d: x.permute(*d))(o, 0, 2, 1, 3).reshape(B, S, D) @ wo

    def _B_ref(q, k, v, shift_k, ssm_k, ssm_D):
        B, S, D = q.shape
        ks = shift_k.shape[-1]
        k_pad = _pad(k, ((0, 0), (ks - 1, 0), (0, 0)))
        k_shift = torch.zeros_like(k)
        for t in range(ks):
            k_shift = k_shift + k_pad[:, t:t + S, :] * shift_k[:, ks - 1 - t][None, None, :]
        kv = k_shift * v
        L = 2 * S
        kv_pad = _pad(kv, ((0, 0), (0, S), (0, 0)))
        kf_pad = _pad(ssm_k, ((0, 0), (0, S)))
        kv_f = (lambda x, axes=(-2,-1): torch.fft.rfft2(x.float(), dim=axes))(kv_pad[:, None, :, :], axes=(1, 2))
        kf_f = (lambda x, axes=(-2,-1): torch.fft.rfft2(x.float(), dim=axes))(kf_pad[:, None, :], axes=(1, 2))
        kf_f = (lambda x, *d: x.permute(*d))(kf_f, 1, 2, 0)
        y_f = kv_f * kf_f[None, :, :, :]
        y = (lambda x, s, axes=(-2,-1): torch.fft.irfft2(x, s=s, dim=axes).to(torch.bfloat16))(y_f, (1, L), axes=(1, 2))[:, 0, :S, :]
        y = y + kv * ssm_D[None, None, :]
        return q * y

    x = A_x
    x = x + _A_ref(_layernorm(x, axis=-1), A_wqkv, A_wo)
    x = x + _B_ref(_layernorm(x, axis=-1), B_k, B_v, B_shift_k, B_ssm_k, B_ssm_D)
    x = x + _A_ref(_layernorm(x, axis=-1), A_wqkv, A_wo)
    x = x + _B_ref(_layernorm(x, axis=-1), B_k, B_v, B_shift_k, B_ssm_k, B_ssm_D)
    return x
```

```python
import sys

NAME = "interleave_layers__sliding_local_dilated__ssm_conv_h3__prompt"

MB = 1 << 20
O_OFF = 0
X2_OFF = 2 * MB
U_OFF = 4 * MB
Y_OFF = 6 * MB
ST_OFF = 8 * MB
WS_SIZE = 9 * MB
NEG = 0xF149F2CA


class Asm:
    def __init__(self):
        self.lines = []
        self.uid = 0

    def __call__(self, s):
        for l in s.split("\n"):
            l = l.strip()
            if l:
                self.lines.append("    " + l if not l.endswith(":") else l)

    def label(self, base):
        self.uid += 1
        return f"L_{base}_{self.uid}"

    def text(self):
        return "\n".join(self.lines) + "\n"


def vr(a, n=1):
    return f"v{a}" if n == 1 else f"v[{a}:{a+n-1}]"


def sr(a, n=1):
    return f"s{a}" if n == 1 else f"s[{a}:{a+n-1}]"


def srd(a, base, lo, hi, size, add=0):
    if add:
        a(f"s_add_u32 s{base}, s{lo}, {add}")
        a(f"s_addc_u32 s{base+1}, s{hi}, 0")
    else:
        a(f"s_mov_b32 s{base}, s{lo}")
        a(f"s_mov_b32 s{base+1}, s{hi}")
    a(f"s_mov_b32 s{base+2}, {size}")
    a(f"s_mov_b32 s{base+3}, 0x00020000")


def interleave(main, side, every):
    out = []
    si = 0
    for i, m in enumerate(main):
        out.append(m)
        if (i + 1) % every == 0 and si < len(side):
            out.append(side[si])
            si += 1
    out += side[si:]
    return out


def kernel_header(a, label):
    a(f".globl {label}")
    a(".p2align 8")
    a(f".type {label},@function")
    a(f"{label}:")


def kernel_desc(label, vgpr, sgpr=102, accum=None):
    if accum is None:
        accum = (vgpr + 3) // 4 * 4
    return f""".p2align 6
.amdhsa_kernel {label}
  .amdhsa_next_free_vgpr {vgpr}
  .amdhsa_next_free_sgpr {sgpr}
  .amdhsa_accum_offset {accum}
  .amdhsa_group_segment_fixed_size 0
  .amdhsa_kernarg_size 96
  .amdhsa_user_sgpr_count 2
  .amdhsa_user_sgpr_kernarg_segment_ptr 1
  .amdhsa_system_sgpr_workgroup_id_x 1
.end_amdhsa_kernel
"""


STAMP = False
STAMP_OFF = 12 * MB


def stamp_begin(a):
    if STAMP:
        a("s_memrealtime s[98:99]")
        a("s_memtime s[76:77]")
        a("s_load_dwordx2 s[96:97], s[0:1], 88")
        for i in range(1, 5):
            a(f"s_mov_b32 s{76+2*i}, 0")


def stamp_mid(a, i):
    if STAMP:
        a(f"s_memtime s[{76+2*i}:{77+2*i}]")


def stamp_end(a, launch_idx):
    if STAMP:
        a("s_waitcnt vmcnt(0) lgkmcnt(0)")
        a("s_memrealtime s[94:95]")
        a("s_memtime s[86:87]")
        a("s_mov_b32 s88, s96")
        a("s_mov_b32 s89, s97")
        a(f"s_mov_b32 s90, {16*MB}")
        a("s_mov_b32 s91, 0x00020000")
        a("s_lshl_b32 s92, s2, 7")
        a(f"s_add_u32 s92, s92, {STAMP_OFF + launch_idx*131072}")
        a("v_lshrrev_b32 v0, 6, v0")
        a("v_lshlrev_b32 v0, 5, v0")
        a("s_waitcnt lgkmcnt(0)")
        a("v_mov_b32 v2, s98")
        a("v_mov_b32 v3, s94")
        for i in range(6):
            a(f"v_mov_b32 v{4+i}, s{76+2*i}")
        a("s_mov_b64 exec, 1")
        a("buffer_store_dwordx4 v[2:5], v0, s[88:91], s92 offen")
        a("buffer_store_dwordx4 v[6:9], v0, s[88:91], s92 offen offset:16")


def bf16_round_inplace(a, v, tmp=None):
    a(f"v_cvt_pk_bf16_f32 v{v}, v{v}, v{v}")
    a(f"v_lshlrev_b32 v{v}, 16, v{v}")


def wg_decode(a, s_id, s_rb, s_g, s_j, t0):
    a(f"s_and_b32 s{t0}, s{s_id}, 7")
    a(f"s_lshr_b32 s{s_j}, s{s_id}, 3")
    a(f"s_lshr_b32 s{s_rb}, s{t0}, 1")
    a(f"s_lshl_b32 s{s_rb}, s{s_rb}, 3")
    a(f"s_lshr_b32 s{s_g}, s{s_j}, 2")
    a(f"s_add_u32 s{s_rb}, s{s_rb}, s{s_g}")
    a(f"s_and_b32 s{s_g}, s{t0}, 1")
    a(f"s_lshl_b32 s{s_g}, s{s_g}, 2")
    a(f"s_and_b32 s{t0}, s{s_j}, 3")
    a(f"s_add_u32 s{s_g}, s{s_g}, s{t0}")


def xq_reduce(a, op, v, t):
    a(f"v_mov_b32 v{t}, v{v}")
    a("s_nop 1")
    a(f"v_permlane16_swap_b32 v{v}, v{t}")
    a("s_nop 1")
    a(f"{op} v{v}, v{v}, v{t}")
    a(f"v_mov_b32 v{t}, v{v}")
    a("s_nop 1")
    a(f"v_permlane32_swap_b32 v{v}, v{t}")
    a("s_nop 1")
    a(f"{op} v{v}, v{v}, v{t}")


def xq_reduce_multi(a, op, vs, ts):
    for sw in ("v_permlane16_swap_b32", "v_permlane32_swap_b32"):
        for v, t in zip(vs, ts):
            a(f"v_mov_b32 v{t}, v{v}")
        a("s_nop 1")
        for v, t in zip(vs, ts):
            a(f"{sw} v{v}, v{t}")
        a("s_nop 1")
        for v, t in zip(vs, ts):
            a(f"{op} v{v}, v{v}, v{t}")


def stats_finalize(a, vsum, vsq, t0):
    a(f"v_mul_f32 v{vsum}, 0x3b000000, v{vsum}")
    a(f"v_mul_f32 v{vsq}, 0x3b000000, v{vsq}")
    a(f"v_fma_f32 v{vsq}, -v{vsum}, v{vsum}, v{vsq}")
    a(f"v_max_f32 v{vsq}, 0, v{vsq}")
    a(f"v_cvt_pk_bf16_f32 v{t0}, v{vsum}, v{vsq}")
    a(f"v_lshlrev_b32 v{vsum}, 16, v{t0}")
    a(f"v_and_b32 v{vsq}, 0xffff0000, v{t0}")
    a(f"v_add_f32 v{vsq}, 0x3727c5ac, v{vsq}")
    bf16_round_inplace(a, vsq)
    a(f"v_sqrt_f32 v{vsq}, v{vsq}")
    a("s_nop 0")
    bf16_round_inplace(a, vsq)
    a(f"v_rcp_f32 v{vsq}, v{vsq}")
    a("s_nop 0")


A_NS = 5
A_XT = 0
A_WR = 81920
A_TB = A_WR + A_NS * 12288
A_ST = A_TB + 8192
A_LDS = A_ST + 1024


def gen_kernel_A(a, label, first):
    kernel_header(a, label)
    L_end = a.label("endA")
    SX, SW, SWS, SK, SV, SSK = 4, 8, 12, 16, 20, 24
    s_wave, s_rb, s_g, s_p, s_b, s_j = 28, 29, 30, 31, 32, 33
    s_xbase, s_wsrc, s_wbase, s_e64, s_slot_r, s_slot_w, s_cnt = 34, 35, 36, 37, 38, 39, 40
    s_t = 42
    s_ecur = 60
    s_wm0 = 61
    s_stile = 62
    a("s_cmp_ge_u32 s2, 256")
    a(f"s_cbranch_scc1 {L_end}")
    stamp_begin(a)
    a("s_load_dwordx4 s[64:67], s[0:1], 0")
    a("s_load_dwordx4 s[68:71], s[0:1], 32")
    a("s_load_dwordx2 s[72:73], s[0:1], 48")
    a("s_load_dwordx2 s[74:75], s[0:1], 88")
    a("v_and_b32 v1, 63, v0")
    a("v_lshrrev_b32 v2, 6, v0")
    a("s_nop 0")
    a(f"v_readfirstlane_b32 s{s_wave}, v2")
    wg_decode(a, 2, s_rb, s_g, s_j, s_t)
    a(f"s_lshr_b32 s{s_p}, s{s_rb}, 4")
    a(f"s_and_b32 s{s_b}, s{s_rb}, 15")
    V_LAM, V_Q = 3, 4
    a(f"v_and_b32 v{V_LAM}, 15, v1")
    a(f"v_lshrrev_b32 v{V_Q}, 4, v1")
    for i in range(4):
        a(f"s_add_u32 s{s_t}, s{s_wave}, {4*i}")
        a(f"v_xor_b32 v{5+i}, s{s_t}, v1")
        a(f"v_lshlrev_b32 v{5+i}, 4, v{5+i}")
    a("v_lshrrev_b32 v10, 3, v1")
    a(f"s_lshl_b32 s{s_t}, s{s_wave}, 3")
    a(f"v_add_u32 v10, s{s_t}, v10")
    a("v_lshrrev_b32 v11, 3, v10")
    a("v_and_b32 v11, 1, v11")
    a("v_lshlrev_b32 v11, 1, v11")
    a("v_bfe_u32 v12, v10, 1, 1")
    a("v_or_b32 v11, v11, v12")
    a("v_bfe_u32 v12, v1, 1, 2")
    a("v_xor_b32 v11, v11, v12")
    a("v_lshlrev_b32 v11, 5, v11")
    a("v_and_b32 v12, 1, v1")
    a("v_lshl_add_u32 v11, v12, 4, v11")
    a(f"s_movk_i32 s{s_t}, 3072")
    a(f"v_mul_lo_u32 v9, v10, s{s_t}")
    a("v_add_u32 v9, v9, v11")
    a("v_bfe_u32 v11, v1, 2, 2")
    a(f"v_and_b32 v12, 1, v{V_Q}")
    a("v_lshlrev_b32 v12, 1, v12")
    a("v_lshrrev_b32 v13, 1, v11")
    a("v_or_b32 v12, v12, v13")
    a(f"v_xor_b32 v12, s{s_wave}, v12")
    a("v_lshlrev_b32 v12, 5, v12")
    a("v_lshl_add_u32 v12, v11, 7, v12")
    a("v_and_b32 v13, 3, v1")
    a("v_lshl_add_u32 v12, v13, 3, v12")
    a(f"v_mul_u32_u24 v13, 3072, v{V_Q}")
    a("v_add_u32 v12, v12, v13")
    a(f"v_add_u32 v10, {A_WR}, v12")
    V_BB = 10
    a(f"v_xor_b32 v11, v{V_LAM}, v{V_Q}")
    a("v_lshlrev_b32 v11, 4, v11")
    a(f"v_lshl_add_u32 v11, v{V_LAM}, 10, v11")
    V_AB = 11
    V_A0, V_A4, V_AS, V_BR = 12, 13, 14, 15
    a("s_waitcnt lgkmcnt(0)")
    if first:
        srd(a, SX, 64, 65, 2 * MB)
    else:
        srd(a, SX, 74, 75, 2 * MB, X2_OFF)
    srd(a, SW, 66, 67, 512 * 1536 * 2)
    srd(a, SWS, 74, 75, WS_SIZE)
    if first:
        srd(a, SK, 68, 69, 2 * MB)
        srd(a, SV, 70, 71, 2 * MB)
        srd(a, SSK, 72, 73, 4096)
    a(f"s_lshl_b32 s{s_xbase}, s{s_b}, 17")
    a(f"s_lshl_b32 s{s_t}, s{s_p}, 10")
    a(f"s_add_u32 s{s_xbase}, s{s_xbase}, s{s_t}")
    a(f"s_sub_u32 s{s_xbase}, s{s_xbase}, 32768")
    a(f"s_lshl_b32 s{s_t}, s{s_wave}, 11")
    a(f"s_add_u32 s{s_xbase}, s{s_xbase}, s{s_t}")
    a(f"s_lshl_b32 s{s_wbase}, s{s_g}, 7")
    a(f"s_lshr_b32 s{s_ecur}, s{s_j}, 2")
    a(f"s_lshl_b32 s{s_ecur}, s{s_ecur}, 1")
    a(f"s_mov_b32 s{s_wsrc}, s{s_ecur}")
    a(f"s_mul_i32 s{s_wm0}, s{s_wave}, 3072")
    a(f"s_add_u32 s{s_wm0}, s{s_wm0}, {A_WR}")
    a(f"s_add_u32 s{s_stile}, s{s_wave}, 1")
    a(f"s_lshl_b32 s{s_stile}, s{s_stile}, 14")

    TK, TV, TS = 168, 188, 196
    if first:
        a(f"s_lshr_b32 s{s_t}, s2, 3")
        a(f"s_lshl_b32 s{s_t}, s{s_t}, 16")
        a(f"s_and_b32 s{s_t+1}, s2, 7")
        a(f"s_lshl_b32 s{s_t+2}, s{s_t+1}, 7")
        a(f"s_add_u32 s{s_t}, s{s_t}, s{s_t+2}")
        a("v_and_b32 v16, 7, v0")
        a("v_lshrrev_b32 v17, 3, v0")
        a("v_lshlrev_b32 v18, 11, v17")
        a("v_lshl_add_u32 v18, v16, 4, v18")
        a(f"v_add_u32 v18, s{s_t}, v18")
        a("v_add_u32 v19, 0xfffff400, v18")
        a("v_add_u32 v20, 0xfffff800, v18")
        a("v_add_u32 v21, 0xfffffc00, v18")
        a(f"buffer_load_dwordx4 {vr(TK,4)}, v19, {sr(SK,4)}, 0 offen")
        a(f"buffer_load_dwordx4 {vr(TK+4,4)}, v20, {sr(SK,4)}, 0 offen")
        a(f"buffer_load_dwordx4 {vr(TK+8,4)}, v21, {sr(SK,4)}, 0 offen")
        a(f"buffer_load_dwordx4 {vr(TK+12,4)}, v18, {sr(SK,4)}, 0 offen")
        a(f"buffer_load_dwordx4 {vr(TK+16,4)}, v18, {sr(SK,4)}, 0 offen offset:1024")
        a(f"buffer_load_dwordx4 {vr(TV,4)}, v18, {sr(SV,4)}, 0 offen")
        a(f"buffer_load_dwordx4 {vr(TV+4,4)}, v18, {sr(SV,4)}, 0 offen offset:1024")
        a(f"s_lshl_b32 s{s_t+2}, s{s_t+1}, 9")
        a("v_lshlrev_b32 v19, 6, v16")
        for d in range(4):
            a(f"buffer_load_dwordx4 {vr(TS+4*d,4)}, v19, {sr(SSK,4)}, s{s_t+2} offen offset:{16*d}")

    def xdma(n_expr_sgpr, i, n_static=None, gam=None):
        pass

    dmas = []
    for n in (2, 3):
        dmas.append([f"s_add_u32 s{s_t+4}, s{s_xbase}, {n*8192}",
                     f"s_lshl_b32 s{s_t+5}, s{s_wave}, 10",
                     f"s_add_u32 m0, s{s_t+5}, {n*4096}",
                     "s_nop 0",
                     f"buffer_load_dwordx4 v{5+(n&3)}, {sr(SX,4)}, s{s_t+4} offen lds"])
    for gp in range(4):
        for i in range(4):
            l = []
            if i == 0:
                l += [f"s_add_u32 s{s_t+6}, s{s_j}, {gp}",
                      f"s_and_b32 s{s_t+6}, s{s_t+6}, 3",
                      f"s_add_u32 s{s_t+6}, s{s_t+6}, 1",
                      f"s_lshl_b32 s{s_t+7}, s{s_t+6}, 15",
                      f"s_add_u32 s{s_t+7}, s{s_t+7}, s{s_xbase}",
                      f"s_lshl_b32 s{s_t+6}, s{s_t+6}, 14",
                      f"s_lshl_b32 s{s_t+5}, s{s_wave}, 10",
                      f"s_add_u32 s{s_t+6}, s{s_t+6}, s{s_t+5}"]
            l += [f"s_add_u32 s{s_t+4}, s{s_t+7}, {i*8192}",
                  f"s_add_u32 m0, s{s_t+6}, {i*4096}",
                  "s_nop 0",
                  f"buffer_load_dwordx4 v{5+i}, {sr(SX,4)}, s{s_t+4} offen lds"]
            dmas.append(l)

    def wdma_lines(m0_expr_lines):
        l = list(m0_expr_lines)
        l += [f"s_mul_i32 s{s_t+4}, s{s_wsrc}, 98304",
              f"s_add_u32 s{s_t+4}, s{s_t+4}, s{s_wbase}",
              f"s_add_u32 s{s_wsrc}, s{s_wsrc}, 1",
              f"s_and_b32 s{s_wsrc}, s{s_wsrc}, 15"]
        for s in range(3):
            l.append(f"buffer_load_dwordx4 v9, {sr(SW,4)}, s{s_t+4} offen offset:{1024*s} lds")
        return l
    for c in range(A_NS):
        dmas.append(wdma_lines([f"s_add_u32 m0, s{s_wm0}, {c*12288}"]))

    fill = []
    fill.append("v_mov_b32 v24, 0")
    fill.append("v_mov_b32 v25, 0")
    fill.append("v_mov_b32 v26, 0")
    fill.append("v_mov_b32 v27, 0")
    fill.append(f"s_cmp_eq_u32 s{s_wave}, 0")
    fill.append(f"s_cselect_b32 s{s_t+8}, 0x3f803f80, 0")
    fill.append(f"v_mov_b32 v28, s{s_t+8}")
    fill.append(f"v_mov_b32 v29, s{s_t+8}")
    fill.append(f"v_mov_b32 v30, s{s_t+8}")
    fill.append(f"v_mov_b32 v31, s{s_t+8}")
    fill.append(f"s_lshl_b32 s{s_t+8}, s{s_wave}, 11")
    fill.append("v_lshlrev_b32 v23, 4, v1")
    fill.append(f"v_add_u32 v23, s{s_t+8}, v23")
    fill.append("ds_write_b128 v23, v[28:31]")
    fill.append("ds_write_b128 v23, v[24:27] offset:1024")

    if first:
        for l in dmas[0] + dmas[1] + dmas[2] + dmas[3] + dmas[4] + dmas[5]:
            a(l)
        for l in fill:
            a(l)
        a("s_waitcnt vmcnt(6)")
        tc = []
        KF = 212
        SF = 222
        VF = 230
        OF = 234
        UP = 104
        for d in range(4):
            for r in range(5):
                tc.append(f"v_lshlrev_b32 v{KF+2*r}, 16, v{TK+4*r+d}")
                tc.append(f"v_and_b32 v{KF+2*r+1}, 0xffff0000, v{TK+4*r+d}")
            for j in range(4):
                for cc in range(2):
                    src = TS + 4 * d + 2 * cc + (j >> 1)
                    if j & 1:
                        tc.append(f"v_and_b32 v{SF+2*j+cc}, 0xffff0000, v{src}")
                    else:
                        tc.append(f"v_lshlrev_b32 v{SF+2*j+cc}, 16, v{src}")
            for tt in range(2):
                tc.append(f"v_lshlrev_b32 v{VF+2*tt}, 16, v{TV+4*tt+d}")
                tc.append(f"v_and_b32 v{VF+2*tt+1}, 0xffff0000, v{TV+4*tt+d}")
            for tt in range(2):
                o = OF + 2 * tt
                tc.append(f"v_pk_mul_f32 {vr(o,2)}, {vr(KF+2*(tt+0),2)}, {vr(SF+6,2)}")
                for j in (2, 1, 0):
                    tc.append(f"v_pk_fma_f32 {vr(o,2)}, {vr(KF+2*(3+tt-j),2)}, {vr(SF+2*j,2)}, {vr(o,2)}")
                tc.append(f"v_pk_mul_f32 {vr(o,2)}, {vr(o,2)}, {vr(VF+2*tt,2)}")
            tc.append(f"v_cvt_pk_bf16_f32 v{UP+2*d}, v{OF+2}, v{OF}")
            tc.append(f"v_cvt_pk_bf16_f32 v{UP+2*d+1}, v{OF+3}, v{OF+1}")
        side = ["\n".join(x) for x in dmas[6:]]
        for l in interleave(tc, side, 7):
            a(l)
        a("v_sub_u32 v19, 31, v17")
        a("v_lshrrev_b32 v20, 2, v19")
        a("v_xor_b32 v20, v20, v16")
        a("v_lshlrev_b32 v20, 4, v20")
        a("v_and_b32 v19, 3, v19")
        a("v_lshl_add_u32 v20, v19, 2, v20")
        a("v_lshl_add_u32 v20, v16, 10, v20")
        a(f"v_add_u32 v20, {A_TB}, v20")
        for i in range(8):
            a(f"ds_write_b32 v20, v{UP+i} offset:{128*i}")
        a("s_waitcnt lgkmcnt(0)")
        a("s_barrier")
        a("v_lshrrev_b32 v19, 3, v0")
        a("v_lshrrev_b32 v20, 3, v19")
        a("v_xor_b32 v20, v20, v16")
        a("v_lshlrev_b32 v20, 4, v20")
        a("v_lshl_add_u32 v20, v19, 7, v20")
        a(f"v_add_u32 v20, {A_TB}, v20")
        a("v_xor_b32 v21, 64, v20")
        a(f"ds_read_b128 {vr(UP,4)}, v20")
        a(f"ds_read_b128 {vr(UP+4,4)}, v21 offset:4096")
        a(f"s_and_b32 s{s_t}, s2, 7")
        a(f"s_lshl_b32 s{s_t}, s{s_t}, 18")
        a(f"s_lshr_b32 s{s_t+1}, s2, 3")
        a(f"s_lshl_b32 s{s_t+1}, s{s_t+1}, 7")
        a(f"s_sub_u32 s{s_t}, s{s_t}, s{s_t+1}")
        a(f"s_add_u32 s{s_t}, s{s_t}, {U_OFF + 3968}")
        a(f"s_add_u32 s{s_t+1}, s{s_t}, {32*4096}")
        a("v_lshlrev_b32 v19, 12, v19")
        a("v_lshl_add_u32 v19, v16, 4, v19")
        a("s_waitcnt lgkmcnt(0)")
        a(f"buffer_store_dwordx4 {vr(UP,4)}, v19, {sr(SWS,4)}, s{s_t} offen")
        a(f"buffer_store_dwordx4 {vr(UP+4,4)}, v19, {sr(SWS,4)}, s{s_t+1} offen")
        a("v_mov_b32 v24, -1")
        a("v_mov_b32 v25, -1")
        a("v_mov_b32 v26, -1")
        a("v_mov_b32 v27, -1")
        a(f"s_lshl_b32 s{s_t}, s2, 10")
        a(f"s_add_u32 s{s_t}, s{s_t}, {ST_OFF}")
        a("v_lshlrev_b32 v19, 2, v0")
        a(f"buffer_store_dword v24, v19, {sr(SWS,4)}, s{s_t} offen")
        a(f"s_lshl_b32 s{s_t}, s2, 13")
        a(f"s_add_u32 s{s_t}, s{s_t}, {Y_OFF}")
        a(f"s_add_u32 s{s_t+1}, s{s_t}, 4096")
        a("v_lshlrev_b32 v19, 4, v0")
        a(f"buffer_store_dwordx4 v[24:27], v19, {sr(SWS,4)}, s{s_t} offen")
        a(f"buffer_store_dwordx4 v[24:27], v19, {sr(SWS,4)}, s{s_t+1} offen")
        nstores = 5
    else:
        for d in dmas[:4]:
            for l in d:
                a(l)
        for l in fill:
            a(l)
        for d in dmas[4:]:
            for l in d:
                a(l)
        nstores = 0

    XS = [32, 56]
    WS_ = [80, 92]
    ACC = 104
    S0, Q0, S1, Q1 = 164, 165, 166, 167
    V_ONE = 22
    for r in range(ACC, ACC + 64):
        a(f"v_mov_b32 v{r}, 0")
    a(f"v_mov_b32 v{V_ONE}, 0x3f803f80")

    def frag_reads(P):
        l = []
        l.append(f"s_lshl_b32 s{s_e64}, s{s_ecur}, 6")
        l.append(f"v_xor_b32 v{V_A0}, s{s_e64}, v{V_AB}")
        l.append(f"v_add_u32 v{V_BR}, s{s_slot_r}, v{V_BB}")
        l.append(f"v_add_u32 v{V_A4}, 0x10000, v{V_A0}")
        l.append(f"v_add_u32 v{V_AS}, s{s_stile}, v{V_A0}")
        for s in range(3):
            for ss in range(2):
                l.append(f"ds_read_b64_tr_b16 {vr(WS_[P]+4*s+2*ss,2)}, v{V_BR} offset:{1024*s+512*ss}")
        for t in range(4):
            l.append(f"ds_read_b128 {vr(XS[P]+4*t,4)}, v{V_A0} offset:{16384*t}")
        l.append(f"ds_read_b128 {vr(XS[P]+16,4)}, v{V_A4}")
        l.append(f"ds_read_b128 {vr(XS[P]+20,4)}, v{V_AS}")
        l.append(f"s_add_u32 s{s_ecur}, s{s_ecur}, 1")
        l.append(f"s_and_b32 s{s_ecur}, s{s_ecur}, 15")
        l.append(f"s_mov_b32 s{s_slot_w}, s{s_slot_r}")
        l.append(f"s_add_u32 s{s_slot_r}, s{s_slot_r}, 12288")
        l.append(f"s_cmp_eq_u32 s{s_slot_r}, {A_NS*12288}")
        l.append(f"s_cselect_b32 s{s_slot_r}, 0, s{s_slot_r}")
        return l

    a(f"s_mov_b32 s{s_slot_r}, 0")
    a(f"s_mov_b32 s{s_cnt}, {A_NS}")
    stamp_mid(a, 1)
    a(f"s_waitcnt vmcnt({3*(A_NS-1)+nstores}) lgkmcnt(0)")
    a("s_barrier")
    stamp_mid(a, 2)
    for l in frag_reads(0):
        a(l)
    L_loop = a.label("loopA")
    a(f"{L_loop}:")
    for P in range(2):
        a("s_waitcnt lgkmcnt(0)")
        a(f"s_waitcnt vmcnt({3*(A_NS-2)})")
        a("s_barrier")
        side = []
        side.append(f"s_add_u32 m0, s{s_wm0}, s{s_slot_w}")
        side.append(f"s_mul_i32 s{s_t+4}, s{s_wsrc}, 98304")
        side.append(f"s_add_u32 s{s_t+4}, s{s_t+4}, s{s_wbase}")
        side.append(f"s_cmp_ge_u32 s{s_cnt}, 16")
        side.append(f"s_cselect_b32 s{s_t+4}, 0x7ff00000, s{s_t+4}")
        side.append(f"s_add_u32 s{s_cnt}, s{s_cnt}, 1")
        side.append(f"s_add_u32 s{s_wsrc}, s{s_wsrc}, 1")
        side.append(f"s_and_b32 s{s_wsrc}, s{s_wsrc}, 15")
        for s in range(3):
            side.append(f"buffer_load_dwordx4 v9, {sr(SW,4)}, s{s_t+4} offen offset:{1024*s} lds")
        side += frag_reads(1 - P)
        dots = []
        for i in range(4):
            dots.append(f"v_dot2_f32_bf16 v{S0}, v{XS[P]+i}, v{V_ONE}, v{S0}")
            dots.append(f"v_dot2_f32_bf16 v{Q0}, v{XS[P]+i}, v{XS[P]+i}, v{Q0}")
            dots.append(f"v_dot2_f32_bf16 v{S1}, v{XS[P]+20+i}, v{V_ONE}, v{S1}")
            dots.append(f"v_dot2_f32_bf16 v{Q1}, v{XS[P]+20+i}, v{XS[P]+20+i}, v{Q1}")
        mf = []
        for t in range(5):
            x = vr(XS[P] + 4 * t, 4)
            mf.append(f"v_mfma_f32_16x16x32_bf16 {vr(ACC+4*t,4)}, {vr(WS_[P],4)}, {x}, {vr(ACC+4*t,4)}")
            mf.append(f"v_mfma_f32_16x16x32_bf16 {vr(ACC+20+4*t,4)}, {vr(WS_[P]+4,4)}, {x}, {vr(ACC+20+4*t,4)}")
            mf.append(f"v_mfma_f32_16x16x32_bf16 {vr(ACC+40+4*t,4)}, {x}, {vr(WS_[P]+8,4)}, {vr(ACC+40+4*t,4)}")
        other = side + dots
        k = 0
        n = len(other)
        for i, m in enumerate(mf):
            a(m)
            upto = (i + 1) * n // len(mf)
            while k < upto:
                a(other[k])
                k += 1
    a(f"s_cmp_lt_u32 s{s_cnt}, {16+A_NS}")
    a(f"s_cbranch_scc1 {L_loop}")

    stamp_mid(a, 3)
    a("s_waitcnt lgkmcnt(0)")
    T = 32
    xq_reduce_multi(a, "v_add_f32", [S0, Q0, S1, Q1], [T, T + 1, T + 2, T + 3])
    stats_finalize(a, S0, Q0, T)
    stats_finalize(a, S1, Q1, T)
    a(f"v_lshlrev_b32 v{T}, 3, v{V_LAM}")
    a(f"s_lshr_b32 s{s_t}, s{s_stile}, 7")
    a(f"s_add_u32 s{s_t}, s{s_t}, {A_ST}")
    a(f"v_add_u32 v{T+1}, s{s_t}, v{T}")
    a(f"v_add_u32 v{T}, {A_ST}, v{T}")
    a(f"v_mov_b32 v{T+2}, v{S1}")
    a(f"v_mov_b32 v{T+3}, v{Q1}")
    a(f"ds_write_b64 v{T+1}, {vr(T+2,2)}")
    a(f"ds_write_b64 v{T}, {vr(S0,2)}")
    CSQ, CSK, CSV = 48, 52, 56
    for r in range(4):
        a(f"v_mov_b32_dpp v{CSQ+r}, v{ACC+r} row_newbcast:0 row_mask:0xf bank_mask:0xf")
        a(f"v_mov_b32_dpp v{CSK+r}, v{ACC+20+r} row_newbcast:0 row_mask:0xf bank_mask:0xf")
    a(f"v_lshlrev_b32 v{T+4}, 2, v{V_LAM}")
    a(f"ds_bpermute_b32 v{CSV}, v{T+4}, v{ACC+40}")
    a("s_waitcnt lgkmcnt(0)")
    a("s_barrier")
    STA, STB = 58, 168
    for t in range(5):
        a(f"ds_read_b64 {vr(STA+2*t,2)}, v{T} offset:{128*t}")
    a(f"v_lshlrev_b32 v{T+4}, 5, v{V_Q}")
    a(f"v_add_u32 v{T+4}, {A_ST}, v{T+4}")
    for t in range(5):
        a(f"ds_read_b128 {vr(STB+8*t,4)}, v{T+4} offset:{128*t}")
        a(f"ds_read_b128 {vr(STB+8*t+4,4)}, v{T+4} offset:{128*t+16}")
    BC, BP, BP1 = 208, 212, 216
    MC, MP = 220, 222
    ONES = 224
    a(f"v_lshlrev_b32 v{T+5}, 2, v{V_Q}")
    a(f"v_mov_b32 v{T+7}, {NEG}")
    a(f"s_cmp_eq_u32 s{s_b}, 0")
    a(f"s_cselect_b32 s{s_t+2}, -1, 0")
    a(f"s_mov_b32 s{s_t+3}, s{s_t+2}")
    for r in range(4):
        a(f"v_add_u32 v{T+6}, {r}, v{T+5}")
        a(f"v_sub_u32 v{T+6}, v{V_LAM}, v{T+6}")
        a(f"v_cmp_gt_u32 vcc, 8, v{T+6}")
        a("s_nop 1")
        a(f"v_cndmask_b32 v{BC+r}, v{T+7}, 0, vcc")
        a(f"v_cndmask_b32 v{T+8+r}, 0, -1, vcc")
        a(f"v_add_u32 v{T+6}, 16, v{T+6}")
        a(f"v_cmp_gt_u32 vcc, 8, v{T+6}")
        a("s_nop 1")
        a(f"v_cndmask_b32 v{BP+r}, v{T+7}, 0, vcc")
        a(f"v_cndmask_b32 v{T+12+r}, 0, -1, vcc")
        a(f"v_cndmask_b32 v{BP1+r}, v{BP+r}, v{T+7}, {sr(s_t+2,2)}")
    a(f"s_mov_b32 s{s_t+4}, 0xffff")
    for h in range(2):
        a(f"v_bfi_b32 v{MC+h}, s{s_t+4}, v{T+8+2*h}, v{T+9+2*h}")
        a(f"v_bfi_b32 v{MP+h}, s{s_t+4}, v{T+12+2*h}, v{T+13+2*h}")
    for r in range(4):
        a(f"v_mov_b32 v{ONES+r}, 0x3f803f80")
    a("s_waitcnt lgkmcnt(0)")
    QP, KP, VP = 68, 78, 88
    for t in range(5):
        mean, rstd = STA + 2 * t, STA + 2 * t + 1
        for (acc, cs, dst, on) in ((ACC + 4 * t, CSQ, QP + 2 * t, t > 0), (ACC + 20 + 4 * t, CSK, KP + 2 * t, True)):
            if not on:
                continue
            for r in range(4):
                a(f"v_fma_f32 v{acc+r}, -v{mean}, v{cs+r}, v{acc+r}")
            for r in range(4):
                a(f"v_mul_f32 v{acc+r}, v{rstd}, v{acc+r}")
            a(f"v_cvt_pk_bf16_f32 v{dst}, v{acc}, v{acc+1}")
            a(f"v_cvt_pk_bf16_f32 v{dst+1}, v{acc+2}, v{acc+3}")
        acc = ACC + 40 + 4 * t
        for r in range(4):
            a(f"v_fma_f32 v{acc+r}, -v{STB+8*t+2*r}, v{CSV}, v{acc+r}")
        for r in range(4):
            a(f"v_mul_f32 v{acc+r}, v{STB+8*t+2*r+1}, v{acc+r}")
        a(f"v_cvt_pk_bf16_f32 v{VP+2*t}, v{acc}, v{acc+1}")
        a(f"v_cvt_pk_bf16_f32 v{VP+2*t+1}, v{acc+2}, v{acc+3}")
    a("s_nop 1")
    stamp_mid(a, 4)
    SC, SP = 104, 120
    for i in range(1, 5):
        a(f"v_mfma_f32_16x16x16_bf16 {vr(SC+4*(i-1),4)}, {vr(KP+2*i,2)}, {vr(QP+2*i,2)}, {vr(BC,4)}")
        bp = BP1 if i == 1 else BP
        a(f"v_mfma_f32_16x16x16_bf16 {vr(SP+4*(i-1),4)}, {vr(KP+2*(i-1),2)}, {vr(QP+2*i,2)}, {vr(bp,4)}")
    a("s_nop 7")
    MX, MT = 136, 140
    for i in range(4):
        for r in range(4):
            a(f"v_max_f32 v{SC+4*i+r}, v{SC+4*i+r}, v{SP+4*i+r}")
        a(f"v_max3_f32 v{MX+i}, v{SC+4*i}, v{SC+4*i+1}, v{SC+4*i+2}")
        a(f"v_max_f32 v{MX+i}, v{MX+i}, v{SC+4*i+3}")
    xq_reduce_multi(a, "v_max_f32", [MX + i for i in range(4)], [MT + i for i in range(4)])
    CEXP = 0x3eb8aa3b
    a(f"s_mov_b32 s{s_t}, {CEXP}")
    for i in range(4):
        a(f"v_mul_f32 v{MX+i}, s{s_t}, v{MX+i}")
    for i in range(4):
        for r in range(4):
            a(f"v_fma_f32 v{SC+4*i+r}, v{SC+4*i+r}, s{s_t}, -v{MX+i}")
    for i in range(4):
        for r in range(4):
            a(f"v_exp_f32 v{SC+4*i+r}, v{SC+4*i+r}")
    a("s_nop 0")
    PP = 144
    for i in range(4):
        a(f"v_cvt_pk_bf16_f32 v{SP+4*i}, v{SC+4*i}, v{SC+4*i+1}")
        a(f"v_cvt_pk_bf16_f32 v{SP+4*i+1}, v{SC+4*i+2}, v{SC+4*i+3}")
        a(f"v_and_b32 v{PP+4*i}, v{MP}, v{SP+4*i}")
        a(f"v_and_b32 v{PP+4*i+1}, v{MP+1}, v{SP+4*i+1}")
        a(f"v_and_b32 v{PP+4*i+2}, v{MC}, v{SP+4*i}")
        a(f"v_and_b32 v{PP+4*i+3}, v{MC+1}, v{SP+4*i+1}")
    a("s_nop 1")
    OO, LL = 168, 184
    for i in range(4):
        a(f"v_mfma_f32_16x16x32_bf16 {vr(OO+4*i,4)}, {vr(VP+2*i,4)}, {vr(PP+4*i,4)}, 0")
        a(f"v_mfma_f32_16x16x32_bf16 {vr(LL+4*i,4)}, {vr(ONES,4)}, {vr(PP+4*i,4)}, 0")
    a(f"s_lshl_b32 s{s_t}, s{s_g}, 2")
    a(f"s_add_u32 s{s_t}, s{s_t}, s{s_wave}")
    a(f"s_lshr_b32 s{s_t+1}, s{s_t}, 1")
    a(f"s_lshl_b32 s{s_t+1}, s{s_t+1}, 10")
    a(f"s_and_b32 s{s_t}, s{s_t}, 1")
    a(f"s_lshl_b32 s{s_t}, s{s_t}, 9")
    a(f"s_add_u32 s{s_t}, s{s_t}, s{s_t+1}")
    a(f"s_lshl_b32 s{s_t+1}, s{s_rb}, 16")
    a(f"s_add_u32 s{s_t}, s{s_t}, s{s_t+1}")
    if O_OFF:
        a(f"s_add_u32 s{s_t}, s{s_t}, {O_OFF}")
    a(f"v_lshrrev_b32 v{T}, 1, v{V_Q}")
    a(f"v_lshlrev_b32 v{T}, 8, v{T}")
    a(f"v_lshl_add_u32 v{T}, v{V_LAM}, 4, v{T}")
    a(f"v_and_b32 v{T+1}, 1, v{V_Q}")
    a(f"v_lshl_add_u32 v{T}, v{T+1}, 3, v{T}")
    a("s_nop 2")
    for i in range(4):
        a(f"v_rcp_f32 v{LL+4*i}, v{LL+4*i}")
    a("s_nop 0")
    for i in range(4):
        for r in range(4):
            a(f"v_mul_f32 v{OO+4*i+r}, v{LL+4*i}, v{OO+4*i+r}")
        a(f"v_cvt_pk_bf16_f32 v{OO+4*i}, v{OO+4*i}, v{OO+4*i+1}")
        a(f"v_cvt_pk_bf16_f32 v{OO+4*i+1}, v{OO+4*i+2}, v{OO+4*i+3}")
        a(f"s_add_u32 s{s_t+1}, s{s_t}, {i*16384}")
        a(f"buffer_store_dwordx2 {vr(OO+4*i,2)}, v{T}, {sr(SWS,4)}, s{s_t+1} offen")
    stamp_end(a, 0 if first else 2)
    a(f"{L_end}:")
    a("s_endpgm")
    return 240


def main(out_path, which="all"):
    from gen_b import gen_kernel_B, B_LDS
    a = Asm()
    hdr = []
    launches = [("ka1", 256, A_LDS), ("kb1", 512, B_LDS), ("ka2", 256, A_LDS), ("kb2", 256, B_LDS)]
    if which != "all":
        launches = launches[:int(which)]
    for n, g, lds in launches:
        hdr.append(f"; @launch kernel={n}_kernel grid=({g},1,1) block=(256,1,1) lds={lds}")
    a('.amdgcn_target "amdgcn-amd-amdhsa--gfx950"')
    a(".text")
    descs = []
    nv = gen_kernel_A(a, "ka1_kernel", True)
    descs.append(kernel_desc("ka1_kernel", nv))
    nv = gen_kernel_B(a, "kb1_kernel", True)
    descs.append(kernel_desc("kb1_kernel", nv))
    nv = gen_kernel_A(a, "ka2_kernel", False)
    descs.append(kernel_desc("ka2_kernel", nv))
    nv = gen_kernel_B(a, "kb2_kernel", False)
    descs.append(kernel_desc("kb2_kernel", nv))
    txt = "\n".join(hdr) + "\n" + a.text() + '.section .rodata,"a"\n' + "".join(descs)
    open(out_path, "w").write(txt)


if __name__ == "__main__":
    main(sys.argv[1], sys.argv[2] if len(sys.argv) > 2 else "all")
```

```python
from gen import *
import gen

SPIN_MAX = 50000
B_WO = 0
B_YT = 65536
B_LDS = 73728
C_U = 0
C_K = 4608
C_KS = 4160
C_CH = 4608 + 4 * 4160
C_RED = 2 * C_CH
C_TR = C_RED + 16384


def gen_conv(a, L_end):
    SKK, SWS = 4, 8
    s_wave, s_ch, s_half, s_c, s_t = 28, 29, 30, 31, 32
    a("s_load_dwordx4 s[64:67], s[0:1], 56")
    a("s_load_dwordx2 s[68:69], s[0:1], 88")
    a("v_and_b32 v1, 63, v0")
    a("v_lshrrev_b32 v2, 6, v0")
    a("s_nop 0")
    a(f"v_readfirstlane_b32 s{s_wave}, v2")
    a(f"v_and_b32 v3, 15, v1")
    a(f"v_lshrrev_b32 v4, 4, v1")
    a(f"s_lshr_b32 s{s_ch}, s{s_wave}, 1")
    a(f"s_and_b32 s{s_half}, s{s_wave}, 1")
    a(f"s_lshl_b32 s{s_c}, s2, 1")
    a(f"s_add_u32 s{s_c}, s{s_c}, s{s_ch}")
    a(f"s_mul_i32 s{s_t+1}, s{s_ch}, {C_CH}")
    a("v_lshlrev_b32 v5, 4, v1")
    a("s_waitcnt lgkmcnt(0)")
    a(f"s_lshl_b32 s{s_t}, s2, 2")
    a(f"s_load_dword s70, s[66:67], s{s_t}")
    srd(a, SKK, 64, 65, 2 * MB)
    srd(a, SWS, 68, 69, WS_SIZE)
    a(f"s_lshl_b32 s{s_t+2}, s{s_c}, 12")
    a(f"s_lshl_b32 s{s_t+3}, s{s_half}, 11")
    a(f"s_add_u32 s{s_t+4}, s{s_t+2}, s{s_t+3}")
    a(f"s_add_u32 s{s_t+4}, s{s_t+4}, {U_OFF}")
    a(f"s_add_u32 m0, s{s_t+1}, s{s_t+3}")
    a("s_nop 0")
    a(f"buffer_load_dwordx4 v5, {sr(SWS,4)}, s{s_t+4} offen lds")
    a(f"buffer_load_dwordx4 v5, {sr(SWS,4)}, s{s_t+4} offen offset:1024 lds")
    for i in range(2):
        a(f"s_lshl_b32 s{s_t+3}, s{s_half}, 1")
        a(f"s_add_u32 s{s_t+3}, s{s_t+3}, {i}")
        a(f"s_mul_i32 s{s_t+5}, s{s_t+3}, {C_KS}")
        a(f"s_add_u32 s{s_t+5}, s{s_t+5}, s{s_t+1}")
        a(f"s_add_u32 m0, s{s_t+5}, {C_K+32}")
        a(f"s_lshl_b32 s{s_t+3}, s{s_t+3}, 1")
        a(f"s_add_u32 s{s_t+4}, s{s_t+2}, s{s_t+3}")
        for n in range(4):
            a(f"buffer_load_dwordx4 v5, {sr(SKK,4)}, s{s_t+4} offen offset:{1024*n} lds")
    a("v_add_u32 v6, v3, v4")
    a("v_subrev_u32 v6, 16, v6")
    a("v_max_i32 v7, 0, v6")
    a("v_lshlrev_b32 v7, 1, v7")
    a(f"buffer_load_ushort v8, v7, {sr(SKK,4)}, s{s_t+2} offen")
    a("v_mov_b32 v10, 0")
    a("v_mov_b32 v11, 0")
    a("v_lshlrev_b32 v9, 3, v1")
    a(f"v_add_u32 v9, s{s_t+1}, v9")
    a(f"ds_write_b64 v9, v[10:11] offset:{C_U+4096}")
    a("v_add_u32 v12, 1, v3")
    a("v_and_b32 v13, 3, v12")
    a(f"v_mul_u32_u24 v13, {C_KS}, v13")
    a("v_and_b32 v12, 0x1c, v12")
    a("v_lshl_add_u32 v13, v12, 1, v13")
    a("v_lshl_add_u32 v13, v4, 4, v13")
    a(f"s_lshl_b32 s{s_t+3}, s{s_half}, 8")
    a(f"s_add_u32 s{s_t+3}, s{s_t+3}, s{s_t+1}")
    a(f"s_add_u32 s{s_t+5}, s{s_t+3}, {C_K}")
    a(f"v_add_u32 v12, s{s_t+5}, v13")
    a("v_lshlrev_b32 v13, 5, v3")
    a("v_sub_u32 v13, 480, v13")
    a("v_lshl_add_u32 v13, v4, 4, v13")
    a(f"v_add_u32 v13, s{s_t+3}, v13")
    a(f"v_mul_u32_u24 v14, {C_KS}, v4")
    a("v_lshl_add_u32 v14, v3, 1, v14")
    a(f"s_add_u32 s{s_t+5}, s{s_t+1}, {C_K}")
    a(f"v_add_u32 v14, s{s_t+5}, v14")
    ACC = 16
    SETS = [48, 112]
    for r in range(ACC, ACC + 32):
        a(f"v_mov_b32 v{r}, 0")
    a("v_cmp_gt_i32 vcc, 0, v6")
    a("s_waitcnt vmcnt(0)")
    a("v_cndmask_b32 v8, v8, 0, vcc")
    a("ds_write_b16 v14, v8")
    a("s_waitcnt lgkmcnt(0)")
    a("s_barrier")
    gen.stamp_mid(a, 1)

    def reads(P, rp):
        l = []
        for j in range(8):
            l.append(f"ds_read_b128 {vr(SETS[P]+32+4*j,4)}, v13 offset:{64*rp+512*(7-j)}")
            l.append(f"ds_read_b64 {vr(SETS[P]+4*j,2)}, v12 offset:{64*rp+512*j}")
            l.append(f"ds_read_b64 {vr(SETS[P]+4*j+2,2)}, v12 offset:{64*rp+512*j+8}")
        return l
    for l in reads(0, 0):
        a(l)
    for rp in range(4):
        P = rp & 1
        a("s_waitcnt lgkmcnt(0)")
        side = reads(1 - P, rp + 1) if rp < 3 else []
        mf = []
        for j in range(8):
            for i in range(j, 8):
                mf.append(f"v_mfma_f32_16x16x32_bf16 {vr(ACC+4*i,4)}, {vr(SETS[P]+4*j,4)}, {vr(SETS[P]+32+4*(i-j),4)}, {vr(ACC+4*i,4)}")
        for l in interleave(mf, side, 1):
            a(l)
    a("s_nop 7")
    gen.stamp_mid(a, 2)
    a(f"s_lshl_b32 s{s_t+3}, s{s_wave}, 12")
    a(f"s_add_u32 s{s_t+3}, s{s_t+3}, {C_RED}")
    a(f"v_add_u32 v6, s{s_t+3}, v5")
    a(f"s_xor_b32 s{s_t+3}, s{s_wave}, 1")
    a(f"s_lshl_b32 s{s_t+3}, s{s_t+3}, 12")
    a(f"s_add_u32 s{s_t+3}, s{s_t+3}, {C_RED}")
    a(f"v_add_u32 v7, s{s_t+3}, v5")
    KEEP = 48
    L1, L2 = a.label("cvh"), a.label("cvj")
    a(f"s_cmp_eq_u32 s{s_half}, 0")
    a(f"s_cbranch_scc0 {L1}")
    for i in range(4):
        a(f"ds_write_b128 v6, {vr(ACC+16+4*i,4)} offset:{1024*i}")
    for r in range(16):
        a(f"v_mov_b32 v{KEEP+r}, v{ACC+r}")
    a(f"s_branch {L2}")
    a(f"{L1}:")
    for i in range(4):
        a(f"ds_write_b128 v6, {vr(ACC+4*i,4)} offset:{1024*i}")
    for r in range(16):
        a(f"v_mov_b32 v{KEEP+r}, v{ACC+16+r}")
    a(f"{L2}:")
    a("v_lshlrev_b32 v9, 5, v3")
    a("v_lshl_add_u32 v9, v4, 3, v9")
    a(f"s_lshl_b32 s{s_t+3}, s{s_half}, 11")
    a(f"s_sub_u32 s{s_t+3}, s{s_t+1}, s{s_t+3}")
    a(f"s_add_u32 s{s_t+3}, s{s_t+3}, {C_U + 4088 - 1536}")
    a(f"v_sub_u32 v9, s{s_t+3}, v9")
    UU, PR = 64, 80
    for i in range(4):
        a(f"ds_read_b64 {vr(UU+2*i,2)}, v9 offset:{512*(3-i)}")
    a("s_waitcnt lgkmcnt(0)")
    a("s_barrier")
    for i in range(4):
        a(f"ds_read_b128 {vr(PR+4*i,4)}, v7 offset:{1024*i}")
    a(f"s_lshl_b32 s{s_t+3}, s70, 16")
    a(f"s_and_b32 s{s_t+4}, s70, 0xffff0000")
    a(f"s_cmp_eq_u32 s{s_ch}, 0")
    a(f"s_cselect_b32 s{s_t+3}, s{s_t+3}, s{s_t+4}")
    UF = 96
    for i in range(4):
        a(f"v_and_b32 v{UF+4*i}, 0xffff0000, v{UU+2*i+1}")
        a(f"v_lshlrev_b32 v{UF+4*i+1}, 16, v{UU+2*i+1}")
        a(f"v_and_b32 v{UF+4*i+2}, 0xffff0000, v{UU+2*i}")
        a(f"v_lshlrev_b32 v{UF+4*i+3}, 16, v{UU+2*i}")
    for r in range(16):
        a(f"v_fma_f32 v{KEEP+r}, v{UF+r}, s{s_t+3}, v{KEEP+r}")
    a("s_waitcnt lgkmcnt(0)")
    for r in range(16):
        a(f"v_add_f32 v{KEEP+r}, v{KEEP+r}, v{PR+r}")
    a(f"s_lshl_b32 s{s_t+3}, s{s_wave}, 11")
    a(f"s_add_u32 s{s_t+3}, s{s_t+3}, {C_TR}")
    a("v_lshlrev_b32 v9, 4, v3")
    a("v_lshl_add_u32 v9, v4, 2, v9")
    a(f"v_add_u32 v9, s{s_t+3}, v9")
    a(f"v_add_u32 v10, s{s_t+3}, v5")
    for i in range(4):
        for par in range(2):
            a(f"v_cvt_pk_bf16_f32 v{UF+2*i+par}, v{KEEP+4*i+par}, v{KEEP+4*i+2+par}")
            a(f"v_min_u32 v{UF+2*i+par}, 0xfffffffe, v{UF+2*i+par}")
            a(f"ds_write_b32 v9, v{UF+2*i+par} offset:{(2*i+par)*256}")
    a("s_waitcnt lgkmcnt(0)")
    a(f"ds_read_b128 {vr(PR,4)}, v10")
    a(f"ds_read_b128 {vr(PR+4,4)}, v10 offset:1024")
    a("v_lshrrev_b32 v9, 5, v1")
    a("v_lshlrev_b32 v9, 8, v9")
    a("v_and_b32 v11, 1, v4")
    a("v_lshl_add_u32 v9, v11, 11, v9")
    a("v_lshl_add_u32 v9, v3, 4, v9")
    a(f"s_lshl_b32 s{s_t+3}, s{s_half}, 10")
    a(f"s_add_u32 s{s_t+3}, s{s_t+3}, s{s_t+2}")
    a(f"s_add_u32 s{s_t+3}, s{s_t+3}, {Y_OFF}")
    a("s_waitcnt lgkmcnt(0)")
    a(f"buffer_store_dwordx4 {vr(PR,4)}, v9, {sr(SWS,4)}, s{s_t+3} offen sc1")
    a(f"buffer_store_dwordx4 {vr(PR+4,4)}, v9, {sr(SWS,4)}, s{s_t+3} offen offset:512 sc1")
    a(f"s_branch {L_end}")


def gen_kernel_B(a, label, first):
    kernel_header(a, label)
    L_end = a.label("endB")
    L_wo = a.label("wo")
    a(f"s_cmp_ge_u32 s2, {512 if first else 256}")
    a(f"s_cbranch_scc1 {L_end}")
    L_fin = a.label("finB")
    gen.stamp_begin(a)
    if first:
        a("s_cmp_ge_u32 s2, 256")
        a(f"s_cbranch_scc1 {L_wo}")
        gen_conv(a, L_fin)
        a(f"{L_wo}:")
        a("s_sub_u32 s3, s2, 256")
    else:
        a("s_mov_b32 s3, s2")
    SX, SWO, SWS, SOUT = 4, 8, 12, 16
    s_wave, s_rb, s_g, s_p, s_b, s_j, s_t = 28, 29, 30, 31, 32, 33, 34
    a("s_load_dwordx2 s[64:65], s[0:1], 0")
    a("s_load_dwordx2 s[66:67], s[0:1], 16")
    a("s_load_dwordx2 s[68:69], s[0:1], 72")
    a("s_load_dwordx2 s[70:71], s[0:1], 88")
    a("v_and_b32 v1, 63, v0")
    a("v_lshrrev_b32 v2, 6, v0")
    a("s_nop 0")
    a(f"v_readfirstlane_b32 s{s_wave}, v2")
    wg_decode(a, 3, s_rb, s_g, s_j, s_t)
    a(f"s_lshr_b32 s{s_p}, s{s_rb}, 4")
    a(f"s_and_b32 s{s_b}, s{s_rb}, 15")
    a("v_and_b32 v3, 15, v1")
    a("v_lshrrev_b32 v4, 4, v1")
    a("v_lshlrev_b32 v5, 4, v1")
    a("v_lshrrev_b32 v7, 3, v1")
    a("v_bfe_u32 v8, v7, 1, 1")
    a(f"s_and_b32 s{s_t}, s{s_wave}, 1")
    a(f"s_lshl_b32 s{s_t}, s{s_t}, 1")
    a(f"v_or_b32 v8, s{s_t}, v8")
    a("v_bfe_u32 v9, v1, 1, 2")
    a("v_xor_b32 v8, v8, v9")
    a("v_lshlrev_b32 v8, 5, v8")
    a("v_and_b32 v9, 1, v1")
    a("v_lshl_add_u32 v8, v9, 4, v8")
    a("v_lshl_add_u32 v6, v7, 10, v8")
    a("v_bfe_u32 v12, v1, 2, 2")
    a("v_and_b32 v13, 1, v4")
    a("v_lshlrev_b32 v13, 1, v13")
    a("v_lshrrev_b32 v14, 1, v12")
    a("v_or_b32 v13, v13, v14")
    a("v_lshl_add_u32 v12, v4, 3, v12")
    a("v_lshlrev_b32 v12, 7, v12")
    a("v_and_b32 v14, 3, v1")
    a("v_lshl_add_u32 v12, v14, 3, v12")
    for nt in range(4):
        a(f"v_xor_b32 v14, {nt}, v13")
        a(f"v_lshl_add_u32 v{8+nt}, v14, 5, v12")
    a("s_waitcnt lgkmcnt(0)")
    if first:
        srd(a, SX, 64, 65, 2 * MB)
        srd(a, SOUT, 70, 71, 2 * MB, X2_OFF)
    else:
        srd(a, SX, 70, 71, 2 * MB, X2_OFF)
        srd(a, SOUT, 68, 69, 2 * MB)
    srd(a, SWO, 66, 67, 512 * 512 * 2)
    srd(a, SWS, 70, 71, WS_SIZE)
    OF = 32
    a(f"s_lshl_b32 s{s_t}, s{s_rb}, 16")
    a(f"s_lshl_b32 s{s_t+1}, s{s_wave}, 14")
    a(f"s_add_u32 s{s_t}, s{s_t}, s{s_t+1}")
    if O_OFF:
        a(f"s_add_u32 s{s_t}, s{s_t}, {O_OFF}")
    a(f"s_lshl_b32 s{s_t+2}, s{s_g}, 7")
    a(f"s_lshl_b32 s{s_t+1}, s{s_wave}, 13")
    a(f"s_add_u32 s{s_t+2}, s{s_t+2}, s{s_t+1}")
    a(f"s_lshl_b32 s{s_t+3}, s{s_wave}, 10")
    for st in range(4):
        a(f"s_add_u32 s{s_t+4}, s{s_t}, {st*4096}")
        for i in range(4):
            e = 4 * st + i
            a(f"buffer_load_dwordx4 {vr(OF+4*e,4)}, v5, {sr(SWS,4)}, s{s_t+4} offen offset:{1024*i}")
        for i in range(4):
            n = 4 * st + i
            a(f"s_add_u32 m0, s{s_t+3}, {B_WO + n*4096}")
            a(f"s_add_u32 s{s_t+4}, s{s_t+2}, {n*32768}")
            a(f"buffer_load_dwordx4 v6, {sr(SWO,4)}, s{s_t+4} offen lds")
    XR = 96
    a(f"s_lshl_b32 s{s_t+5}, s{s_b}, 17")
    a(f"s_lshl_b32 s{s_t+1}, s{s_wave}, 15")
    a(f"s_add_u32 s{s_t+5}, s{s_t+5}, s{s_t+1}")
    a(f"s_lshl_b32 s{s_t+1}, s{s_p}, 10")
    a(f"s_add_u32 s{s_t+5}, s{s_t+5}, s{s_t+1}")
    a(f"s_lshl_b32 s{s_t+1}, s{s_g}, 7")
    a(f"s_add_u32 s{s_t+5}, s{s_t+5}, s{s_t+1}")
    a("v_lshlrev_b32 v7, 11, v3")
    a("v_lshl_add_u32 v7, v4, 3, v7")
    for nt in range(4):
        a(f"buffer_load_dwordx2 {vr(XR+2*nt,2)}, v7, {sr(SX,4)}, s{s_t+5} offen offset:{32*nt}")
    a(f"s_lshl_b32 s{s_t+6}, s{s_g}, 18")
    a(f"s_lshl_b32 s{s_t+1}, s{s_p}, 11")
    a(f"s_add_u32 s{s_t+6}, s{s_t+6}, s{s_t+1}")
    a(f"s_lshl_b32 s{s_t+1}, s{s_b}, 7")
    a(f"s_add_u32 s{s_t+6}, s{s_t+6}, s{s_t+1}")
    a(f"s_lshl_b32 s{s_t+1}, s{s_wave}, 5")
    a(f"s_add_u32 s{s_t+6}, s{s_t+6}, s{s_t+1}")
    a(f"s_add_u32 s{s_t+6}, s{s_t+6}, {Y_OFF}")
    a("v_lshlrev_b32 v15, 12, v1")
    YR = 104
    nY = 0
    if not first:
        a(f"buffer_load_dwordx4 {vr(YR,4)}, v15, {sr(SWS,4)}, s{s_t+6} offen")
        a(f"buffer_load_dwordx4 {vr(YR+4,4)}, v15, {sr(SWS,4)}, s{s_t+6} offen offset:16")
        nY = 2
    ACC = 16
    for r in range(ACC, ACC + 16):
        a(f"v_mov_b32 v{r}, 0")
    WF = [112, 128]

    def reads(P, e):
        l = []
        for nt in range(4):
            for ss in range(2):
                l.append(f"ds_read_b64_tr_b16 {vr(WF[P]+4*nt+2*ss,2)}, v{8+nt} offset:{B_WO+4096*e+512*ss}")
        return l
    total = 32 + 4 + nY
    for st in range(4):
        a(f"s_waitcnt vmcnt({total - 8*(st+1)})")
        a("s_barrier")
        for l in reads(0, 4 * st):
            a(l)
        for i in range(4):
            e = 4 * st + i
            P = i & 1
            if i < 3:
                for l in reads(1 - P, e + 1):
                    a(l)
                a("s_waitcnt lgkmcnt(8)")
            else:
                a("s_waitcnt lgkmcnt(0)")
            for nt in range(4):
                a(f"v_mfma_f32_16x16x32_bf16 {vr(ACC+4*nt,4)}, {vr(WF[P]+4*nt,4)}, {vr(OF+4*e,4)}, {vr(ACC+4*nt,4)}")
    gen.stamp_mid(a, 1)
    a(f"s_waitcnt vmcnt({nY})")
    XF = 32
    X1P = 48
    for i in range(8):
        a(f"v_lshlrev_b32 v{XF+2*i}, 16, v{XR+i}")
        a(f"v_and_b32 v{XF+2*i+1}, 0xffff0000, v{XR+i}")
    a("v_mov_b32 v58, 0x3f803f80")
    a("v_mov_b32 v56, 0")
    a("v_mov_b32 v57, 0")
    for i in range(8):
        a(f"v_pk_add_f32 {vr(XF+2*i,2)}, {vr(XF+2*i,2)}, {vr(ACC+2*i,2)}")
        a(f"v_cvt_pk_bf16_f32 v{X1P+i}, v{XF+2*i}, v{XF+2*i+1}")
    for i in range(8):
        a(f"v_dot2_f32_bf16 v56, v{X1P+i}, v58, v56")
        a(f"v_dot2_f32_bf16 v57, v{X1P+i}, v{X1P+i}, v57")
    for i in range(8):
        a(f"v_lshlrev_b32 v{XF+2*i}, 16, v{X1P+i}")
        a(f"v_and_b32 v{XF+2*i+1}, 0xffff0000, v{X1P+i}")
    xq_reduce_multi(a, "v_add_f32", [56, 57], [60, 61])
    a("v_min_u32 v57, 0xfffffffe, v57")
    a("v_min_u32 v56, 0xfffffffe, v56")
    a(f"s_lshl_b32 s{s_t+7}, s{s_rb}, 12")
    a(f"s_lshl_b32 s{s_t+1}, s{s_wave}, 10")
    a(f"s_add_u32 s{s_t+7}, s{s_t+7}, s{s_t+1}")
    a(f"s_add_u32 s{s_t+7}, s{s_t+7}, {ST_OFF + (0 if first else 131072)}")
    a(f"s_lshl_b32 s{s_t+1}, s{s_g}, 3")
    a(f"s_add_u32 s{s_t+1}, s{s_t+1}, s{s_t+7}")
    a("v_lshlrev_b32 v59, 6, v3")
    a("s_mov_b64 exec, 0xffff")
    a(f"buffer_store_dwordx2 v[56:57], v59, {sr(SWS,4)}, s{s_t+1} offen sc1")
    a("s_mov_b64 exec, -1")
    a("v_lshl_add_u32 v59, v4, 4, v59")
    gen.stamp_mid(a, 2)
    if first:
        Lp = a.label("pollY")
        a(f"s_mov_b32 s{s_t+9}, 0")
        a(f"{Lp}:")
        a(f"buffer_load_dwordx4 {vr(YR,4)}, v15, {sr(SWS,4)}, s{s_t+6} offen sc1")
        a(f"buffer_load_dwordx4 {vr(YR+4,4)}, v15, {sr(SWS,4)}, s{s_t+6} offen offset:16 sc1")
        a("s_waitcnt vmcnt(0)")
        a(f"v_max3_u32 v60, v{YR}, v{YR+1}, v{YR+2}")
        a(f"v_max3_u32 v60, v60, v{YR+3}, v{YR+4}")
        a(f"v_max3_u32 v60, v60, v{YR+5}, v{YR+6}")
        a(f"v_max_u32 v60, v60, v{YR+7}")
        a("v_cmp_eq_u32 vcc, -1, v60")
        a("s_nop 4")
        Ld = a.label("pollYd")
        a(f"s_cbranch_vccz {Ld}")
        a("s_sleep 4")
        a(f"s_add_u32 s{s_t+9}, s{s_t+9}, 1")
        a(f"s_cmp_lt_u32 s{s_t+9}, {SPIN_MAX}")
        a(f"s_cbranch_scc1 {Lp}")
        a(f"{Ld}:")
    else:
        a("s_waitcnt vmcnt(1)")
    gen.stamp_mid(a, 3)
    a(f"s_lshl_b32 s{s_t+1}, s{s_wave}, 11")
    a(f"s_add_u32 s{s_t+1}, s{s_t+1}, {B_YT}")
    a("v_lshlrev_b32 v60, 5, v1")
    a(f"v_add_u32 v60, s{s_t+1}, v60")
    a(f"ds_write_b128 v60, {vr(YR,4)}")
    a(f"ds_write_b128 v60, {vr(YR+4,4)} offset:16")
    a("v_bfe_u32 v61, v1, 2, 2")
    a("v_lshl_add_u32 v61, v4, 2, v61")
    a("v_lshlrev_b32 v61, 5, v61")
    a("v_and_b32 v62, 3, v1")
    a("v_lshl_add_u32 v61, v62, 3, v61")
    a(f"v_add_u32 v61, s{s_t+1}, v61")
    a("s_waitcnt lgkmcnt(0)")
    YP = 64
    for nt in range(4):
        a(f"ds_read_b64_tr_b16 {vr(YP+2*nt,2)}, v61 offset:{512*nt}")
    Lp = a.label("pollS")
    Ld = a.label("pollSd")
    a(f"s_mov_b32 s{s_t+9}, 0")
    a(f"{Lp}:")
    a(f"buffer_load_dwordx4 v[72:75], v59, {sr(SWS,4)}, s{s_t+7} offen sc1")
    a("s_waitcnt vmcnt(0)")
    a("v_max3_u32 v60, v72, v73, v74")
    a("v_max_u32 v60, v60, v75")
    a("v_cmp_eq_u32 vcc, -1, v60")
    a("s_nop 4")
    a(f"s_cbranch_vccz {Ld}")
    a("s_sleep 2")
    a(f"s_add_u32 s{s_t+9}, s{s_t+9}, 1")
    a(f"s_cmp_lt_u32 s{s_t+9}, {SPIN_MAX}")
    a(f"s_cbranch_scc1 {Lp}")
    a(f"{Ld}:")
    gen.stamp_mid(a, 4)
    a("v_add_f32 v56, v72, v74")
    a("v_add_f32 v57, v73, v75")
    xq_reduce_multi(a, "v_add_f32", [56, 57], [60, 61])
    stats_finalize(a, 56, 57, 60)
    a("s_waitcnt lgkmcnt(0)")
    YF = 76
    for i in range(8):
        a(f"v_lshlrev_b32 v{YF+2*i}, 16, v{YP+i}")
        a(f"v_and_b32 v{YF+2*i+1}, 0xffff0000, v{YP+i}")
    D = 96
    for i in range(8):
        a(f"v_pk_add_f32 {vr(D+2*i,2)}, {vr(XF+2*i,2)}, v[56:57] op_sel_hi:[1,0] neg_lo:[0,1] neg_hi:[0,1]")
        a(f"v_pk_mul_f32 {vr(D+2*i,2)}, {vr(D+2*i,2)}, v[56:57] op_sel:[0,1]")
        a(f"v_pk_fma_f32 {vr(D+2*i,2)}, {vr(D+2*i,2)}, {vr(YF+2*i,2)}, {vr(XF+2*i,2)}")
        a(f"v_cvt_pk_bf16_f32 v{X1P+i}, v{D+2*i}, v{D+2*i+1}")
    for nt in range(4):
        a(f"buffer_store_dwordx2 {vr(X1P+2*nt,2)}, v7, {sr(SOUT,4)}, s{s_t+5} offen offset:{32*nt}")
    a(f"{L_fin}:")
    gen.stamp_end(a, 1 if first else 3)
    a(f"{L_end}:")
    a("s_endpgm")
    return 176
```

```python
import sys
from gen import Asm, vr, sr, srd, interleave, kernel_header, xq_reduce_multi, stats_finalize, NAME, NEG, MB

KB = 1024
O1_OFF = 0
O2_OFF = 2 * MB
X2_OFF = 4 * MB
U_OFF = 6 * MB
Y_OFF = 8 * MB
ST1_OFF = 10 * MB
ST2_OFF = ST1_OFF + 256 * KB
XS_OFF = ST2_OFF + 256 * KB
HALO_OFF = XS_OFF + 128 * KB
HS_OFF = HALO_OFF + 256 * KB
FL_OFF = HS_OFF + 16 * KB
F_HELLO = FL_OFF
F_T = F_HELLO + 4 * KB
F_Y = F_T + 2 * KB
F_O1 = F_Y + 2 * KB
F_X2 = F_O1 + 4 * KB
F_H = F_X2 + 4 * KB
F_O2 = F_H + 4 * KB
WS_SIZE = 11 * MB
assert F_O2 + 4 * KB <= WS_SIZE
STAMP_OFF = 12 * MB

L_X = 0
XQ = 20480
L_R = 81920
NS = 5
L_M = 147456
L_TB = L_M
L_ST = L_M + 8192
L_YT = L_M + 10240
LDS_SIZE = 163840
C_U = 0
C_K = 4608
C_KS = 4160
C_CH = 4608 + 4 * 4160
C_RED = 2 * C_CH
C_TR = C_RED + 16384
assert C_TR + 8192 <= 81920
P2_YT = L_TB

SPIN_MAX = 40000
STAMP = False


class VM:
    def __init__(self, a):
        self.a = a
        self.q = []

    def issue(self, tag):
        self.q.append(tag)

    def wait(self, *tags):
        idx = -1
        for i, t in enumerate(self.q):
            if t in tags:
                idx = i
        if idx < 0:
            return
        n = len(self.q) - 1 - idx
        assert n <= 63
        self.a(f"s_waitcnt vmcnt({n})")
        self.q = self.q[idx + 1:]

    def drain(self):
        self.a("s_waitcnt vmcnt(0)")
        self.q = []


def ar(a_, n=1):
    return f"a{a_}" if n == 1 else f"a[{a_}:{a_+n-1}]"


def spread(a, mf, other):
    k = 0
    n = len(other)
    for i, m in enumerate(mf):
        a(m)
        upto = (i + 1) * n // len(mf)
        while k < upto:
            a(other[k])
            k += 1


def gen(a, label):
    kernel_header(a, label)
    vm = VM(a)
    L_end = a.label("end")
    SX, SW, SWS, SK, SV, SSK, SWO, SKK, SOUT, SDBG = 4, 8, 12, 16, 20, 24, 28, 32, 36, 40
    s_wave, s_rb, s_g, s_p, s_b, s_rot = 44, 45, 46, 47, 48, 49
    s_ep = 50
    s_loc = 52
    s_xcc = 53
    s_D = 54
    s_wm0 = 55
    s_rowbase = 56
    s_c = 57
    s_cl = 58
    s_half = 59
    s_ch = 60
    s_spin = 61
    t = 62
    nst = [0]

    def stamp():
        if STAMP:
            i = nst[0]
            assert i < 10
            a(f"s_memtime s[{76+2*i}:{77+2*i}]")
            nst[0] += 1

    V_LANE, V_LAM, V_Q, V_L16 = 1, 2, 3, 4
    V_XD = 5
    V_WD = 6
    V_BB = 7
    V_ROW = 8
    V_Z = 9
    VAE = 10
    CSQ, CSK, CSV = 26, 30, 34
    BC, BP, BP1, MC, MP, ONES = 38, 42, 46, 50, 52, 54
    V_WO = 58
    V_T0 = 62
    W0 = 64

    a("s_cmp_ge_u32 s2, 256")
    a(f"s_cbranch_scc1 {L_end}")
    if STAMP:
        a("s_memrealtime s[98:99]")
    stamp()
    a("s_load_dwordx4 s[80:83], s[0:1], 0")
    a("s_load_dwordx2 s[84:85], s[0:1], 16")
    a("s_load_dwordx4 s[88:91], s[0:1], 32")
    a("s_load_dwordx2 s[86:87], s[0:1], 88")
    a(f"v_and_b32 v{V_LANE}, 63, v0")
    a("v_lshrrev_b32 v62, 6, v0")
    a(f"v_and_b32 v{V_LAM}, 15, v{V_LANE}")
    a(f"v_readfirstlane_b32 s{s_wave}, v62")
    a(f"v_lshrrev_b32 v{V_Q}, 4, v{V_LANE}")
    a(f"v_lshlrev_b32 v{V_L16}, 4, v{V_LANE}")
    a(f"v_mov_b32 v{V_Z}, 0")
    a(f"s_and_b32 s{s_rb}, s2, 7")
    a(f"s_lshl_b32 s{s_rb}, s{s_rb}, 2")
    a(f"s_lshr_b32 s{t}, s2, 6")
    a(f"s_add_u32 s{s_rb}, s{s_rb}, s{t}")
    a(f"s_lshr_b32 s{s_g}, s2, 3")
    a(f"s_and_b32 s{s_g}, s{s_g}, 7")
    a(f"s_lshr_b32 s{s_p}, s{s_rb}, 4")
    a(f"s_and_b32 s{s_b}, s{s_rb}, 15")
    a(f"s_lshl_b32 s{s_rot}, s{t}, 2")
    a(f"s_lshl_b32 s{t}, s{s_wave}, 2")
    a(f"v_add_u32 v62, s{t}, v{V_Q}")
    a(f"v_xor_b32 v62, v62, v{V_LAM}")
    a("v_lshlrev_b32 v62, 4, v62")
    a(f"v_lshl_add_u32 v{V_XD}, v{V_Q}, 11, v62")
    a(f"v_lshrrev_b32 v62, 3, v{V_LANE}")
    a(f"s_lshl_b32 s{t}, s{s_wave}, 3")
    a(f"v_add_u32 v62, s{t}, v62")
    a("v_bfe_u32 v63, v62, 3, 1")
    a("v_lshlrev_b32 v63, 1, v63")
    a("v_bfe_u32 v64, v62, 1, 1")
    a("v_or_b32 v63, v63, v64")
    a(f"v_bfe_u32 v64, v{V_LANE}, 1, 2")
    a("v_xor_b32 v63, v63, v64")
    a("v_lshlrev_b32 v63, 5, v63")
    a(f"v_and_b32 v64, 1, v{V_LANE}")
    a("v_lshl_add_u32 v63, v64, 4, v63")
    a(f"v_mul_u32_u24 v{V_WD}, 3072, v62")
    a(f"v_add_u32 v{V_WD}, v{V_WD}, v63")
    a("s_waitcnt lgkmcnt(0)")
    srd(a, SX, 80, 81, 2 * MB)
    srd(a, SW, 82, 83, 512 * 1536 * 2)
    srd(a, SWS, 86, 87, WS_SIZE)
    srd(a, SK, 88, 89, 2 * MB)
    srd(a, SV, 90, 91, 2 * MB)
    srd(a, SWO, 84, 85, 512 * 512 * 2)
    a("s_load_dwordx4 s[80:83], s[0:1], 48")
    a("s_load_dwordx4 s[84:87], s[0:1], 64")
    a("s_load_dwordx2 s[88:89], s[0:1], 80")
    a(f"s_lshl_b32 s{s_rowbase}, s{s_b}, 17")
    a(f"s_lshl_b32 s{t}, s{s_p}, 10")
    a(f"s_add_u32 s{s_rowbase}, s{s_rowbase}, s{t}")
    a(f"s_mul_i32 s{s_wm0}, s{s_wave}, 3072")
    a(f"s_add_u32 s{s_wm0}, s{s_wm0}, {L_R}")

    def xdma(srd_, qi, i, base_sgpr, halo_oob):
        l = []
        l.append(f"s_lshr_b32 s{t}, s{s_rot}, 2")
        l.append(f"s_add_u32 s{t}, s{t}, {qi}")
        l.append(f"s_and_b32 s{t}, s{t}, 3")
        l.append(f"s_mul_i32 s{t+1}, s{t}, {XQ}")
        l.append(f"s_lshl_b32 s{t+2}, s{s_wave}, 10")
        l.append(f"s_add_u32 s{t+1}, s{t+1}, s{t+2}")
        l.append(f"s_add_u32 m0, s{t+1}, {L_X + i*4096}")
        l.append(f"s_lshl_b32 s{t}, s{t}, 8")
        l.append(f"s_lshl_b32 s{t+2}, s{s_wave}, 13")
        l.append(f"s_add_u32 s{t}, s{t}, s{t+2}")
        l.append(f"s_add_u32 s{t}, s{t}, s{base_sgpr}")
        l.append(f"s_add_u32 s{t}, s{t}, {(i*32768 - 32768) & 0xffffffff}")
        if i == 0 and halo_oob:
            l.append(f"s_cmp_lt_u32 s{s_wave}, 2")
            l.append(f"s_cselect_b32 s{t}, 0x7ff00000, s{t}")
        l.append(f"buffer_load_dwordx4 v{V_XD}, {sr(srd_,4)}, s{t} offen lds")
        return l

    def wdma(c):
        l = [f"s_add_u32 m0, s{s_wm0}, {(c % NS)*12288}",
             f"s_add_u32 s{t}, s{s_rot}, {c}",
             f"s_and_b32 s{t}, s{t}, 15",
             f"s_mul_i32 s{t}, s{t}, 98304",
             f"s_lshl_b32 s{t+1}, s{s_g}, 7",
             f"s_add_u32 s{t}, s{t}, s{t+1}"]
        for s in range(3):
            l.append(f"buffer_load_dwordx4 v{V_WD}, {sr(SW,4)}, s{t} offen offset:{1024*s} lds")
        return l

    def emit_x(qi, i):
        for l in xdma(SX, qi, i, s_rowbase, True):
            a(l)
        vm.issue(f"x{qi}")

    def emit_w(c):
        for l in wdma(c):
            a(l)
        for _ in range(3):
            vm.issue(f"w{c}")

    for i in range(5):
        emit_x(0, i)
    emit_w(0)
    TK, TV, TS = 184, 204, 212
    KF, SF, VF, OF = 228, 238, 246, 250
    UP = 112
    a(f"s_lshr_b32 s{t}, s2, 3")
    a(f"s_lshl_b32 s{t}, s{t}, 16")
    a(f"s_and_b32 s{t+1}, s2, 7")
    a(f"s_lshl_b32 s{t+2}, s{t+1}, 7")
    a(f"s_add_u32 s{t}, s{t}, s{t+2}")
    a("v_and_b32 v64, 7, v0")
    a("v_lshrrev_b32 v65, 3, v0")
    a("v_lshlrev_b32 v66, 11, v65")
    a("v_lshl_add_u32 v66, v64, 4, v66")
    a(f"v_add_u32 v66, s{t}, v66")
    a("v_add_u32 v67, 0xfffff400, v66")
    a("v_add_u32 v68, 0xfffff800, v66")
    a("v_add_u32 v69, 0xfffffc00, v66")
    a(f"buffer_load_dwordx4 {vr(TK,4)}, v67, {sr(SK,4)}, 0 offen")
    a(f"buffer_load_dwordx4 {vr(TK+4,4)}, v68, {sr(SK,4)}, 0 offen")
    a(f"buffer_load_dwordx4 {vr(TK+8,4)}, v69, {sr(SK,4)}, 0 offen")
    a(f"buffer_load_dwordx4 {vr(TK+12,4)}, v66, {sr(SK,4)}, 0 offen")
    a(f"buffer_load_dwordx4 {vr(TK+16,4)}, v66, {sr(SK,4)}, 0 offen offset:1024")
    a(f"buffer_load_dwordx4 {vr(TV,4)}, v66, {sr(SV,4)}, 0 offen")
    a(f"buffer_load_dwordx4 {vr(TV+4,4)}, v66, {sr(SV,4)}, 0 offen offset:1024")
    for _ in range(7):
        vm.issue("T")
    a("s_waitcnt lgkmcnt(0)")
    srd(a, SSK, 80, 81, 4096)
    srd(a, SKK, 82, 83, 2 * MB)
    srd(a, SOUT, 86, 87, 2 * MB)
    srd(a, SDBG, 88, 89, 256)
    a(f"s_lshl_b32 s{t+3}, s2, 2")
    a(f"s_load_dword s{s_D}, s[84:85], s{t+3}")
    a(f"s_getreg_b32 s{s_xcc}, hwreg(HW_REG_XCC_ID)")
    a(f"s_and_b32 s{s_xcc}, s{s_xcc}, 15")
    a(f"s_and_b32 s{t+1}, s2, 7")
    a(f"s_lshl_b32 s{t+2}, s{t+1}, 9")
    a("v_lshlrev_b32 v67, 6, v64")
    for d in range(4):
        a(f"buffer_load_dwordx4 {vr(TS+4*d,4)}, v67, {sr(SSK,4)}, s{t+2} offen offset:{16*d}")
        vm.issue("T")
    Lq = a.label("noep")
    a(f"s_or_b32 s{t}, s2, s{s_wave}")
    a(f"s_cmp_lg_u32 s{t}, 0")
    a(f"s_cbranch_scc1 {Lq}")
    a(f"s_memrealtime s[{t+4}:{t+5}]")
    a("s_waitcnt lgkmcnt(0)")
    a(f"s_or_b32 s{t+4}, s{t+4}, 1")
    a(f"v_mov_b32 v70, s{t+4}")
    a(f"v_mov_b32 v71, s{t+5}")
    a("s_mov_b64 exec, 1")
    a(f"buffer_store_dwordx2 v[70:71], v{V_Z}, {sr(SDBG,4)}, 0 offen sc1")
    a("s_mov_b64 exec, -1")
    a(f"{Lq}:")
    emit_w(1)
    a(f"v_bfe_u32 v70, v{V_LANE}, 2, 2")
    a(f"v_and_b32 v71, 1, v{V_Q}")
    a("v_lshlrev_b32 v71, 1, v71")
    a("v_lshrrev_b32 v72, 1, v70")
    a("v_or_b32 v71, v71, v72")
    a(f"v_xor_b32 v72, s{s_wave}, v71")
    a("v_lshlrev_b32 v72, 5, v72")
    a("v_lshl_add_u32 v72, v70, 7, v72")
    a(f"v_and_b32 v73, 3, v{V_LANE}")
    a("v_lshl_add_u32 v72, v73, 3, v72")
    a(f"v_mul_u32_u24 v74, 3072, v{V_Q}")
    a("v_add_u32 v72, v72, v74")
    a(f"v_add_u32 v{V_BB}, {L_R}, v72")
    a(f"v_lshl_add_u32 v72, v{V_Q}, 3, v70")
    a("v_lshlrev_b32 v72, 7, v72")
    a("v_lshl_add_u32 v72, v73, 3, v72")
    a(f"v_add_u32 v72, {L_R}, v72")
    for nt in range(4):
        a(f"v_xor_b32 v74, {nt}, v71")
        a(f"v_lshl_add_u32 v{V_WO+nt}, v74, 5, v72")
    for e4 in range(4):
        a(f"v_add_u32 v70, {4*e4}, v{V_Q}")
        a(f"v_xor_b32 v70, v70, v{V_LAM}")
        a("v_lshlrev_b32 v70, 4, v70")
        a(f"v_lshl_add_u32 v70, v{V_LAM}, 8, v70")
        for qi in range(4):
            a(f"s_lshr_b32 s{t}, s{s_rot}, 2")
            a(f"s_add_u32 s{t}, s{t}, {qi}")
            a(f"s_and_b32 s{t}, s{t}, 3")
            a(f"s_mul_i32 s{t}, s{t}, {XQ}")
            a(f"v_add_u32 v{VAE+4*qi+e4}, s{t}, v70")
    a(f"v_lshlrev_b32 v{V_ROW}, 11, v{V_LAM}")
    a(f"v_lshl_add_u32 v{V_ROW}, v{V_Q}, 3, v{V_ROW}")
    a(f"v_lshlrev_b32 v70, 2, v{V_Q}")
    a(f"v_mov_b32 v72, {NEG}")
    a(f"s_cmp_eq_u32 s{s_b}, 0")
    a(f"s_cselect_b32 s{t+2}, -1, 0")
    a(f"s_mov_b32 s{t+3}, s{t+2}")
    for r in range(4):
        a(f"v_add_u32 v71, {r}, v70")
        a(f"v_sub_u32 v71, v{V_LAM}, v71")
        a("v_cmp_gt_u32 vcc, 8, v71")
        a("s_nop 1")
        a(f"v_cndmask_b32 v{BC+r}, v72, 0, vcc")
        a(f"v_cndmask_b32 v{74+r}, 0, -1, vcc")
        a("v_add_u32 v71, 16, v71")
        a("v_cmp_gt_u32 vcc, 8, v71")
        a("s_nop 1")
        a(f"v_cndmask_b32 v{BP+r}, v72, 0, vcc")
        a(f"v_cndmask_b32 v{78+r}, 0, -1, vcc")
        a(f"v_cndmask_b32 v{BP1+r}, v{BP+r}, v72, {sr(t+2,2)}")
    a(f"s_mov_b32 s{t+4}, 0xffff")
    for h in range(2):
        a(f"v_bfi_b32 v{MC+h}, s{t+4}, v{74+2*h}, v{75+2*h}")
        a(f"v_bfi_b32 v{MP+h}, s{t+4}, v{78+2*h}, v{79+2*h}")
    for r in range(4):
        a(f"v_mov_b32 v{ONES+r}, 0x3f803f80")
    emit_w(2)
    vm.wait("T")
    tc = []
    for d in range(4):
        for r in range(5):
            tc.append(f"v_lshlrev_b32 v{KF+2*r}, 16, v{TK+4*r+d}")
            tc.append(f"v_and_b32 v{KF+2*r+1}, 0xffff0000, v{TK+4*r+d}")
        for j in range(4):
            for cc in range(2):
                src = TS + 4 * d + 2 * cc + (j >> 1)
                if j & 1:
                    tc.append(f"v_and_b32 v{SF+2*j+cc}, 0xffff0000, v{src}")
                else:
                    tc.append(f"v_lshlrev_b32 v{SF+2*j+cc}, 16, v{src}")
        for tt in range(2):
            tc.append(f"v_lshlrev_b32 v{VF+2*tt}, 16, v{TV+4*tt+d}")
            tc.append(f"v_and_b32 v{VF+2*tt+1}, 0xffff0000, v{TV+4*tt+d}")
        for tt in range(2):
            o = OF + 2 * tt
            tc.append(f"v_pk_mul_f32 {vr(o,2)}, {vr(KF+2*(tt+0),2)}, {vr(SF+6,2)}")
            for j in (2, 1, 0):
                tc.append(f"v_pk_fma_f32 {vr(o,2)}, {vr(KF+2*(3+tt-j),2)}, {vr(SF+2*j,2)}, {vr(o,2)}")
            tc.append(f"v_pk_mul_f32 {vr(o,2)}, {vr(o,2)}, {vr(VF+2*tt,2)}")
        tc.append(f"v_cvt_pk_bf16_f32 v{UP+2*d}, v{OF+2}, v{OF}")
        tc.append(f"v_cvt_pk_bf16_f32 v{UP+2*d+1}, v{OF+3}, v{OF+1}")
    sides = [("x", 1, i) for i in range(5)] + [("w", 3), ("w", 4)]
    per = len(tc) // (len(sides) + 1)
    for i, l in enumerate(tc):
        a(l)
        if (i + 1) % per == 0 and sides:
            sd = sides.pop(0)
            if sd[0] == "x":
                emit_x(sd[1], sd[2])
            else:
                emit_w(sd[1])
    assert not sides
    a("v_sub_u32 v67, 31, v65")
    a("v_lshrrev_b32 v68, 2, v67")
    a("v_xor_b32 v68, v68, v64")
    a("v_lshlrev_b32 v68, 4, v68")
    a("v_and_b32 v67, 3, v67")
    a("v_lshl_add_u32 v68, v67, 2, v68")
    a("v_lshl_add_u32 v68, v64, 10, v68")
    a(f"v_add_u32 v68, {L_TB}, v68")
    for i in range(8):
        a(f"ds_write_b32 v68, v{UP+i} offset:{128*i}")
    a("s_waitcnt lgkmcnt(0)")
    a("s_barrier")
    a("v_lshrrev_b32 v67, 3, v0")
    a("v_lshrrev_b32 v68, 3, v67")
    a("v_xor_b32 v68, v68, v64")
    a("v_lshlrev_b32 v68, 4, v68")
    a("v_lshl_add_u32 v68, v67, 7, v68")
    a(f"v_add_u32 v68, {L_TB}, v68")
    a("v_xor_b32 v69, 64, v68")
    a(f"ds_read_b128 {vr(UP,4)}, v68")
    a(f"ds_read_b128 {vr(UP+4,4)}, v69 offset:4096")
    a(f"s_and_b32 s{t}, s2, 7")
    a(f"s_lshl_b32 s{t}, s{t}, 18")
    a(f"s_lshr_b32 s{t+1}, s2, 3")
    a(f"s_lshl_b32 s{t+1}, s{t+1}, 7")
    a(f"s_sub_u32 s{t}, s{t}, s{t+1}")
    a(f"s_add_u32 s{t}, s{t}, {U_OFF + 3968}")
    a(f"s_add_u32 s{t+1}, s{t}, {32*4096}")
    a("v_lshlrev_b32 v67, 12, v67")
    a("v_lshl_add_u32 v67, v64, 4, v67")
    a("s_waitcnt lgkmcnt(0)")
    a(f"buffer_store_dwordx4 {vr(UP,4)}, v67, {sr(SWS,4)}, s{t} offen sc1")
    a(f"buffer_store_dwordx4 {vr(UP+4,4)}, v67, {sr(SWS,4)}, s{t+1} offen sc1")
    vm.issue("Tst")
    vm.issue("Tst")
    stamp()

    XS = [64, 88]
    ACC = 112
    AQ, AK, AV = ACC - 4, ACC + 16, ACC + 36
    SA = 168
    SU = 172
    V_SB = 180
    V_EP = 182
    a("s_nop 1")
    for r in range(ACC, ACC + 60):
        a(f"v_mov_b32 v{r}, 0")
    for r in range(CSQ, CSQ + 12):
        a(f"v_mov_b32 v{r}, 0")
    a(f"s_add_u32 s{t+6}, s{s_wave}, 1")
    a(f"s_lshl_b32 s{t+6}, s{t+6}, 12")
    s_stile = t + 6

    def p1_reads(P, e):
        l = []
        slot = (e % NS) * 12288
        for s in range(3):
            for ss in range(2):
                l.append(f"ds_read_b64_tr_b16 {ar(12*e+4*s+2*ss,2)}, v{V_BB} offset:{slot+1024*s+512*ss}")
        l.append(f"v_add_u32 v{V_SB}, s{s_stile}, v{VAE+e}")
        for tl in range(5):
            l.append(f"ds_read_b128 {vr(XS[P]+4*tl,4)}, v{VAE+e} offset:{4096*tl}")
        l.append(f"ds_read_b128 {vr(XS[P]+20,4)}, v{V_SB}")
        return l

    def stats_ops(src):
        l = []
        for i in range(4):
            l.append(f"v_lshlrev_b32 v{SU+2*i}, 16, v{src+i}")
            l.append(f"v_and_b32 v{SU+2*i+1}, 0xffff0000, v{src+i}")
        for i in range(8):
            l.append(f"v_add_f32 v{SA+(i&1)}, v{SA+(i&1)}, v{SU+i}")
            l.append(f"v_fmac_f32 v{SA+2+(i&1)}, v{SU+i}, v{SU+i}")
        return l

    vm.wait("x0", "w0")
    a("s_barrier")
    for l in p1_reads(0, 0):
        a(l)
    xsched = {0: [(2, 0), (2, 1)], 1: [(2, 2), (2, 3), (2, 4)], 2: [(3, 0), (3, 1)], 3: [(3, 2), (3, 3), (3, 4)]}
    for e in range(16):
        P = e & 1
        a("s_waitcnt lgkmcnt(0)")
        if e < 15:
            need = [f"w{e+1}"]
            if (e + 1) % 4 == 0:
                need.append(f"x{(e+1)//4}")
            if e == 4:
                need += ["Tst", "ep"]
            vm.wait(*need)
        a("s_barrier")
        other = []
        if e == 0:
            other.append(f"buffer_load_dwordx2 {vr(V_EP,2)}, v{V_Z}, {sr(SDBG,4)}, 0 offen sc1")
            vm.issue("ep")
        if e + NS < 16:
            other += wdma(e + NS)
            for _ in range(3):
                vm.issue(f"w{e+NS}")
        for (qi, i) in xsched.get(e, []):
            other += xdma(SX, qi, i, s_rowbase, True)
            vm.issue(f"x{qi}")
        if e < 15:
            other += p1_reads(1 - P, e + 1)
        other += stats_ops(XS[P] + 20)
        if e == 4:
            Lp, Lok, Lnf = a.label("ep"), a.label("epok"), a.label("nf")
            a(f"s_mov_b32 s{s_spin}, 0")
            a(f"{Lp}:")
            a(f"v_readfirstlane_b32 s{s_ep}, v{V_EP}")
            a(f"v_readfirstlane_b32 s{s_ep+1}, v{V_EP+1}")
            a(f"s_add_u32 s{s_spin}, s{s_spin}, 1")
            a(f"s_cmp_lg_u32 s{s_ep}, 0")
            a(f"s_cbranch_scc1 {Lok}")
            a(f"s_cmp_gt_u32 s{s_spin}, {SPIN_MAX}")
            a(f"s_cbranch_scc1 {Lok}")
            a("s_sleep 2")
            a(f"buffer_load_dwordx2 {vr(V_EP,2)}, v{V_Z}, {sr(SDBG,4)}, 0 offen sc1")
            a("s_waitcnt vmcnt(0)")
            a(f"s_branch {Lp}")
            a(f"{Lok}:")
            a(f"s_cmp_lg_u32 s{s_wave}, 0")
            a(f"s_cbranch_scc1 {Lnf}")
            a(f"v_mov_b32 v{SU}, s{s_ep}")
            a(f"v_mov_b32 v{SU+1}, s{s_ep+1}")
            a(f"v_mov_b32 v{SU+2}, s{s_xcc}")
            a(f"v_mov_b32 v{SU+3}, 0")
            a(f"s_and_b32 s{t}, s2, 7")
            a(f"s_lshl_b32 s{t}, s{t}, 8")
            a(f"s_and_b32 s{t+1}, s2, 0xf8")
            a(f"s_add_u32 s{t}, s{t}, s{t+1}")
            a(f"s_add_u32 s{t}, s{t}, {F_T}")
            a(f"s_lshl_b32 s{t+1}, s{s_rb}, 7")
            a(f"s_lshl_b32 s{t+2}, s{s_g}, 4")
            a(f"s_add_u32 s{t+1}, s{t+1}, s{t+2}")
            a(f"s_add_u32 s{t+1}, s{t+1}, {F_HELLO}")
            a("s_mov_b64 exec, 1")
            a(f"buffer_store_dwordx2 {vr(SU,2)}, v{V_Z}, {sr(SWS,4)}, s{t} offen sc1")
            a(f"buffer_store_dwordx4 {vr(SU,4)}, v{V_Z}, {sr(SWS,4)}, s{t+1} offen sc1")
            a("s_mov_b64 exec, -1")
            a("s_nop 1")
            a(f"{Lnf}:")
        mf = []
        wq, wk, wv = ar(12 * e, 4), ar(12 * e + 4, 4), ar(12 * e + 8, 4)
        for tl in range(5):
            x = vr(XS[P] + 4 * tl, 4)
            if tl > 0:
                mf.append(f"v_mfma_f32_16x16x32_bf16 {vr(AQ+4*tl,4)}, {wq}, {x}, {vr(AQ+4*tl,4)}")
            mf.append(f"v_mfma_f32_16x16x32_bf16 {vr(AK+4*tl,4)}, {wk}, {x}, {vr(AK+4*tl,4)}")
            mf.append(f"v_mfma_f32_16x16x32_bf16 {vr(AV+4*tl,4)}, {x}, {wv}, {vr(AV+4*tl,4)}")
        mf.append(f"v_mfma_f32_16x16x32_bf16 {vr(CSQ,4)}, {wq}, {vr(ONES,4)}, {vr(CSQ,4)}")
        mf.append(f"v_mfma_f32_16x16x32_bf16 {vr(CSK,4)}, {wk}, {vr(ONES,4)}, {vr(CSK,4)}")
        mf.append(f"v_mfma_f32_16x16x32_bf16 {vr(CSV,4)}, {vr(ONES,4)}, {wv}, {vr(CSV,4)}")
        spread(a, mf, other)
    stamp()
    HR = 64
    a(f"v_lshrrev_b32 v{V_T0}, 5, v{V_LANE}")
    a(f"s_lshl_b32 s{t}, s{s_wave}, 1")
    a(f"s_add_u32 s{t}, s{t}, 8")
    a(f"v_add_u32 v{V_T0}, s{t}, v{V_T0}")
    a(f"v_lshlrev_b32 v{V_T0}, 8, v{V_T0}")
    a(f"v_lshl_add_u32 v{V_T0}, v{V_LAM}, 4, v{V_T0}")
    a(f"v_and_b32 v{V_T0+1}, 1, v{V_Q}")
    a(f"v_mul_u32_u24 v{V_T0+1}, {XQ}, v{V_T0+1}")
    a(f"v_add_u32 v{V_T0}, v{V_T0}, v{V_T0+1}")
    a(f"ds_read_b128 {vr(HR,4)}, v{V_T0} offset:{L_X}")
    a(f"ds_read_b128 {vr(HR+4,4)}, v{V_T0} offset:{L_X+2*XQ}")
    a(f"v_add_f32 v{SA}, v{SA}, v{SA+1}")
    a(f"v_add_f32 v{SA+1}, v{SA+2}, v{SA+3}")
    a(f"v_mov_b32 v{SA+2}, 0")
    a(f"v_mov_b32 v{SA+3}, 0")
    a("s_waitcnt lgkmcnt(0)")
    a("s_barrier")
    V_HL, V_FT = 184, 188
    a(f"s_lshl_b32 s{t}, s{s_rb}, 7")
    a(f"s_add_u32 s{t}, s{t}, {F_HELLO}")
    a(f"v_and_b32 v{V_T0}, 7, v{V_LANE}")
    a(f"v_lshlrev_b32 v{V_T0}, 4, v{V_T0}")
    a(f"buffer_load_dwordx4 {vr(V_HL,4)}, v{V_T0}, {sr(SWS,4)}, s{t} offen sc1")
    vm.issue("hl")
    a(f"s_lshr_b32 s{t+1}, s2, 5")
    a(f"s_lshl_b32 s{t+1}, s{t+1}, 8")
    a(f"s_add_u32 s{t+1}, s{t+1}, {F_T}")
    a(f"v_and_b32 v{V_T0+1}, 31, v{V_LANE}")
    a(f"v_lshlrev_b32 v{V_T0+1}, 3, v{V_T0+1}")
    a(f"buffer_load_dwordx2 {vr(V_FT,2)}, v{V_T0+1}, {sr(SWS,4)}, s{t+1} offen sc1")
    vm.issue("ft")
    a(f"s_lshr_b32 s{s_ch}, s{s_wave}, 1")
    a(f"s_and_b32 s{s_half}, s{s_wave}, 1")
    a(f"s_lshl_b32 s{s_c}, s2, 1")
    a(f"s_add_u32 s{s_c}, s{s_c}, s{s_ch}")
    a(f"s_lshl_b32 s{s_c}, s{s_c}, 12")
    a(f"s_mul_i32 s{s_cl}, s{s_ch}, {C_CH}")
    for i in range(2):
        a(f"s_lshl_b32 s{t+3}, s{s_half}, 1")
        a(f"s_add_u32 s{t+3}, s{t+3}, {i}")
        a(f"s_mul_i32 s{t+5}, s{t+3}, {C_KS}")
        a(f"s_add_u32 s{t+5}, s{t+5}, s{s_cl}")
        a(f"s_add_u32 m0, s{t+5}, {C_K+32}")
        a(f"s_lshl_b32 s{t+3}, s{t+3}, 1")
        a(f"s_add_u32 s{t+4}, s{s_c}, s{t+3}")
        for n in range(4):
            a(f"buffer_load_dwordx4 v{V_L16}, {sr(SKK,4)}, s{t+4} offen offset:{1024*n} lds")
            vm.issue("ck")
    V_FX, V_FI = 190, 191
    a(f"v_add_u32 v{V_FI}, v{V_LAM}, v{V_Q}")
    a(f"v_subrev_u32 v{V_FI}, 16, v{V_FI}")
    a(f"v_max_i32 v{V_T0}, 0, v{V_FI}")
    a(f"v_lshlrev_b32 v{V_T0}, 1, v{V_T0}")
    a(f"buffer_load_ushort v{V_FX}, v{V_T0}, {sr(SKK,4)}, s{s_c} offen")
    vm.issue("ck")
    V_WOD = 192
    a(f"v_lshrrev_b32 v{V_T0}, 3, v{V_LANE}")
    a(f"v_bfe_u32 v{V_T0+1}, v{V_T0}, 1, 1")
    a(f"s_and_b32 s{t}, s{s_wave}, 1")
    a(f"s_lshl_b32 s{t}, s{t}, 1")
    a(f"v_or_b32 v{V_T0+1}, s{t}, v{V_T0+1}")
    a(f"v_bfe_u32 v{V_WOD}, v{V_LANE}, 1, 2")
    a(f"v_xor_b32 v{V_T0+1}, v{V_T0+1}, v{V_WOD}")
    a(f"v_lshlrev_b32 v{V_T0+1}, 5, v{V_T0+1}")
    a(f"v_and_b32 v{V_WOD}, 1, v{V_LANE}")
    a(f"v_lshl_add_u32 v{V_T0+1}, v{V_WOD}, 4, v{V_T0+1}")
    a(f"v_lshl_add_u32 v{V_WOD}, v{V_T0}, 10, v{V_T0+1}")
    a(f"s_lshl_b32 s{t+2}, s{s_g}, 7")
    a(f"s_lshl_b32 s{t+1}, s{s_wave}, 13")
    a(f"s_add_u32 s{t+2}, s{t+2}, s{t+1}")
    a(f"s_lshl_b32 s{t+3}, s{s_wave}, 10")
    wo_dmas = []
    for n in range(16):
        wo_dmas.append(f"s_add_u32 m0, s{t+3}, {L_R + n*4096}\ns_add_u32 s{t+4}, s{t+2}, {n*32768}\n"
                       f"buffer_load_dwordx4 v{V_WOD}, {sr(SWO,4)}, s{t+4} offen lds")
    ep = []
    for i in range(8):
        ep.append(f"v_dot2_f32_bf16 v{SA+2}, v{HR+i}, v{ONES}, v{SA+2}")
        ep.append(f"v_dot2_f32_bf16 v{SA+3}, v{HR+i}, v{HR+i}, v{SA+3}")
    for l in interleave(ep, wo_dmas[:8], 2):
        a(l)
    for _ in range(8):
        vm.issue("wo")
    a("s_nop 2")
    for sh in (8, 4, 2, 1):
        a(f"v_add_f32_dpp v{SA+2}, v{SA+2}, v{SA+2} row_ror:{sh} row_mask:0xf bank_mask:0xf")
        a(f"v_add_f32_dpp v{SA+3}, v{SA+3}, v{SA+3} row_ror:{sh} row_mask:0xf bank_mask:0xf")
        a("s_nop 0")
    TT = 72
    for i in range(4):
        a(f"v_mov_b32 v{TT+i}, v{SA+i}")
    a("s_nop 1")
    for i in range(4):
        a(f"v_permlane16_swap_b32 v{SA+i}, v{TT+i}")
    a("s_nop 1")
    for i in range(4):
        a(f"v_add_f32 v{SA+i}, v{SA+i}, v{TT+i}")
    for i in range(2):
        a(f"v_mov_b32 v{TT+i}, v{SA+i}")
    a("s_nop 1")
    for i in range(2):
        a(f"v_permlane32_swap_b32 v{SA+i}, v{TT+i}")
    a("s_nop 1")
    for i in range(2):
        a(f"v_add_f32 v{SA+i}, v{SA+i}, v{TT+i}")
    stats_finalize(a, SA, SA + 1, TT)
    stats_finalize(a, SA + 2, SA + 3, TT)
    a(f"v_lshlrev_b32 v{TT}, 3, v{V_LAM}")
    a(f"s_lshr_b32 s{t}, s{s_stile}, 5")
    a(f"s_add_u32 s{t}, s{t}, {L_ST}")
    a(f"v_add_u32 v{TT+1}, s{t}, v{TT}")
    a(f"ds_write_b64 v{TT+1}, {vr(SA,2)}")
    a(f"v_lshrrev_b32 v{TT+1}, 5, v{V_LANE}")
    a(f"v_lshlrev_b32 v{TT+1}, 3, v{TT+1}")
    a(f"s_lshl_b32 s{t}, s{s_wave}, 4")
    a(f"s_add_u32 s{t}, s{t}, {L_ST + 64}")
    a(f"v_add_u32 v{TT+1}, s{t}, v{TT+1}")
    a(f"ds_write_b64 v{TT+1}, {vr(SA+2,2)}")
    a(f"v_and_b32 v{TT+1}, 0x38, v{TT}")
    a(f"v_add_u32 v{TT+1}, {L_ST}, v{TT+1}")
    a(f"v_mov_b32 v{TT+2}, 0")
    a(f"v_mov_b32 v{TT+3}, 1.0")
    a(f"ds_write_b64 v{TT+1}, {vr(TT+2,2)}")
    a(f"v_add_u32 v{TT}, {L_ST}, v{TT}")
    for l in wo_dmas[8:]:
        a(l)
    for _ in range(8):
        vm.issue("wo")
    a("s_waitcnt lgkmcnt(0)")
    a("s_barrier")
    STA, STB = 76, 196
    QP, KP, VP = 86, 96, 236

    def read_stats(vlam8):
        for tl in range(5):
            a(f"ds_read_b64 {vr(STA+2*tl,2)}, v{vlam8} offset:{128*tl}")
        a(f"v_lshlrev_b32 v{V_T0}, 5, v{V_Q}")
        a(f"v_add_u32 v{V_T0}, {L_ST}, v{V_T0}")
        for tl in range(5):
            a(f"ds_read_b128 {vr(STB+8*tl,4)}, v{V_T0} offset:{128*tl}")
            a(f"ds_read_b128 {vr(STB+8*tl+4,4)}, v{V_T0} offset:{128*tl+16}")

    read_stats(TT)
    vm.wait("hl", "ft")

    def poll(check_lines, reload_lines, name):
        Lp, Ld = a.label(name), a.label(name + "d")
        a(f"s_mov_b32 s{s_spin}, 0")
        a(f"{Lp}:")
        for l in check_lines:
            a(l)
        a("s_nop 4")
        a(f"s_cbranch_vccz {Ld}")
        a(f"s_add_u32 s{s_spin}, s{s_spin}, 1")
        a(f"s_cmp_gt_u32 s{s_spin}, {SPIN_MAX}")
        a(f"s_cbranch_scc1 {Ld}")
        a("s_sleep 1")
        for l in reload_lines:
            a(l)
        a("s_waitcnt vmcnt(0)")
        a(f"s_branch {Lp}")
        a(f"{Ld}:")

    def chk_ep(regs_lo_hi, tmp):
        l = []
        first = True
        for lo in regs_lo_hi:
            if first:
                l.append(f"v_xor_b32 v{tmp}, s{s_ep}, v{lo}")
                first = False
            else:
                l.append(f"v_xor_b32 v{tmp+1}, s{s_ep}, v{lo}")
                l.append(f"v_or_b32 v{tmp}, v{tmp}, v{tmp+1}")
            l.append(f"v_xor_b32 v{tmp+1}, s{s_ep+1}, v{lo+1}")
            l.append(f"v_or_b32 v{tmp}, v{tmp}, v{tmp+1}")
        l.append(f"v_cmp_ne_u32 vcc, 0, v{tmp}")
        return l

    PT = 106
    a(f"v_and_b32 v{PT}, 7, v{V_LANE}")
    a(f"v_lshlrev_b32 v{PT}, 4, v{PT}")
    a(f"v_and_b32 v{PT+1}, 31, v{V_LANE}")
    a(f"v_lshlrev_b32 v{PT+1}, 3, v{PT+1}")
    a(f"s_lshl_b32 s{t}, s{s_rb}, 7")
    a(f"s_add_u32 s{t}, s{t}, {F_HELLO}")
    a(f"s_lshr_b32 s{t+1}, s2, 5")
    a(f"s_lshl_b32 s{t+1}, s{t+1}, 8")
    a(f"s_add_u32 s{t+1}, s{t+1}, {F_T}")
    poll(chk_ep([V_HL, V_FT], PT + 2),
         [f"buffer_load_dwordx4 {vr(V_HL,4)}, v{PT}, {sr(SWS,4)}, s{t} offen sc1",
          f"buffer_load_dwordx2 {vr(V_FT,2)}, v{PT+1}, {sr(SWS,4)}, s{t+1} offen sc1"], "phl")
    a(f"v_cmp_ne_u32 vcc, s{s_xcc}, v{V_HL+2}")
    a("s_nop 4")
    a(f"s_cmp_eq_u64 vcc, 0")
    a(f"s_cselect_b32 s{s_loc}, 1, 0")
    a(f"s_lshl_b32 s{t+3}, s{s_half}, 11")
    a(f"s_add_u32 s{t+4}, s{s_c}, s{t+3}")
    a(f"s_add_u32 s{t+4}, s{t+4}, {U_OFF}")
    a(f"s_add_u32 m0, s{s_cl}, s{t+3}")
    a("s_nop 0")
    a(f"buffer_load_dwordx4 v{V_L16}, {sr(SWS,4)}, s{t+4} offen sc1 lds")
    a(f"buffer_load_dwordx4 v{V_L16}, {sr(SWS,4)}, s{t+4} offen offset:1024 sc1 lds")
    vm.issue("cu")
    vm.issue("cu")
    a("s_waitcnt lgkmcnt(0)")

    def normalize(tl, pk):
        l = []
        mean, rstd = STA + 2 * tl, STA + 2 * tl + 1
        for (acc, cs, dst, on) in ((AQ + 4 * tl, CSQ, QP + 2 * tl, tl > 0), (AK + 4 * tl, CSK, KP + 2 * tl, True)):
            if not on:
                continue
            if pk:
                for h in range(2):
                    l.append(f"v_pk_fma_f32 {vr(acc+2*h,2)}, {vr(cs+2*h,2)}, {vr(mean,2)}, {vr(acc+2*h,2)} op_sel_hi:[1,0,1] neg_lo:[0,1,0] neg_hi:[0,1,0]")
                for h in range(2):
                    l.append(f"v_pk_mul_f32 {vr(acc+2*h,2)}, {vr(acc+2*h,2)}, {vr(mean,2)} op_sel:[0,1]")
            else:
                for r in range(4):
                    l.append(f"v_fma_f32 v{acc+r}, -v{mean}, v{cs+r}, v{acc+r}")
                for r in range(4):
                    l.append(f"v_mul_f32 v{acc+r}, v{rstd}, v{acc+r}")
            l.append(f"v_cvt_pk_bf16_f32 v{dst}, v{acc}, v{acc+1}")
            l.append(f"v_cvt_pk_bf16_f32 v{dst+1}, v{acc+2}, v{acc+3}")
        acc = AV + 4 * tl
        for r in range(4):
            l.append(f"v_fma_f32 v{acc+r}, -v{STB+8*tl+2*r}, v{CSV}, v{acc+r}")
        for r in range(4):
            l.append(f"v_mul_f32 v{acc+r}, v{STB+8*tl+2*r+1}, v{acc+r}")
        l.append(f"v_cvt_pk_bf16_f32 v{VP+2*tl}, v{acc}, v{acc+1}")
        l.append(f"v_cvt_pk_bf16_f32 v{VP+2*tl+1}, v{acc+2}, v{acc+3}")
        return l

    def attention_batch(o_off):
        SC, SP = 112, 128
        a("s_nop 1")
        for i in range(1, 5):
            a(f"v_mfma_f32_16x16x16_bf16 {vr(SC+4*(i-1),4)}, {vr(KP+2*i,2)}, {vr(QP+2*i,2)}, {vr(BC,4)}")
            bp = BP1 if i == 1 else BP
            a(f"v_mfma_f32_16x16x16_bf16 {vr(SP+4*(i-1),4)}, {vr(KP+2*(i-1),2)}, {vr(QP+2*i,2)}, {vr(bp,4)}")
        a(f"s_lshl_b32 s{t}, s{s_g}, 2")
        a(f"s_add_u32 s{t}, s{t}, s{s_wave}")
        a(f"s_lshr_b32 s{t+1}, s{t}, 1")
        a(f"s_lshl_b32 s{t+1}, s{t+1}, 10")
        a(f"s_and_b32 s{t}, s{t}, 1")
        a(f"s_lshl_b32 s{t}, s{t}, 9")
        a(f"s_add_u32 s{t}, s{t}, s{t+1}")
        a(f"s_lshl_b32 s{t+1}, s{s_rb}, 16")
        a(f"s_add_u32 s{t}, s{t}, s{t+1}")
        a(f"s_add_u32 s{t}, s{t}, {o_off}")
        a(f"v_lshrrev_b32 v{V_T0}, 1, v{V_Q}")
        a(f"v_lshlrev_b32 v{V_T0}, 8, v{V_T0}")
        a(f"v_lshl_add_u32 v{V_T0}, v{V_LAM}, 4, v{V_T0}")
        a(f"v_and_b32 v{V_T0+1}, 1, v{V_Q}")
        a(f"v_lshl_add_u32 v{V_T0}, v{V_T0+1}, 3, v{V_T0}")
        MX, MT = 144, 148
        for i in range(4):
            for r in range(4):
                a(f"v_max_f32 v{SC+4*i+r}, v{SC+4*i+r}, v{SP+4*i+r}")
            a(f"v_max3_f32 v{MX+i}, v{SC+4*i}, v{SC+4*i+1}, v{SC+4*i+2}")
            a(f"v_max_f32 v{MX+i}, v{MX+i}, v{SC+4*i+3}")
        xq_reduce_multi(a, "v_max_f32", [MX + i for i in range(4)], [MT + i for i in range(4)])
        a(f"s_mov_b32 s{t+2}, 0x3eb8aa3b")
        for i in range(4):
            a(f"v_mul_f32 v{MX+i}, s{t+2}, v{MX+i}")
        for i in range(4):
            for r in range(4):
                a(f"v_fma_f32 v{SC+4*i+r}, v{SC+4*i+r}, s{t+2}, -v{MX+i}")
        for i in range(4):
            for r in range(4):
                a(f"v_exp_f32 v{SC+4*i+r}, v{SC+4*i+r}")
        a("s_nop 0")
        PP = 152
        for i in range(4):
            a(f"v_cvt_pk_bf16_f32 v{SP+4*i}, v{SC+4*i}, v{SC+4*i+1}")
            a(f"v_cvt_pk_bf16_f32 v{SP+4*i+1}, v{SC+4*i+2}, v{SC+4*i+3}")
            a(f"v_and_b32 v{PP+4*i}, v{MP}, v{SP+4*i}")
            a(f"v_and_b32 v{PP+4*i+1}, v{MP+1}, v{SP+4*i+1}")
            a(f"v_and_b32 v{PP+4*i+2}, v{MC}, v{SP+4*i}")
            a(f"v_and_b32 v{PP+4*i+3}, v{MC+1}, v{SP+4*i+1}")
        a("s_nop 1")
        OO, LL = 196, 212
        for i in range(4):
            a(f"v_mfma_f32_16x16x32_bf16 {vr(LL+4*i,4)}, {vr(ONES,4)}, {vr(PP+4*i,4)}, 0")
            a(f"v_mfma_f32_16x16x32_bf16 {vr(OO+4*i,4)}, {vr(VP+2*i,4)}, {vr(PP+4*i,4)}, 0")
        a("s_nop 7")
        for i in range(4):
            a(f"v_rcp_f32 v{LL+4*i}, v{LL+4*i}")
        a("s_nop 0")
        for i in range(4):
            a(f"v_pk_mul_f32 {vr(OO+4*i,2)}, {vr(OO+4*i,2)}, {vr(LL+4*i,2)} op_sel_hi:[1,0]")
            a(f"v_pk_mul_f32 {vr(OO+4*i+2,2)}, {vr(OO+4*i+2,2)}, {vr(LL+4*i,2)} op_sel_hi:[1,0]")
            a(f"v_cvt_pk_bf16_f32 v{OO+4*i}, v{OO+4*i}, v{OO+4*i+1}")
            a(f"v_cvt_pk_bf16_f32 v{OO+4*i+1}, v{OO+4*i+2}, v{OO+4*i+3}")
        Lg, Lj = a.label("og"), a.label("oj")
        a(f"s_cmp_eq_u32 s{s_loc}, 0")
        a(f"s_cbranch_scc1 {Lg}")
        for fl, lab in (("", None), (" sc1", Lg)):
            if lab:
                a(f"s_branch {Lj}")
                a(f"{lab}:")
            for i in range(4):
                a(f"s_add_u32 s{t+1}, s{t}, {i*16384}")
                a(f"buffer_store_dwordx2 {vr(OO+4*i,2)}, v{V_T0}, {sr(SWS,4)}, s{t+1} offen{fl}")
        a(f"{Lj}:")
        for _ in range(4):
            vm.issue("ost")

    def group_flag(f_off, always_global=False):
        Ln, Lg, Lj = a.label("nf"), a.label("fg"), a.label("fj")
        a(f"s_cmp_lg_u32 s{s_wave}, 0")
        a(f"s_cbranch_scc1 {Ln}")
        a(f"v_mov_b32 v{V_T0}, s{s_ep}")
        a(f"v_mov_b32 v{V_T0+1}, s{s_ep+1}")
        a(f"s_lshl_b32 s{t}, s{s_rb}, 7")
        a(f"s_lshl_b32 s{t+1}, s{s_g}, 3")
        a(f"s_add_u32 s{t}, s{t}, s{t+1}")
        a(f"s_add_u32 s{t}, s{t}, {f_off}")
        a("s_mov_b64 exec, 1")
        if not always_global:
            a(f"s_cmp_eq_u32 s{s_loc}, 0")
            a(f"s_cbranch_scc1 {Lg}")
            a(f"buffer_store_dwordx2 {vr(V_T0,2)}, v{V_Z}, {sr(SWS,4)}, s{t} offen")
            a(f"s_branch {Lj}")
            a(f"{Lg}:")
        a(f"buffer_store_dwordx2 {vr(V_T0,2)}, v{V_Z}, {sr(SWS,4)}, s{t} offen sc1")
        a(f"{Lj}:")
        a("s_mov_b64 exec, -1")
        a(f"{Ln}:")

    def wait_group_flags(f_off, rb_sgpr, name, vtmp):
        a(f"s_lshl_b32 s{t}, s{rb_sgpr}, 7")
        a(f"s_add_u32 s{t}, s{t}, {f_off}")
        a(f"v_and_b32 v{vtmp}, 7, v{V_LANE}")
        a(f"v_lshlrev_b32 v{vtmp}, 3, v{vtmp}")
        ld = f"buffer_load_dwordx2 {vr(vtmp+2,2)}, v{vtmp}, {sr(SWS,4)}, s{t} offen sc1"
        a(ld)
        vm.drain()
        poll(chk_ep([vtmp + 2], vtmp + 4), [ld], name)

    for tl in range(5):
        for l in normalize(tl, True):
            a(l)
    attention_batch(O1_OFF)
    stamp()
    vm.drain()
    a("s_barrier")
    group_flag(F_O1)

    CA, CB = 64, 65
    a(f"v_lshlrev_b32 v{V_T0}, 3, v{V_LANE}")
    a(f"v_add_u32 v{V_T0}, s{s_cl}, v{V_T0}")
    a("v_mov_b32 v66, 0")
    a("v_mov_b32 v67, 0")
    a(f"ds_write_b64 v{V_T0}, v[66:67] offset:{C_U+4096}")
    a(f"v_mul_u32_u24 v68, {C_KS}, v{V_Q}")
    a(f"v_lshl_add_u32 v68, v{V_LAM}, 1, v68")
    a(f"s_add_u32 s{t+5}, s{s_cl}, {C_K}")
    a(f"v_add_u32 v68, s{t+5}, v68")
    a(f"v_cmp_gt_i32 vcc, 0, v{V_FI}")
    a("s_nop 1")
    a(f"v_cndmask_b32 v{V_FX}, v{V_FX}, 0, vcc")
    a(f"ds_write_b16 v68, v{V_FX}")
    a(f"v_add_u32 v{CA}, 1, v{V_LAM}")
    a(f"v_and_b32 v{CB}, 3, v{CA}")
    a(f"v_mul_u32_u24 v{CB}, {C_KS}, v{CB}")
    a(f"v_and_b32 v{CA}, 0x1c, v{CA}")
    a(f"v_lshl_add_u32 v{CB}, v{CA}, 1, v{CB}")
    a(f"v_lshl_add_u32 v{CB}, v{V_Q}, 4, v{CB}")
    a(f"s_lshl_b32 s{t+3}, s{s_half}, 8")
    a(f"s_add_u32 s{t+3}, s{t+3}, s{s_cl}")
    a(f"s_add_u32 s{t+5}, s{t+3}, {C_K}")
    a(f"v_add_u32 v{CA}, s{t+5}, v{CB}")
    a(f"v_lshlrev_b32 v{CB}, 5, v{V_LAM}")
    a(f"v_sub_u32 v{CB}, 480, v{CB}")
    a(f"v_lshl_add_u32 v{CB}, v{V_Q}, 4, v{CB}")
    a(f"v_add_u32 v{CB}, s{t+3}, v{CB}")
    CACC = 72
    CS = [104, 168]
    for r in range(CACC, CACC + 32):
        a(f"v_mov_b32 v{r}, 0")
    a("s_waitcnt lgkmcnt(0)")
    a("s_barrier")

    def creads(P, rp):
        l = []
        for j in range(8):
            l.append(f"ds_read_b128 {vr(CS[P]+32+4*j,4)}, v{CB} offset:{64*rp+512*(7-j)}")
            l.append(f"ds_read_b64 {vr(CS[P]+4*j,2)}, v{CA} offset:{64*rp+512*j}")
            l.append(f"ds_read_b64 {vr(CS[P]+4*j+2,2)}, v{CA} offset:{64*rp+512*j+8}")
        return l
    for l in creads(0, 0):
        a(l)
    for rp in range(4):
        P = rp & 1
        a("s_waitcnt lgkmcnt(0)")
        side = creads(1 - P, rp + 1) if rp < 3 else []
        mf = []
        for j in range(8):
            for i in range(j, 8):
                mf.append(f"v_mfma_f32_16x16x32_bf16 {vr(CACC+4*i,4)}, {vr(CS[P]+4*j,4)}, {vr(CS[P]+32+4*(i-j),4)}, {vr(CACC+4*i,4)}")
        for l in interleave(mf, side, 1):
            a(l)
    a(f"s_lshl_b32 s{t+3}, s{s_wave}, 12")
    a(f"s_add_u32 s{t+3}, s{t+3}, {C_RED}")
    a(f"v_add_u32 v66, s{t+3}, v{V_L16}")
    a(f"s_xor_b32 s{t+3}, s{s_wave}, 1")
    a(f"s_lshl_b32 s{t+3}, s{t+3}, 12")
    a(f"s_add_u32 s{t+3}, s{t+3}, {C_RED}")
    a(f"v_add_u32 v67, s{t+3}, v{V_L16}")
    a("s_nop 3")
    KEEP = 104
    L1, L2 = a.label("cvh"), a.label("cvj")
    a(f"s_cmp_eq_u32 s{s_half}, 0")
    a(f"s_cbranch_scc0 {L1}")
    for i in range(4):
        a(f"ds_write_b128 v66, {vr(CACC+16+4*i,4)} offset:{1024*i}")
    for r in range(16):
        a(f"v_mov_b32 v{KEEP+r}, v{CACC+r}")
    a(f"s_branch {L2}")
    a(f"{L1}:")
    for i in range(4):
        a(f"ds_write_b128 v66, {vr(CACC+4*i,4)} offset:{1024*i}")
    for r in range(16):
        a(f"v_mov_b32 v{KEEP+r}, v{CACC+16+r}")
    a(f"{L2}:")
    a(f"v_lshlrev_b32 v68, 5, v{V_LAM}")
    a(f"v_lshl_add_u32 v68, v{V_Q}, 3, v68")
    a(f"s_lshl_b32 s{t+3}, s{s_half}, 11")
    a(f"s_sub_u32 s{t+3}, s{s_cl}, s{t+3}")
    a(f"s_add_u32 s{t+3}, s{t+3}, {C_U + 4088 - 1536}")
    a(f"v_sub_u32 v68, s{t+3}, v68")
    UU, PR, UF = 120, 128, 144
    for i in range(4):
        a(f"ds_read_b64 {vr(UU+2*i,2)}, v68 offset:{512*(3-i)}")
    a("s_waitcnt lgkmcnt(0)")
    a("s_barrier")
    for i in range(4):
        a(f"ds_read_b128 {vr(PR+4*i,4)}, v67 offset:{1024*i}")
    a(f"s_lshl_b32 s{t+3}, s{s_D}, 16")
    a(f"s_and_b32 s{t+4}, s{s_D}, 0xffff0000")
    a(f"s_cmp_eq_u32 s{s_ch}, 0")
    a(f"s_cselect_b32 s{t+3}, s{t+3}, s{t+4}")
    for i in range(4):
        a(f"v_and_b32 v{UF+4*i}, 0xffff0000, v{UU+2*i+1}")
        a(f"v_lshlrev_b32 v{UF+4*i+1}, 16, v{UU+2*i+1}")
        a(f"v_and_b32 v{UF+4*i+2}, 0xffff0000, v{UU+2*i}")
        a(f"v_lshlrev_b32 v{UF+4*i+3}, 16, v{UU+2*i}")
    for r in range(16):
        a(f"v_fma_f32 v{KEEP+r}, v{UF+r}, s{t+3}, v{KEEP+r}")
    a(f"s_lshl_b32 s{t+3}, s{s_wave}, 11")
    a(f"s_add_u32 s{t+3}, s{t+3}, {C_TR}")
    a(f"v_lshlrev_b32 v68, 4, v{V_LAM}")
    a(f"v_lshl_add_u32 v68, v{V_Q}, 2, v68")
    a(f"v_add_u32 v68, s{t+3}, v68")
    a(f"v_add_u32 v69, s{t+3}, v{V_L16}")
    a("s_waitcnt lgkmcnt(0)")
    for r in range(8):
        a(f"v_pk_add_f32 {vr(KEEP+2*r,2)}, {vr(KEEP+2*r,2)}, {vr(PR+2*r,2)}")
    for i in range(4):
        for par in range(2):
            a(f"v_cvt_pk_bf16_f32 v{UF+2*i+par}, v{KEEP+4*i+par}, v{KEEP+4*i+2+par}")
            a(f"ds_write_b32 v68, v{UF+2*i+par} offset:{(2*i+par)*256}")
    a("s_waitcnt lgkmcnt(0)")
    a(f"ds_read_b128 {vr(PR,4)}, v69")
    a(f"ds_read_b128 {vr(PR+4,4)}, v69 offset:1024")
    a(f"v_lshrrev_b32 v68, 5, v{V_LANE}")
    a("v_lshlrev_b32 v68, 8, v68")
    a(f"v_and_b32 v70, 1, v{V_Q}")
    a("v_lshl_add_u32 v68, v70, 11, v68")
    a(f"v_lshl_add_u32 v68, v{V_LAM}, 4, v68")
    a(f"s_lshl_b32 s{t+3}, s{s_half}, 10")
    a(f"s_add_u32 s{t+3}, s{t+3}, s{s_c}")
    a(f"s_add_u32 s{t+3}, s{t+3}, {Y_OFF}")
    a("s_waitcnt lgkmcnt(0)")
    a(f"buffer_store_dwordx4 {vr(PR,4)}, v68, {sr(SWS,4)}, s{t+3} offen sc1")
    a(f"buffer_store_dwordx4 {vr(PR+4,4)}, v68, {sr(SWS,4)}, s{t+3} offen offset:512 sc1")
    vm.drain()
    a("s_barrier")
    Ln = a.label("nfy")
    a(f"s_cmp_lg_u32 s{s_wave}, 0")
    a(f"s_cbranch_scc1 {Ln}")
    a(f"v_mov_b32 v{V_T0}, s{s_ep}")
    a(f"v_mov_b32 v{V_T0+1}, s{s_ep+1}")
    a(f"s_lshl_b32 s{t}, s2, 3")
    a(f"s_add_u32 s{t}, s{t}, {F_Y}")
    a("s_mov_b64 exec, 1")
    a(f"buffer_store_dwordx2 {vr(V_T0,2)}, v{V_Z}, {sr(SWS,4)}, s{t} offen sc1")
    a("s_mov_b64 exec, -1")
    a(f"{Ln}:")
    stamp()
    a(f"s_lshl_b32 s{t}, s{s_g}, 7")
    a(f"s_add_u32 s{s_rowbase}, s{s_rowbase}, s{t}")

    YP = 246

    def wo_phase(layer):
        first = layer == 0
        o_off = O1_OFF if first else O2_OFF
        wait_group_flags(F_O1 if first else F_O2, s_rb, "po", 64)
        OFR = 192
        a(f"s_lshl_b32 s{t}, s{s_rb}, 16")
        a(f"s_lshl_b32 s{t+1}, s{s_wave}, 14")
        a(f"s_add_u32 s{t}, s{t}, s{t+1}")
        a(f"s_add_u32 s{t}, s{t}, {o_off}")
        for st in range(4):
            a(f"s_add_u32 s{t+4}, s{t}, {st*4096}")
            for i in range(4):
                e = 4 * st + i
                a(f"buffer_load_dwordx4 {ar(OFR+4*e,4)}, v{V_L16}, {sr(SWS,4)}, s{t+4} offen offset:{1024*i} sc1")
                vm.issue(f"o{e}")
        XR = 96
        a(f"s_lshl_b32 s{t+1}, s{s_wave}, 15")
        a(f"s_add_u32 s{t+5}, s{s_rowbase}, s{t+1}")
        if first:
            for nt in range(4):
                a(f"buffer_load_dwordx2 {vr(XR+2*nt,2)}, v{V_ROW}, {sr(SX,4)}, s{t+5} offen offset:{32*nt}")
                vm.issue("xr")
            a(f"s_lshl_b32 s{t+7}, s{s_g}, 8")
            a(f"s_add_u32 s{t+7}, s{t+7}, {F_Y}")
            a(f"v_and_b32 v70, 31, v{V_LANE}")
            a("v_lshlrev_b32 v70, 3, v70")
            a(f"buffer_load_dwordx2 v[72:73], v70, {sr(SWS,4)}, s{t+7} offen sc1")
            vm.issue("fy")
        WACC = 80
        for r in range(WACC, WACC + 16):
            a(f"v_mov_b32 v{r}, 0")
        WF = [112, 128]

        def reads(P, e):
            return [f"ds_read_b64_tr_b16 {vr(WF[P]+4*nt+2*ss,2)}, v{V_WO+nt} offset:{4096*e+512*ss}"
                    for nt in range(4) for ss in range(2)]
        for l in reads(0, 0):
            a(l)
        for e in range(16):
            P = e & 1
            if e < 15:
                for l in reads(1 - P, e + 1):
                    a(l)
                a("s_waitcnt lgkmcnt(8)")
            else:
                a("s_waitcnt lgkmcnt(0)")
            vm.wait(f"o{e}")
            for nt in range(4):
                a(f"v_mfma_f32_16x16x32_bf16 {vr(WACC+4*nt,4)}, {vr(WF[P]+4*nt,4)}, {ar(OFR+4*e,4)}, {vr(WACC+4*nt,4)}")
        XF, X1P = 144, 160
        if first:
            vm.wait("xr")
            src = XR
        else:
            src = X2K
        for i in range(8):
            a(f"v_lshlrev_b32 v{XF+2*i}, 16, v{src+i}")
            a(f"v_and_b32 v{XF+2*i+1}, 0xffff0000, v{src+i}")
        G = 168
        a(f"v_mov_b32 v{G}, 0")
        a(f"v_mov_b32 v{G+1}, 0")
        a(f"v_mov_b32 v{G+2}, s{s_ep}")
        a(f"v_mov_b32 v{G+3}, s{s_ep+1}")
        for i in range(8):
            a(f"v_pk_add_f32 {vr(XF+2*i,2)}, {vr(XF+2*i,2)}, {vr(WACC+2*i,2)}")
            a(f"v_cvt_pk_bf16_f32 v{X1P+i}, v{XF+2*i}, v{XF+2*i+1}")
        for i in range(8):
            a(f"v_dot2_f32_bf16 v{G}, v{X1P+i}, v{ONES}, v{G}")
            a(f"v_dot2_f32_bf16 v{G+1}, v{X1P+i}, v{X1P+i}, v{G+1}")
        for i in range(8):
            a(f"v_lshlrev_b32 v{XF+2*i}, 16, v{X1P+i}")
            a(f"v_and_b32 v{XF+2*i+1}, 0xffff0000, v{X1P+i}")
        xq_reduce_multi(a, "v_add_f32", [G, G + 1], [G + 4, G + 5])
        st_off = ST1_OFF if first else ST2_OFF
        a(f"s_lshl_b32 s{t+6}, s{s_rb}, 13")
        a(f"s_lshl_b32 s{t+1}, s{s_wave}, 11")
        a(f"s_add_u32 s{t+6}, s{t+6}, s{t+1}")
        a(f"s_add_u32 s{t+6}, s{t+6}, {st_off}")
        a(f"s_lshl_b32 s{t+1}, s{s_g}, 4")
        a(f"s_add_u32 s{t+1}, s{t+1}, s{t+6}")
        a(f"v_lshlrev_b32 v74, 7, v{V_LAM}")
        Lg, Lj = a.label("sg"), a.label("sj")
        a("s_mov_b64 exec, 0xffff")
        a(f"s_cmp_eq_u32 s{s_loc}, 0")
        a(f"s_cbranch_scc1 {Lg}")
        a(f"buffer_store_dwordx4 {vr(G,4)}, v74, {sr(SWS,4)}, s{t+1} offen")
        a(f"s_branch {Lj}")
        a(f"{Lg}:")
        a(f"buffer_store_dwordx4 {vr(G,4)}, v74, {sr(SWS,4)}, s{t+1} offen sc1")
        a(f"{Lj}:")
        a("s_mov_b64 exec, -1")
        vm.issue("sst")
        a(f"v_lshl_add_u32 v74, v{V_Q}, 5, v74")
        GR = 176
        gl = [f"buffer_load_dwordx4 {vr(GR,4)}, v74, {sr(SWS,4)}, s{t+6} offen sc1",
              f"buffer_load_dwordx4 {vr(GR+4,4)}, v74, {sr(SWS,4)}, s{t+6} offen offset:16 sc1"]
        if first:
            vm.wait("fy")
            poll(chk_ep([72], 76), [f"buffer_load_dwordx2 v[72:73], v70, {sr(SWS,4)}, s{t+7} offen sc1"], "pfy")
            a(f"s_lshl_b32 s{t+7}, s{s_g}, 18")
            a(f"s_lshl_b32 s{t+1}, s{s_p}, 11")
            a(f"s_add_u32 s{t+7}, s{t+7}, s{t+1}")
            a(f"s_lshl_b32 s{t+1}, s{s_b}, 7")
            a(f"s_add_u32 s{t+7}, s{t+7}, s{t+1}")
            a(f"s_lshl_b32 s{t+1}, s{s_wave}, 5")
            a(f"s_add_u32 s{t+7}, s{t+7}, s{t+1}")
            a(f"s_add_u32 s{t+7}, s{t+7}, {Y_OFF}")
            a(f"v_lshlrev_b32 v75, 12, v{V_LANE}")
            YR = 184
            a(f"buffer_load_dwordx4 {vr(YR,4)}, v75, {sr(SWS,4)}, s{t+7} offen sc1")
            a(f"buffer_load_dwordx4 {vr(YR+4,4)}, v75, {sr(SWS,4)}, s{t+7} offen offset:16 sc1")
            vm.issue("y")
            vm.issue("y")
        for l in gl:
            a(l)
            vm.issue("gr")
        if first:
            a(f"s_lshl_b32 s{t+1}, s{s_wave}, 11")
            a(f"s_add_u32 s{t+1}, s{t+1}, {P2_YT}")
            a(f"v_lshlrev_b32 v76, 5, v{V_LANE}")
            a(f"v_add_u32 v76, s{t+1}, v76")
            a(f"v_bfe_u32 v77, v{V_LANE}, 2, 2")
            a(f"v_lshl_add_u32 v77, v{V_Q}, 2, v77")
            a("v_lshlrev_b32 v77, 5, v77")
            a(f"v_and_b32 v78, 3, v{V_LANE}")
            a("v_lshl_add_u32 v77, v78, 3, v77")
            a(f"v_add_u32 v77, s{t+1}, v77")
            vm.wait("y")
            a(f"ds_write_b128 v76, {vr(YR,4)}")
            a(f"ds_write_b128 v76, {vr(YR+4,4)} offset:16")
            a("s_waitcnt lgkmcnt(0)")
            for nt in range(4):
                a(f"ds_read_b64_tr_b16 {vr(YP+2*nt,2)}, v77 offset:{512*nt}")
        vm.drain()
        poll(chk_ep([GR + 2, GR + 6], 76), gl, "pst")
        a(f"v_add_f32 v{G}, v{GR}, v{GR+4}")
        a(f"v_add_f32 v{G+1}, v{GR+1}, v{GR+5}")
        xq_reduce_multi(a, "v_add_f32", [G, G + 1], [G + 4, G + 5])
        stats_finalize(a, G, G + 1, G + 4)
        a("s_waitcnt lgkmcnt(0)")
        YF, D = 192, 208
        for i in range(8):
            a(f"v_lshlrev_b32 v{YF+2*i}, 16, v{YP+i}")
            a(f"v_and_b32 v{YF+2*i+1}, 0xffff0000, v{YP+i}")
        dst = X2K if first else X1P
        for i in range(8):
            a(f"v_pk_add_f32 {vr(D+2*i,2)}, {vr(XF+2*i,2)}, {vr(G,2)} op_sel_hi:[1,0] neg_lo:[0,1] neg_hi:[0,1]")
            a(f"v_pk_mul_f32 {vr(D+2*i,2)}, {vr(D+2*i,2)}, {vr(G,2)} op_sel:[0,1]")
            a(f"v_pk_fma_f32 {vr(D+2*i,2)}, {vr(D+2*i,2)}, {vr(YF+2*i,2)}, {vr(XF+2*i,2)}")
            a(f"v_cvt_pk_bf16_f32 v{dst+i}, v{D+2*i}, v{D+2*i+1}")
        if not first:
            for nt in range(4):
                a(f"buffer_store_dwordx2 {vr(dst+2*nt,2)}, v{V_ROW}, {sr(SOUT,4)}, s{t+5} offen offset:{32*nt}")
            return
        a(f"s_add_u32 s{t+5}, s{t+5}, {X2_OFF}")
        a(f"v_mov_b32 v{G}, 0")
        a(f"v_mov_b32 v{G+1}, 0")
        Lg, Lj = a.label("xg"), a.label("xj")
        a(f"s_cmp_eq_u32 s{s_loc}, 0")
        a(f"s_cbranch_scc1 {Lg}")
        for fl, lab in (("", None), (" sc1", Lg)):
            if lab:
                a(f"s_branch {Lj}")
                a(f"{lab}:")
            for nt in range(4):
                a(f"buffer_store_dwordx2 {vr(dst+2*nt,2)}, v{V_ROW}, {sr(SWS,4)}, s{t+5} offen offset:{32*nt}{fl}")
        a(f"{Lj}:")
        for i in range(8):
            a(f"v_dot2_f32_bf16 v{G}, v{dst+i}, v{ONES}, v{G}")
            a(f"v_dot2_f32_bf16 v{G+1}, v{dst+i}, v{dst+i}, v{G+1}")
        a("s_nop 2")
        xq_reduce_multi(a, "v_add_f32", [G, G + 1], [G + 4, G + 5])
        a(f"s_lshl_b32 s{t}, s{s_rb}, 12")
        a(f"s_lshl_b32 s{t+1}, s{s_wave}, 10")
        a(f"s_add_u32 s{t}, s{t}, s{t+1}")
        a(f"s_lshl_b32 s{t+1}, s{s_g}, 3")
        a(f"s_add_u32 s{t}, s{t}, s{t+1}")
        a(f"s_add_u32 s{t}, s{t}, {XS_OFF}")
        a(f"v_lshlrev_b32 v74, 6, v{V_LAM}")
        Lg, Lj = a.label("yg"), a.label("yj")
        a("s_mov_b64 exec, 0xffff")
        a(f"s_cmp_eq_u32 s{s_loc}, 0")
        a(f"s_cbranch_scc1 {Lg}")
        a(f"buffer_store_dwordx2 {vr(G,2)}, v74, {sr(SWS,4)}, s{t} offen")
        a(f"s_branch {Lj}")
        a(f"{Lg}:")
        a(f"buffer_store_dwordx2 {vr(G,2)}, v74, {sr(SWS,4)}, s{t} offen sc1")
        a(f"{Lj}:")
        a("s_mov_b64 exec, -1")
        Lh = a.label("nh")
        a(f"s_cmp_lg_u32 s{s_wave}, 3")
        a(f"s_cbranch_scc1 {Lh}")
        a(f"v_lshlrev_b32 v75, 10, v{V_LAM}")
        a(f"v_lshl_add_u32 v75, v{V_Q}, 3, v75")
        a(f"s_lshl_b32 s{t}, s{s_rb}, 13")
        a(f"s_lshl_b32 s{t+1}, s{s_g}, 7")
        a(f"s_add_u32 s{t}, s{t}, s{t+1}")
        a(f"s_add_u32 s{t}, s{t}, {HALO_OFF - 8192}")
        a(f"s_lshl_b32 s{t+2}, s{s_rb}, 9")
        a(f"s_lshl_b32 s{t+1}, s{s_g}, 3")
        a(f"s_add_u32 s{t+2}, s{t+2}, s{t+1}")
        a(f"s_add_u32 s{t+2}, s{t+2}, {HS_OFF - 512}")
        a(f"s_mov_b32 s{t+8}, 0xff00ff00")
        a(f"s_mov_b32 s{t+9}, 0xff00ff00")
        a(f"s_mov_b64 exec, {sr(t+8,2)}")
        for nt in range(4):
            a(f"buffer_store_dwordx2 {vr(dst+2*nt,2)}, v75, {sr(SWS,4)}, s{t} offen offset:{32*nt} sc1")
        a("s_mov_b64 exec, 0xff00")
        a(f"buffer_store_dwordx2 {vr(G,2)}, v74, {sr(SWS,4)}, s{t+2} offen sc1")
        a("s_mov_b64 exec, -1")
        a(f"{Lh}:")
        vm.drain()
        a("s_barrier")
        group_flag(F_X2)
        group_flag(F_H, always_global=True)

    X2K = 238
    wo_phase(0)
    stamp()

    VP = 106
    VP = 184
    wait_group_flags(F_X2, s_rb, "px2", 64)
    a(f"s_lshl_b32 s{t+10}, s{s_g}, 7")
    a(f"s_sub_u32 s{t+10}, s{s_rowbase}, s{t+10}")
    a(f"s_add_u32 s{t+10}, s{t+10}, {X2_OFF}")
    for i in range(1, 5):
        for qi in range(4):
            l = xdma(SWS, qi, i, t + 10, False)
            l[-1] = l[-1].replace(" offen lds", " offen sc1 lds")
            for x in l:
                a(x)
            vm.issue(f"x2t{i}")
    PS = 64
    a(f"s_lshl_b32 s{t}, s{s_rb}, 12")
    a(f"s_lshl_b32 s{t+1}, s{s_wave}, 10")
    a(f"s_add_u32 s{t}, s{t}, s{t+1}")
    a(f"s_add_u32 s{t}, s{t}, {XS_OFF}")
    a(f"v_lshlrev_b32 v74, 6, v{V_LAM}")
    a(f"v_lshl_add_u32 v74, v{V_Q}, 4, v74")
    a(f"buffer_load_dwordx4 {vr(PS,4)}, v74, {sr(SWS,4)}, s{t} offen sc1")
    vm.issue("ps")
    Lnh, Lhj = a.label("nohalo"), a.label("hj")
    a(f"s_cmp_eq_u32 s{s_b}, 0")
    a(f"s_cbranch_scc1 {Lnh}")
    a(f"s_sub_u32 s{t+11}, s{s_rb}, 1")
    q_save = list(vm.q)
    wait_group_flags(F_H, t + 11, "ph", 68)
    a(f"{Lnh}:")
    vm.q = q_save
    a(f"v_lshrrev_b32 v75, 11, v{V_XD}")
    a(f"v_and_b32 v76, 0xff, v{V_XD}")
    a("v_lshl_add_u32 v75, v75, 10, v76")
    for qd in range(4):
        a(f"s_lshl_b32 s{t+2}, s{s_wave}, 10")
        a(f"s_add_u32 m0, s{t+2}, {L_X + qd*XQ}")
        a(f"s_lshl_b32 s{t}, s{s_rb}, 13")
        a(f"s_lshl_b32 s{t+1}, s{s_wave}, 12")
        a(f"s_add_u32 s{t}, s{t}, s{t+1}")
        a(f"s_add_u32 s{t}, s{t}, {HALO_OFF - 8192 - 8192 + qd*256}")
        a(f"s_cmp_lt_u32 s{s_wave}, 2")
        a(f"s_cselect_b32 s{t}, 0x7ff00000, s{t}")
        a(f"s_cmp_eq_u32 s{s_b}, 0")
        a(f"s_cselect_b32 s{t}, 0x7ff00000, s{t}")
        a(f"buffer_load_dwordx4 v75, {sr(SWS,4)}, s{t} offen sc1 lds")
        vm.issue("x2t0")
    a(f"v_and_b32 v76, 7, v{V_LAM}")
    a("v_lshlrev_b32 v76, 6, v76")
    a(f"v_lshl_add_u32 v76, v{V_Q}, 4, v76")
    a(f"s_lshl_b32 s{t}, s{s_rb}, 9")
    a(f"s_add_u32 s{t}, s{t}, {HS_OFF - 512}")
    a(f"s_cmp_eq_u32 s{s_b}, 0")
    a(f"s_cselect_b32 s{t}, 0x7ff00000, s{t}")
    a(f"buffer_load_dwordx4 {vr(PS+4,4)}, v76, {sr(SWS,4)}, s{t} offen sc1")
    vm.issue("ps")
    for r in range(ACC, ACC + 56):
        a(f"v_mov_b32 v{r}, 0")
    vm.wait("ps")
    a(f"v_add_f32 v{SA}, v{PS}, v{PS+2}")
    a(f"v_add_f32 v{SA+1}, v{PS+1}, v{PS+3}")
    a(f"v_add_f32 v{SA+2}, v{PS+4}, v{PS+6}")
    a(f"v_add_f32 v{SA+3}, v{PS+5}, v{PS+7}")
    xq_reduce_multi(a, "v_add_f32", [SA, SA + 1, SA + 2, SA + 3], [TT, TT + 1, TT + 2, TT + 3])
    stats_finalize(a, SA, SA + 1, TT)
    stats_finalize(a, SA + 2, SA + 3, TT)
    a(f"v_lshlrev_b32 v{TT}, 3, v{V_LAM}")
    a(f"s_lshl_b32 s{t}, s{s_wave}, 7")
    a(f"s_add_u32 s{t}, s{t}, {L_ST + 128}")
    a(f"v_add_u32 v{TT+1}, s{t}, v{TT}")
    a(f"ds_write_b64 v{TT+1}, {vr(SA,2)}")
    a(f"v_and_b32 v{TT+1}, 0x38, v{TT}")
    a(f"v_add_u32 v{TT+1}, {L_ST+64}, v{TT+1}")
    a(f"ds_write_b64 v{TT+1}, {vr(SA+2,2)}")
    a(f"v_add_u32 v{TT}, {L_ST}, v{TT}")
    a("s_waitcnt lgkmcnt(0)")
    vm.drain()
    a("s_barrier")
    read_stats(TT)
    stamp()
    def p3_reads(P, e):
        return [f"ds_read_b128 {vr(XS3[P]+4*tl,4)}, v{VAE+e} offset:{4096*tl}" for tl in range(5)]
    XS3 = [168, 64]
    XS3 = [168, 86]
    for l in p3_reads(0, 0):
        a(l)
    for e in range(16):
        P = e & 1
        a("s_waitcnt lgkmcnt(0)")
        other = p3_reads(1 - P, e + 1) if e < 15 else []
        mf = []
        wq, wk, wv = ar(12 * e, 4), ar(12 * e + 4, 4), ar(12 * e + 8, 4)
        for tl in range(5):
            x = vr(XS3[P] + 4 * tl, 4)
            if tl > 0:
                mf.append(f"v_mfma_f32_16x16x32_bf16 {vr(AQ+4*tl,4)}, {wq}, {x}, {vr(AQ+4*tl,4)}")
            mf.append(f"v_mfma_f32_16x16x32_bf16 {vr(AK+4*tl,4)}, {wk}, {x}, {vr(AK+4*tl,4)}")
            mf.append(f"v_mfma_f32_16x16x32_bf16 {vr(AV+4*tl,4)}, {x}, {wv}, {vr(AV+4*tl,4)}")
        for l in interleave(mf, other, 1):
            a(l)
    a("s_nop 7")
    for tl in range(5):
        for l in normalize(tl, True):
            a(l)
    attention_batch(O2_OFF)
    stamp()
    vm.drain()
    a("s_barrier")
    group_flag(F_O2)
    wo_phase(1)
    if STAMP:
        a("s_waitcnt vmcnt(0) lgkmcnt(0)")
        stamp()
        a("s_memrealtime s[96:97]")
        a(f"s_mov_b32 s{SWS+2}, {16*MB}")
        a(f"s_lshl_b32 s{t}, s2, 8")
        a(f"s_lshl_b32 s{t+1}, s{s_wave}, 6")
        a(f"s_add_u32 s{t}, s{t}, s{t+1}")
        a(f"s_add_u32 s{t}, s{t}, {STAMP_OFF}")
        a("s_waitcnt lgkmcnt(0)")
        a("v_mov_b32 v64, s98")
        a("v_mov_b32 v65, s96")
        for i in range(10):
            a(f"v_mov_b32 v{66+i}, s{76+2*i}" if i < nst[0] else f"v_mov_b32 v{66+i}, 0")
        a("s_mov_b64 exec, 1")
        for i in range(3):
            a(f"buffer_store_dwordx4 {vr(64+4*i,4)}, v{V_Z}, {sr(SWS,4)}, s{t} offen offset:{16*i}")
    a(f"{L_end}:")
    a("s_endpgm")


def main(out_path):
    a = Asm()
    label = NAME + "_kernel"
    a('.amdgcn_target "amdgcn-amd-amdhsa--gfx950"')
    a(".text")
    gen(a, label)
    desc = f""".section .rodata,"a"
.p2align 6
.amdhsa_kernel {label}
  .amdhsa_next_free_vgpr 512
  .amdhsa_next_free_sgpr 102
  .amdhsa_accum_offset 256
  .amdhsa_group_segment_fixed_size 0
  .amdhsa_kernarg_size 96
  .amdhsa_user_sgpr_count 2
  .amdhsa_user_sgpr_kernarg_segment_ptr 1
  .amdhsa_system_sgpr_workgroup_id_x 1
.end_amdhsa_kernel
"""
    hdr = f"; @launch grid=(256,1,1) block=(256,1,1) lds={LDS_SIZE}\n"
    open(out_path, "w").write(hdr + a.text() + desc)


if __name__ == "__main__":
    if len(sys.argv) > 2:
        STAMP = True
    main(sys.argv[1])
```

```python
import sys
from gen import Asm, vr, sr, srd, kernel_header, NAME, NEG, MB

KB = 1024
O1_OFF = 0
O2_OFF = 2 * MB
X2_OFF = 4 * MB
U_OFF = 6 * MB
Y_OFF = 8 * MB
ST1_OFF = 10 * MB
ST2_OFF = ST1_OFF + 256 * KB
XS_OFF = ST2_OFF + 256 * KB
HALO_OFF = XS_OFF + 128 * KB
HS_OFF = HALO_OFF + 256 * KB
FL_OFF = HS_OFF + 16 * KB
F_HELLO = FL_OFF
F_T = F_HELLO + 4 * KB
F_Y = F_T + 2 * KB
F_O1 = F_Y + 8 * KB
F_X2 = F_O1 + 8 * KB
F_O2 = F_X2 + 8 * KB
F_H = F_O2 + 8 * KB
WS_SIZE = 11 * MB
assert F_H + 4 * KB <= WS_SIZE
STAMP_OFF = 12 * MB

L_X = 0
XQ = 20480
L_R = 81920
NS = 5
L_M = 147456
L_TB = L_M
L_ST = L_M + 8192
LDS_SIZE = 163840
C_U = 0
C_K = 4608
C_KS = 4160
C_CH = 4608 + 4 * 4160
C_RED = 2 * C_CH
C_TR = C_RED + 16384
assert C_TR + 8192 <= 81920
P2_YT = L_TB

SPIN_MAX = 40000
STAMP = False
import os
EXP = os.environ.get("EXP", "")
FINE = os.environ.get("FINE", "")
OOB = 0x7ff00000
DSW = float(os.environ.get("DSW", "0.5"))


def ar(a_, n=1):
    return f"a{a_}" if n == 1 else f"a[{a_}:{a_+n-1}]"


class Ctx:
    def __init__(self, a):
        self.a = a
        self.q = []
        self.count = 0

    def raw(self, s):
        for l in s.split("\n"):
            if l.strip():
                self.a(l)
                self.count += 1

    def vwait_n(self, tags):
        idx = -1
        for i, t in enumerate(self.q):
            if t in tags:
                idx = i
        if idx < 0:
            return None
        n = len(self.q) - 1 - idx
        assert n <= 63
        self.q = self.q[idx + 1:]
        return n

    def item(self, it):
        if isinstance(it, str):
            self.raw(it)
        elif it[0] == "vm":
            self.raw(it[2])
            self.q.append(it[1])
        elif it[0] == "wait":
            n = self.vwait_n(it[1])
            lg = it[2] if len(it) > 2 else None
            parts = []
            if n is not None:
                parts.append(f"vmcnt({n})")
            if lg is not None:
                parts.append(f"lgkmcnt({lg})")
            if parts:
                self.raw("s_waitcnt " + " ".join(parts))
        elif it[0] == "drain":
            self.raw("s_waitcnt vmcnt(0)")
            self.q = []
        elif it[0] == "gap":
            self.raw(f"s_nop {it[1]-1}")
        else:
            raise ValueError(it)

    def __call__(self, *its):
        for it in its:
            if isinstance(it, list):
                for x in it:
                    self.item(x)
            else:
                self.item(it)

    def merge(self, main, side, k=2):
        side = list(side)
        si = 0
        dist = 0

        def is_gap(x):
            return isinstance(x, tuple) and x[0] == "gap"

        for m in main:
            self.item(m)
            mf = isinstance(m, str) and m.startswith("v_mfma")
            dist += 3 if mf else 1
            if not mf:
                continue
            quota = k
            while quota > 0 and si < len(side):
                it = side[si]
                if is_gap(it):
                    if dist >= it[1]:
                        si += 1
                        continue
                    break
                self.item(it)
                dist = 0
                si += 1
                if isinstance(it, tuple) and it[0] == "vm":
                    quota -= 2
                elif isinstance(it, str) and it.startswith("ds_"):
                    quota -= DSW
                elif not (isinstance(it, str) and it.startswith("s_")):
                    quota -= 1
        while si < len(side):
            it = side[si]
            if is_gap(it):
                if it[1] - dist > 0:
                    self.raw(f"s_nop {it[1]-dist-1}")
            else:
                self.item(it)
                dist = 0
            si += 1


def xq_reduce(op, vs, ts, steps=("v_permlane16_swap_b32", "v_permlane32_swap_b32")):
    l = []
    n = len(vs)
    for sw in steps:
        for v, t in zip(vs, ts):
            l.append(f"v_mov_b32 v{t}, v{v}")
        l.append(("gap", 2 if n < 2 else 1))
        for v, t in zip(vs, ts):
            l.append(f"{sw} v{v}, v{t}")
        l.append(("gap", 2 if n < 2 else 1))
        for v, t in zip(vs, ts):
            l.append(f"{op} v{v}, v{v}, v{t}")
    return l


def stats_fin(pairs, tmps):
    l = []
    def each(f):
        for (s, q), t in zip(pairs, tmps):
            l.append(f(s, q, t))
    each(lambda s, q, t: f"v_mul_f32 v{s}, 0x3b000000, v{s}")
    each(lambda s, q, t: f"v_mul_f32 v{q}, 0x3b000000, v{q}")
    each(lambda s, q, t: f"v_fma_f32 v{q}, -v{s}, v{s}, v{q}")
    each(lambda s, q, t: f"v_max_f32 v{q}, 0, v{q}")
    each(lambda s, q, t: f"v_cvt_pk_bf16_f32 v{t}, v{s}, v{q}")
    each(lambda s, q, t: f"v_lshlrev_b32 v{s}, 16, v{t}")
    each(lambda s, q, t: f"v_and_b32 v{q}, 0xffff0000, v{t}")
    each(lambda s, q, t: f"v_add_f32 v{q}, 0x3727c5ac, v{q}")
    each(lambda s, q, t: f"v_cvt_pk_bf16_f32 v{q}, v{q}, v{q}")
    each(lambda s, q, t: f"v_lshlrev_b32 v{q}, 16, v{q}")
    each(lambda s, q, t: f"v_sqrt_f32 v{q}, v{q}")
    l.append(("gap", 1))
    each(lambda s, q, t: f"v_cvt_pk_bf16_f32 v{q}, v{q}, v{q}")
    each(lambda s, q, t: f"v_lshlrev_b32 v{q}, 16, v{q}")
    each(lambda s, q, t: f"v_rcp_f32 v{q}, v{q}")
    l.append(("gap", 1))
    return l


def gen(a, label):
    kernel_header(a, label)
    c = Ctx(a)
    L_end = a.label("end")
    SX, SW, SWS, SK, SV, SSK, SWO, SKK, SOUT, SDBG = 4, 8, 12, 16, 20, 24, 28, 32, 36, 40
    s_wave, s_rb, s_g, s_p, s_b, s_rot = 44, 45, 46, 47, 48, 49
    s_ep = 50
    s_loc, s_xcc, s_D, s_wm0, s_rowbase, s_c, s_cl, s_half, s_ch, s_spin = 52, 53, 54, 55, 56, 57, 58, 59, 60, 61
    s_xq, s_xl, s_wq = 62, 66, 70
    t = 74
    s_x0m = 16
    s_flag = 18
    s_stile = 19
    nst = [0]

    def stamp(tag=""):
        if STAMP and (tag == FINE or (tag == "" and (not FINE or nst[0] == 0))):
            i = nst[0]
            assert i < 14, i
            c("s_memtime s[100:101]", "s_waitcnt lgkmcnt(0)", f"v_writelane_b32 v255, s100, {i+2}")
            nst[0] += 1

    V_LANE, V_LAM, V_Q, V_L16, V_XD, V_WD, V_BB, V_ROW, V_Z = 1, 2, 3, 4, 5, 6, 7, 8, 9
    VAE = 10
    CSQ, CSK, CSV = 26, 30, 34
    V_L8 = 35
    V_EPV = 36
    BC, BP, BP1, MC, MP, ONES = 38, 42, 46, 50, 52, 54
    V_WO = 58
    V_T0 = 62

    c("s_cmp_ge_u32 s2, 256", f"s_cbranch_scc1 {L_end}")
    if STAMP:
        c("s_memrealtime s[100:101]", "v_mov_b32 v255, 0", "s_waitcnt lgkmcnt(0)", "v_writelane_b32 v255, s100, 0")
    stamp()
    c("s_load_dwordx4 s[88:91], s[0:1], 0",
      "s_load_dwordx2 s[92:93], s[0:1], 16",
      "s_load_dwordx4 s[96:99], s[0:1], 32",
      "s_load_dwordx2 s[94:95], s[0:1], 88")
    c(f"v_and_b32 v{V_LANE}, 63, v0",
      "v_lshrrev_b32 v62, 6, v0",
      f"v_and_b32 v{V_LAM}, 15, v{V_LANE}",
      f"v_readfirstlane_b32 s{s_wave}, v62",
      f"v_lshrrev_b32 v{V_Q}, 4, v{V_LANE}",
      f"v_lshlrev_b32 v{V_L16}, 4, v{V_LANE}",
      f"v_mov_b32 v{V_Z}, 0",
      f"s_and_b32 s{s_rb}, s2, 7",
      f"s_lshl_b32 s{s_rb}, s{s_rb}, 2",
      f"s_lshr_b32 s{s_rot}, s2, 6",
      f"s_add_u32 s{s_rb}, s{s_rb}, s{s_rot}",
      f"s_lshr_b32 s{s_g}, s2, 3",
      f"s_and_b32 s{s_g}, s{s_g}, 7",
      f"s_lshr_b32 s{s_p}, s{s_rb}, 4",
      f"s_and_b32 s{s_b}, s{s_rb}, 15")
    if "nopf" not in EXP:
        Lpf = a.label("nopf")
        c(f"s_and_b32 s{t}, s2, 0x78",
          f"s_cmp_lg_u32 s{t}, 0",
          f"s_cbranch_scc1 {Lpf}",
          f"s_getpc_b64 s[{t+2}:{t+3}]",
          f"s_and_b32 s{t+2}, s{t+2}, 0xffffff00",
          f"v_lshlrev_b32 v62, 7, v0",
          f"v_min_u32 v62, CODE_LIMIT, v62",
          f"global_load_dword v253, v62, s[{t+2}:{t+3}]",
          f"{Lpf}:")
    c(f"s_lshl_b32 s{t}, s{s_wave}, 2",
      f"v_add_u32 v62, s{t}, v{V_Q}",
      f"v_xor_b32 v62, v62, v{V_LAM}",
      "v_lshlrev_b32 v62, 4, v62",
      f"v_lshl_add_u32 v{V_XD}, v{V_Q}, 11, v62")
    c(f"v_lshrrev_b32 v62, 3, v{V_LANE}",
      f"s_lshl_b32 s{t}, s{s_wave}, 3",
      f"v_add_u32 v62, s{t}, v62",
      "v_bfe_u32 v63, v62, 3, 1",
      "v_lshlrev_b32 v63, 1, v63",
      "v_bfe_u32 v64, v62, 1, 1",
      "v_or_b32 v63, v63, v64",
      f"v_bfe_u32 v64, v{V_LANE}, 1, 2",
      "v_xor_b32 v63, v63, v64",
      "v_lshlrev_b32 v63, 5, v63",
      f"v_and_b32 v64, 1, v{V_LANE}",
      "v_lshl_add_u32 v63, v64, 4, v63",
      f"v_mul_u32_u24 v{V_WD}, 3072, v62",
      f"v_add_u32 v{V_WD}, v{V_WD}, v63")
    c(f"s_lshl_b32 s{s_rowbase}, s{s_b}, 17",
      f"s_lshl_b32 s{t}, s{s_p}, 10",
      f"s_add_u32 s{s_rowbase}, s{s_rowbase}, s{t}",
      f"s_mul_i32 s{s_wm0}, s{s_wave}, 3072",
      f"s_add_u32 s{s_wm0}, s{s_wm0}, {L_R}")
    c(f"s_lshl_b32 s{t+1}, s{s_wave}, 13",
      f"s_add_u32 s{t+1}, s{t+1}, s{s_rowbase}",
      f"s_sub_u32 s{t+1}, s{t+1}, 32768",
      f"s_lshl_b32 s{t+2}, s{s_wave}, 10",
      f"s_lshl_b32 s{t+3}, s{s_g}, 7")
    for qi in range(4):
        c(f"s_add_u32 s{t}, s{s_rot}, {qi}",
          f"s_and_b32 s{t}, s{t}, 3",
          f"s_lshl_b32 s{s_xq+qi}, s{t}, 8",
          f"s_add_u32 s{s_xq+qi}, s{s_xq+qi}, s{t+1}",
          f"s_mul_i32 s{s_xl+qi}, s{t}, {XQ}",
          f"s_add_u32 s{s_xl+qi}, s{s_xl+qi}, s{t+2}",
          f"s_mul_i32 s{s_wq+qi}, s{t}, {4*98304}",
          f"s_add_u32 s{s_wq+qi}, s{s_wq+qi}, s{t+3}")
    s_wo = 82
    for e4 in range(4):
        c(f"s_add_u32 s{t}, s2, {e4}",
          f"s_and_b32 s{t}, s{t}, 3",
          f"s_mul_i32 s{s_wo+e4}, s{t}, 98304")
    c(f"s_cmp_eq_u32 s{s_wave}, 0",
      "s_cselect_b32 s86, 0xffff0000, -1",
      "s_mov_b32 s87, -1")
    c("s_waitcnt lgkmcnt(0)")
    srd(a, SX, 88, 89, 2 * MB)
    srd(a, SW, 90, 91, 512 * 1536 * 2)

    def xdma(qi, i):
        l = [f"s_add_u32 m0, s{s_xl+qi}, {L_X + i*4096}"]
        if i == 0:
            l += [f"s_cmp_lt_u32 s{s_wave}, 2",
                  f"s_cselect_b32 s{t}, {OOB}, s{s_xq+qi}",
                  ("vm", f"x{qi}", f"s_mov_b64 exec, s[86:87]\nbuffer_load_dwordx4 v{V_XD}, {sr(SX,4)}, s{t} offen lds\ns_mov_b64 exec, -1")]
        else:
            l += [f"s_add_u32 s{t}, s{s_xq+qi}, {i*32768}",
                  ("vm", f"x{qi}", f"buffer_load_dwordx4 v{V_XD}, {sr(SX,4)}, s{t} offen lds")]
        return l

    def wdma(ch):
        l = [f"s_add_u32 m0, s{s_wm0}, {(ch % NS)*12288}",
             f"s_add_u32 s{t}, s{s_wq+(ch>>2)}, s{s_wo+(ch&3)}"]
        for s in range(3):
            l.append(("vm", f"w{ch}", f"buffer_load_dwordx4 v{V_WD}, {sr(SW,4)}, s{t} offen offset:{1024*s} lds"))
        return l

    for i in range(5):
        c(xdma(0, i))
    c(wdma(0))
    srd(a, SWS, 94, 95, WS_SIZE)
    srd(a, SK, 96, 97, 2 * MB)
    srd(a, SV, 98, 99, 2 * MB)
    srd(a, SWO, 92, 93, 512 * 512 * 2)
    c("s_load_dwordx4 s[88:91], s[0:1], 48",
      "s_load_dwordx4 s[92:95], s[0:1], 64",
      "s_load_dwordx2 s[96:97], s[0:1], 80")
    TK, TV, TS = 184, 204, 212
    KF, SF, VF, OF = 228, 238, 246, 250
    UP = 112
    c(f"s_lshr_b32 s{t}, s2, 3",
      f"s_lshl_b32 s{t}, s{t}, 16",
      f"s_and_b32 s{t+1}, s2, 7",
      f"s_lshl_b32 s{t+2}, s{t+1}, 7",
      f"s_add_u32 s{t}, s{t}, s{t+2}",
      "v_and_b32 v64, 7, v0",
      "v_lshrrev_b32 v65, 3, v0",
      "v_lshlrev_b32 v66, 11, v65",
      "v_lshl_add_u32 v66, v64, 4, v66",
      f"v_add_u32 v66, s{t}, v66",
      "v_add_u32 v67, 0xfffff400, v66",
      "v_add_u32 v68, 0xfffff800, v66",
      "v_add_u32 v69, 0xfffffc00, v66")
    for ins in (f"buffer_load_dwordx4 {vr(TK,4)}, v67, {sr(SK,4)}, 0 offen",
                f"buffer_load_dwordx4 {vr(TK+4,4)}, v68, {sr(SK,4)}, 0 offen",
                f"buffer_load_dwordx4 {vr(TK+8,4)}, v69, {sr(SK,4)}, 0 offen",
                f"buffer_load_dwordx4 {vr(TK+12,4)}, v66, {sr(SK,4)}, 0 offen",
                f"buffer_load_dwordx4 {vr(TK+16,4)}, v66, {sr(SK,4)}, 0 offen offset:1024",
                f"buffer_load_dwordx4 {vr(TV,4)}, v66, {sr(SV,4)}, 0 offen",
                f"buffer_load_dwordx4 {vr(TV+4,4)}, v66, {sr(SV,4)}, 0 offen offset:1024"):
        if "notl" not in EXP:
            c(("vm", "T", ins))
    c("s_waitcnt lgkmcnt(0)")
    srd(a, SSK, 88, 89, 4096)
    srd(a, SKK, 90, 91, 2 * MB)
    srd(a, SOUT, 94, 95, 2 * MB)
    srd(a, SDBG, 96, 97, 256)
    c(f"s_lshl_b32 s{t+3}, s2, 2",
      f"s_load_dword s{s_D}, s[92:93], s{t+3}",
      f"s_getreg_b32 s{s_xcc}, hwreg(HW_REG_XCC_ID)",
      f"s_and_b32 s{s_xcc}, s{s_xcc}, 15",
      f"s_lshl_b32 s{t+2}, s{t+1}, 9",
      "v_lshlrev_b32 v67, 6, v64")
    for d in range(4):
        c(("vm", "T", f"buffer_load_dwordx4 {vr(TS+4*d,4)}, v67, {sr(SSK,4)}, s{t+2} offen offset:{16*d}"))
    Lq = a.label("noep")
    c(f"s_or_b32 s{t}, s2, s{s_wave}",
      f"s_cmp_lg_u32 s{t}, 0",
      f"s_cbranch_scc1 {Lq}",
      f"s_memrealtime s[{t+4}:{t+5}]",
      "s_waitcnt lgkmcnt(0)",
      f"s_or_b32 s{t+4}, s{t+4}, 1",
      f"v_mov_b32 v70, s{t+4}",
      f"v_mov_b32 v71, s{t+5}",
      "s_mov_b64 exec, 1",
      f"buffer_store_dwordx2 v[70:71], v{V_Z}, {sr(SDBG,4)}, 0 offen sc1",
      "s_mov_b64 exec, -1",
      f"{Lq}:")
    c(wdma(1))
    k = []
    k += [f"v_bfe_u32 v70, v{V_LANE}, 2, 2",
          f"v_and_b32 v71, 1, v{V_Q}",
          "v_lshlrev_b32 v71, 1, v71",
          "v_lshrrev_b32 v72, 1, v70",
          "v_or_b32 v71, v71, v72",
          f"v_xor_b32 v72, s{s_wave}, v71",
          "v_lshlrev_b32 v72, 5, v72",
          "v_lshl_add_u32 v72, v70, 7, v72",
          f"v_and_b32 v73, 3, v{V_LANE}",
          "v_lshl_add_u32 v72, v73, 3, v72",
          f"v_mul_u32_u24 v74, 3072, v{V_Q}",
          "v_add_u32 v72, v72, v74",
          f"v_add_u32 v{V_BB}, {L_R}, v72",
          f"v_lshl_add_u32 v72, v{V_Q}, 3, v70",
          "v_lshlrev_b32 v72, 7, v72",
          "v_lshl_add_u32 v72, v73, 3, v72",
          f"v_add_u32 v72, {L_R}, v72"]
    for nt in range(4):
        k += [f"v_xor_b32 v74, {nt}, v71", f"v_lshl_add_u32 v{V_WO+nt}, v74, 5, v72"]
    k += [f"s_lshl_b32 s{t+2}, s{s_wave}, 10"]
    for e4 in range(4):
        k += [f"s_add_u32 s{t+3}, s2, {e4}",
              f"s_and_b32 s{t+3}, s{t+3}, 3",
              f"s_lshl_b32 s{t+3}, s{t+3}, 2",
              f"v_add_u32 v70, s{t+3}, v{V_Q}",
              f"v_xor_b32 v70, v70, v{V_LAM}",
              "v_lshlrev_b32 v70, 4, v70",
              f"v_lshl_add_u32 v70, v{V_LAM}, 8, v70",
              f"v_subrev_u32 v70, s{t+2}, v70"]
        for qi in range(4):
            k.append(f"v_add_u32 v{VAE+4*qi+e4}, s{s_xl+qi}, v70")
    k += [f"v_lshlrev_b32 v{V_ROW}, 11, v{V_LAM}",
          f"v_lshl_add_u32 v{V_ROW}, v{V_Q}, 3, v{V_ROW}",
          f"v_lshlrev_b32 v{V_L8}, 3, v{V_LANE}",
          f"v_lshlrev_b32 v70, 2, v{V_Q}",
          f"v_mov_b32 v72, {NEG}",
          f"s_cmp_eq_u32 s{s_b}, 0",
          f"s_cselect_b32 s{t+2}, -1, 0",
          f"s_mov_b32 s{t+3}, s{t+2}"]
    for r in range(4):
        k += [f"v_add_u32 v71, {r}, v70",
              f"v_sub_u32 v71, v{V_LAM}, v71",
              "v_cmp_gt_u32 vcc, 8, v71",
              "v_add_u32 v71, 16, v71",
              f"v_cmp_gt_u32 {sr(t+4,2)}, 8, v71",
              f"v_cndmask_b32 v{BC+r}, v72, 0, vcc",
              f"v_cndmask_b32 v{74+r}, 0, -1, vcc",
              f"v_cndmask_b32 v{BP+r}, v72, 0, {sr(t+4,2)}",
              f"v_cndmask_b32 v{78+r}, 0, -1, {sr(t+4,2)}",
              f"v_cndmask_b32 v{BP1+r}, v{BP+r}, v72, {sr(t+2,2)}"]
    k.append(f"s_mov_b32 s{t+4}, 0xffff")
    for h in range(2):
        k += [f"v_bfi_b32 v{MC+h}, s{t+4}, v{74+2*h}, v{75+2*h}",
              f"v_bfi_b32 v{MP+h}, s{t+4}, v{78+2*h}, v{79+2*h}"]
    for r in range(4):
        k.append(f"v_mov_b32 v{ONES+r}, 0x3f803f80")
    k += [f"v_mul_u32_u24 v70, {XQ}, v{V_Q}",
          f"v_lshl_add_u32 v70, v{V_LAM}, 4, v70",
          f"ds_write_b128 v70, {vr(ONES,4)} offset:{L_X}"]
    k += [f"s_add_u32 s{s_stile}, s{s_wave}, 1",
          f"s_lshl_b32 s{s_stile}, s{s_stile}, 12",
          f"s_lshl_b32 s{s_flag}, s{s_rb}, 8",
          f"s_lshl_b32 s{t+2}, s{s_g}, 5",
          f"s_add_u32 s{s_flag}, s{s_flag}, s{t+2}",
          f"s_lshl_b32 s{t+2}, s{s_wave}, 3",
          f"s_add_u32 s{s_flag}, s{s_flag}, s{t+2}",
          f"s_lshr_b32 s{s_ch}, s{s_wave}, 1",
          f"s_and_b32 s{s_half}, s{s_wave}, 1",
          f"s_lshl_b32 s{s_c}, s2, 1",
          f"s_add_u32 s{s_c}, s{s_c}, s{s_ch}",
          f"s_lshl_b32 s{s_c}, s{s_c}, 12",
          f"s_mul_i32 s{s_cl}, s{s_ch}, {C_CH}"]
    c(k)
    c(wdma(2))
    c(("wait", ["T"]))
    tc = []
    for d in range(4):
        for r in range(5):
            tc.append(f"v_lshlrev_b32 v{KF+2*r}, 16, v{TK+4*r+d}")
            tc.append(f"v_and_b32 v{KF+2*r+1}, 0xffff0000, v{TK+4*r+d}")
        for j in range(4):
            for cc in range(2):
                src = TS + 4 * d + 2 * cc + (j >> 1)
                tc.append(f"v_and_b32 v{SF+2*j+cc}, 0xffff0000, v{src}" if j & 1 else f"v_lshlrev_b32 v{SF+2*j+cc}, 16, v{src}")
        for tt in range(2):
            tc.append(f"v_lshlrev_b32 v{VF+2*tt}, 16, v{TV+4*tt+d}")
            tc.append(f"v_and_b32 v{VF+2*tt+1}, 0xffff0000, v{TV+4*tt+d}")
        for tt in range(2):
            o = OF + 2 * tt
            tc.append(f"v_pk_mul_f32 {vr(o,2)}, {vr(KF+2*(tt+0),2)}, {vr(SF+6,2)}")
            for j in (2, 1, 0):
                tc.append(f"v_pk_fma_f32 {vr(o,2)}, {vr(KF+2*(3+tt-j),2)}, {vr(SF+2*j,2)}, {vr(o,2)}")
            tc.append(f"v_pk_mul_f32 {vr(o,2)}, {vr(o,2)}, {vr(VF+2*tt,2)}")
        tc.append(f"v_cvt_pk_bf16_f32 v{UP+2*d}, v{OF+2}, v{OF}")
        tc.append(f"v_cvt_pk_bf16_f32 v{UP+2*d+1}, v{OF+3}, v{OF+1}")
    groups = [xdma(1, i) for i in range(5)] + [wdma(3), wdma(4)]
    per = len(tc) // (len(groups) + 1)
    for i, l in enumerate(tc):
        if "notc" not in EXP:
            c(l)
        if (i + 1) % per == 0 and groups:
            c(groups.pop(0))
    assert not groups
    c("v_sub_u32 v67, 31, v65",
      "v_lshrrev_b32 v68, 2, v67",
      "v_xor_b32 v68, v68, v64",
      "v_lshlrev_b32 v68, 4, v68",
      "v_and_b32 v67, 3, v67",
      "v_lshl_add_u32 v68, v67, 2, v68",
      "v_lshl_add_u32 v68, v64, 10, v68",
      f"v_add_u32 v68, {L_TB}, v68")
    for i in range(8):
        c(f"ds_write_b32 v68, v{UP+i} offset:{128*i}")
    c("v_lshrrev_b32 v67, 3, v0",
      "v_lshrrev_b32 v68, 3, v67",
      "v_xor_b32 v68, v68, v64",
      "v_lshlrev_b32 v68, 4, v68",
      "v_lshl_add_u32 v68, v67, 7, v68",
      f"v_add_u32 v68, {L_TB}, v68",
      "v_xor_b32 v69, 64, v68",
      f"s_and_b32 s{t}, s2, 7",
      f"s_lshl_b32 s{t}, s{t}, 18",
      f"s_lshr_b32 s{t+1}, s2, 3",
      f"s_lshl_b32 s{t+1}, s{t+1}, 7",
      f"s_sub_u32 s{t}, s{t}, s{t+1}",
      f"s_add_u32 s{t}, s{t}, {U_OFF + 3968}",
      f"s_add_u32 s{t+1}, s{t}, {32*4096}",
      "v_lshlrev_b32 v67, 12, v67",
      "v_lshl_add_u32 v67, v64, 4, v67",
      ("wait", ["x0", "w0"], 0),
      "s_barrier",
      f"ds_read_b128 {vr(UP,4)}, v68",
      f"ds_read_b128 {vr(UP+4,4)}, v69 offset:4096")

    XS = [64 + 8, 96]
    XS = [184, 208]
    ACC = 108
    AQ, AK, AV = ACC, ACC + 20, ACC + 40
    SA = 168
    V_SB = 172
    V_EP = 174
    SU = 232

    def p1_reads(P, e):
        l = []
        slot = (e % NS) * 12288
        l.append(f"v_add_u32 v{V_SB}, s{s_stile}, v{VAE+e}")
        for s in range(3):
            for ss in range(2):
                l.append(f"ds_read_b64_tr_b16 {ar(12*e+4*s+2*ss,2)}, v{V_BB} offset:{slot+1024*s+512*ss}")
        for tl in range(5):
            l.append(f"ds_read_b128 {vr(XS[P]+4*tl,4)}, v{VAE+e} offset:{4096*tl}")
        l.append(f"ds_read_b128 {vr(XS[P]+20,4)}, v{V_SB}")
        return l

    c(p1_reads(0, 0))
    c(f"v_mov_b32 v{SA}, 0", f"v_mov_b32 v{SA+1}, 0", "s_waitcnt lgkmcnt(12)")
    c(("vm", "Tst", f"buffer_store_dwordx4 {vr(UP,4)}, v67, {sr(SWS,4)}, s{t} offen sc1"),
      ("vm", "Tst", f"buffer_store_dwordx4 {vr(UP+4,4)}, v67, {sr(SWS,4)}, s{t+1} offen sc1"))
    stamp()
    V_WOD = 176
    wod = [f"v_lshrrev_b32 v{V_T0}, 3, v{V_LANE}",
           f"v_bfe_u32 v{V_T0+1}, v{V_T0}, 1, 1",
           f"s_lshl_b32 s{t+5}, s{s_half}, 1",
           f"v_or_b32 v{V_T0+1}, s{t+5}, v{V_T0+1}",
           f"v_bfe_u32 v{V_WOD}, v{V_LANE}, 1, 2",
           f"v_xor_b32 v{V_T0+1}, v{V_T0+1}, v{V_WOD}",
           f"v_lshlrev_b32 v{V_T0+1}, 5, v{V_T0+1}",
           f"v_and_b32 v{V_WOD}, 1, v{V_LANE}",
           f"v_lshl_add_u32 v{V_T0+1}, v{V_WOD}, 4, v{V_T0+1}",
           f"v_lshl_add_u32 v{V_WOD}, v{V_T0}, 10, v{V_T0+1}",
           f"s_lshl_b32 s{t+6}, s{s_g}, 7",
           f"s_lshl_b32 s{t+5}, s{s_wave}, 13",
           f"s_add_u32 s{t+6}, s{t+6}, s{t+5}",
           f"s_lshl_b32 s{t+7}, s{s_wave}, 10"]

    def wodma(n):
        return [f"s_add_u32 m0, s{t+7}, {L_R + n*4096}",
                f"s_add_u32 s{t}, s{t+6}, {n*32768}",
                ("vm", "wo", f"buffer_load_dwordx4 v{V_WOD}, {sr(SWO,4)}, s{t} offen lds")]

    xsched = {0: [(2, 0), (2, 1)], 1: [(2, 2), (2, 3), (2, 4)], 2: [(3, 0), (3, 1)], 3: [(3, 2), (3, 3), (3, 4)]}
    V_HL, V_FT = 178, 182
    for e in range(16):
        P = e & 1
        need = []
        if e < 15:
            need = [f"w{e+1}"]
            if (e + 1) % 4 == 0:
                need.append(f"x{(e+1)//4}")
            if e == 4:
                need += ["Tst", "ep"]
        c(("wait", need, 0))
        if "nobar" not in EXP:
            c("s_barrier")
        sx = XS[P] + 20
        st_ops = []
        if "dot" in EXP:
            for i in range(4):
                c(f"v_dot2_f32_bf16 v{SA}, v{sx+i}, v{ONES}, v{SA}",
                  f"v_dot2_f32_bf16 v{SA+1}, v{sx+i}, v{sx+i}, v{SA+1}")
        else:
            for i in range(4):
                st_ops += [f"v_lshlrev_b32 v{SU}, 16, v{sx+i}",
                           f"v_and_b32 v{SU+1}, 0xffff0000, v{sx+i}",
                           f"v_add_f32 v{SA}, v{SA}, v{SU}",
                           f"v_fmac_f32 v{SA+1}, v{SU}, v{SU}",
                           f"v_add_f32 v{SA}, v{SA}, v{SU+1}",
                           f"v_fmac_f32 v{SA+1}, v{SU+1}, v{SU+1}"]
        if "stepstamp" in EXP and e in (2, 6, 10):
            stamp()
        other = []
        if e < 15:
            other += p1_reads(1 - P, e + 1)
        if e == 0:
            other.append(("vm", "ep", f"buffer_load_dwordx2 {vr(V_EP,2)}, v{V_Z}, {sr(SDBG,4)}, 0 offen sc1"))
        if e + NS < 16:
            other += wdma(e + NS)
        for (qi, i) in xsched.get(e, []):
            other += xdma(qi, i)
        if e == 7 and "nopf2" not in EXP:
            other += [f"s_lshl_b32 s{t}, s2, 13",
                      f"s_lshl_b32 s{t+1}, s{s_wave}, 11",
                      f"s_add_u32 s{t}, s{t}, s{t+1}",
                      ("vm", "pf", f"buffer_load_dwordx4 v[240:243], v{V_L16}, {sr(SKK,4)}, s{t} offen"),
                      ("vm", "pf", f"buffer_load_dwordx4 v[240:243], v{V_L16}, {sr(SKK,4)}, s{t} offen offset:1024"),
                      f"v_lshlrev_b32 v236, 18, v{V_LANE}",
                      ("vm", "pf", f"buffer_load_dword v237, v236, {sr(SWS,4)}, 0 offen"),
                      ("vm", "pf", f"buffer_load_dword v237, v236, {sr(SOUT,4)}, 0 offen")]
        if e == 10:
            other += wod
        if e == 11:
            other += wodma(15)
        if e >= 12:
            for n in range(3 * (e - 11), 3 * (e - 11) + 3):
                other += wodma(n)
        if e == 15:
            other += [f"s_lshl_b32 s{t+8}, s{s_rb}, 7",
                      f"s_add_u32 s{t+8}, s{t+8}, {F_HELLO}",
                      f"v_and_b32 v{V_T0}, 0x70, v{V_L16}",
                      ("vm", "hl", f"buffer_load_dwordx4 {vr(V_HL,4)}, v{V_T0}, {sr(SWS,4)}, s{t+8} offen sc1"),
                      f"s_lshr_b32 s{t+9}, s2, 5",
                      f"s_lshl_b32 s{t+9}, s{t+9}, 8",
                      f"s_add_u32 s{t+9}, s{t+9}, {F_T}",
                      f"v_and_b32 v{V_T0+1}, 0xf8, v{V_L8}",
                      ("vm", "hl", f"buffer_load_dwordx2 {vr(V_FT,2)}, v{V_T0+1}, {sr(SWS,4)}, s{t+9} offen sc1")]
        if e == 4:
            Lp, Lok, Lnf = a.label("ep"), a.label("epok"), a.label("nf")
            c(f"s_mov_b32 s{s_spin}, 0",
              f"{Lp}:",
              f"v_readfirstlane_b32 s{s_ep}, v{V_EP}",
              f"v_readfirstlane_b32 s{s_ep+1}, v{V_EP+1}",
              f"s_add_u32 s{s_spin}, s{s_spin}, 1",
              f"s_cmp_lg_u32 s{s_ep}, 0",
              f"s_cbranch_scc1 {Lok}",
              f"s_cmp_gt_u32 s{s_spin}, {SPIN_MAX}",
              f"s_cbranch_scc1 {Lok}",
              "s_sleep 2",
              f"buffer_load_dwordx2 {vr(V_EP,2)}, v{V_Z}, {sr(SDBG,4)}, 0 offen sc1",
              "s_waitcnt vmcnt(0)",
              f"s_branch {Lp}",
              f"{Lok}:",
              f"v_mov_b32 v{V_EPV}, s{s_ep}",
              f"v_mov_b32 v{V_EPV+1}, s{s_ep+1}",
              f"s_cmp_lg_u32 s{s_wave}, 0",
              f"s_cbranch_scc1 {Lnf}",
              f"v_mov_b32 v{V_HL}, s{s_ep}",
              f"v_mov_b32 v{V_HL+1}, s{s_ep+1}",
              f"v_mov_b32 v{V_HL+2}, s{s_xcc}",
              f"v_mov_b32 v{V_HL+3}, 0",
              f"s_and_b32 s{t}, s2, 7",
              f"s_lshl_b32 s{t}, s{t}, 8",
              f"s_and_b32 s{t+1}, s2, 0xf8",
              f"s_add_u32 s{t}, s{t}, s{t+1}",
              f"s_add_u32 s{t}, s{t}, {F_T}",
              f"s_lshl_b32 s{t+1}, s{s_rb}, 7",
              f"s_lshl_b32 s{t+2}, s{s_g}, 4",
              f"s_add_u32 s{t+1}, s{t+1}, s{t+2}",
              f"s_add_u32 s{t+1}, s{t+1}, {F_HELLO}",
              "s_mov_b64 exec, 1",
              f"buffer_store_dwordx2 {vr(V_HL,2)}, v{V_Z}, {sr(SWS,4)}, s{t} offen sc1",
              f"buffer_store_dwordx4 {vr(V_HL,4)}, v{V_Z}, {sr(SWS,4)}, s{t+1} offen sc1",
              "s_mov_b64 exec, -1",
              f"{Lnf}:")
        mf = []
        wq, wk, wv = ar(12 * e, 4), ar(12 * e + 4, 4), ar(12 * e + 8, 4)
        for tl in range(5):
            x = vr(XS[P] + 4 * tl, 4)
            for (acc, A_, B_) in ((AQ + 4 * tl, wq, x), (AK + 4 * tl, wk, x), (AV + 4 * tl, x, wv)):
                mf.append(f"v_mfma_f32_16x16x32_bf16 {vr(acc,4)}, {A_}, {B_}, {vr(acc,4) if e else 0}")
        mix = []
        no, ns = len(other), len(st_ops)
        io = 0
        for j, so in enumerate(st_ops):
            while io < (j + 1) * no // max(ns, 1):
                mix.append(other[io])
                io += 1
            mix.append(so)
        mix += other[io:]
        c.merge(mf, mix)
    stamp()
    HR = 64
    c(f"v_lshrrev_b32 v72, 5, v{V_LANE}",
      f"s_lshl_b32 s{t}, s{s_wave}, 1",
      f"s_add_u32 s{t}, s{t}, 8",
      f"v_add_u32 v72, s{t}, v72",
      "v_lshlrev_b32 v72, 8, v72",
      f"v_lshl_add_u32 v72, v{V_LAM}, 4, v72",
      f"v_and_b32 v73, 1, v{V_Q}",
      f"v_mul_u32_u24 v73, {XQ}, v73",
      "v_add_u32 v72, v72, v73",
      f"ds_read_b128 {vr(HR,4)}, v72 offset:{L_X}",
      f"ds_read_b128 {vr(HR+4,4)}, v72 offset:{L_X+2*XQ}",
      f"v_mov_b32 v{SA+2}, 0",
      f"v_mov_b32 v{SA+3}, 0",
      f"v_lshlrev_b32 v74, 2, v{V_LAM}")
    for r in range(4):
        c(f"v_mov_b32_dpp v{CSQ+r}, v{AQ+r} row_newbcast:0 row_mask:0xf bank_mask:0xf",
          f"v_mov_b32_dpp v{CSK+r}, v{AK+r} row_newbcast:0 row_mask:0xf bank_mask:0xf")
    c(f"ds_bpermute_b32 v{CSV}, v74, v{AV}",
      "s_waitcnt lgkmcnt(0)",
      "s_barrier")
    STA, STB = 94, 196
    QP, KP, VP = 64, 74, 84
    def read_stats(vlam8):
        l = [f"ds_read_b64 {vr(STA+2*tl,2)}, v{vlam8} offset:{128*tl}" for tl in range(5)]
        l += [f"v_lshlrev_b32 v{V_T0}, 5, v{V_Q}", f"v_add_u32 v{V_T0}, {L_ST}, v{V_T0}"]
        for tl in range(5):
            l += [f"ds_read_b128 {vr(STB+8*tl,4)}, v{V_T0} offset:{128*tl}",
                  f"ds_read_b128 {vr(STB+8*tl+4,4)}, v{V_T0} offset:{128*tl+16}"]
        return l

    def poll(check_lines, reload_lines, name, sleep=1):
        Lp, Ld = a.label(name), a.label(name + "d")
        c(f"s_mov_b32 s{s_spin}, 0", f"{Lp}:")
        c(check_lines)
        c(f"s_add_u32 s{s_spin}, s{s_spin}, 1",
          f"s_cmp_gt_u32 s{s_spin}, {SPIN_MAX}",
          f"s_cbranch_scc1 {Ld}",
          "s_nop 1",
          f"s_cbranch_vccz {Ld}",
          f"s_sleep {sleep}")
        c(reload_lines)
        c("s_waitcnt vmcnt(0)", f"s_branch {Lp}", f"{Ld}:")

    def chk_ep(regs_lo, tmp):
        l = []
        for n, lo in enumerate(regs_lo):
            if n == 0:
                l.append(f"v_xor_b32 v{tmp}, s{s_ep}, v{lo}")
            else:
                l.append(f"v_xor_b32 v{tmp+1}, s{s_ep}, v{lo}")
                l.append(f"v_or_b32 v{tmp}, v{tmp}, v{tmp+1}")
            l.append(f"v_xor_b32 v{tmp+1}, s{s_ep+1}, v{lo+1}")
            l.append(f"v_or_b32 v{tmp}, v{tmp}, v{tmp+1}")
        l.append(f"v_cmp_ne_u32 vcc, 0, v{tmp}")
        return l

    PT = 104
    c(f"v_and_b32 v{PT}, 0x70, v{V_L16}", f"v_and_b32 v{PT+1}, 0xf8, v{V_L8}")
    c(("wait", ["hl"]))
    poll(chk_ep([V_HL, V_FT], 106),
         [f"buffer_load_dwordx4 {vr(V_HL,4)}, v{PT}, {sr(SWS,4)}, s{t+8} offen sc1",
          f"buffer_load_dwordx2 {vr(V_FT,2)}, v{PT+1}, {sr(SWS,4)}, s{t+9} offen sc1"], "phl")
    c(f"v_cmp_ne_u32 vcc, s{s_xcc}, v{V_HL+2}",
      f"s_lshl_b32 s{t+3}, s{s_half}, 11",
      f"s_add_u32 s{t+4}, s{s_c}, s{t+3}",
      f"s_add_u32 s{t+4}, s{t+4}, {U_OFF}",
      f"s_add_u32 m0, s{s_cl}, s{t+3}",
      "s_nop 0",
      ("vm", "cu", f"buffer_load_dwordx4 v{V_L16}, {sr(SWS,4)}, s{t+4} offen sc1 lds"),
      ("vm", "cu", f"buffer_load_dwordx4 v{V_L16}, {sr(SWS,4)}, s{t+4} offen offset:1024 sc1 lds"),
      "s_cmp_eq_u64 vcc, 0",
      f"s_cselect_b32 s{s_loc}, 1, 0")
    V_FX, V_FI = 184, 185
    dm = []
    for i in range(2):
        g0 = [f"s_lshl_b32 s{t+3}, s{s_half}, 1",
              f"s_add_u32 s{t+3}, s{t+3}, {i}",
              f"s_mul_i32 s{t+5}, s{t+3}, {C_KS}",
              f"s_add_u32 s{t+5}, s{t+5}, s{s_cl}",
              f"s_add_u32 s{t+10+i}, s{t+5}, {C_K+32}",
              f"s_lshl_b32 s{t+3}, s{t+3}, 1",
              f"s_add_u32 s{t+12+i}, s{s_c}, s{t+3}"]
        c(g0)
        for n in range(4):
            dm.append([f"s_mov_b32 m0, s{t+10+i}", "s_nop 0",
                       ("vm", "ck", f"buffer_load_dwordx4 v{V_L16}, {sr(SKK,4)}, s{t+12+i} offen offset:{1024*n} lds")])
    for n in range(3):
        dm.append(wodma(n))
    c(f"v_add_u32 v{V_FI}, v{V_LAM}, v{V_Q}",
      f"v_subrev_u32 v{V_FI}, 16, v{V_FI}",
      f"v_max_i32 v74, 0, v{V_FI}",
      "v_lshlrev_b32 v74, 1, v74",
      ("vm", "ck", f"buffer_load_ushort v{V_FX}, v74, {sr(SKK,4)}, s{s_c} offen"))

    def with_dmas(main, groups, every):
        n = 0
        for it in main:
            c(it)
            n += 1
            if n % every == 0 and groups:
                c(groups.pop(0))

    TT = 72
    ep = []
    for i in range(8):
        ep.append(f"v_dot2_f32_bf16 v{SA+2}, v{HR+i}, v{ONES}, v{SA+2}")
        ep.append(f"v_dot2_f32_bf16 v{SA+3}, v{HR+i}, v{HR+i}, v{SA+3}")
    ep.append(("gap", 3))
    for sh in (8, 4, 2, 1):
        ep += [f"v_add_f32_dpp v{SA+2}, v{SA+2}, v{SA+2} row_ror:{sh} row_mask:0xf bank_mask:0xf",
               f"v_add_f32_dpp v{SA+3}, v{SA+3}, v{SA+3} row_ror:{sh} row_mask:0xf bank_mask:0xf",
               ("gap", 1)]
    ep += xq_reduce("v_add_f32", [SA, SA + 1, SA + 2, SA + 3], [TT, TT + 1, TT + 2, TT + 3], ("v_permlane16_swap_b32",))
    ep += xq_reduce("v_add_f32", [SA, SA + 1], [TT, TT + 1], ("v_permlane32_swap_b32",))
    ep += stats_fin([(SA, SA + 1), (SA + 2, SA + 3)], [TT, TT + 1])
    ep += [f"v_lshlrev_b32 v{TT}, 3, v{V_LAM}",
           f"s_lshr_b32 s{t+1}, s{s_stile}, 5",
           f"s_add_u32 s{t+1}, s{t+1}, {L_ST}",
           f"v_add_u32 v{TT+1}, s{t+1}, v{TT}",
           f"ds_write_b64 v{TT+1}, {vr(SA,2)}",
           f"v_lshrrev_b32 v{TT+1}, 5, v{V_LANE}",
           f"v_lshlrev_b32 v{TT+1}, 3, v{TT+1}",
           f"s_lshl_b32 s{t+1}, s{s_wave}, 4",
           f"s_add_u32 s{t+1}, s{t+1}, {L_ST + 64}",
           f"v_add_u32 v{TT+1}, s{t+1}, v{TT+1}",
           f"ds_write_b64 v{TT+1}, {vr(SA+2,2)}",
           f"v_and_b32 v{TT+1}, 0x38, v{TT}",
           f"v_add_u32 v{TT+1}, {L_ST}, v{TT+1}",
           f"v_mov_b32 v{TT+2}, 0",
           f"v_mov_b32 v{TT+3}, 1.0",
           f"ds_write_b64 v{TT+1}, {vr(TT+2,2)}",
           f"v_add_u32 v{TT}, {L_ST}, v{TT}"]
    with_dmas(ep, dm, 12)
    c("s_waitcnt lgkmcnt(0)", "s_barrier")

    c(read_stats(TT), "s_waitcnt lgkmcnt(0)")

    def normalize(tl, pk, VP):
        l = []
        mean, rstd = STA + 2 * tl, STA + 2 * tl + 1
        for (acc, cs, dst, on) in ((AQ + 4 * tl, CSQ, QP + 2 * tl, tl > 0), (AK + 4 * tl, CSK, KP + 2 * tl, True)):
            if not on:
                continue
            if pk:
                for h in range(2):
                    l.append(f"v_pk_fma_f32 {vr(acc+2*h,2)}, {vr(cs+2*h,2)}, {vr(mean,2)}, {vr(acc+2*h,2)} op_sel_hi:[1,0,1] neg_lo:[0,1,0] neg_hi:[0,1,0]")
                for h in range(2):
                    l.append(f"v_pk_mul_f32 {vr(acc+2*h,2)}, {vr(acc+2*h,2)}, {vr(mean,2)} op_sel:[0,1]")
            else:
                for r in range(4):
                    l.append(f"v_fma_f32 v{acc+r}, -v{mean}, v{cs+r}, v{acc+r}")
                for r in range(4):
                    l.append(f"v_mul_f32 v{acc+r}, v{rstd}, v{acc+r}")
            l.append(f"v_cvt_pk_bf16_f32 v{dst}, v{acc}, v{acc+1}")
            l.append(f"v_cvt_pk_bf16_f32 v{dst+1}, v{acc+2}, v{acc+3}")
        acc = AV + 4 * tl
        for r in range(4):
            l.append(f"v_fma_f32 v{acc+r}, -v{STB+8*tl+2*r}, v{CSV}, v{acc+r}")
        for r in range(4):
            l.append(f"v_mul_f32 v{acc+r}, v{STB+8*tl+2*r+1}, v{acc+r}")
        l.append(f"v_cvt_pk_bf16_f32 v{VP+2*tl}, v{acc}, v{acc+1}")
        l.append(f"v_cvt_pk_bf16_f32 v{VP+2*tl+1}, v{acc+2}, v{acc+3}")
        return l

    V_OA = 254
    s_oa = 20
    oaddr = [f"s_lshl_b32 s{t}, s{s_g}, 2",
             f"s_add_u32 s{t}, s{t}, s{s_wave}",
             f"s_lshr_b32 s{t+1}, s{t}, 1",
             f"s_lshl_b32 s{t+1}, s{t+1}, 10",
             f"s_and_b32 s{t}, s{t}, 1",
             f"s_lshl_b32 s{t}, s{t}, 9",
             f"s_add_u32 s{t}, s{t}, s{t+1}",
             f"s_lshl_b32 s{t+1}, s{s_rb}, 16",
             f"s_add_u32 s{s_oa}, s{t}, s{t+1}",
             f"v_lshrrev_b32 v{V_OA}, 1, v{V_Q}",
             f"v_lshlrev_b32 v{V_OA}, 8, v{V_OA}",
             f"v_lshl_add_u32 v{V_OA}, v{V_LAM}, 4, v{V_OA}",
             f"v_and_b32 v{V_T0+1}, 1, v{V_Q}",
             f"v_lshl_add_u32 v{V_OA}, v{V_T0+1}, 3, v{V_OA}"]

    def attn_tiles(tiles, VP, regs, pk):
        SC, SP, MX, MT, PP, OO, LL = (regs[k_] for k_ in ("SC", "SP", "MX", "MT", "PP", "OO", "LL"))
        n = len(tiles)
        l = [("gap", 2)]
        for j, i in enumerate(tiles):
            l.append(f"v_mfma_f32_16x16x16_bf16 {vr(SC+4*j,4)}, {vr(KP+2*i,2)}, {vr(QP+2*i,2)}, {vr(BC,4)}")
            l.append(f"v_mfma_f32_16x16x16_bf16 {vr(SP+4*j,4)}, {vr(KP+2*(i-1),2)}, {vr(QP+2*i,2)}, {vr(BP1 if i == 1 else BP,4)}")
        l.append(("gap", max(8 - 2 * (n - 1), 1) if n < 4 else 2))
        if n >= 2:
            pass
        for j in range(n):
            if j == n - 1 and n > 1:
                l.append(("gap", 2))
            for r in range(4):
                l.append(f"v_max_f32 v{SC+4*j+r}, v{SC+4*j+r}, v{SP+4*j+r}")
            l.append(f"v_max3_f32 v{MX+j}, v{SC+4*j}, v{SC+4*j+1}, v{SC+4*j+2}")
            l.append(f"v_max_f32 v{MX+j}, v{MX+j}, v{SC+4*j+3}")
        l += xq_reduce("v_max_f32", [MX + j for j in range(n)], [MT + j for j in range(n)])
        for j in range(n):
            l.append(f"v_mul_f32 v{MX+j}, 0x3eb8aa3b, v{MX+j}")
        for j in range(n):
            for r in range(4):
                l.append(f"v_fma_f32 v{SC+4*j+r}, v{SC+4*j+r}, s{s_cexp}, -v{MX+j}")
        for j in range(n):
            for r in range(4):
                l.append(f"v_exp_f32 v{SC+4*j+r}, v{SC+4*j+r}")
        l.append(("gap", 1))
        for j in range(n):
            l += [f"v_cvt_pk_bf16_f32 v{SP+4*j}, v{SC+4*j}, v{SC+4*j+1}",
                  f"v_cvt_pk_bf16_f32 v{SP+4*j+1}, v{SC+4*j+2}, v{SC+4*j+3}",
                  f"v_and_b32 v{PP+4*j}, v{MP}, v{SP+4*j}",
                  f"v_and_b32 v{PP+4*j+1}, v{MP+1}, v{SP+4*j+1}",
                  f"v_and_b32 v{PP+4*j+2}, v{MC}, v{SP+4*j}",
                  f"v_and_b32 v{PP+4*j+3}, v{MC+1}, v{SP+4*j+1}"]
        l.append(("gap", 2))
        for j, i in enumerate(tiles):
            l.append(f"v_mfma_f32_16x16x32_bf16 {vr(LL+4*j,4)}, {vr(ONES,4)}, {vr(PP+4*j,4)}, 0")
            l.append(f"v_mfma_f32_16x16x32_bf16 {vr(OO+4*j,4)}, {vr(VP+2*(i-1),4)}, {vr(PP+4*j,4)}, 0")
        l.append(("gap", 8))
        for j in range(n):
            l.append(f"v_rcp_f32 v{LL+4*j}, v{LL+4*j}")
        l.append(("gap", 1))
        for j in range(n):
            if pk:
                l += [f"v_pk_mul_f32 {vr(OO+4*j,2)}, {vr(OO+4*j,2)}, {vr(LL+4*j,2)} op_sel_hi:[1,0]",
                      f"v_pk_mul_f32 {vr(OO+4*j+2,2)}, {vr(OO+4*j+2,2)}, {vr(LL+4*j,2)} op_sel_hi:[1,0]"]
            else:
                l += [f"v_mul_f32 v{OO+4*j+r}, v{LL+4*j}, v{OO+4*j+r}" for r in range(4)]
            l += [f"v_cvt_pk_bf16_f32 v{OO+4*j}, v{OO+4*j}, v{OO+4*j+1}",
                  f"v_cvt_pk_bf16_f32 v{OO+4*j+1}, v{OO+4*j+2}, v{OO+4*j+3}"]
        return l

    def dual_store(lines_fn, tag, nops):
        Lg, Lj = a.label("sg"), a.label("sj")
        c(f"s_cmp_eq_u32 s{s_loc}, 0", f"s_cbranch_scc1 {Lg}")
        c(lines_fn(""))
        c(f"s_branch {Lj}", f"{Lg}:")
        c(lines_fn(" sc1"))
        c(f"{Lj}:")
        c.q += [tag] * nops

    def wave_flag(f_off, sc1_only=False):
        c(f"s_add_u32 s{t}, s{s_flag}, {f_off}", "s_mov_b64 exec, 1")
        if sc1_only:
            c(("vm", "fl", f"buffer_store_dwordx2 {vr(V_EPV,2)}, v{V_Z}, {sr(SWS,4)}, s{t} offen sc1"))
        else:
            dual_store(lambda fl: [f"buffer_store_dwordx2 {vr(V_EPV,2)}, v{V_Z}, {sr(SWS,4)}, s{t} offen{fl}"], "fl", 1)
        c("s_mov_b64 exec, -1")

    s_cexp = 17
    c(f"s_mov_b32 s{s_cexp}, 0x3eb8aa3b")
    R1 = dict(SC=108, SP=124, MX=140, MT=144, PP=148, OO=196, LL=212)
    main = []
    for tl in range(5):
        main += normalize(tl, True, VP)
    with_dmas(main, dm, 16)
    assert not dm

    def o_stores(o_off, OO, tiles):
        def f(fl):
            l = []
            for j, i in enumerate(tiles):
                l += [f"s_add_u32 s{t+1}, s{s_oa}, {o_off + (i-1)*16384}",
                      f"buffer_store_dwordx2 {vr(OO+4*j,2)}, v{V_OA}, {sr(SWS,4)}, s{t+1} offen{fl}"]
            return l
        dual_store(f, "ost", len(tiles))

    stamp()
    CA, CB, C2, C3, C4, C5, C6 = 94, 95, 96, 97, 98, 99, 100
    c(f"v_add_u32 v{V_T0}, s{s_cl}, v{V_L8}",
      f"v_mov_b32 v{C2}, 0",
      f"v_mov_b32 v{C3}, 0",
      f"ds_write_b64 v{V_T0}, {vr(C2,2)} offset:{C_U+4096}",
      f"v_mul_u32_u24 v{C4}, {C_KS}, v{V_Q}",
      f"v_lshl_add_u32 v{C4}, v{V_LAM}, 1, v{C4}",
      f"s_add_u32 s{t+5}, s{s_cl}, {C_K}",
      f"v_add_u32 v{C4}, s{t+5}, v{C4}",
      f"v_cmp_gt_i32 vcc, 0, v{V_FI}",
      f"v_add_u32 v{CA}, 1, v{V_LAM}",
      f"v_and_b32 v{CB}, 3, v{CA}",
      f"v_mul_u32_u24 v{CB}, {C_KS}, v{CB}",
      f"v_and_b32 v{CA}, 0x1c, v{CA}",
      f"v_lshl_add_u32 v{CB}, v{CA}, 1, v{CB}",
      f"v_lshl_add_u32 v{CB}, v{V_Q}, 4, v{CB}",
      f"s_lshl_b32 s{t+3}, s{s_half}, 8",
      f"s_add_u32 s{t+3}, s{t+3}, s{s_cl}",
      f"s_add_u32 s{t+5}, s{t+3}, {C_K}",
      f"v_add_u32 v{CA}, s{t+5}, v{CB}",
      f"v_lshlrev_b32 v{CB}, 5, v{V_LAM}",
      f"v_sub_u32 v{CB}, 480, v{CB}",
      f"v_lshl_add_u32 v{CB}, v{V_Q}, 4, v{CB}",
      f"v_add_u32 v{CB}, s{t+3}, v{CB}",
      ("wait", ["ck", "cu"]),
      f"v_cndmask_b32 v{V_FX}, v{V_FX}, 0, vcc",
      f"ds_write_b16 v{C4}, v{V_FX}",
      "s_waitcnt lgkmcnt(0)", "s_barrier")
    CACC = 104
    V_FO = 232
    V_FA = 236

    def creg(P, off, n):
        return vr(136 + off, n) if P == 0 else ar(192 + off, n)

    def creads(P, rp):
        l = []
        for j in range(8):
            l.append(f"ds_read_b128 {creg(P,32+4*j,4)}, v{CB} offset:{64*rp+512*(7-j)}")
            l.append(f"ds_read_b64 {creg(P,4*j,2)}, v{CA} offset:{64*rp+512*j}")
            l.append(f"ds_read_b64 {creg(P,4*j+2,2)}, v{CA} offset:{64*rp+512*j+8}")
        return l

    def flags_load(f_off, rb_sgpr, dst, sreg):
        return [f"s_lshl_b32 s{sreg}, s{rb_sgpr}, 8",
                f"s_add_u32 s{sreg}, s{sreg}, {f_off}",
                ("vm", "fo", f"buffer_load_dwordx2 {vr(dst,2)}, v{V_FA}, {sr(SWS,4)}, s{sreg} offen sc1")]

    def flags_poll(dst, sreg, tmp, name):
        c(("wait", ["fo"]))
        poll(chk_ep([dst], tmp), [f"buffer_load_dwordx2 {vr(dst,2)}, v{V_FA}, {sr(SWS,4)}, s{sreg} offen sc1"], name)

    c(creads(0, 0))
    KEEP, UU, PR, UF = 136, 152, 160, 176
    pre_ep = [f"v_and_b32 v{V_FA}, 0xf8, v{V_L8}"] + oaddr + [
        f"s_lshl_b32 s{t+3}, s{s_wave}, 12",
        f"s_add_u32 s{t+3}, s{t+3}, {C_RED}",
        f"v_add_u32 v{C2}, s{t+3}, v{V_L16}",
        f"s_xor_b32 s{t+3}, s{s_wave}, 1",
        f"s_lshl_b32 s{t+3}, s{t+3}, 12",
        f"s_add_u32 s{t+3}, s{t+3}, {C_RED}",
        f"v_add_u32 v{C3}, s{t+3}, v{V_L16}",
        f"v_lshlrev_b32 v{C4}, 5, v{V_LAM}",
        f"v_lshl_add_u32 v{C4}, v{V_Q}, 3, v{C4}",
        f"s_lshl_b32 s{t+3}, s{s_half}, 11",
        f"s_sub_u32 s{t+3}, s{s_cl}, s{t+3}",
        f"s_add_u32 s{t+3}, s{t+3}, {C_U + 4088 - 1536}",
        f"v_sub_u32 v{C4}, s{t+3}, v{C4}",
        f"s_lshl_b32 s{t+3}, s{s_wave}, 11",
        f"s_add_u32 s{t+3}, s{t+3}, {C_TR}",
        f"v_lshlrev_b32 v{C5}, 4, v{V_LAM}",
        f"v_lshl_add_u32 v{C5}, v{V_Q}, 2, v{C5}",
        f"v_add_u32 v{C5}, s{t+3}, v{C5}",
        f"v_add_u32 v{C6}, s{t+3}, v{V_L16}",
        f"v_lshrrev_b32 v101, 5, v{V_LANE}",
        "v_lshlrev_b32 v101, 8, v101",
        f"v_and_b32 v102, 1, v{V_Q}",
        "v_lshl_add_u32 v101, v102, 11, v101",
        f"v_lshl_add_u32 v101, v{V_LAM}, 4, v101",
        f"s_lshl_b32 s{t+4}, s{s_half}, 10",
        f"s_add_u32 s{t+4}, s{t+4}, s{s_c}",
        f"s_add_u32 s{t+4}, s{t+4}, {Y_OFF}",
        f"s_lshl_b32 s{t+3}, s{s_D}, 16",
        f"s_and_b32 s{t+5}, s{s_D}, 0xffff0000",
        f"s_cmp_eq_u32 s{s_ch}, 0",
        f"s_cselect_b32 s{t+3}, s{t+3}, s{t+5}"]
    pre_ep += [f"ds_read_b64 {vr(UU+2*i,2)}, v{C4} offset:{512*(3-i)}" for i in range(4)]
    pre_ep += ["s_waitcnt lgkmcnt(0)"]
    for i in range(4):
        pre_ep += [f"v_and_b32 v{UF+4*i}, 0xffff0000, v{UU+2*i+1}",
                   f"v_lshlrev_b32 v{UF+4*i+1}, 16, v{UU+2*i+1}",
                   f"v_and_b32 v{UF+4*i+2}, 0xffff0000, v{UU+2*i}",
                   f"v_lshlrev_b32 v{UF+4*i+3}, 16, v{UU+2*i}"]
    pre_ep += [f"v_mul_f32 v{UF+r}, s{t+3}, v{UF+r}" for r in range(16)]
    for rp in range(4):
        P = rp & 1
        c("s_waitcnt lgkmcnt(0)")
        side = creads(1 - P, rp + 1) if rp < 3 else pre_ep
        mf = []
        for j in range(8):
            for i in range(j, 8):
                cc = vr(CACC + 4 * i, 4) if (rp or j) else 0
                mf.append(f"v_mfma_f32_16x16x32_bf16 {vr(CACC+4*i,4)}, {creg(P,4*j,4)}, {creg(P,32+4*(i-j),4)}, {cc}")
        c.merge(mf, side, 2 if rp == 3 else 0.5)
    OFR = 192

    def o_loads(o_off):
        g = []
        for st in range(4):
            for i in range(4):
                e = 4 * st + i
                l = []
                if i == 0:
                    l.append(f"s_add_u32 s{t+11}, s{t+10}, {st*4096}")
                l.append(("vm", f"o{e}", f"buffer_load_dwordx4 {ar(OFR+4*e,4)}, v{V_L16}, {sr(SWS,4)}, s{t+11} offen offset:{1024*i} sc1"))
                g.append(l)
        pre = [f"s_lshl_b32 s{t+10}, s{s_rb}, 16",
               f"s_lshl_b32 s{t+11}, s{s_wave}, 14",
               f"s_add_u32 s{t+10}, s{t+10}, s{t+11}",
               f"s_add_u32 s{t+10}, s{t+10}, {o_off}"]
        return pre, g

    L1, L2 = a.label("cvh"), a.label("cvj")
    c("s_nop 5", f"s_cmp_eq_u32 s{s_half}, 0", f"s_cbranch_scc0 {L1}")
    for i in range(4):
        c(f"ds_write_b128 v{C2}, {vr(CACC+16+4*i,4)} offset:{1024*i}")
    for r in range(8):
        c(f"v_pk_add_f32 {vr(KEEP+2*r,2)}, {vr(CACC+2*r,2)}, {vr(UF+2*r,2)}")
    c(f"s_branch {L2}", f"{L1}:")
    for i in range(4):
        c(f"ds_write_b128 v{C2}, {vr(CACC+4*i,4)} offset:{1024*i}")
    for r in range(8):
        c(f"v_pk_add_f32 {vr(KEEP+2*r,2)}, {vr(CACC+16+2*r,2)}, {vr(UF+2*r,2)}")
    c(f"{L2}:", "s_waitcnt lgkmcnt(0)", "s_barrier")
    c([f"ds_read_b128 {vr(PR+4*i,4)}, v{C3} offset:{1024*i}" for i in range(4)])
    for i in range(4):
        c(f"s_waitcnt lgkmcnt({3-i})" if i == 0 else f"s_waitcnt lgkmcnt({3-i+2*i})",
          f"v_pk_add_f32 {vr(KEEP+4*i,2)}, {vr(KEEP+4*i,2)}, {vr(PR+4*i,2)}",
          f"v_pk_add_f32 {vr(KEEP+4*i+2,2)}, {vr(KEEP+4*i+2,2)}, {vr(PR+4*i+2,2)}")
        for par in range(2):
            c(f"v_cvt_pk_bf16_f32 v{UF+2*i+par}, v{KEEP+4*i+par}, v{KEEP+4*i+2+par}",
              f"ds_write_b32 v{C5}, v{UF+2*i+par} offset:{(2*i+par)*256}")
    YS = 228
    c("s_waitcnt lgkmcnt(0)",
      f"ds_read_b128 {vr(YS,4)}, v{C6}",
      f"ds_read_b128 {vr(238,4)}, v{C6} offset:1024")
    att = attn_tiles([1, 2, 3, 4], VP, R1, True)
    c(att[:9])
    c("s_waitcnt lgkmcnt(0)",
      ("vm", "yst", f"buffer_store_dwordx4 {vr(YS,4)}, v101, {sr(SWS,4)}, s{t+4} offen sc1"),
      ("vm", "yst", f"buffer_store_dwordx4 {vr(238,4)}, v101, {sr(SWS,4)}, s{t+4} offen offset:512 sc1"))
    stamp()
    c(att[9:])
    o_stores(O1_OFF, R1["OO"], [1, 2, 3, 4])
    c(f"s_lshl_b32 s{t}, s{s_g}, 7", f"s_add_u32 s{s_rowbase}, s{s_rowbase}, s{t}")
    pre, og = o_loads(O1_OFF)
    c(pre)
    c(("drain",))
    wave_flag(F_O1)
    c(flags_load(F_O1, s_rb, V_FO, t + 8))
    Lny = a.label("nfy")
    c("s_barrier",
      f"s_cmp_lg_u32 s{s_wave}, 0",
      f"s_cbranch_scc1 {Lny}",
      f"s_lshl_b32 s{t}, s2, 3",
      f"s_add_u32 s{t}, s{t}, {F_Y}",
      "s_mov_b64 exec, 1",
      f"buffer_store_dwordx2 {vr(V_EPV,2)}, v{V_Z}, {sr(SWS,4)}, s{t} offen sc1",
      "s_mov_b64 exec, -1",
      f"{Lny}:")
    stamp()
    YR = 184
    s_yd = 22
    c(f"s_lshl_b32 s{t+7}, s{s_g}, 8",
      f"s_add_u32 s{t+7}, s{t+7}, {F_Y}",
      f"s_lshl_b32 s{t+9}, s{s_g}, 18",
      f"s_lshl_b32 s{t+1}, s{s_p}, 11",
      f"s_add_u32 s{t+9}, s{t+9}, s{t+1}",
      f"s_lshl_b32 s{t+1}, s{s_b}, 7",
      f"s_add_u32 s{t+9}, s{t+9}, s{t+1}",
      f"s_lshl_b32 s{t+1}, s{s_wave}, 5",
      f"s_add_u32 s{t+9}, s{t+9}, s{t+1}",
      f"s_add_u32 s{t+9}, s{t+9}, {Y_OFF}",
      f"v_lshlrev_b32 v75, 12, v{V_LANE}",
      f"s_lshl_b32 s{t+1}, s{s_wave}, 11",
      f"s_add_u32 s{t+1}, s{t+1}, {P2_YT}",
      f"v_lshlrev_b32 v78, 5, v{V_LANE}",
      f"v_add_u32 v78, s{t+1}, v78",
      f"v_bfe_u32 v79, v{V_LANE}, 2, 2",
      f"v_lshl_add_u32 v79, v{V_Q}, 2, v79",
      "v_lshlrev_b32 v79, 5, v79",
      f"v_and_b32 v76, 3, v{V_LANE}",
      "v_lshl_add_u32 v79, v76, 3, v79",
      f"v_add_u32 v79, s{t+1}, v79",
      f"s_mov_b32 s{s_yd}, 0")
    fyl = f"buffer_load_dwordx2 {vr(72,2)}, v{V_FA}, {sr(SWS,4)}, s{t+7} offen sc1"
    ylds = [f"buffer_load_dwordx4 {vr(224,4)}, v75, {sr(SWS,4)}, s{t+9} offen sc1",
            f"buffer_load_dwordx4 {vr(228,4)}, v75, {sr(SWS,4)}, s{t+9} offen offset:16 sc1"]
    flags_poll(V_FO, t + 8, 68, "po1")
    c(("vm", "fy", fyl))
    for g_ in og:
        c(g_)

    def y_try():
        Ls = a.label("ys")
        c(("wait", ["fy"]))
        c(chk_ep([72], 76), "s_nop 4", f"s_cbranch_vccnz {Ls}", f"s_mov_b32 s{s_yd}, 1")
        c(ylds)
        c(f"{Ls}:")
    y_try()
    stamp()

    YP, X2K = 246, 238

    def wo_phase(layer):
        first = layer == 0
        XR = 96
        c(f"s_lshl_b32 s{t+1}, s{s_wave}, 15", f"s_add_u32 s{t+5}, s{s_rowbase}, s{t+1}")
        if first:
            for nt in range(4):
                c(("vm", "xr", f"buffer_load_dwordx2 {vr(XR+2*nt,2)}, v{V_ROW}, {sr(SX,4)}, s{t+5} offen offset:{32*nt}"))
        WACC = 80
        WF = [112, 144, 176]

        def reads(P, e):
            return [f"ds_read_b64_tr_b16 {vr(WF[P]+4*nt+2*ss,2)}, v{V_WO+nt} offset:{4096*e+512*ss}"
                    for nt in range(4) for ss in range(2)]
        c(reads(0, 0), reads(1, 1))
        for e in range(16):
            P = e % 3
            c(("wait", [f"o{e}"], 8 if e < 15 else 0))
            mf = [f"v_mfma_f32_16x16x32_bf16 {vr(WACC+4*nt,4)}, {vr(WF[P]+4*nt,4)}, {ar(OFR+4*e,4)}, {vr(WACC+4*nt,4) if e else 0}"
                  for nt in range(4)]
            c.merge(mf, reads((e + 2) % 3, e + 2) if e < 14 else [], 2)
        XF, X1P, G = 144, 160, 168
        if first and 'stamp' not in EXP:
            stamp()
        if first:
            c(("wait", ["xr"]))
            src = XR
        else:
            src = X2K
        for i in range(8):
            c(f"v_lshlrev_b32 v{XF+2*i}, 16, v{src+i}", f"v_and_b32 v{XF+2*i+1}, 0xffff0000, v{src+i}")
        c(f"v_mov_b32 v{G}, 0", f"v_mov_b32 v{G+1}, 0", f"v_mov_b32 v{G+2}, s{s_ep}", f"v_mov_b32 v{G+3}, s{s_ep+1}")
        for i in range(8):
            c(f"v_pk_add_f32 {vr(XF+2*i,2)}, {vr(XF+2*i,2)}, {vr(WACC+2*i,2)}",
              f"v_cvt_pk_bf16_f32 v{X1P+i}, v{XF+2*i}, v{XF+2*i+1}")
        for i in range(8):
            c(f"v_dot2_f32_bf16 v{G}, v{X1P+i}, v{ONES}, v{G}", f"v_dot2_f32_bf16 v{G+1}, v{X1P+i}, v{X1P+i}, v{G+1}")
        st_off = ST1_OFF if first else ST2_OFF
        c(f"s_lshl_b32 s{t+6}, s{s_rb}, 13",
          f"s_lshl_b32 s{t+1}, s{s_wave}, 11",
          f"s_add_u32 s{t+6}, s{t+6}, s{t+1}",
          f"s_add_u32 s{t+6}, s{t+6}, {st_off}",
          f"s_lshl_b32 s{t+1}, s{s_g}, 4",
          f"s_add_u32 s{t+1}, s{t+1}, s{t+6}",
          f"v_lshlrev_b32 v74, 7, v{V_LAM}")
        c(xq_reduce("v_add_f32", [G, G + 1], [G + 4, G + 5]))
        c("s_mov_b64 exec, 0xffff")
        dual_store(lambda fl: [f"buffer_store_dwordx4 {vr(G,4)}, v74, {sr(SWS,4)}, s{t+1} offen{fl}"], "sst", 1)
        c("s_mov_b64 exec, -1")
        GR = 176
        for i in range(8):
            c(f"v_lshlrev_b32 v{XF+2*i}, 16, v{X1P+i}", f"v_and_b32 v{XF+2*i+1}, 0xffff0000, v{X1P+i}")
        c(f"v_lshl_add_u32 v74, v{V_Q}, 5, v74")
        gl = [f"buffer_load_dwordx4 {vr(GR,4)}, v74, {sr(SWS,4)}, s{t+6} offen sc1",
              f"buffer_load_dwordx4 {vr(GR+4,4)}, v74, {sr(SWS,4)}, s{t+6} offen offset:16 sc1"]
        if first:
            Lyd = a.label("yd")
            c(f"s_cmp_lg_u32 s{s_yd}, 0", f"s_cbranch_scc1 {Lyd}", fyl, "s_waitcnt vmcnt(0)")
            poll(chk_ep([72], 76), [fyl], "pfy", 4)
            c(ylds)
            c(f"{Lyd}:")
            if 'stamp' not in EXP:
                stamp()
            c("s_waitcnt vmcnt(0)")
            c.q = []
        for l in gl:
            c(("vm", "gr", l))
        if first:
            c("ds_write_b128 v78, v[224:227]",
              "ds_write_b128 v78, v[228:231] offset:16",
              "s_waitcnt lgkmcnt(0)")
            for nt in range(4):
                c(f"ds_read_b64_tr_b16 {vr(YP+2*nt,2)}, v79 offset:{512*nt}")
        c(("drain",))
        if first and 'stamp' not in EXP:
            stamp()
        poll(chk_ep([GR + 2, GR + 6], 76), gl, "pst")
        c(f"v_add_f32 v{G}, v{GR}, v{GR+4}", f"v_add_f32 v{G+1}, v{GR+1}, v{GR+5}")
        c(xq_reduce("v_add_f32", [G, G + 1], [G + 4, G + 5]))
        c(stats_fin([(G, G + 1)], [G + 4]))
        c("s_waitcnt lgkmcnt(0)")
        YF, D = 192, 208
        for i in range(8):
            c(f"v_lshlrev_b32 v{YF+2*i}, 16, v{YP+i}", f"v_and_b32 v{YF+2*i+1}, 0xffff0000, v{YP+i}")
        dst = X2K if first else X1P
        for i in range(8):
            c(f"v_pk_add_f32 {vr(D+2*i,2)}, {vr(XF+2*i,2)}, {vr(G,2)} op_sel_hi:[1,0] neg_lo:[0,1] neg_hi:[0,1]",
              f"v_pk_mul_f32 {vr(D+2*i,2)}, {vr(D+2*i,2)}, {vr(G,2)} op_sel:[0,1]",
              f"v_pk_fma_f32 {vr(D+2*i,2)}, {vr(D+2*i,2)}, {vr(YF+2*i,2)}, {vr(XF+2*i,2)}",
              f"v_cvt_pk_bf16_f32 v{dst+i}, v{D+2*i}, v{D+2*i+1}")
        if not first:
            for nt in range(4):
                c(f"buffer_store_dwordx2 {vr(dst+2*nt,2)}, v{V_ROW}, {sr(SOUT,4)}, s{t+5} offen offset:{32*nt}")
            return
        c(f"s_add_u32 s{t+5}, s{t+5}, {X2_OFF}", f"v_mov_b32 v{G}, 0", f"v_mov_b32 v{G+1}, 0")
        dual_store(lambda fl: [f"buffer_store_dwordx2 {vr(dst+2*nt,2)}, v{V_ROW}, {sr(SWS,4)}, s{t+5} offen offset:{32*nt}{fl}"
                               for nt in range(4)], "x2st", 4)
        for i in range(8):
            c(f"v_dot2_f32_bf16 v{G}, v{dst+i}, v{ONES}, v{G}", f"v_dot2_f32_bf16 v{G+1}, v{dst+i}, v{dst+i}, v{G+1}")
        c(f"s_lshl_b32 s{t}, s{s_rb}, 12",
          f"s_lshl_b32 s{t+1}, s{s_wave}, 10",
          f"s_add_u32 s{t}, s{t}, s{t+1}",
          f"s_lshl_b32 s{t+1}, s{s_g}, 3",
          f"s_add_u32 s{t}, s{t}, s{t+1}",
          f"s_add_u32 s{t}, s{t}, {XS_OFF}",
          f"v_lshlrev_b32 v74, 6, v{V_LAM}")
        c(xq_reduce("v_add_f32", [G, G + 1], [G + 4, G + 5]))
        c("s_mov_b64 exec, 0xffff")
        dual_store(lambda fl: [f"buffer_store_dwordx2 {vr(G,2)}, v74, {sr(SWS,4)}, s{t} offen{fl}"], "x2st", 1)
        c("s_mov_b64 exec, -1", ("drain",))
        wave_flag(F_X2)
        Lh = a.label("nh")
        c(f"s_cmp_lg_u32 s{s_wave}, 3",
          f"s_cbranch_scc1 {Lh}",
          f"v_lshlrev_b32 v75, 10, v{V_LAM}",
          f"v_lshl_add_u32 v75, v{V_Q}, 3, v75",
          f"s_lshl_b32 s{t}, s{s_rb}, 13",
          f"s_lshl_b32 s{t+1}, s{s_g}, 7",
          f"s_add_u32 s{t}, s{t}, s{t+1}",
          f"s_add_u32 s{t}, s{t}, {HALO_OFF - 8192}",
          f"s_lshl_b32 s{t+2}, s{s_rb}, 9",
          f"s_lshl_b32 s{t+1}, s{s_g}, 3",
          f"s_add_u32 s{t+2}, s{t+2}, s{t+1}",
          f"s_add_u32 s{t+2}, s{t+2}, {HS_OFF - 512}",
          f"s_mov_b32 s{t+8}, 0xff00ff00",
          f"s_mov_b32 s{t+9}, 0xff00ff00",
          f"s_mov_b64 exec, {sr(t+8,2)}")
        for nt in range(4):
            c(f"buffer_store_dwordx2 {vr(dst+2*nt,2)}, v75, {sr(SWS,4)}, s{t} offen offset:{32*nt} sc1")
        c("s_mov_b64 exec, 0xff00",
          f"buffer_store_dwordx2 {vr(G,2)}, v74, {sr(SWS,4)}, s{t+2} offen sc1",
          "s_mov_b64 exec, -1",
          f"{Lh}:")

    wo_phase(0)
    stamp()

    c(flags_load(F_X2, s_rb, V_FO, t + 8))
    for qi in range(4):
        c(f"s_add_u32 s{s_xq+qi}, s{s_xq+qi}, {X2_OFF}")
    flags_poll(V_FO, t + 8, 68, "px2")
    Lh2 = a.label("nh2")
    c(f"s_cmp_lg_u32 s{s_wave}, 3",
      f"s_cbranch_scc1 {Lh2}",
      f"s_lshl_b32 s{t}, s{s_rb}, 7",
      f"s_lshl_b32 s{t+1}, s{s_g}, 3",
      f"s_add_u32 s{t}, s{t}, s{t+1}",
      f"s_add_u32 s{t}, s{t}, {F_H}",
      "s_mov_b64 exec, 1",
      f"buffer_store_dwordx2 {vr(V_EPV,2)}, v{V_Z}, {sr(SWS,4)}, s{t} offen sc1",
      "s_mov_b64 exec, -1",
      f"{Lh2}:")

    def x2dma(qi, i):
        return [f"s_add_u32 m0, s{s_xl+qi}, {L_X + i*4096}",
                f"s_add_u32 s{t}, s{s_xq+qi}, {i*32768}",
                ("vm", f"x2t{i}", f"buffer_load_dwordx4 v{V_XD}, {sr(SWS,4)}, s{t} offen sc1 lds")]
    PS = 184
    c(f"s_lshl_b32 s{t+1}, s{s_rb}, 12",
      f"s_lshl_b32 s{t+2}, s{s_wave}, 10",
      f"s_add_u32 s{t+1}, s{t+1}, s{t+2}",
      f"s_add_u32 s{t+1}, s{t+1}, {XS_OFF}",
      f"v_lshlrev_b32 v195, 6, v{V_LAM}",
      f"v_lshl_add_u32 v195, v{V_Q}, 4, v195")
    for qi in range(4):
        c(x2dma(qi, 1))
    c(("vm", "ps", f"buffer_load_dwordx4 {vr(PS,4)}, v195, {sr(SWS,4)}, s{t+1} offen sc1"))
    for i in range(2, 5):
        for qi in range(4):
            c(x2dma(qi, i))
    V_HF = 190
    c(f"s_sub_u32 s{t+9}, s{s_rb}, 1",
      f"s_lshl_b32 s{t+9}, s{t+9}, 7",
      f"s_add_u32 s{t+9}, s{t+9}, {F_H}",
      f"v_and_b32 v192, 0x38, v{V_L8}")
    hld = f"buffer_load_dwordx2 {vr(V_HF,2)}, v192, {sr(SWS,4)}, s{t+9} offen sc1"
    c(("wait", ["ps"]),
      f"v_add_f32 v{SA}, v{PS}, v{PS+2}",
      f"v_add_f32 v{SA+1}, v{PS+1}, v{PS+3}")
    c(xq_reduce("v_add_f32", [SA, SA + 1], [104, 105]))
    c(stats_fin([(SA, SA + 1)], [104]))
    c(f"v_lshlrev_b32 v193, 3, v{V_LAM}",
      f"s_lshl_b32 s{t}, s{s_wave}, 7",
      f"s_add_u32 s{t}, s{t}, {L_ST + 128}",
      f"v_add_u32 v195, s{t}, v193",
      f"ds_write_b64 v195, {vr(SA,2)}",
      f"v_add_u32 v193, {L_ST}, v193",
      f"v_lshlrev_b32 v194, 5, v{V_Q}",
      f"v_add_u32 v194, {L_ST}, v194")
    V_S8, V_S32 = 193, 194

    def stat_reads(tl):
        return [f"ds_read_b64 {vr(STA+2*tl,2)}, v{V_S8} offset:{128*tl}",
                f"ds_read_b128 {vr(STB+8*tl,4)}, v{V_S32} offset:{128*tl}",
                f"ds_read_b128 {vr(STB+8*tl+4,4)}, v{V_S32} offset:{128*tl+16}"]

    XF3 = [168, 176]

    def tile_stream(tl):
        m = []
        def rd(e):
            return f"ds_read_b128 {vr(168+4*(e&3),4)}, v{VAE+e} offset:{4096*tl}"
        m += [rd(0), rd(1)]
        for e in range(16):
            if e % 2 == 0:
                if e + 2 < 16:
                    m += [rd(e + 2), rd(e + 3), "s_waitcnt lgkmcnt(2)"]
                else:
                    m.append("s_waitcnt lgkmcnt(0)")
            x = vr(168 + 4 * (e & 3), 4)
            wq, wk, wv = ar(12 * e, 4), ar(12 * e + 4, 4), ar(12 * e + 8, 4)
            for (acc, A_, B_, on) in ((AQ + 4 * tl, wq, x, tl > 0), (AK + 4 * tl, wk, x, True), (AV + 4 * tl, x, wv, True)):
                if on:
                    m.append(f"v_mfma_f32_16x16x32_bf16 {vr(acc,4)}, {A_}, {B_}, {vr(acc,4) if e else 0}")
        return m

    def R3(qt):
        return dict(SC=AQ + 4 * qt, SP=AK + 4 * qt, PP=AV + 4 * qt, LL=STB + 8 * qt, MX=STB + 8 * qt + 4, MT=STB + 8 * qt + 5, OO=108)

    PSH = 184
    s_hd = 21

    def halo_try(n, blocking):
        Lskip, Lgo = a.label("hskip"), a.label("hgo")
        c(f"s_cmp_lg_u32 s{s_hd}, 0", f"s_cbranch_scc1 {Lskip}")
        qs = list(c.q)
        c(f"s_cmp_eq_u32 s{s_b}, 0", f"s_cbranch_scc1 {Lgo}")
        c(("wait", [f"hf{n}"]))
        if not blocking:
            c(chk_ep([V_HF], PSH), "s_nop 4", f"s_cbranch_vccnz {Lskip}")
        else:
            poll(chk_ep([V_HF], PSH), [hld], "ph", 2)
        c(f"{Lgo}:")
        c(f"s_mov_b32 s{s_hd}, 1",
          f"v_lshrrev_b32 v{PSH}, 11, v{V_XD}",
          f"v_and_b32 v{PSH+1}, 0xff, v{V_XD}",
          f"v_lshl_add_u32 v{PSH}, v{PSH}, 10, v{PSH+1}",
          f"s_lshl_b32 s{t+2}, s{s_wave}, 10",
          f"s_lshl_b32 s{t}, s{s_rb}, 13",
          f"s_lshl_b32 s{t+1}, s{s_wave}, 12",
          f"s_add_u32 s{t}, s{t}, s{t+1}",
          f"s_add_u32 s{t}, s{t}, {HALO_OFF - 8192 - 8192}",
          f"s_cmp_lt_u32 s{s_wave}, 2",
          f"s_cselect_b32 s{t}, {OOB}, s{t}",
          f"s_cmp_eq_u32 s{s_b}, 0",
          f"s_cselect_b32 s{t}, {OOB}, s{t}")
        for qd in range(4):
            c(f"s_add_u32 m0, s{t+2}, {L_X + qd*XQ}",
              f"s_add_u32 s{t+1}, s{t}, {qd*256}",
              f"buffer_load_dwordx4 v{PSH}, {sr(SWS,4)}, s{t+1} offen sc1 lds")
        c(f"v_and_b32 v{PSH+1}, 7, v{V_LAM}",
          f"v_lshlrev_b32 v{PSH+1}, 6, v{PSH+1}",
          f"v_lshl_add_u32 v{PSH+1}, v{V_Q}, 4, v{PSH+1}",
          f"s_lshl_b32 s{t}, s{s_rb}, 9",
          f"s_add_u32 s{t}, s{t}, {HS_OFF - 512}",
          f"s_cmp_eq_u32 s{s_b}, 0",
          f"s_cselect_b32 s{t}, {OOB}, s{t}",
          "s_nop 1",
          f"buffer_load_dwordx4 {vr(PSH,4)}, v{PSH+1}, {sr(SWS,4)}, s{t} offen sc1",
          f"{Lskip}:")
        c.q = qs

    c(f"s_mov_b32 s{s_hd}, 0")
    stamp()
    order = [1, 2, 3, 4, 0]
    for n, tl in enumerate(order):
        side = []
        if n == 0:
            c(("wait", ["x2t1"], 0), "s_barrier")
            for t2 in range(1, 5):
                c(stat_reads(t2))
            side.append(("vm", "hf1", hld))
        elif n == 1:
            c(("wait", ["x2t4"]), "s_barrier")
        elif n == 4:
            c(("drain",), "s_barrier")
        if n >= 1:
            side += [("gap", 8)] + normalize(order[n - 1], False, VP)
        if n >= 2:
            side += attn_tiles([order[n - 1]], VP, R3(order[n - 1]), False)
        if n == 4:
            HS2 = 188
            side += [f"v_add_f32 v{HS2}, v{PSH}, v{PSH+2}", f"v_add_f32 v{HS2+1}, v{PSH+1}, v{PSH+3}"]
            side += xq_reduce("v_add_f32", [HS2, HS2 + 1], [PSH, PSH + 1])
            side += stats_fin([(HS2, HS2 + 1)], [PSH])
            side += [f"v_and_b32 v{PSH}, 0x38, v{V_S8}", f"v_add_u32 v{PSH}, {(L_ST & ~0x3f) + 64}, v{PSH}"]
        stamp("p3")
        c.merge(tile_stream(tl), side)
        stamp("p3")
        if n >= 2:
            o_stores(O2_OFF, 108, [order[n - 1]])
        if n in (1, 2, 3):
            halo_try(n, n == 3)
            if n < 3:
                c(("vm", f"hf{n+1}", hld))
    c(f"ds_write_b64 v{PSH}, {vr(HS2,2)}", "s_waitcnt lgkmcnt(0)")
    c(stat_reads(0), "s_waitcnt lgkmcnt(0)")
    stamp("p3")
    c(normalize(0, True, VP))
    c(attn_tiles([1], VP, R3(1), True))
    o_stores(O2_OFF, 108, [1])
    stamp()
    stamp("p3")
    c(("drain",))
    wave_flag(F_O2)
    c(flags_load(F_O2, s_rb, V_FO, t + 8))
    pre, og = o_loads(O2_OFF)
    c(pre)
    flags_poll(V_FO, t + 8, 68, "po2")
    for g_ in og:
        c(g_)
    wo_phase(1)
    if STAMP:
        c("s_waitcnt vmcnt(0) lgkmcnt(0)")
        stamp()
        c("s_memrealtime s[100:101]",
          f"s_mov_b32 s{SWS+2}, {16*MB}",
          f"s_lshl_b32 s{t}, s2, 8",
          f"s_lshl_b32 s{t+1}, s{s_wave}, 6",
          f"s_add_u32 s{t}, s{t}, s{t+1}",
          f"s_add_u32 s{t}, s{t}, {STAMP_OFF}",
          "s_waitcnt lgkmcnt(0)",
          "v_writelane_b32 v255, s100, 1",
          f"v_lshlrev_b32 v64, 2, v{V_LANE}",
          "s_mov_b64 exec, 0xffff",
          f"buffer_store_dword v255, v64, {sr(SWS,4)}, s{t} offen")
    a(f"{L_end}:")
    a("s_endpgm")
    a(f".set CODE_LIMIT, {L_end} - {label}")


def main(out_path):
    a = Asm()
    label = NAME + "_kernel"
    a('.amdgcn_target "amdgcn-amd-amdhsa--gfx950"')
    a(".text")
    gen(a, label)
    desc = f""".section .rodata,"a"
.p2align 6
.amdhsa_kernel {label}
  .amdhsa_next_free_vgpr 512
  .amdhsa_next_free_sgpr 102
  .amdhsa_accum_offset 256
  .amdhsa_group_segment_fixed_size 0
  .amdhsa_kernarg_size 96
  .amdhsa_user_sgpr_count 2
  .amdhsa_user_sgpr_kernarg_segment_ptr 1
  .amdhsa_system_sgpr_workgroup_id_x 1
.end_amdhsa_kernel
"""
    hdr = f"; @launch grid=(256,1,1) block=(256,1,1) lds={LDS_SIZE}\n"
    open(out_path, "w").write(hdr + a.text() + desc)


if __name__ == "__main__":
    if len(sys.argv) > 2:
        STAMP = True
    main(sys.argv[1])
```

```python
import sys
from gen import Asm, vr, sr, srd, kernel_header, NAME, NEG, MB

KB = 1024
O1_OFF = 0
O2_OFF = 2 * MB
X2_OFF = 4 * MB
U_OFF = 6 * MB
Y_OFF = 8 * MB
ST1_OFF = 10 * MB
ST2_OFF = ST1_OFF + 256 * KB
XS_OFF = ST2_OFF + 256 * KB
HALO_OFF = XS_OFF + 128 * KB
HS_OFF = HALO_OFF + 256 * KB
FL_OFF = HS_OFF + 16 * KB
F_HELLO = FL_OFF
F_T = F_HELLO + 4 * KB
F_Y = F_T + 2 * KB
F_O1 = F_Y + 8 * KB
F_X2 = F_O1 + 8 * KB
F_O2 = F_X2 + 8 * KB
F_H = F_O2 + 8 * KB
WS_SIZE = 11 * MB
assert F_H + 4 * KB <= WS_SIZE
STAMP_OFF = 12 * MB

L_X = 0
XQ = 20480
L_R = 81920
NS = 5
L_M = 147456
L_TB = L_M
L_ST = L_M + 8192
LDS_SIZE = 163840
C_U = 0
C_K = 4608
C_KS = 4160
C_CH = 4608 + 4 * 4160
C_RED = 2 * C_CH
C_TR = C_RED + 16384
assert C_TR + 8192 <= 81920
P2_YT = L_TB

SPIN_MAX = 40000
STAMP = False
import os
EXP = os.environ.get("EXP", "")
FINE = os.environ.get("FINE", "")
OOB = 0x7ff00000
PFS = int(os.environ.get("PFS", "11"))
DSW = float(os.environ.get("DSW", "0.5"))


def ar(a_, n=1):
    return f"a{a_}" if n == 1 else f"a[{a_}:{a_+n-1}]"


class Ctx:
    def __init__(self, a):
        self.a = a
        self.q = []
        self.count = 0

    def raw(self, s):
        for l in s.split("\n"):
            if l.strip():
                self.a(l)
                self.count += 1

    def vwait_n(self, tags):
        idx = -1
        for i, t in enumerate(self.q):
            if t in tags:
                idx = i
        if idx < 0:
            return None
        n = len(self.q) - 1 - idx
        assert n <= 63
        self.q = self.q[idx + 1:]
        return n

    def item(self, it):
        if isinstance(it, str):
            self.raw(it)
        elif it[0] == "vm":
            self.raw(it[2])
            self.q.append(it[1])
        elif it[0] == "wait":
            n = self.vwait_n(it[1])
            lg = it[2] if len(it) > 2 else None
            parts = []
            if n is not None:
                parts.append(f"vmcnt({n})")
            if lg is not None:
                parts.append(f"lgkmcnt({lg})")
            if parts:
                self.raw("s_waitcnt " + " ".join(parts))
        elif it[0] == "drain":
            self.raw("s_waitcnt vmcnt(0)")
            self.q = []
        elif it[0] == "gap":
            self.raw(f"s_nop {it[1]-1}")
        else:
            raise ValueError(it)

    def __call__(self, *its):
        for it in its:
            if isinstance(it, list):
                for x in it:
                    self.item(x)
            else:
                self.item(it)

    def merge(self, main, side, k=2):
        side = list(side)
        si = 0
        dist = 0

        def is_gap(x):
            return isinstance(x, tuple) and x[0] == "gap"

        for m in main:
            self.item(m)
            mf = isinstance(m, str) and m.startswith("v_mfma")
            dist += 3 if mf else 1
            if not mf:
                continue
            quota = k
            while quota > 0 and si < len(side):
                it = side[si]
                if is_gap(it):
                    if dist >= it[1]:
                        si += 1
                        continue
                    break
                self.item(it)
                dist = 0
                si += 1
                if isinstance(it, tuple) and it[0] == "vm":
                    quota -= 2
                elif isinstance(it, str) and it.startswith("ds_"):
                    quota -= DSW
                elif not (isinstance(it, str) and it.startswith("s_")):
                    quota -= 1
        while si < len(side):
            it = side[si]
            if is_gap(it):
                if it[1] - dist > 0:
                    self.raw(f"s_nop {it[1]-dist-1}")
            else:
                self.item(it)
                dist = 0
            si += 1


def _merge2(self, main, must, opt, flush=False):
    must = list(must)
    mi = 0
    si = 0
    dist = getattr(self, "_dist", 100)

    def is_gap(x):
        return isinstance(x, tuple) and x[0] == "gap"
    for m in main:
        self.item(m)
        dist += 3
        if mi < len(must):
            self.item(must[mi])
            mi += 1
            dist += 1
        quota = 2
        while quota > 0 and si < len(opt):
            it = opt[si]
            if is_gap(it):
                if dist >= it[1]:
                    si += 1
                    continue
                break
            if callable(it):
                it()
                quota -= 2
            else:
                self.item(it)
                if isinstance(it, str) and it.startswith("v_mfma"):
                    quota -= 2
                elif not (isinstance(it, str) and it.startswith("s_")):
                    quota -= 1
            dist = 0
            si += 1
    for x in must[mi:]:
        self.item(x)
    rest = opt[si:]
    if flush:
        for it in rest:
            if is_gap(it):
                if it[1] - dist > 0:
                    self.raw(f"s_nop {it[1]-dist-1}")
            elif callable(it):
                it()
                dist = 0
            else:
                self.item(it)
                dist = 0
        rest = []
    self._dist = dist
    return rest


Ctx.merge2 = _merge2


def xq_reduce(op, vs, ts, steps=("v_permlane16_swap_b32", "v_permlane32_swap_b32")):
    l = []
    n = len(vs)
    for sw in steps:
        for v, t in zip(vs, ts):
            l.append(f"v_mov_b32 v{t}, v{v}")
        l.append(("gap", 2 if n < 2 else 1))
        for v, t in zip(vs, ts):
            l.append(f"{sw} v{v}, v{t}")
        l.append(("gap", 2 if n < 2 else 1))
        for v, t in zip(vs, ts):
            l.append(f"{op} v{v}, v{v}, v{t}")
    return l


def stats_fin(pairs, tmps):
    l = []
    def each(f):
        for (s, q), t in zip(pairs, tmps):
            l.append(f(s, q, t))
    each(lambda s, q, t: f"v_mul_f32 v{s}, 0x3b000000, v{s}")
    each(lambda s, q, t: f"v_mul_f32 v{q}, 0x3b000000, v{q}")
    each(lambda s, q, t: f"v_fma_f32 v{q}, -v{s}, v{s}, v{q}")
    each(lambda s, q, t: f"v_max_f32 v{q}, 0, v{q}")
    each(lambda s, q, t: f"v_cvt_pk_bf16_f32 v{t}, v{s}, v{q}")
    each(lambda s, q, t: f"v_lshlrev_b32 v{s}, 16, v{t}")
    each(lambda s, q, t: f"v_and_b32 v{q}, 0xffff0000, v{t}")
    each(lambda s, q, t: f"v_add_f32 v{q}, 0x3727c5ac, v{q}")
    each(lambda s, q, t: f"v_cvt_pk_bf16_f32 v{q}, v{q}, v{q}")
    each(lambda s, q, t: f"v_lshlrev_b32 v{q}, 16, v{q}")
    each(lambda s, q, t: f"v_sqrt_f32 v{q}, v{q}")
    l.append(("gap", 1))
    each(lambda s, q, t: f"v_cvt_pk_bf16_f32 v{q}, v{q}, v{q}")
    each(lambda s, q, t: f"v_lshlrev_b32 v{q}, 16, v{q}")
    each(lambda s, q, t: f"v_rcp_f32 v{q}, v{q}")
    l.append(("gap", 1))
    return l


def gen(a, label):
    kernel_header(a, label)
    c = Ctx(a)
    L_end = a.label("end")
    SX, SW, SWS, SK, SV, SSK, SWO, SKK, SOUT, SDBG = 4, 8, 12, 16, 20, 24, 28, 32, 36, 40
    s_wave, s_rb, s_g, s_p, s_b, s_rot = 44, 45, 46, 47, 48, 49
    s_ep = 50
    s_loc, s_xcc, s_D, s_wm0, s_rowbase, s_c, s_cl, s_half, s_ch, s_spin = 52, 53, 54, 55, 56, 57, 58, 59, 60, 61
    s_xq, s_xl, s_wq = 62, 66, 70
    t = 74
    s_x0m = 16
    s_flag = 18
    s_stile = 19
    nst = [0]

    def stamp(tag=""):
        if STAMP and FINE != "none" and (tag == FINE or (tag == "" and (not FINE or nst[0] == 0))):
            i = nst[0]
            assert i < 14, i
            c("s_memtime s[100:101]", "s_waitcnt lgkmcnt(0)", f"v_writelane_b32 v255, s100, {i+2}")
            nst[0] += 1

    V_LANE, V_LAM, V_Q, V_L16, V_XD, V_WD, V_BB, V_ROW, V_Z = 1, 2, 3, 4, 5, 6, 7, 8, 9
    VAE = 10
    CSQ, CSK, CSV = 26, 30, 34
    V_L8 = 35
    V_EPV = 36
    BC, BP, BP1, MC, MP, ONES = 38, 42, 46, 50, 52, 54
    V_WO = 58
    V_T0 = 62

    c("s_cmp_ge_u32 s2, 256", f"s_cbranch_scc1 {L_end}")
    if STAMP:
        c("s_memrealtime s[100:101]", "v_mov_b32 v255, 0", "s_waitcnt lgkmcnt(0)", "v_writelane_b32 v255, s100, 0")
    stamp()
    c("s_load_dwordx4 s[88:91], s[0:1], 0",
      "s_load_dwordx2 s[92:93], s[0:1], 16",
      "s_load_dwordx4 s[96:99], s[0:1], 32",
      "s_load_dwordx2 s[94:95], s[0:1], 88")
    c(f"v_and_b32 v{V_LANE}, 63, v0",
      "v_lshrrev_b32 v62, 6, v0",
      f"v_and_b32 v{V_LAM}, 15, v{V_LANE}",
      f"v_readfirstlane_b32 s{s_wave}, v62",
      f"v_lshrrev_b32 v{V_Q}, 4, v{V_LANE}",
      f"v_lshlrev_b32 v{V_L16}, 4, v{V_LANE}",
      f"v_mov_b32 v{V_Z}, 0",
      f"s_and_b32 s{s_rb}, s2, 7",
      f"s_lshl_b32 s{s_rb}, s{s_rb}, 2",
      f"s_lshr_b32 s{s_rot}, s2, 6",
      f"s_add_u32 s{s_rb}, s{s_rb}, s{s_rot}",
      f"s_lshr_b32 s{s_g}, s2, 3",
      f"s_and_b32 s{s_g}, s{s_g}, 7",
      f"s_lshr_b32 s{s_p}, s{s_rb}, 4",
      f"s_and_b32 s{s_b}, s{s_rb}, 15")
    if "nopf" not in EXP:
        Lpf = a.label("nopf")
        c(f"s_and_b32 s{t}, s2, 0x78",
          f"s_cmp_lg_u32 s{t}, 0",
          f"s_cbranch_scc1 {Lpf}",
          f"s_getpc_b64 s[{t+2}:{t+3}]",
          f"s_and_b32 s{t+2}, s{t+2}, 0xffffff00",
          f"v_lshlrev_b32 v62, 7, v0",
          f"v_min_u32 v62, CODE_LIMIT, v62",
          f"global_load_dword v253, v62, s[{t+2}:{t+3}]",
          f"{Lpf}:")
    c(f"s_lshl_b32 s{t}, s{s_wave}, 2",
      f"v_add_u32 v62, s{t}, v{V_Q}",
      f"v_xor_b32 v62, v62, v{V_LAM}",
      "v_lshlrev_b32 v62, 4, v62",
      f"v_lshl_add_u32 v{V_XD}, v{V_Q}, 11, v62")
    c(f"v_lshrrev_b32 v62, 3, v{V_LANE}",
      f"s_lshl_b32 s{t}, s{s_wave}, 3",
      f"v_add_u32 v62, s{t}, v62",
      "v_bfe_u32 v63, v62, 3, 1",
      "v_lshlrev_b32 v63, 1, v63",
      "v_bfe_u32 v64, v62, 1, 1",
      "v_or_b32 v63, v63, v64",
      f"v_bfe_u32 v64, v{V_LANE}, 1, 2",
      "v_xor_b32 v63, v63, v64",
      "v_lshlrev_b32 v63, 5, v63",
      f"v_and_b32 v64, 1, v{V_LANE}",
      "v_lshl_add_u32 v63, v64, 4, v63",
      f"v_mul_u32_u24 v{V_WD}, 3072, v62",
      f"v_add_u32 v{V_WD}, v{V_WD}, v63")
    c(f"s_lshl_b32 s{s_rowbase}, s{s_b}, 17",
      f"s_lshl_b32 s{t}, s{s_p}, 10",
      f"s_add_u32 s{s_rowbase}, s{s_rowbase}, s{t}",
      f"s_mul_i32 s{s_wm0}, s{s_wave}, 3072",
      f"s_add_u32 s{s_wm0}, s{s_wm0}, {L_R}")
    c(f"s_lshl_b32 s{t+1}, s{s_wave}, 13",
      f"s_add_u32 s{t+1}, s{t+1}, s{s_rowbase}",
      f"s_sub_u32 s{t+1}, s{t+1}, 32768",
      f"s_lshl_b32 s{t+2}, s{s_wave}, 10",
      f"s_lshl_b32 s{t+3}, s{s_g}, 7")
    for qi in range(4):
        c(f"s_add_u32 s{t}, s{s_rot}, {qi}",
          f"s_and_b32 s{t}, s{t}, 3",
          f"s_lshl_b32 s{s_xq+qi}, s{t}, 8",
          f"s_add_u32 s{s_xq+qi}, s{s_xq+qi}, s{t+1}",
          f"s_mul_i32 s{s_xl+qi}, s{t}, {XQ}",
          f"s_add_u32 s{s_xl+qi}, s{s_xl+qi}, s{t+2}",
          f"s_mul_i32 s{s_wq+qi}, s{t}, {4*98304}",
          f"s_add_u32 s{s_wq+qi}, s{s_wq+qi}, s{t+3}")
    s_wo = 82
    for e4 in range(4):
        c(f"s_add_u32 s{t}, s2, {e4}",
          f"s_and_b32 s{t}, s{t}, 3",
          f"s_mul_i32 s{s_wo+e4}, s{t}, 98304")
    c(f"s_cmp_eq_u32 s{s_wave}, 0",
      "s_cselect_b32 s86, 0xffff0000, -1",
      "s_mov_b32 s87, -1")
    stamp("p1")
    c("s_waitcnt lgkmcnt(0)")
    stamp("p1")
    srd(a, SX, 88, 89, 2 * MB)
    srd(a, SW, 90, 91, 512 * 1536 * 2)

    def xdma(qi, i):
        l = [f"s_add_u32 m0, s{s_xl+qi}, {L_X + i*4096}"]
        if i == 0:
            l += [f"s_cmp_lt_u32 s{s_wave}, 2",
                  f"s_cselect_b32 s{t}, {OOB}, s{s_xq+qi}",
                  ("vm", f"x{qi}", f"s_mov_b64 exec, s[86:87]\nbuffer_load_dwordx4 v{V_XD}, {sr(SX,4)}, s{t} offen lds\ns_mov_b64 exec, -1")]
        else:
            l += [f"s_add_u32 s{t}, s{s_xq+qi}, {i*32768}",
                  ("vm", f"x{qi}", f"buffer_load_dwordx4 v{V_XD}, {sr(SX,4)}, s{t} offen lds")]
        return l

    def wdma(ch):
        l = [f"s_add_u32 m0, s{s_wm0}, {(ch % NS)*12288}",
             f"s_add_u32 s{t}, s{s_wq+(ch>>2)}, s{s_wo+(ch&3)}"]
        for s in range(3):
            l.append(("vm", f"w{ch}", f"buffer_load_dwordx4 v{V_WD}, {sr(SW,4)}, s{t} offen offset:{1024*s} lds"))
        return l

    for i in range(5):
        c(xdma(0, i))
    c(wdma(0))
    srd(a, SWS, 94, 95, WS_SIZE)
    srd(a, SK, 96, 97, 2 * MB)
    srd(a, SV, 98, 99, 2 * MB)
    srd(a, SWO, 92, 93, 512 * 512 * 2)
    c("s_load_dwordx4 s[88:91], s[0:1], 48",
      "s_load_dwordx4 s[92:95], s[0:1], 64",
      "s_load_dwordx2 s[96:97], s[0:1], 80")
    TK, TV, TS = 184, 204, 212
    KF, SF, VF, OF = 228, 238, 246, 250
    UP = 112
    c(f"s_lshr_b32 s{t}, s2, 3",
      f"s_lshl_b32 s{t}, s{t}, 16",
      f"s_and_b32 s{t+1}, s2, 7",
      f"s_lshl_b32 s{t+2}, s{t+1}, 7",
      f"s_add_u32 s{t}, s{t}, s{t+2}",
      "v_and_b32 v64, 7, v0",
      "v_lshrrev_b32 v65, 3, v0",
      "v_lshlrev_b32 v66, 11, v65",
      "v_lshl_add_u32 v66, v64, 4, v66",
      f"v_add_u32 v66, s{t}, v66",
      "v_add_u32 v67, 0xfffff400, v66",
      "v_add_u32 v68, 0xfffff800, v66",
      "v_add_u32 v69, 0xfffffc00, v66")
    for ins in (f"buffer_load_dwordx4 {vr(TK,4)}, v67, {sr(SK,4)}, 0 offen",
                f"buffer_load_dwordx4 {vr(TK+4,4)}, v68, {sr(SK,4)}, 0 offen",
                f"buffer_load_dwordx4 {vr(TK+8,4)}, v69, {sr(SK,4)}, 0 offen",
                f"buffer_load_dwordx4 {vr(TK+12,4)}, v66, {sr(SK,4)}, 0 offen",
                f"buffer_load_dwordx4 {vr(TK+16,4)}, v66, {sr(SK,4)}, 0 offen offset:1024",
                f"buffer_load_dwordx4 {vr(TV,4)}, v66, {sr(SV,4)}, 0 offen",
                f"buffer_load_dwordx4 {vr(TV+4,4)}, v66, {sr(SV,4)}, 0 offen offset:1024"):
        if "notl" not in EXP:
            c(("vm", "T", ins))
    c("s_waitcnt lgkmcnt(0)")
    srd(a, SSK, 88, 89, 4096)
    srd(a, SKK, 90, 91, 2 * MB)
    srd(a, SOUT, 94, 95, 2 * MB)
    srd(a, SDBG, 96, 97, 256)
    c(f"s_lshl_b32 s{t+3}, s2, 2",
      f"s_load_dword s{s_D}, s[92:93], s{t+3}",
      f"s_getreg_b32 s{s_xcc}, hwreg(HW_REG_XCC_ID)",
      f"s_and_b32 s{s_xcc}, s{s_xcc}, 15",
      f"s_lshl_b32 s{t+2}, s{t+1}, 9",
      "v_lshlrev_b32 v67, 6, v64")
    for d in range(4):
        c(("vm", "T", f"buffer_load_dwordx4 {vr(TS+4*d,4)}, v67, {sr(SSK,4)}, s{t+2} offen offset:{16*d}"))
    Lq = a.label("noep")
    c(f"s_or_b32 s{t}, s2, s{s_wave}",
      f"s_cmp_lg_u32 s{t}, 0",
      f"s_cbranch_scc1 {Lq}",
      f"s_memrealtime s[{t+4}:{t+5}]",
      "s_waitcnt lgkmcnt(0)",
      f"s_or_b32 s{t+4}, s{t+4}, 1",
      f"v_mov_b32 v70, s{t+4}",
      f"v_mov_b32 v71, s{t+5}",
      "s_mov_b64 exec, 1",
      f"buffer_store_dwordx2 v[70:71], v{V_Z}, {sr(SDBG,4)}, 0 offen sc1",
      "s_mov_b64 exec, -1",
      f"{Lq}:")
    c(wdma(1))
    k = []
    k += [f"v_bfe_u32 v70, v{V_LANE}, 2, 2",
          f"v_and_b32 v71, 1, v{V_Q}",
          "v_lshlrev_b32 v71, 1, v71",
          "v_lshrrev_b32 v72, 1, v70",
          "v_or_b32 v71, v71, v72",
          f"v_xor_b32 v72, s{s_wave}, v71",
          "v_lshlrev_b32 v72, 5, v72",
          "v_lshl_add_u32 v72, v70, 7, v72",
          f"v_and_b32 v73, 3, v{V_LANE}",
          "v_lshl_add_u32 v72, v73, 3, v72",
          f"v_mul_u32_u24 v74, 3072, v{V_Q}",
          "v_add_u32 v72, v72, v74",
          f"v_add_u32 v{V_BB}, {L_R}, v72",
          f"v_lshl_add_u32 v72, v{V_Q}, 3, v70",
          "v_lshlrev_b32 v72, 7, v72",
          "v_lshl_add_u32 v72, v73, 3, v72",
          f"v_add_u32 v72, {L_R}, v72"]
    for nt in range(4):
        k += [f"v_xor_b32 v74, {nt}, v71", f"v_lshl_add_u32 v{V_WO+nt}, v74, 5, v72"]
    k += [f"s_lshl_b32 s{t+2}, s{s_wave}, 10"]
    for e4 in range(4):
        k += [f"s_add_u32 s{t+3}, s2, {e4}",
              f"s_and_b32 s{t+3}, s{t+3}, 3",
              f"s_lshl_b32 s{t+3}, s{t+3}, 2",
              f"v_add_u32 v70, s{t+3}, v{V_Q}",
              f"v_xor_b32 v70, v70, v{V_LAM}",
              "v_lshlrev_b32 v70, 4, v70",
              f"v_lshl_add_u32 v70, v{V_LAM}, 8, v70",
              f"v_subrev_u32 v70, s{t+2}, v70"]
        for qi in range(4):
            k.append(f"v_add_u32 v{VAE+4*qi+e4}, s{s_xl+qi}, v70")
    k += [f"v_lshlrev_b32 v{V_ROW}, 11, v{V_LAM}",
          f"v_lshl_add_u32 v{V_ROW}, v{V_Q}, 3, v{V_ROW}",
          f"v_lshlrev_b32 v{V_L8}, 3, v{V_LANE}",
          f"v_lshlrev_b32 v70, 2, v{V_Q}",
          f"v_mov_b32 v72, {NEG}",
          f"s_cmp_eq_u32 s{s_b}, 0",
          f"s_cselect_b32 s{t+2}, -1, 0",
          f"s_mov_b32 s{t+3}, s{t+2}"]
    for r in range(4):
        k += [f"v_add_u32 v71, {r}, v70",
              f"v_sub_u32 v71, v{V_LAM}, v71",
              "v_cmp_gt_u32 vcc, 8, v71",
              "v_add_u32 v71, 16, v71",
              f"v_cmp_gt_u32 {sr(t+4,2)}, 8, v71",
              f"v_cndmask_b32 v{BC+r}, v72, 0, vcc",
              f"v_cndmask_b32 v{74+r}, 0, -1, vcc",
              f"v_cndmask_b32 v{BP+r}, v72, 0, {sr(t+4,2)}",
              f"v_cndmask_b32 v{78+r}, 0, -1, {sr(t+4,2)}",
              f"v_cndmask_b32 v{BP1+r}, v{BP+r}, v72, {sr(t+2,2)}"]
    k.append(f"s_mov_b32 s{t+4}, 0xffff")
    for h in range(2):
        k += [f"v_bfi_b32 v{MC+h}, s{t+4}, v{74+2*h}, v{75+2*h}",
              f"v_bfi_b32 v{MP+h}, s{t+4}, v{78+2*h}, v{79+2*h}"]
    for r in range(4):
        k.append(f"v_mov_b32 v{ONES+r}, 0x3f803f80")
    k += [f"v_mul_u32_u24 v70, {XQ}, v{V_Q}",
          f"v_lshl_add_u32 v70, v{V_LAM}, 4, v70",
          f"ds_write_b128 v70, {vr(ONES,4)} offset:{L_X}"]
    k += [f"s_add_u32 s{s_stile}, s{s_wave}, 1",
          f"s_lshl_b32 s{s_stile}, s{s_stile}, 12",
          f"s_lshl_b32 s{s_flag}, s{s_rb}, 8",
          f"s_lshl_b32 s{t+2}, s{s_g}, 5",
          f"s_add_u32 s{s_flag}, s{s_flag}, s{t+2}",
          f"s_lshl_b32 s{t+2}, s{s_wave}, 3",
          f"s_add_u32 s{s_flag}, s{s_flag}, s{t+2}",
          f"s_lshr_b32 s{s_ch}, s{s_wave}, 1",
          f"s_and_b32 s{s_half}, s{s_wave}, 1",
          f"s_lshl_b32 s{s_c}, s2, 1",
          f"s_add_u32 s{s_c}, s{s_c}, s{s_ch}",
          f"s_lshl_b32 s{s_c}, s{s_c}, 12",
          f"s_mul_i32 s{s_cl}, s{s_ch}, {C_CH}"]
    c(k)
    c(wdma(2))
    stamp("p1")
    c(("wait", ["T"]))
    stamp("p1")
    tc = []
    for d in range(4):
        for r in range(5):
            tc.append(f"v_lshlrev_b32 v{KF+2*r}, 16, v{TK+4*r+d}")
            tc.append(f"v_and_b32 v{KF+2*r+1}, 0xffff0000, v{TK+4*r+d}")
        for j in range(4):
            for cc in range(2):
                src = TS + 4 * d + 2 * cc + (j >> 1)
                tc.append(f"v_and_b32 v{SF+2*j+cc}, 0xffff0000, v{src}" if j & 1 else f"v_lshlrev_b32 v{SF+2*j+cc}, 16, v{src}")
        for tt in range(2):
            tc.append(f"v_lshlrev_b32 v{VF+2*tt}, 16, v{TV+4*tt+d}")
            tc.append(f"v_and_b32 v{VF+2*tt+1}, 0xffff0000, v{TV+4*tt+d}")
        for tt in range(2):
            o = OF + 2 * tt
            tc.append(f"v_pk_mul_f32 {vr(o,2)}, {vr(KF+2*(tt+0),2)}, {vr(SF+6,2)}")
            for j in (2, 1, 0):
                tc.append(f"v_pk_fma_f32 {vr(o,2)}, {vr(KF+2*(3+tt-j),2)}, {vr(SF+2*j,2)}, {vr(o,2)}")
            tc.append(f"v_pk_mul_f32 {vr(o,2)}, {vr(o,2)}, {vr(VF+2*tt,2)}")
        tc.append(f"v_cvt_pk_bf16_f32 v{UP+2*d}, v{OF+2}, v{OF}")
        tc.append(f"v_cvt_pk_bf16_f32 v{UP+2*d+1}, v{OF+3}, v{OF+1}")
    groups = [xdma(1, i) for i in range(5)] + [wdma(3), wdma(4)]
    per = len(tc) // (len(groups) + 1)
    for i, l in enumerate(tc):
        if "notc" not in EXP:
            c(l)
        if (i + 1) % per == 0 and groups:
            c(groups.pop(0))
    assert not groups
    c("v_sub_u32 v67, 31, v65",
      "v_lshrrev_b32 v68, 2, v67",
      "v_xor_b32 v68, v68, v64",
      "v_lshlrev_b32 v68, 4, v68",
      "v_and_b32 v67, 3, v67",
      "v_lshl_add_u32 v68, v67, 2, v68",
      "v_lshl_add_u32 v68, v64, 10, v68",
      f"v_add_u32 v68, {L_TB}, v68")
    for i in range(8):
        c(f"ds_write_b32 v68, v{UP+i} offset:{128*i}")
    c("v_lshrrev_b32 v67, 3, v0",
      "v_lshrrev_b32 v68, 3, v67",
      "v_xor_b32 v68, v68, v64",
      "v_lshlrev_b32 v68, 4, v68",
      "v_lshl_add_u32 v68, v67, 7, v68",
      f"v_add_u32 v68, {L_TB}, v68",
      "v_xor_b32 v69, 64, v68",
      f"s_and_b32 s{t}, s2, 7",
      f"s_lshl_b32 s{t}, s{t}, 18",
      f"s_lshr_b32 s{t+1}, s2, 3",
      f"s_lshl_b32 s{t+1}, s{t+1}, 7",
      f"s_sub_u32 s{t}, s{t}, s{t+1}",
      f"s_add_u32 s{t}, s{t}, {U_OFF + 3968}",
      f"s_add_u32 s{t+1}, s{t}, {32*4096}",
      "v_lshlrev_b32 v67, 12, v67",
      "v_lshl_add_u32 v67, v64, 4, v67",
      "s_nop 0")
    stamp("p1")
    c(("wait", ["x0", "w0"], 0),
      "s_barrier",
      f"ds_read_b128 {vr(UP,4)}, v68",
      f"ds_read_b128 {vr(UP+4,4)}, v69 offset:4096")

    XS = [64 + 8, 96]
    XS = [184, 208]
    ACC = 108
    AQ, AK, AV = ACC, ACC + 20, ACC + 40
    SA = 168
    V_SB = 172
    V_EP = 174
    SU = 232

    def p1_reads(P, e):
        l = []
        slot = (e % NS) * 12288
        l.append(f"v_add_u32 v{V_SB}, s{s_stile}, v{VAE+e}")
        for s in range(3):
            for ss in range(2):
                l.append(f"ds_read_b64_tr_b16 {ar(12*e+4*s+2*ss,2)}, v{V_BB} offset:{slot+1024*s+512*ss}")
        for tl in range(5):
            l.append(f"ds_read_b128 {vr(XS[P]+4*tl,4)}, v{VAE+e} offset:{4096*tl}")
        l.append(f"ds_read_b128 {vr(XS[P]+20,4)}, v{V_SB}")
        return l

    c(p1_reads(0, 0))
    c(f"v_mov_b32 v{SA}, 0", f"v_mov_b32 v{SA+1}, 0", "s_waitcnt lgkmcnt(12)")
    c(("vm", "Tst", f"buffer_store_dwordx4 {vr(UP,4)}, v67, {sr(SWS,4)}, s{t} offen sc1"),
      ("vm", "Tst", f"buffer_store_dwordx4 {vr(UP+4,4)}, v67, {sr(SWS,4)}, s{t+1} offen sc1"))
    stamp()
    V_WOD = 176
    wod = [f"v_lshrrev_b32 v{V_T0}, 3, v{V_LANE}",
           f"v_bfe_u32 v{V_T0+1}, v{V_T0}, 1, 1",
           f"s_lshl_b32 s{t+5}, s{s_half}, 1",
           f"v_or_b32 v{V_T0+1}, s{t+5}, v{V_T0+1}",
           f"v_bfe_u32 v{V_WOD}, v{V_LANE}, 1, 2",
           f"v_xor_b32 v{V_T0+1}, v{V_T0+1}, v{V_WOD}",
           f"v_lshlrev_b32 v{V_T0+1}, 5, v{V_T0+1}",
           f"v_and_b32 v{V_WOD}, 1, v{V_LANE}",
           f"v_lshl_add_u32 v{V_T0+1}, v{V_WOD}, 4, v{V_T0+1}",
           f"v_lshl_add_u32 v{V_WOD}, v{V_T0}, 10, v{V_T0+1}",
           f"s_lshl_b32 s{t+6}, s{s_g}, 7",
           f"s_lshl_b32 s{t+5}, s{s_wave}, 13",
           f"s_add_u32 s{t+6}, s{t+6}, s{t+5}",
           f"s_lshl_b32 s{t+7}, s{s_wave}, 10"]

    def wodma(n):
        return [f"s_add_u32 m0, s{t+7}, {L_R + n*4096}",
                f"s_add_u32 s{t}, s{t+6}, {n*32768}",
                ("vm", "wo", f"buffer_load_dwordx4 v{V_WOD}, {sr(SWO,4)}, s{t} offen lds")]

    xsched = {0: [(2, 0), (2, 1)], 1: [(2, 2), (2, 3), (2, 4)], 2: [(3, 0), (3, 1)], 3: [(3, 2), (3, 3), (3, 4)]}
    V_HL, V_FT = 178, 182
    for e in range(16):
        P = e & 1
        need = []
        if e < 15:
            need = [f"w{e+1}"]
            if (e + 1) % 4 == 0:
                need.append(f"x{(e+1)//4}")
            if e == 4:
                need += ["Tst", "ep"]
        c(("wait", need, 0))
        if "nobar" not in EXP:
            c("s_barrier")
        sx = XS[P] + 20
        st_ops = []
        if "plain" not in EXP:
            for i in range(4):
                c(f"v_dot2_f32_bf16 v{SA}, v{sx+i}, v{ONES}, v{SA}",
                  f"v_dot2_f32_bf16 v{SA+1}, v{sx+i}, v{sx+i}, v{SA+1}")
        else:
            for i in range(4):
                st_ops += [f"v_lshlrev_b32 v{SU}, 16, v{sx+i}",
                           f"v_and_b32 v{SU+1}, 0xffff0000, v{sx+i}",
                           f"v_add_f32 v{SA}, v{SA}, v{SU}",
                           f"v_fmac_f32 v{SA+1}, v{SU}, v{SU}",
                           f"v_add_f32 v{SA}, v{SA}, v{SU+1}",
                           f"v_fmac_f32 v{SA+1}, v{SU+1}, v{SU+1}"]
        if e in (0, 2, 4, 6, 8, 10, 12, 14):
            stamp("p1")
        other = []
        if e < 15:
            other += p1_reads(1 - P, e + 1)
        if e == 0:
            other.append(("vm", "ep", f"buffer_load_dwordx2 {vr(V_EP,2)}, v{V_Z}, {sr(SDBG,4)}, 0 offen sc1"))
        if e + NS < 16:
            other += wdma(e + NS)
        for (qi, i) in xsched.get(e, []):
            other += xdma(qi, i)
        if e == 15:
            other += [f"s_lshl_b32 s{t+8}, s{s_rb}, 7",
                      f"s_add_u32 s{t+8}, s{t+8}, {F_HELLO}",
                      f"v_and_b32 v{V_T0}, 0x70, v{V_L16}",
                      ("vm", "hl", f"buffer_load_dwordx4 {vr(V_HL,4)}, v{V_T0}, {sr(SWS,4)}, s{t+8} offen sc1"),
                      f"s_lshr_b32 s{t+9}, s2, 5",
                      f"s_lshl_b32 s{t+9}, s{t+9}, 8",
                      f"s_add_u32 s{t+9}, s{t+9}, {F_T}",
                      f"v_and_b32 v{V_T0+1}, 0xf8, v{V_L8}",
                      ("vm", "hl", f"buffer_load_dwordx2 {vr(V_FT,2)}, v{V_T0+1}, {sr(SWS,4)}, s{t+9} offen sc1")]
        if e == 7 and "nopf2" not in EXP:
            other += [f"s_lshl_b32 s{t}, s2, 13",
                      f"s_lshl_b32 s{t+1}, s{s_wave}, 11",
                      f"s_add_u32 s{t}, s{t}, s{t+1}",
                      ("vm", "pf", f"buffer_load_dwordx4 v[240:243], v{V_L16}, {sr(SKK,4)}, s{t} offen"),
                      ("vm", "pf", f"buffer_load_dwordx4 v[240:243], v{V_L16}, {sr(SKK,4)}, s{t} offen offset:1024"),
                      f"v_lshlrev_b32 v236, 18, v{V_LANE}",
                      ("vm", "pf", f"buffer_load_dword v237, v236, {sr(SWS,4)}, 0 offen"),
                      ("vm", "pf", f"buffer_load_dword v237, v236, {sr(SOUT,4)}, 0 offen")]
        if e == 8 and "nopfl" not in EXP:
            other += [f"s_lshl_b32 s{t}, s{s_rb}, 8",
                      f"v_lshlrev_b32 v236, 13, v{V_Q}",
                      f"v_lshl_add_u32 v236, v{V_LAM}, 4, v236",
                      f"s_add_u32 s{t}, s{t}, {F_O1}",
                      ("vm", "pf", f"buffer_load_dword v237, v236, {sr(SWS,4)}, s{t} offen sc1"),
                      f"s_lshl_b32 s{t}, s{s_rb}, 13",
                      f"s_lshl_b32 s{t+1}, s{s_wave}, 11",
                      f"s_add_u32 s{t}, s{t}, s{t+1}",
                      f"v_lshlrev_b32 v236, 7, v{V_LAM}",
                      f"v_and_b32 v237, 1, v{V_Q}",
                      f"v_lshl_add_u32 v236, v237, 18, v236",
                      f"s_add_u32 s{t}, s{t}, {ST1_OFF}",
                      ("vm", "pf", f"buffer_load_dword v237, v236, {sr(SWS,4)}, s{t} offen sc1")]
        if e == 9 and "pfb" in EXP:
            other += [f"s_lshl_b32 s{t}, s{s_g}, 2",
                      f"s_add_u32 s{t}, s{t}, s{s_wave}",
                      f"s_lshl_b32 s{t}, s{t}, 9",
                      f"s_lshl_b32 s{t+1}, s{s_rb}, 16",
                      f"s_add_u32 s{t}, s{t}, s{t+1}",
                      f"v_and_b32 v236, 3, v{V_LANE}",
                      "v_lshlrev_b32 v236, 7, v236",
                      f"v_bfe_u32 v237, v{V_LANE}, 2, 2",
                      "v_lshl_add_u32 v236, v237, 14, v236",
                      f"v_and_b32 v237, 1, v{V_Q}",
                      "v_lshl_add_u32 v236, v237, 21, v236",
                      ("vm", "pf", f"buffer_load_dword v237, v236, {sr(SWS,4)}, s{t} offen"),
                      f"s_lshl_b32 s{t}, s{s_wave}, 15",
                      f"s_add_u32 s{t}, s{t}, s{s_rowbase}",
                      f"s_lshl_b32 s{t+1}, s{s_g}, 7",
                      f"s_add_u32 s{t}, s{t}, s{t+1}",
                      f"s_add_u32 s{t+1}, s{t}, {X2_OFF}",
                      ("vm", "pf", f"buffer_load_dword v237, v{V_ROW}, {sr(SWS,4)}, s{t+1} offen"),
                      ("vm", "pf", f"buffer_load_dword v237, v{V_ROW}, {sr(SOUT,4)}, s{t} offen")]
        if e == 10:
            other += wod
        if e == 11:
            other += wodma(15)
        if e >= 12:
            for n in range(3 * (e - 11), 3 * (e - 11) + 3):
                other += wodma(n)
        if e == 4:
            Lp, Lok, Lnf = a.label("ep"), a.label("epok"), a.label("nf")
            c(f"s_mov_b32 s{s_spin}, 0",
              f"{Lp}:",
              f"v_readfirstlane_b32 s{s_ep}, v{V_EP}",
              f"v_readfirstlane_b32 s{s_ep+1}, v{V_EP+1}",
              f"s_add_u32 s{s_spin}, s{s_spin}, 1",
              f"s_cmp_lg_u32 s{s_ep}, 0",
              f"s_cbranch_scc1 {Lok}",
              f"s_cmp_gt_u32 s{s_spin}, {SPIN_MAX}",
              f"s_cbranch_scc1 {Lok}",
              "s_sleep 2",
              f"buffer_load_dwordx2 {vr(V_EP,2)}, v{V_Z}, {sr(SDBG,4)}, 0 offen sc1",
              "s_waitcnt vmcnt(0)",
              f"s_branch {Lp}",
              f"{Lok}:",
              f"v_mov_b32 v{V_EPV}, s{s_ep}",
              f"v_mov_b32 v{V_EPV+1}, s{s_ep+1}",
              f"s_cmp_lg_u32 s{s_wave}, 0",
              f"s_cbranch_scc1 {Lnf}",
              f"v_mov_b32 v{V_HL}, s{s_ep}",
              f"v_mov_b32 v{V_HL+1}, s{s_ep+1}",
              f"v_mov_b32 v{V_HL+2}, s{s_xcc}",
              f"v_mov_b32 v{V_HL+3}, 0",
              f"s_and_b32 s{t}, s2, 7",
              f"s_lshl_b32 s{t}, s{t}, 8",
              f"s_and_b32 s{t+1}, s2, 0xf8",
              f"s_add_u32 s{t}, s{t}, s{t+1}",
              f"s_add_u32 s{t}, s{t}, {F_T}",
              f"s_lshl_b32 s{t+1}, s{s_rb}, 7",
              f"s_lshl_b32 s{t+2}, s{s_g}, 4",
              f"s_add_u32 s{t+1}, s{t+1}, s{t+2}",
              f"s_add_u32 s{t+1}, s{t+1}, {F_HELLO}",
              "s_mov_b64 exec, 1",
              f"buffer_store_dwordx2 {vr(V_HL,2)}, v{V_Z}, {sr(SWS,4)}, s{t} offen sc1",
              f"buffer_store_dwordx4 {vr(V_HL,4)}, v{V_Z}, {sr(SWS,4)}, s{t+1} offen sc1",
              "s_mov_b64 exec, -1",
              f"{Lnf}:")
        mf = []
        wq, wk, wv = ar(12 * e, 4), ar(12 * e + 4, 4), ar(12 * e + 8, 4)
        for tl in range(5):
            x = vr(XS[P] + 4 * tl, 4)
            for (acc, A_, B_) in ((AQ + 4 * tl, wq, x), (AK + 4 * tl, wk, x), (AV + 4 * tl, x, wv)):
                mf.append(f"v_mfma_f32_16x16x32_bf16 {vr(acc,4)}, {A_}, {B_}, {vr(acc,4) if e else 0}")
        mix = []
        no, ns = len(other), len(st_ops)
        io = 0
        for j, so in enumerate(st_ops):
            while io < (j + 1) * no // max(ns, 1):
                mix.append(other[io])
                io += 1
            mix.append(so)
        mix += other[io:]
        c.merge(mf, mix)
    stamp()
    HR = 64
    c(f"v_lshrrev_b32 v72, 5, v{V_LANE}",
      f"s_lshl_b32 s{t}, s{s_wave}, 1",
      f"s_add_u32 s{t}, s{t}, 8",
      f"v_add_u32 v72, s{t}, v72",
      "v_lshlrev_b32 v72, 8, v72",
      f"v_lshl_add_u32 v72, v{V_LAM}, 4, v72",
      f"v_and_b32 v73, 1, v{V_Q}",
      f"v_mul_u32_u24 v73, {XQ}, v73",
      "v_add_u32 v72, v72, v73",
      f"ds_read_b128 {vr(HR,4)}, v72 offset:{L_X}",
      f"ds_read_b128 {vr(HR+4,4)}, v72 offset:{L_X+2*XQ}",
      f"v_mov_b32 v{SA+2}, 0",
      f"v_mov_b32 v{SA+3}, 0",
      f"v_lshlrev_b32 v74, 2, v{V_LAM}")
    for r in range(4):
        c(f"v_mov_b32_dpp v{CSQ+r}, v{AQ+r} row_newbcast:0 row_mask:0xf bank_mask:0xf",
          f"v_mov_b32_dpp v{CSK+r}, v{AK+r} row_newbcast:0 row_mask:0xf bank_mask:0xf")
    c(f"ds_bpermute_b32 v{CSV}, v74, v{AV}",
      "s_waitcnt lgkmcnt(0)",
      "s_barrier")
    STA, STB = 94, 196
    QP, KP, VP = 64, 74, 84
    def read_stats(vlam8):
        l = [f"ds_read_b64 {vr(STA+2*tl,2)}, v{vlam8} offset:{128*tl}" for tl in range(5)]
        l += [f"v_lshlrev_b32 v{V_T0}, 5, v{V_Q}", f"v_add_u32 v{V_T0}, {L_ST}, v{V_T0}"]
        for tl in range(5):
            l += [f"ds_read_b128 {vr(STB+8*tl,4)}, v{V_T0} offset:{128*tl}",
                  f"ds_read_b128 {vr(STB+8*tl+4,4)}, v{V_T0} offset:{128*tl+16}"]
        return l

    def poll(check_lines, reload_lines, name, sleep=1):
        Lp, Ld = a.label(name), a.label(name + "d")
        c(f"s_mov_b32 s{s_spin}, 0", f"{Lp}:")
        c(check_lines)
        c(f"s_add_u32 s{s_spin}, s{s_spin}, 1",
          f"s_cmp_gt_u32 s{s_spin}, {SPIN_MAX}",
          f"s_cbranch_scc1 {Ld}",
          "s_nop 1",
          f"s_cbranch_vccz {Ld}",
          f"s_sleep {sleep}")
        c(reload_lines)
        c("s_waitcnt vmcnt(0)", f"s_branch {Lp}", f"{Ld}:")

    def chk_ep(regs_lo, tmp):
        l = []
        for n, lo in enumerate(regs_lo):
            if n == 0:
                l.append(f"v_xor_b32 v{tmp}, s{s_ep}, v{lo}")
            else:
                l.append(f"v_xor_b32 v{tmp+1}, s{s_ep}, v{lo}")
                l.append(f"v_or_b32 v{tmp}, v{tmp}, v{tmp+1}")
            l.append(f"v_xor_b32 v{tmp+1}, s{s_ep+1}, v{lo+1}")
            l.append(f"v_or_b32 v{tmp}, v{tmp}, v{tmp+1}")
        l.append(f"v_cmp_ne_u32 vcc, 0, v{tmp}")
        return l

    PT = 104
    c(f"v_and_b32 v{PT}, 0x70, v{V_L16}", f"v_and_b32 v{PT+1}, 0xf8, v{V_L8}")
    c(("wait", ["hl"]))
    poll(chk_ep([V_HL, V_FT], 106),
         [f"buffer_load_dwordx4 {vr(V_HL,4)}, v{PT}, {sr(SWS,4)}, s{t+8} offen sc1",
          f"buffer_load_dwordx2 {vr(V_FT,2)}, v{PT+1}, {sr(SWS,4)}, s{t+9} offen sc1"], "phl")
    c(f"v_cmp_ne_u32 vcc, s{s_xcc}, v{V_HL+2}",
      f"s_lshl_b32 s{t+3}, s{s_half}, 11",
      f"s_add_u32 s{t+4}, s{s_c}, s{t+3}",
      f"s_add_u32 s{t+4}, s{t+4}, {U_OFF}",
      f"s_add_u32 m0, s{s_cl}, s{t+3}",
      "s_nop 0",
      ("vm", "cu", f"buffer_load_dwordx4 v{V_L16}, {sr(SWS,4)}, s{t+4} offen sc1 lds"),
      ("vm", "cu", f"buffer_load_dwordx4 v{V_L16}, {sr(SWS,4)}, s{t+4} offen offset:1024 sc1 lds"),
      "s_cmp_eq_u64 vcc, 0",
      f"s_cselect_b32 s{s_loc}, 1, 0")
    V_FX, V_FI = 184, 185
    dm = []
    for i in range(2):
        g0 = [f"s_lshl_b32 s{t+3}, s{s_half}, 1",
              f"s_add_u32 s{t+3}, s{t+3}, {i}",
              f"s_mul_i32 s{t+5}, s{t+3}, {C_KS}",
              f"s_add_u32 s{t+5}, s{t+5}, s{s_cl}",
              f"s_add_u32 s{t+10+i}, s{t+5}, {C_K+32}",
              f"s_lshl_b32 s{t+3}, s{t+3}, 1",
              f"s_add_u32 s{t+12+i}, s{s_c}, s{t+3}"]
        c(g0)
        for n in range(4):
            dm.append([f"s_mov_b32 m0, s{t+10+i}", "s_nop 0",
                       ("vm", "ck", f"buffer_load_dwordx4 v{V_L16}, {sr(SKK,4)}, s{t+12+i} offen offset:{1024*n} lds")])
    for n in range(3):
        dm.append(wodma(n))
    c(f"v_add_u32 v{V_FI}, v{V_LAM}, v{V_Q}",
      f"v_subrev_u32 v{V_FI}, 16, v{V_FI}",
      f"v_max_i32 v74, 0, v{V_FI}",
      "v_lshlrev_b32 v74, 1, v74",
      ("vm", "ck", f"buffer_load_ushort v{V_FX}, v74, {sr(SKK,4)}, s{s_c} offen"))

    def with_dmas(main, groups, every):
        n = 0
        for it in main:
            c(it)
            n += 1
            if n % every == 0 and groups:
                c(groups.pop(0))

    TT = 72
    ep = []
    for i in range(8):
        ep.append(f"v_dot2_f32_bf16 v{SA+2}, v{HR+i}, v{ONES}, v{SA+2}")
        ep.append(f"v_dot2_f32_bf16 v{SA+3}, v{HR+i}, v{HR+i}, v{SA+3}")
    ep.append(("gap", 3))
    for sh in (8, 4, 2, 1):
        ep += [f"v_add_f32_dpp v{SA+2}, v{SA+2}, v{SA+2} row_ror:{sh} row_mask:0xf bank_mask:0xf",
               f"v_add_f32_dpp v{SA+3}, v{SA+3}, v{SA+3} row_ror:{sh} row_mask:0xf bank_mask:0xf",
               ("gap", 1)]
    ep += xq_reduce("v_add_f32", [SA, SA + 1, SA + 2, SA + 3], [TT, TT + 1, TT + 2, TT + 3], ("v_permlane16_swap_b32",))
    ep += xq_reduce("v_add_f32", [SA, SA + 1], [TT, TT + 1], ("v_permlane32_swap_b32",))
    ep += stats_fin([(SA, SA + 1), (SA + 2, SA + 3)], [TT, TT + 1])
    ep += [f"v_lshlrev_b32 v{TT}, 3, v{V_LAM}",
           f"s_lshr_b32 s{t+1}, s{s_stile}, 5",
           f"s_add_u32 s{t+1}, s{t+1}, {L_ST}",
           f"v_add_u32 v{TT+1}, s{t+1}, v{TT}",
           f"ds_write_b64 v{TT+1}, {vr(SA,2)}",
           f"v_lshrrev_b32 v{TT+1}, 5, v{V_LANE}",
           f"v_lshlrev_b32 v{TT+1}, 3, v{TT+1}",
           f"s_lshl_b32 s{t+1}, s{s_wave}, 4",
           f"s_add_u32 s{t+1}, s{t+1}, {L_ST + 64}",
           f"v_add_u32 v{TT+1}, s{t+1}, v{TT+1}",
           f"ds_write_b64 v{TT+1}, {vr(SA+2,2)}",
           f"v_and_b32 v{TT+1}, 0x38, v{TT}",
           f"v_add_u32 v{TT+1}, {L_ST}, v{TT+1}",
           f"v_mov_b32 v{TT+2}, 0",
           f"v_mov_b32 v{TT+3}, 1.0",
           f"ds_write_b64 v{TT+1}, {vr(TT+2,2)}",
           f"v_add_u32 v{TT}, {L_ST}, v{TT}"]
    with_dmas(ep, dm, 12)
    c("s_waitcnt lgkmcnt(0)", "s_barrier")

    c(read_stats(TT), "s_waitcnt lgkmcnt(0)")

    def normalize(tl, pk, VP):
        l = []
        mean, rstd = STA + 2 * tl, STA + 2 * tl + 1
        for (acc, cs, dst, on) in ((AQ + 4 * tl, CSQ, QP + 2 * tl, tl > 0), (AK + 4 * tl, CSK, KP + 2 * tl, True)):
            if not on:
                continue
            if pk:
                for h in range(2):
                    l.append(f"v_pk_fma_f32 {vr(acc+2*h,2)}, {vr(cs+2*h,2)}, {vr(mean,2)}, {vr(acc+2*h,2)} op_sel_hi:[1,0,1] neg_lo:[0,1,0] neg_hi:[0,1,0]")
                for h in range(2):
                    l.append(f"v_pk_mul_f32 {vr(acc+2*h,2)}, {vr(acc+2*h,2)}, {vr(mean,2)} op_sel:[0,1]")
            else:
                for r in range(4):
                    l.append(f"v_fma_f32 v{acc+r}, -v{mean}, v{cs+r}, v{acc+r}")
                for r in range(4):
                    l.append(f"v_mul_f32 v{acc+r}, v{rstd}, v{acc+r}")
            l.append(f"v_cvt_pk_bf16_f32 v{dst}, v{acc}, v{acc+1}")
            l.append(f"v_cvt_pk_bf16_f32 v{dst+1}, v{acc+2}, v{acc+3}")
        acc = AV + 4 * tl
        for r in range(4):
            l.append(f"v_fma_f32 v{acc+r}, -v{STB+8*tl+2*r}, v{CSV}, v{acc+r}")
        for r in range(4):
            l.append(f"v_mul_f32 v{acc+r}, v{STB+8*tl+2*r+1}, v{acc+r}")
        l.append(f"v_cvt_pk_bf16_f32 v{VP+2*tl}, v{acc}, v{acc+1}")
        l.append(f"v_cvt_pk_bf16_f32 v{VP+2*tl+1}, v{acc+2}, v{acc+3}")
        return l

    V_OA = 254
    s_oa = 20
    oaddr = [f"s_lshl_b32 s{t}, s{s_g}, 2",
             f"s_add_u32 s{t}, s{t}, s{s_wave}",
             f"s_lshr_b32 s{t+1}, s{t}, 1",
             f"s_lshl_b32 s{t+1}, s{t+1}, 10",
             f"s_and_b32 s{t}, s{t}, 1",
             f"s_lshl_b32 s{t}, s{t}, 9",
             f"s_add_u32 s{t}, s{t}, s{t+1}",
             f"s_lshl_b32 s{t+1}, s{s_rb}, 16",
             f"s_add_u32 s{s_oa}, s{t}, s{t+1}",
             f"v_lshrrev_b32 v{V_OA}, 1, v{V_Q}",
             f"v_lshlrev_b32 v{V_OA}, 8, v{V_OA}",
             f"v_lshl_add_u32 v{V_OA}, v{V_LAM}, 4, v{V_OA}",
             f"v_and_b32 v{V_T0+1}, 1, v{V_Q}",
             f"v_lshl_add_u32 v{V_OA}, v{V_T0+1}, 3, v{V_OA}"]

    def attn_tiles(tiles, VP, regs, pk):
        SC, SP, MX, MT, PP, OO, LL = (regs[k_] for k_ in ("SC", "SP", "MX", "MT", "PP", "OO", "LL"))
        n = len(tiles)
        l = [("gap", 2)]
        for j, i in enumerate(tiles):
            l.append(f"v_mfma_f32_16x16x16_bf16 {vr(SC+4*j,4)}, {vr(KP+2*i,2)}, {vr(QP+2*i,2)}, {vr(BC,4)}")
            l.append(f"v_mfma_f32_16x16x16_bf16 {vr(SP+4*j,4)}, {vr(KP+2*(i-1),2)}, {vr(QP+2*i,2)}, {vr(BP1 if i == 1 else BP,4)}")
        l.append(("gap", max(8 - 2 * (n - 1), 1) if n < 4 else 2))
        if n >= 2:
            pass
        for j in range(n):
            if j == n - 1 and n > 1:
                l.append(("gap", 2))
            for r in range(4):
                l.append(f"v_max_f32 v{SC+4*j+r}, v{SC+4*j+r}, v{SP+4*j+r}")
            l.append(f"v_max3_f32 v{MX+j}, v{SC+4*j}, v{SC+4*j+1}, v{SC+4*j+2}")
            l.append(f"v_max_f32 v{MX+j}, v{MX+j}, v{SC+4*j+3}")
        l += xq_reduce("v_max_f32", [MX + j for j in range(n)], [MT + j for j in range(n)])
        for j in range(n):
            l.append(f"v_mul_f32 v{MX+j}, 0x3eb8aa3b, v{MX+j}")
        for j in range(n):
            for r in range(4):
                l.append(f"v_fma_f32 v{SC+4*j+r}, v{SC+4*j+r}, s{s_cexp}, -v{MX+j}")
        for j in range(n):
            for r in range(4):
                l.append(f"v_exp_f32 v{SC+4*j+r}, v{SC+4*j+r}")
        l.append(("gap", 1))
        for j in range(n):
            l += [f"v_cvt_pk_bf16_f32 v{SP+4*j}, v{SC+4*j}, v{SC+4*j+1}",
                  f"v_cvt_pk_bf16_f32 v{SP+4*j+1}, v{SC+4*j+2}, v{SC+4*j+3}",
                  f"v_and_b32 v{PP+4*j}, v{MP}, v{SP+4*j}",
                  f"v_and_b32 v{PP+4*j+1}, v{MP+1}, v{SP+4*j+1}",
                  f"v_and_b32 v{PP+4*j+2}, v{MC}, v{SP+4*j}",
                  f"v_and_b32 v{PP+4*j+3}, v{MC+1}, v{SP+4*j+1}"]
        l.append(("gap", 2))
        for j, i in enumerate(tiles):
            l.append(f"v_mfma_f32_16x16x32_bf16 {vr(LL+4*j,4)}, {vr(ONES,4)}, {vr(PP+4*j,4)}, 0")
            l.append(f"v_mfma_f32_16x16x32_bf16 {vr(OO+4*j,4)}, {vr(VP+2*(i-1),4)}, {vr(PP+4*j,4)}, 0")
        l.append(("gap", 8))
        for j in range(n):
            l.append(f"v_rcp_f32 v{LL+4*j}, v{LL+4*j}")
        l.append(("gap", 1))
        for j in range(n):
            if pk:
                l += [f"v_pk_mul_f32 {vr(OO+4*j,2)}, {vr(OO+4*j,2)}, {vr(LL+4*j,2)} op_sel_hi:[1,0]",
                      f"v_pk_mul_f32 {vr(OO+4*j+2,2)}, {vr(OO+4*j+2,2)}, {vr(LL+4*j,2)} op_sel_hi:[1,0]"]
            else:
                l += [f"v_mul_f32 v{OO+4*j+r}, v{LL+4*j}, v{OO+4*j+r}" for r in range(4)]
            l += [f"v_cvt_pk_bf16_f32 v{OO+4*j}, v{OO+4*j}, v{OO+4*j+1}",
                  f"v_cvt_pk_bf16_f32 v{OO+4*j+1}, v{OO+4*j+2}, v{OO+4*j+3}"]
        return l

    def dual_store(lines_fn, tag, nops):
        Lg, Lj = a.label("sg"), a.label("sj")
        c(f"s_cmp_eq_u32 s{s_loc}, 0", f"s_cbranch_scc1 {Lg}")
        c(lines_fn(""))
        c(f"s_branch {Lj}", f"{Lg}:")
        c(lines_fn(" sc1"))
        c(f"{Lj}:")
        c.q += [tag] * nops

    def wave_flag(f_off, sc1_only=False):
        c(f"s_add_u32 s{t}, s{s_flag}, {f_off}", "s_mov_b64 exec, 1")
        if sc1_only:
            c(("vm", "fl", f"buffer_store_dwordx2 {vr(V_EPV,2)}, v{V_Z}, {sr(SWS,4)}, s{t} offen sc1"))
        else:
            dual_store(lambda fl: [f"buffer_store_dwordx2 {vr(V_EPV,2)}, v{V_Z}, {sr(SWS,4)}, s{t} offen{fl}"], "fl", 1)
        c("s_mov_b64 exec, -1")

    s_cexp = 17
    c(f"s_mov_b32 s{s_cexp}, 0x3eb8aa3b")
    R1 = dict(SC=108, SP=124, MX=140, MT=144, PP=148, OO=196, LL=212)
    main = []
    for tl in range(5):
        main += normalize(tl, True, VP)
    with_dmas(main, dm, 16)
    assert not dm

    def o_stores(o_off, OO, tiles):
        def f(fl):
            l = []
            for j, i in enumerate(tiles):
                l += [f"s_add_u32 s{t+1}, s{s_oa}, {(O1_OFF if (fl == '' and 'noalias' not in EXP) else o_off) + (i-1)*16384}",
                      f"buffer_store_dwordx2 {vr(OO+4*j,2)}, v{V_OA}, {sr(SWS,4)}, s{t+1} offen{fl}"]
            return l
        dual_store(f, "ost", len(tiles))

    stamp()
    CA, CB, C2, C3, C4, C5, C6 = 94, 95, 96, 97, 98, 99, 100
    c(f"v_add_u32 v{V_T0}, s{s_cl}, v{V_L8}",
      f"v_mov_b32 v{C2}, 0",
      f"v_mov_b32 v{C3}, 0",
      f"ds_write_b64 v{V_T0}, {vr(C2,2)} offset:{C_U+4096}",
      f"v_mul_u32_u24 v{C4}, {C_KS}, v{V_Q}",
      f"v_lshl_add_u32 v{C4}, v{V_LAM}, 1, v{C4}",
      f"s_add_u32 s{t+5}, s{s_cl}, {C_K}",
      f"v_add_u32 v{C4}, s{t+5}, v{C4}",
      f"v_cmp_gt_i32 vcc, 0, v{V_FI}",
      f"v_add_u32 v{CA}, 1, v{V_LAM}",
      f"v_and_b32 v{CB}, 3, v{CA}",
      f"v_mul_u32_u24 v{CB}, {C_KS}, v{CB}",
      f"v_and_b32 v{CA}, 0x1c, v{CA}",
      f"v_lshl_add_u32 v{CB}, v{CA}, 1, v{CB}",
      f"v_lshl_add_u32 v{CB}, v{V_Q}, 4, v{CB}",
      f"s_lshl_b32 s{t+3}, s{s_half}, 8",
      f"s_add_u32 s{t+3}, s{t+3}, s{s_cl}",
      f"s_add_u32 s{t+5}, s{t+3}, {C_K}",
      f"v_add_u32 v{CA}, s{t+5}, v{CB}",
      f"v_lshlrev_b32 v{CB}, 5, v{V_LAM}",
      f"v_sub_u32 v{CB}, 480, v{CB}",
      f"v_lshl_add_u32 v{CB}, v{V_Q}, 4, v{CB}",
      f"v_add_u32 v{CB}, s{t+3}, v{CB}",
      ("wait", ["ck", "cu"]),
      f"v_cndmask_b32 v{V_FX}, v{V_FX}, 0, vcc",
      f"ds_write_b16 v{C4}, v{V_FX}",
      "s_waitcnt lgkmcnt(0)", "s_barrier")
    CACC = 104
    V_FO = 232
    V_FA = 236

    def creg(P, off, n):
        return vr(136 + off, n) if P == 0 else ar(192 + off, n)

    def creads(P, rp):
        l = []
        for j in range(8):
            l.append(f"ds_read_b128 {creg(P,32+4*j,4)}, v{CB} offset:{64*rp+512*(7-j)}")
            l.append(f"ds_read_b64 {creg(P,4*j,2)}, v{CA} offset:{64*rp+512*j}")
            l.append(f"ds_read_b64 {creg(P,4*j+2,2)}, v{CA} offset:{64*rp+512*j+8}")
        return l

    def flags_load(f_off, rb_sgpr, dst, sreg):
        return [f"s_lshl_b32 s{sreg}, s{rb_sgpr}, 8",
                f"s_add_u32 s{sreg}, s{sreg}, {f_off}",
                ("vm", "fo", f"buffer_load_dwordx2 {vr(dst,2)}, v{V_FA}, {sr(SWS,4)}, s{sreg} offen sc1")]

    def flags_poll(dst, sreg, tmp, name):
        c(("wait", ["fo"]))
        poll(chk_ep([dst], tmp), [f"buffer_load_dwordx2 {vr(dst,2)}, v{V_FA}, {sr(SWS,4)}, s{sreg} offen sc1"], name)

    c(creads(0, 0))
    KEEP, UU, PR, UF = 136, 152, 160, 176
    pre_ep = [
        f"s_lshl_b32 s{t+3}, s{s_wave}, 12",
        f"s_add_u32 s{t+3}, s{t+3}, {C_RED}",
        f"v_add_u32 v{C2}, s{t+3}, v{V_L16}",
        f"s_xor_b32 s{t+3}, s{s_wave}, 1",
        f"s_lshl_b32 s{t+3}, s{t+3}, 12",
        f"s_add_u32 s{t+3}, s{t+3}, {C_RED}",
        f"v_add_u32 v{C3}, s{t+3}, v{V_L16}",
        f"v_lshlrev_b32 v{C4}, 5, v{V_LAM}",
        f"v_lshl_add_u32 v{C4}, v{V_Q}, 3, v{C4}",
        f"s_lshl_b32 s{t+3}, s{s_half}, 11",
        f"s_sub_u32 s{t+3}, s{s_cl}, s{t+3}",
        f"s_add_u32 s{t+3}, s{t+3}, {C_U + 4088 - 1536}",
        f"v_sub_u32 v{C4}, s{t+3}, v{C4}",
        f"s_lshl_b32 s{t+3}, s{s_wave}, 11",
        f"s_add_u32 s{t+3}, s{t+3}, {C_TR}",
        f"v_lshlrev_b32 v{C5}, 4, v{V_LAM}",
        f"v_lshl_add_u32 v{C5}, v{V_Q}, 2, v{C5}",
        f"v_add_u32 v{C5}, s{t+3}, v{C5}",
        f"v_add_u32 v{C6}, s{t+3}, v{V_L16}",
        f"v_lshrrev_b32 v101, 5, v{V_LANE}",
        "v_lshlrev_b32 v101, 8, v101",
        f"v_and_b32 v102, 1, v{V_Q}",
        "v_lshl_add_u32 v101, v102, 11, v101",
        f"v_lshl_add_u32 v101, v{V_LAM}, 4, v101",
        f"s_lshl_b32 s{t+4}, s{s_half}, 10",
        f"s_add_u32 s{t+4}, s{t+4}, s{s_c}",
        f"s_add_u32 s{t+4}, s{t+4}, {Y_OFF}",
        f"s_lshl_b32 s{t+3}, s{s_D}, 16",
        f"s_and_b32 s{t+5}, s{s_D}, 0xffff0000",
        f"s_cmp_eq_u32 s{s_ch}, 0",
        f"s_cselect_b32 s{t+3}, s{t+3}, s{t+5}"]
    pre_ep += [f"ds_read_b64 {vr(UU+2*i,2)}, v{C4} offset:{512*(3-i)}" for i in range(4)]
    pre_ep += ["s_waitcnt lgkmcnt(0)"]
    for i in range(4):
        pre_ep += [f"v_and_b32 v{UF+4*i}, 0xffff0000, v{UU+2*i+1}",
                   f"v_lshlrev_b32 v{UF+4*i+1}, 16, v{UU+2*i+1}",
                   f"v_and_b32 v{UF+4*i+2}, 0xffff0000, v{UU+2*i}",
                   f"v_lshlrev_b32 v{UF+4*i+3}, 16, v{UU+2*i}"]
    pre_ep += [f"v_mul_f32 v{UF+r}, s{t+3}, v{UF+r}" for r in range(16)]
    RA = dict(SC=200, SP=208, MX=216, MT=218, PP=220, OO=238, LL=246)
    opt = [f"v_and_b32 v{V_FA}, 0xf8, v{V_L8}"] + oaddr
    for pr in ([1, 2], [3, 4]):
        opt += attn_tiles(pr, VP, RA, False)
        opt.append(lambda pr=pr: o_stores(O1_OFF, RA["OO"], pr))
        opt.append(("gap", 3))
    c._dist = 100
    for rp in range(4):
        P = rp & 1
        c("s_waitcnt lgkmcnt(0)")
        if rp == 3:
            opt += pre_ep
        mf = []
        for j in range(8):
            for i in range(j, 8):
                cc = vr(CACC + 4 * i, 4) if (rp or j) else 0
                mf.append(f"v_mfma_f32_16x16x32_bf16 {vr(CACC+4*i,4)}, {creg(P,4*j,4)}, {creg(P,32+4*(i-j),4)}, {cc}")
        opt = c.merge2(mf, creads(1 - P, rp + 1) if rp < 3 else [], opt, flush=(rp == 3))
    OFR = 192

    def o_loads(o_off):
        g = []
        for st in range(4):
            for i in range(4):
                e = 4 * st + i
                l = []
                if i == 0:
                    l.append(f"s_add_u32 s{t+11}, s{t+10}, {st*4096}")
                l.append(("vm", f"o{e}", f"buffer_load_dwordx4 {ar(OFR+4*e,4)}, v{V_L16}, {sr(SWS,4)}, s{t+11} offen offset:{1024*i} sc1"))
                g.append(l)
        pre = [f"s_lshl_b32 s{t+10}, s{s_rb}, 16",
               f"s_lshl_b32 s{t+11}, s{s_wave}, 14",
               f"s_add_u32 s{t+10}, s{t+10}, s{t+11}",
               f"s_cmp_eq_u32 s{s_loc}, 0",
               f"s_cselect_b32 s{t+11}, {o_off}, {o_off if 'noalias' in EXP else O1_OFF}",
               f"s_add_u32 s{t+10}, s{t+10}, s{t+11}"]
        return pre, g

    c(("wait", ["ost"]))
    wave_flag(F_O1)
    L1, L2 = a.label("cvh"), a.label("cvj")
    c("s_nop 1", f"s_cmp_eq_u32 s{s_half}, 0", f"s_cbranch_scc0 {L1}")
    for i in range(4):
        c(f"ds_write_b128 v{C2}, {vr(CACC+16+4*i,4)} offset:{1024*i}")
    for r in range(8):
        c(f"v_pk_add_f32 {vr(KEEP+2*r,2)}, {vr(CACC+2*r,2)}, {vr(UF+2*r,2)}")
    c(f"s_branch {L2}", f"{L1}:")
    for i in range(4):
        c(f"ds_write_b128 v{C2}, {vr(CACC+4*i,4)} offset:{1024*i}")
    for r in range(8):
        c(f"v_pk_add_f32 {vr(KEEP+2*r,2)}, {vr(CACC+16+2*r,2)}, {vr(UF+2*r,2)}")
    c(f"{L2}:", "s_waitcnt lgkmcnt(0)", "s_barrier")
    c([f"ds_read_b128 {vr(PR+4*i,4)}, v{C3} offset:{1024*i}" for i in range(4)])
    c(flags_load(F_O1, s_rb, V_FO, t + 8))
    for i in range(4):
        c(f"s_waitcnt lgkmcnt({3-i})" if i == 0 else f"s_waitcnt lgkmcnt({3-i+2*i})",
          f"v_pk_add_f32 {vr(KEEP+4*i,2)}, {vr(KEEP+4*i,2)}, {vr(PR+4*i,2)}",
          f"v_pk_add_f32 {vr(KEEP+4*i+2,2)}, {vr(KEEP+4*i+2,2)}, {vr(PR+4*i+2,2)}")
        for par in range(2):
            c(f"v_cvt_pk_bf16_f32 v{UF+2*i+par}, v{KEEP+4*i+par}, v{KEEP+4*i+2+par}",
              f"ds_write_b32 v{C5}, v{UF+2*i+par} offset:{(2*i+par)*256}")
    YS = 228
    c("s_waitcnt lgkmcnt(0)",
      f"ds_read_b128 {vr(YS,4)}, v{C6}",
      f"ds_read_b128 {vr(238,4)}, v{C6} offset:1024")
    c("s_waitcnt lgkmcnt(0)",
      ("vm", "yst", f"buffer_store_dwordx4 {vr(YS,4)}, v101, {sr(SWS,4)}, s{t+4} offen sc1"),
      ("vm", "yst", f"buffer_store_dwordx4 {vr(238,4)}, v101, {sr(SWS,4)}, s{t+4} offen offset:512 sc1"))
    stamp()
    c(f"s_lshl_b32 s{t}, s{s_g}, 7", f"s_add_u32 s{s_rowbase}, s{s_rowbase}, s{t}")
    pre, og = o_loads(O1_OFF)
    c(pre)
    c(f"s_lshl_b32 s{t+7}, s{s_g}, 8",
      f"s_add_u32 s{t+7}, s{t+7}, {F_Y}",
      f"s_lshl_b32 s{t+9}, s{s_g}, 18",
      f"s_lshl_b32 s{t+1}, s{s_p}, 11",
      f"s_add_u32 s{t+9}, s{t+9}, s{t+1}",
      f"s_lshl_b32 s{t+1}, s{s_b}, 7",
      f"s_add_u32 s{t+9}, s{t+9}, s{t+1}",
      f"s_lshl_b32 s{t+1}, s{s_wave}, 16",
      f"s_add_u32 s{t+9}, s{t+9}, s{t+1}",
      f"s_add_u32 s{t+9}, s{t+9}, {Y_OFF}",
      f"s_add_u32 s22, s{t+9}, 32768",
      f"v_lshrrev_b32 v75, 3, v{V_LANE}",
      "v_lshlrev_b32 v75, 12, v75",
      f"v_and_b32 v76, 0x70, v{V_L16}",
      "v_add_u32 v75, v75, v76",
      f"s_lshl_b32 s23, s{s_wave}, 11",
      f"s_add_u32 s23, s23, {P2_YT}",
      f"v_bfe_u32 v79, v{V_LANE}, 2, 2",
      f"v_lshl_add_u32 v79, v{V_Q}, 2, v79",
      "v_lshlrev_b32 v79, 7, v79",
      f"v_and_b32 v76, 3, v{V_LANE}",
      "v_lshl_add_u32 v79, v76, 3, v79",
      f"s_lshl_b32 s{t+1}, s{s_wave}, 5",
      f"s_add_u32 s{t+1}, s{t+1}, {P2_YT}",
      f"v_add_u32 v79, s{t+1}, v79")
    fyl = f"buffer_load_dwordx2 {vr(72,2)}, v{V_FA}, {sr(SWS,4)}, s{t+7} offen sc1"
    ylds = ["s_mov_b32 m0, s23", "s_nop 0",
            f"buffer_load_dwordx4 v75, {sr(SWS,4)}, s{t+9} offen sc1 lds",
            "s_add_u32 m0, s23, 1024", "s_nop 0",
            f"buffer_load_dwordx4 v75, {sr(SWS,4)}, s22 offen sc1 lds"]
    flags_poll(V_FO, t + 8, 68, "po1")
    for g_ in og:
        c(g_)
    stamp()

    def y_flag():
        Lny = a.label("nfy")
        c(("wait", ["yst"]),
          "s_barrier",
          f"s_cmp_lg_u32 s{s_wave}, 0",
          f"s_cbranch_scc1 {Lny}",
          f"s_lshl_b32 s{t}, s2, 3",
          f"s_add_u32 s{t}, s{t}, {F_Y}",
          "s_mov_b64 exec, 1",
          f"buffer_store_dwordx2 {vr(V_EPV,2)}, v{V_Z}, {sr(SWS,4)}, s{t} offen sc1",
          "s_mov_b64 exec, -1",
          f"{Lny}:")

    YP, X2K = 246, 238

    def wo_phase(layer):
        first = layer == 0
        XR = 96
        c(f"s_lshl_b32 s{t+1}, s{s_wave}, 15", f"s_add_u32 s{t+5}, s{s_rowbase}, s{t+1}")
        if first:
            for nt in range(4):
                c(("vm", "xr", f"buffer_load_dwordx2 {vr(XR+2*nt,2)}, v{V_ROW}, {sr(SX,4)}, s{t+5} offen offset:{32*nt}"))
        WACC = 80
        WF = [112, 144, 176]

        def reads(P, e):
            return [f"ds_read_b64_tr_b16 {vr(WF[P]+4*nt+2*ss,2)}, v{V_WO+nt} offset:{4096*e+512*ss}"
                    for nt in range(4) for ss in range(2)]
        c(reads(0, 0), reads(1, 1))
        for e in range(16):
            P = e % 3
            if first and e == 0:
                y_flag()
            c(("wait", [f"o{e}"], 8 if e < 15 else 0))
            mf = [f"v_mfma_f32_16x16x32_bf16 {vr(WACC+4*nt,4)}, {vr(WF[P]+4*nt,4)}, {ar(OFR+4*e,4)}, {vr(WACC+4*nt,4) if e else 0}"
                  for nt in range(4)]
            c.merge(mf, reads((e + 2) % 3, e + 2) if e < 14 else [], 2)
        XF, X1P, G = 144, 160, 168
        if first and 'stamp' not in EXP:
            stamp()
        if first:
            c(("wait", ["xr"]))
            src = XR
        else:
            src = X2K
        for i in range(8):
            c(f"v_lshlrev_b32 v{XF+2*i}, 16, v{src+i}", f"v_and_b32 v{XF+2*i+1}, 0xffff0000, v{src+i}")
        c(f"v_mov_b32 v{G}, 0", f"v_mov_b32 v{G+1}, 0", f"v_mov_b32 v{G+2}, s{s_ep}", f"v_mov_b32 v{G+3}, s{s_ep+1}")
        for i in range(8):
            c(f"v_pk_add_f32 {vr(XF+2*i,2)}, {vr(XF+2*i,2)}, {vr(WACC+2*i,2)}",
              f"v_cvt_pk_bf16_f32 v{X1P+i}, v{XF+2*i}, v{XF+2*i+1}")
        for i in range(8):
            c(f"v_dot2_f32_bf16 v{G}, v{X1P+i}, v{ONES}, v{G}", f"v_dot2_f32_bf16 v{G+1}, v{X1P+i}, v{X1P+i}, v{G+1}")
        st_off = ST1_OFF if first else ST2_OFF
        c(f"s_lshl_b32 s{t+6}, s{s_rb}, 13",
          f"s_lshl_b32 s{t+1}, s{s_wave}, 11",
          f"s_add_u32 s{t+6}, s{t+6}, s{t+1}",
          f"s_add_u32 s{t+6}, s{t+6}, {st_off}",
          f"s_lshl_b32 s{t+1}, s{s_g}, 4",
          f"s_add_u32 s{t+1}, s{t+1}, s{t+6}",
          f"v_lshlrev_b32 v74, 7, v{V_LAM}")
        c(xq_reduce("v_add_f32", [G, G + 1], [G + 4, G + 5]))
        c("s_mov_b64 exec, 0xffff")
        dual_store(lambda fl: [f"buffer_store_dwordx4 {vr(G,4)}, v74, {sr(SWS,4)}, s{t+1} offen{fl}"], "sst", 1)
        c("s_mov_b64 exec, -1")
        GR = 176
        for i in range(8):
            c(f"v_lshlrev_b32 v{XF+2*i}, 16, v{X1P+i}", f"v_and_b32 v{XF+2*i+1}, 0xffff0000, v{X1P+i}")
        c(f"v_lshl_add_u32 v74, v{V_Q}, 5, v74")
        gl = [f"buffer_load_dwordx4 {vr(GR,4)}, v74, {sr(SWS,4)}, s{t+6} offen sc1",
              f"buffer_load_dwordx4 {vr(GR+4,4)}, v74, {sr(SWS,4)}, s{t+6} offen offset:16 sc1"]
        if first:
            Lyd = a.label("yd")
            c(f"s_cmp_lg_u32 s{s_wave}, 0", f"s_cbranch_scc1 {Lyd}", fyl, "s_waitcnt vmcnt(0)")
            poll(chk_ep([72], 76), [fyl], "pfy", 3)
            c(f"{Lyd}:", "s_barrier")
            c(ylds)
            if 'stamp' not in EXP:
                stamp()
        for l in gl:
            c(("vm", "gr", l))
        if first:
            c("s_waitcnt vmcnt(2)", "s_barrier")
            for nt in range(4):
                c(f"ds_read_b64_tr_b16 {vr(YP+2*nt,2)}, v79 offset:{2048*nt}")
        c(("drain",))
        if first and 'stamp' not in EXP:
            stamp()
        poll(chk_ep([GR + 2, GR + 6], 76), gl, "pst")
        c(f"v_add_f32 v{G}, v{GR}, v{GR+4}", f"v_add_f32 v{G+1}, v{GR+1}, v{GR+5}")
        c(xq_reduce("v_add_f32", [G, G + 1], [G + 4, G + 5]))
        c(stats_fin([(G, G + 1)], [G + 4]))
        c("s_waitcnt lgkmcnt(0)")
        YF, D = 192, 208
        for i in range(8):
            c(f"v_lshlrev_b32 v{YF+2*i}, 16, v{YP+i}", f"v_and_b32 v{YF+2*i+1}, 0xffff0000, v{YP+i}")
        dst = X2K if first else X1P
        for i in range(8):
            c(f"v_pk_add_f32 {vr(D+2*i,2)}, {vr(XF+2*i,2)}, {vr(G,2)} op_sel_hi:[1,0] neg_lo:[0,1] neg_hi:[0,1]",
              f"v_pk_mul_f32 {vr(D+2*i,2)}, {vr(D+2*i,2)}, {vr(G,2)} op_sel:[0,1]",
              f"v_pk_fma_f32 {vr(D+2*i,2)}, {vr(D+2*i,2)}, {vr(YF+2*i,2)}, {vr(XF+2*i,2)}",
              f"v_cvt_pk_bf16_f32 v{dst+i}, v{D+2*i}, v{D+2*i+1}")
        if not first:
            for nt in range(4):
                c(f"buffer_store_dwordx2 {vr(dst+2*nt,2)}, v{V_ROW}, {sr(SOUT,4)}, s{t+5} offen offset:{32*nt}")
            return
        c(f"s_add_u32 s{t+5}, s{t+5}, {X2_OFF}", f"v_mov_b32 v{G}, 0", f"v_mov_b32 v{G+1}, 0")
        dual_store(lambda fl: [f"buffer_store_dwordx2 {vr(dst+2*nt,2)}, v{V_ROW}, {sr(SWS,4)}, s{t+5} offen offset:{32*nt}{fl}"
                               for nt in range(4)], "x2st", 4)
        for i in range(8):
            c(f"v_dot2_f32_bf16 v{G}, v{dst+i}, v{ONES}, v{G}", f"v_dot2_f32_bf16 v{G+1}, v{dst+i}, v{dst+i}, v{G+1}")
        c(f"s_lshl_b32 s{t}, s{s_rb}, 12",
          f"s_lshl_b32 s{t+1}, s{s_wave}, 10",
          f"s_add_u32 s{t}, s{t}, s{t+1}",
          f"s_lshl_b32 s{t+1}, s{s_g}, 3",
          f"s_add_u32 s{t}, s{t}, s{t+1}",
          f"s_add_u32 s{t}, s{t}, {XS_OFF}",
          f"v_lshlrev_b32 v74, 6, v{V_LAM}")
        c(xq_reduce("v_add_f32", [G, G + 1], [G + 4, G + 5]))
        c("s_mov_b64 exec, 0xffff")
        dual_store(lambda fl: [f"buffer_store_dwordx2 {vr(G,2)}, v74, {sr(SWS,4)}, s{t} offen{fl}"], "x2st", 1)
        c("s_mov_b64 exec, -1", ("drain",))
        wave_flag(F_X2)
        Lh = a.label("nh")
        c(f"s_cmp_lg_u32 s{s_wave}, 3",
          f"s_cbranch_scc1 {Lh}",
          f"v_lshlrev_b32 v75, 10, v{V_LAM}",
          f"v_lshl_add_u32 v75, v{V_Q}, 3, v75",
          f"s_lshl_b32 s{t}, s{s_rb}, 13",
          f"s_lshl_b32 s{t+1}, s{s_g}, 7",
          f"s_add_u32 s{t}, s{t}, s{t+1}",
          f"s_add_u32 s{t}, s{t}, {HALO_OFF - 8192}",
          f"s_lshl_b32 s{t+2}, s{s_rb}, 9",
          f"s_lshl_b32 s{t+1}, s{s_g}, 3",
          f"s_add_u32 s{t+2}, s{t+2}, s{t+1}",
          f"s_add_u32 s{t+2}, s{t+2}, {HS_OFF - 512}",
          f"s_mov_b32 s{t+8}, 0xff00ff00",
          f"s_mov_b32 s{t+9}, 0xff00ff00",
          f"s_mov_b64 exec, {sr(t+8,2)}")
        for nt in range(4):
            c(f"buffer_store_dwordx2 {vr(dst+2*nt,2)}, v75, {sr(SWS,4)}, s{t} offen offset:{32*nt} sc1")
        c("s_mov_b64 exec, 0xff00",
          f"buffer_store_dwordx2 {vr(G,2)}, v74, {sr(SWS,4)}, s{t+2} offen sc1",
          "s_mov_b64 exec, -1",
          f"{Lh}:")

    wo_phase(0)
    stamp()

    c(flags_load(F_X2, s_rb, V_FO, t + 8))
    for qi in range(4):
        c(f"s_add_u32 s{s_xq+qi}, s{s_xq+qi}, {X2_OFF}")
    flags_poll(V_FO, t + 8, 68, "px2")
    Lh2 = a.label("nh2")
    c(f"s_cmp_lg_u32 s{s_wave}, 3",
      f"s_cbranch_scc1 {Lh2}",
      f"s_lshl_b32 s{t}, s{s_rb}, 7",
      f"s_lshl_b32 s{t+1}, s{s_g}, 3",
      f"s_add_u32 s{t}, s{t}, s{t+1}",
      f"s_add_u32 s{t}, s{t}, {F_H}",
      "s_mov_b64 exec, 1",
      f"buffer_store_dwordx2 {vr(V_EPV,2)}, v{V_Z}, {sr(SWS,4)}, s{t} offen sc1",
      "s_mov_b64 exec, -1",
      f"{Lh2}:")

    def x2dma(qi, i):
        return [f"s_add_u32 m0, s{s_xl+qi}, {L_X + i*4096}",
                f"s_add_u32 s{t}, s{s_xq+qi}, {i*32768}",
                ("vm", f"x2t{i}", f"buffer_load_dwordx4 v{V_XD}, {sr(SWS,4)}, s{t} offen sc1 lds")]
    PS = 184
    c(f"s_lshl_b32 s{t+1}, s{s_rb}, 12",
      f"s_lshl_b32 s{t+2}, s{s_wave}, 10",
      f"s_add_u32 s{t+1}, s{t+1}, s{t+2}",
      f"s_add_u32 s{t+1}, s{t+1}, {XS_OFF}",
      f"v_lshlrev_b32 v195, 6, v{V_LAM}",
      f"v_lshl_add_u32 v195, v{V_Q}, 4, v195")
    for qi in range(4):
        c(x2dma(qi, 1))
    c(("vm", "ps", f"buffer_load_dwordx4 {vr(PS,4)}, v195, {sr(SWS,4)}, s{t+1} offen sc1"))
    for i in range(2, 5):
        for qi in range(4):
            c(x2dma(qi, i))
    V_HF = 190
    c(f"s_sub_u32 s{t+9}, s{s_rb}, 1",
      f"s_lshl_b32 s{t+9}, s{t+9}, 7",
      f"s_add_u32 s{t+9}, s{t+9}, {F_H}",
      f"v_and_b32 v192, 0x38, v{V_L8}")
    hld = f"buffer_load_dwordx2 {vr(V_HF,2)}, v192, {sr(SWS,4)}, s{t+9} offen sc1"
    c(("wait", ["ps"]),
      f"v_add_f32 v{SA}, v{PS}, v{PS+2}",
      f"v_add_f32 v{SA+1}, v{PS+1}, v{PS+3}")
    c(xq_reduce("v_add_f32", [SA, SA + 1], [104, 105]))
    c(stats_fin([(SA, SA + 1)], [104]))
    c(f"v_lshlrev_b32 v193, 3, v{V_LAM}",
      f"s_lshl_b32 s{t}, s{s_wave}, 7",
      f"s_add_u32 s{t}, s{t}, {L_ST + 128}",
      f"v_add_u32 v195, s{t}, v193",
      f"ds_write_b64 v195, {vr(SA,2)}",
      f"v_add_u32 v193, {L_ST}, v193",
      f"v_lshlrev_b32 v194, 5, v{V_Q}",
      f"v_add_u32 v194, {L_ST}, v194")
    V_S8, V_S32 = 193, 194

    def stat_reads(tl):
        return [f"ds_read_b64 {vr(STA+2*tl,2)}, v{V_S8} offset:{128*tl}",
                f"ds_read_b128 {vr(STB+8*tl,4)}, v{V_S32} offset:{128*tl}",
                f"ds_read_b128 {vr(STB+8*tl+4,4)}, v{V_S32} offset:{128*tl+16}"]

    XF3 = [168, 176]

    def tile_stream(tl):
        m = []
        def rd(e):
            return f"ds_read_b128 {vr(168+4*(e&3),4)}, v{VAE+e} offset:{4096*tl}"
        m += [rd(0), rd(1)]
        for e in range(16):
            if e % 2 == 0:
                if e + 2 < 16:
                    m += [rd(e + 2), rd(e + 3), "s_waitcnt lgkmcnt(2)"]
                else:
                    m.append("s_waitcnt lgkmcnt(0)")
            x = vr(168 + 4 * (e & 3), 4)
            wq, wk, wv = ar(12 * e, 4), ar(12 * e + 4, 4), ar(12 * e + 8, 4)
            for (acc, A_, B_, on) in ((AQ + 4 * tl, wq, x, tl > 0), (AK + 4 * tl, wk, x, True), (AV + 4 * tl, x, wv, True)):
                if on:
                    m.append(f"v_mfma_f32_16x16x32_bf16 {vr(acc,4)}, {A_}, {B_}, {vr(acc,4) if e else 0}")
        return m

    def R3(qt):
        return dict(SC=AQ + 4 * qt, SP=AK + 4 * qt, PP=AV + 4 * qt, LL=STB + 8 * qt, MX=STB + 8 * qt + 4, MT=STB + 8 * qt + 5, OO=108)

    PSH = 184
    s_hd = 21

    def halo_try(n, blocking):
        Lskip, Lgo = a.label("hskip"), a.label("hgo")
        c(f"s_cmp_lg_u32 s{s_hd}, 0", f"s_cbranch_scc1 {Lskip}")
        qs = list(c.q)
        c(f"s_cmp_eq_u32 s{s_b}, 0", f"s_cbranch_scc1 {Lgo}")
        c(("wait", [f"hf{n}"]))
        if not blocking:
            c(chk_ep([V_HF], PSH), "s_nop 4", f"s_cbranch_vccnz {Lskip}")
        else:
            poll(chk_ep([V_HF], PSH), [hld], "ph", 2)
        c(f"{Lgo}:")
        c(f"s_mov_b32 s{s_hd}, 1",
          f"v_lshrrev_b32 v{PSH}, 11, v{V_XD}",
          f"v_and_b32 v{PSH+1}, 0xff, v{V_XD}",
          f"v_lshl_add_u32 v{PSH}, v{PSH}, 10, v{PSH+1}",
          f"s_lshl_b32 s{t+2}, s{s_wave}, 10",
          f"s_lshl_b32 s{t}, s{s_rb}, 13",
          f"s_lshl_b32 s{t+1}, s{s_wave}, 12",
          f"s_add_u32 s{t}, s{t}, s{t+1}",
          f"s_add_u32 s{t}, s{t}, {HALO_OFF - 8192 - 8192}",
          f"s_cmp_lt_u32 s{s_wave}, 2",
          f"s_cselect_b32 s{t}, {OOB}, s{t}",
          f"s_cmp_eq_u32 s{s_b}, 0",
          f"s_cselect_b32 s{t}, {OOB}, s{t}")
        for qd in range(4):
            c(f"s_add_u32 m0, s{t+2}, {L_X + qd*XQ}",
              f"s_add_u32 s{t+1}, s{t}, {qd*256}",
              f"buffer_load_dwordx4 v{PSH}, {sr(SWS,4)}, s{t+1} offen sc1 lds")
        c(f"v_and_b32 v{PSH+1}, 7, v{V_LAM}",
          f"v_lshlrev_b32 v{PSH+1}, 6, v{PSH+1}",
          f"v_lshl_add_u32 v{PSH+1}, v{V_Q}, 4, v{PSH+1}",
          f"s_lshl_b32 s{t}, s{s_rb}, 9",
          f"s_add_u32 s{t}, s{t}, {HS_OFF - 512}",
          f"s_cmp_eq_u32 s{s_b}, 0",
          f"s_cselect_b32 s{t}, {OOB}, s{t}",
          "s_nop 1",
          f"buffer_load_dwordx4 {vr(PSH,4)}, v{PSH+1}, {sr(SWS,4)}, s{t} offen sc1",
          f"{Lskip}:")
        c.q = qs

    c(f"s_mov_b32 s{s_hd}, 0")
    stamp()
    order = [1, 2, 3, 4, 0]
    for n, tl in enumerate(order):
        side = []
        if n == 0:
            c(("wait", ["x2t1"], 0), "s_barrier")
            for t2 in range(1, 5):
                c(stat_reads(t2))
            side.append(("vm", "hf1", hld))
        elif n == 1:
            c(("wait", ["x2t4"]), "s_barrier")
        elif n == 4:
            c(("drain",), "s_barrier")
        if n >= 1:
            side += [("gap", 8)] + normalize(order[n - 1], False, VP)
        if n >= 2:
            side += attn_tiles([order[n - 1]], VP, R3(order[n - 1]), False)
        if n == 4:
            HS2 = 188
            side += [f"v_add_f32 v{HS2}, v{PSH}, v{PSH+2}", f"v_add_f32 v{HS2+1}, v{PSH+1}, v{PSH+3}"]
            side += xq_reduce("v_add_f32", [HS2, HS2 + 1], [PSH, PSH + 1])
            side += stats_fin([(HS2, HS2 + 1)], [PSH])
            side += [f"v_and_b32 v{PSH}, 0x38, v{V_S8}", f"v_add_u32 v{PSH}, {(L_ST & ~0x3f) + 64}, v{PSH}"]
        stamp("p3")
        c.merge(tile_stream(tl), side)
        stamp("p3")
        if n >= 2:
            o_stores(O2_OFF, 108, [order[n - 1]])
        if n in (1, 2, 3):
            halo_try(n, n == 3)
            if n < 3:
                c(("vm", f"hf{n+1}", hld))
    c(f"ds_write_b64 v{PSH}, {vr(HS2,2)}", "s_waitcnt lgkmcnt(0)")
    c(stat_reads(0), "s_waitcnt lgkmcnt(0)")
    stamp("p3")
    c(normalize(0, True, VP))
    c(attn_tiles([1], VP, R3(1), True))
    o_stores(O2_OFF, 108, [1])
    stamp()
    stamp("p3")
    c(("drain",))
    wave_flag(F_O2)
    c(flags_load(F_O2, s_rb, V_FO, t + 8))
    pre, og = o_loads(O2_OFF)
    c(pre)
    flags_poll(V_FO, t + 8, 68, "po2")
    for g_ in og:
        c(g_)
    wo_phase(1)
    if STAMP:
        c("s_waitcnt vmcnt(0) lgkmcnt(0)")
        stamp()
        c("s_memrealtime s[100:101]",
          f"s_mov_b32 s{SWS+2}, {16*MB}",
          f"s_lshl_b32 s{t}, s2, 8",
          f"s_lshl_b32 s{t+1}, s{s_wave}, 6",
          f"s_add_u32 s{t}, s{t}, s{t+1}",
          f"s_add_u32 s{t}, s{t}, {STAMP_OFF}",
          "s_waitcnt lgkmcnt(0)",
          "v_writelane_b32 v255, s100, 1",
          f"v_lshlrev_b32 v64, 2, v{V_LANE}",
          "s_mov_b64 exec, 0xffff",
          f"buffer_store_dword v255, v64, {sr(SWS,4)}, s{t} offen")
    a(f"{L_end}:")
    a("s_endpgm")
    a(f".set CODE_LIMIT, {L_end} - {label}")


def main(out_path):
    a = Asm()
    label = NAME + "_kernel"
    a('.amdgcn_target "amdgcn-amd-amdhsa--gfx950"')
    a(".text")
    gen(a, label)
    desc = f""".section .rodata,"a"
.p2align 6
.amdhsa_kernel {label}
  .amdhsa_next_free_vgpr 512
  .amdhsa_next_free_sgpr 102
  .amdhsa_accum_offset 256
  .amdhsa_group_segment_fixed_size 0
  .amdhsa_kernarg_size 96
  .amdhsa_user_sgpr_count 2
  .amdhsa_user_sgpr_kernarg_segment_ptr 1
  .amdhsa_system_sgpr_workgroup_id_x 1
.end_amdhsa_kernel
"""
    hdr = f"; @launch grid=(256,1,1) block=(256,1,1) lds={LDS_SIZE}\n"
    open(out_path, "w").write(hdr + a.text() + desc)


if __name__ == "__main__":
    if len(sys.argv) > 2:
        STAMP = True
    main(sys.argv[1])
```

```python
import sys
from gen import Asm, vr, sr, srd, kernel_header, NAME, NEG, MB

KB = 1024
O1_OFF = 0
O2_OFF = 2 * MB
X2_OFF = 4 * MB
U_OFF = 6 * MB
Y_OFF = 8 * MB
ST1_OFF = 10 * MB
ST2_OFF = ST1_OFF + 256 * KB
XS_OFF = ST2_OFF + 256 * KB
HALO_OFF = XS_OFF + 128 * KB
HS_OFF = HALO_OFF + 256 * KB
FL_OFF = HS_OFF + 16 * KB
F_HELLO = FL_OFF
F_T = F_HELLO + 4 * KB
F_Y = F_T + 2 * KB
F_O1 = F_Y + 8 * KB
F_X2 = F_O1 + 8 * KB
F_O2 = F_X2 + 8 * KB
F_H = F_O2 + 8 * KB
WS_SIZE = 11 * MB
assert F_H + 4 * KB <= WS_SIZE
STAMP_OFF = 12 * MB

L_X = 0
XQ = 20480
L_R = 81920
NS = 5
L_M = 147456
L_TB = L_M
L_ST = L_M + 8192
LDS_SIZE = 163840
C_U = 0
C_K = 4608
C_KS = 4160
C_CH = 4608 + 4 * 4160
C_RED = 2 * C_CH
C_TR = C_RED + 16384
assert C_TR + 8192 <= 81920
P2_YT = L_TB

SPIN_MAX = 40000
STAMP = False
import os
EXP = os.environ.get("EXP", "")
FINE = os.environ.get("FINE", "")
OOB = 0x7ff00000
PFS = int(os.environ.get("PFS", "11"))
OPRE = int(os.environ.get("OPRE", "6"))
DSW = float(os.environ.get("DSW", "0.5"))


def ar(a_, n=1):
    return f"a{a_}" if n == 1 else f"a[{a_}:{a_+n-1}]"


class Ctx:
    def __init__(self, a):
        self.a = a
        self.q = []
        self.count = 0

    def raw(self, s):
        for l in s.split("\n"):
            if l.strip():
                self.a(l)
                self.count += 1

    def vwait_n(self, tags):
        idx = -1
        for i, t in enumerate(self.q):
            if t in tags:
                idx = i
        if idx < 0:
            return None
        n = len(self.q) - 1 - idx
        assert n <= 63
        self.q = self.q[idx + 1:]
        return n

    def item(self, it):
        if isinstance(it, str):
            self.raw(it)
        elif it[0] == "vm":
            self.raw(it[2])
            self.q.append(it[1])
        elif it[0] == "wait":
            n = self.vwait_n(it[1])
            lg = it[2] if len(it) > 2 else None
            parts = []
            if n is not None:
                parts.append(f"vmcnt({n})")
            if lg is not None:
                parts.append(f"lgkmcnt({lg})")
            if parts:
                self.raw("s_waitcnt " + " ".join(parts))
        elif it[0] == "drain":
            self.raw("s_waitcnt vmcnt(0)")
            self.q = []
        elif it[0] == "gap":
            self.raw(f"s_nop {it[1]-1}")
        else:
            raise ValueError(it)

    def __call__(self, *its):
        for it in its:
            if isinstance(it, list):
                for x in it:
                    self.item(x)
            else:
                self.item(it)

    def merge(self, main, side, k=2):
        side = list(side)
        si = 0
        dist = 0

        def is_gap(x):
            return isinstance(x, tuple) and x[0] == "gap"

        for m in main:
            self.item(m)
            mf = isinstance(m, str) and m.startswith("v_mfma")
            dist += 3 if mf else 1
            if not mf:
                continue
            quota = k
            while quota > 0 and si < len(side):
                it = side[si]
                if is_gap(it):
                    if dist >= it[1]:
                        si += 1
                        continue
                    break
                self.item(it)
                dist = 0
                si += 1
                if isinstance(it, tuple) and it[0] == "vm":
                    quota -= 2
                elif isinstance(it, str) and it.startswith("ds_"):
                    quota -= DSW
                elif not (isinstance(it, str) and it.startswith("s_")):
                    quota -= 1
        while si < len(side):
            it = side[si]
            if is_gap(it):
                if it[1] - dist > 0:
                    self.raw(f"s_nop {it[1]-dist-1}")
            else:
                self.item(it)
                dist = 0
            si += 1


def _merge2(self, main, must, opt, flush=False):
    must = list(must)
    mi = 0
    si = 0
    dist = getattr(self, "_dist", 100)

    def is_gap(x):
        return isinstance(x, tuple) and x[0] == "gap"
    for m in main:
        self.item(m)
        dist += 3
        if mi < len(must):
            self.item(must[mi])
            mi += 1
            dist += 1
        quota = 2
        while quota > 0 and si < len(opt):
            it = opt[si]
            if is_gap(it):
                if dist >= it[1]:
                    si += 1
                    continue
                break
            if callable(it):
                it()
                quota -= 2
            else:
                self.item(it)
                if isinstance(it, str) and it.startswith("v_mfma"):
                    quota -= 2
                elif not (isinstance(it, str) and it.startswith("s_")):
                    quota -= 1
            dist = 0
            si += 1
    for x in must[mi:]:
        self.item(x)
    rest = opt[si:]
    if flush:
        for it in rest:
            if is_gap(it):
                if it[1] - dist > 0:
                    self.raw(f"s_nop {it[1]-dist-1}")
            elif callable(it):
                it()
                dist = 0
            else:
                self.item(it)
                dist = 0
        rest = []
    self._dist = dist
    return rest


Ctx.merge2 = _merge2


def xq_reduce(op, vs, ts, steps=("v_permlane16_swap_b32", "v_permlane32_swap_b32")):
    l = []
    n = len(vs)
    for sw in steps:
        for v, t in zip(vs, ts):
            l.append(f"v_mov_b32 v{t}, v{v}")
        l.append(("gap", 2 if n < 2 else 1))
        for v, t in zip(vs, ts):
            l.append(f"{sw} v{v}, v{t}")
        l.append(("gap", 2 if n < 2 else 1))
        for v, t in zip(vs, ts):
            l.append(f"{op} v{v}, v{v}, v{t}")
    return l


def stats_fin(pairs, tmps):
    l = []
    def each(f):
        for (s, q), t in zip(pairs, tmps):
            l.append(f(s, q, t))
    each(lambda s, q, t: f"v_mul_f32 v{s}, 0x3b000000, v{s}")
    each(lambda s, q, t: f"v_mul_f32 v{q}, 0x3b000000, v{q}")
    each(lambda s, q, t: f"v_fma_f32 v{q}, -v{s}, v{s}, v{q}")
    each(lambda s, q, t: f"v_max_f32 v{q}, 0, v{q}")
    each(lambda s, q, t: f"v_cvt_pk_bf16_f32 v{t}, v{s}, v{q}")
    each(lambda s, q, t: f"v_lshlrev_b32 v{s}, 16, v{t}")
    each(lambda s, q, t: f"v_and_b32 v{q}, 0xffff0000, v{t}")
    each(lambda s, q, t: f"v_add_f32 v{q}, 0x3727c5ac, v{q}")
    each(lambda s, q, t: f"v_cvt_pk_bf16_f32 v{q}, v{q}, v{q}")
    each(lambda s, q, t: f"v_lshlrev_b32 v{q}, 16, v{q}")
    each(lambda s, q, t: f"v_sqrt_f32 v{q}, v{q}")
    l.append(("gap", 1))
    each(lambda s, q, t: f"v_cvt_pk_bf16_f32 v{q}, v{q}, v{q}")
    each(lambda s, q, t: f"v_lshlrev_b32 v{q}, 16, v{q}")
    each(lambda s, q, t: f"v_rcp_f32 v{q}, v{q}")
    l.append(("gap", 1))
    return l


def gen(a, label):
    kernel_header(a, label)
    c = Ctx(a)
    L_end = a.label("end")
    SX, SW, SWS, SK, SV, SSK, SWO, SKK, SOUT, SDBG = 4, 8, 12, 16, 20, 24, 28, 32, 36, 40
    s_wave, s_rb, s_g, s_p, s_b, s_rot = 44, 45, 46, 47, 48, 49
    s_ep = 50
    s_loc, s_xcc, s_D, s_wm0, s_rowbase, s_c, s_cl, s_half, s_ch, s_spin = 52, 53, 54, 55, 56, 57, 58, 59, 60, 61
    s_xq, s_xl, s_wq = 62, 66, 70
    t = 74
    s_x0m = 16
    s_flag = 18
    s_stile = 19
    nst = [0]

    def stamp(tag=""):
        if STAMP and FINE != "none" and (tag == FINE or (tag == "" and (not FINE or nst[0] == 0))):
            i = nst[0]
            assert i < 14, i
            c("s_memtime s[100:101]", "s_waitcnt lgkmcnt(0)", f"v_writelane_b32 v255, s100, {i+2}")
            nst[0] += 1

    V_LANE, V_LAM, V_Q, V_L16, V_XD, V_WD, V_BB, V_ROW, V_Z = 1, 2, 3, 4, 5, 6, 7, 8, 9
    VAE = 10
    CSQ, CSK, CSV = 26, 30, 34
    V_L8 = 35
    V_EPV = 36
    BC, BP, BP1, MC, MP, ONES = 38, 42, 46, 50, 52, 54
    V_WO = 58
    V_T0 = 62

    c("s_cmp_ge_u32 s2, 256", f"s_cbranch_scc1 {L_end}")
    if STAMP:
        c("s_memrealtime s[100:101]", "v_mov_b32 v255, 0", "s_waitcnt lgkmcnt(0)", "v_writelane_b32 v255, s100, 0")
    stamp()
    c("s_load_dwordx4 s[88:91], s[0:1], 0",
      "s_load_dwordx2 s[92:93], s[0:1], 16",
      "s_load_dwordx4 s[96:99], s[0:1], 32",
      "s_load_dwordx2 s[94:95], s[0:1], 88")
    c(f"v_and_b32 v{V_LANE}, 63, v0",
      "v_lshrrev_b32 v62, 6, v0",
      f"v_and_b32 v{V_LAM}, 15, v{V_LANE}",
      f"v_readfirstlane_b32 s{s_wave}, v62",
      f"v_lshrrev_b32 v{V_Q}, 4, v{V_LANE}",
      f"v_lshlrev_b32 v{V_L16}, 4, v{V_LANE}",
      f"v_mov_b32 v{V_Z}, 0",
      f"s_and_b32 s{s_rb}, s2, 7",
      f"s_lshl_b32 s{s_rb}, s{s_rb}, 2",
      f"s_lshr_b32 s{s_rot}, s2, 6",
      f"s_add_u32 s{s_rb}, s{s_rb}, s{s_rot}",
      f"s_lshr_b32 s{s_g}, s2, 3",
      f"s_and_b32 s{s_g}, s{s_g}, 7",
      f"s_lshr_b32 s{s_p}, s{s_rb}, 4",
      f"s_and_b32 s{s_b}, s{s_rb}, 15")
    if "nopf" not in EXP:
        Lpf = a.label("nopf")
        c(f"s_and_b32 s{t}, s2, 0x78",
          f"s_cmp_lg_u32 s{t}, 0",
          f"s_cbranch_scc1 {Lpf}",
          f"s_getpc_b64 s[{t+2}:{t+3}]",
          f"s_and_b32 s{t+2}, s{t+2}, 0xffffff00",
          f"v_lshlrev_b32 v62, 7, v0",
          f"v_min_u32 v62, CODE_LIMIT, v62",
          f"global_load_dword v253, v62, s[{t+2}:{t+3}]",
          f"{Lpf}:")
    c(f"s_lshl_b32 s{t}, s{s_wave}, 2",
      f"v_add_u32 v62, s{t}, v{V_Q}",
      f"v_xor_b32 v62, v62, v{V_LAM}",
      "v_lshlrev_b32 v62, 4, v62",
      f"v_lshl_add_u32 v{V_XD}, v{V_Q}, 11, v62")
    c(f"v_lshrrev_b32 v62, 3, v{V_LANE}",
      f"s_lshl_b32 s{t}, s{s_wave}, 3",
      f"v_add_u32 v62, s{t}, v62",
      "v_bfe_u32 v63, v62, 3, 1",
      "v_lshlrev_b32 v63, 1, v63",
      "v_bfe_u32 v64, v62, 1, 1",
      "v_or_b32 v63, v63, v64",
      f"v_bfe_u32 v64, v{V_LANE}, 1, 2",
      "v_xor_b32 v63, v63, v64",
      "v_lshlrev_b32 v63, 5, v63",
      f"v_and_b32 v64, 1, v{V_LANE}",
      "v_lshl_add_u32 v63, v64, 4, v63",
      f"v_mul_u32_u24 v{V_WD}, 3072, v62",
      f"v_add_u32 v{V_WD}, v{V_WD}, v63")
    c(f"s_lshl_b32 s{s_rowbase}, s{s_b}, 17",
      f"s_lshl_b32 s{t}, s{s_p}, 10",
      f"s_add_u32 s{s_rowbase}, s{s_rowbase}, s{t}",
      f"s_mul_i32 s{s_wm0}, s{s_wave}, 3072",
      f"s_add_u32 s{s_wm0}, s{s_wm0}, {L_R}")
    c(f"s_lshl_b32 s{t+1}, s{s_wave}, 13",
      f"s_add_u32 s{t+1}, s{t+1}, s{s_rowbase}",
      f"s_sub_u32 s{t+1}, s{t+1}, 32768",
      f"s_lshl_b32 s{t+2}, s{s_wave}, 10",
      f"s_lshl_b32 s{t+3}, s{s_g}, 7")
    for qi in range(4):
        c(f"s_add_u32 s{t}, s{s_rot}, {qi}",
          f"s_and_b32 s{t}, s{t}, 3",
          f"s_lshl_b32 s{s_xq+qi}, s{t}, 8",
          f"s_add_u32 s{s_xq+qi}, s{s_xq+qi}, s{t+1}",
          f"s_mul_i32 s{s_xl+qi}, s{t}, {XQ}",
          f"s_add_u32 s{s_xl+qi}, s{s_xl+qi}, s{t+2}",
          f"s_mul_i32 s{s_wq+qi}, s{t}, {4*98304}",
          f"s_add_u32 s{s_wq+qi}, s{s_wq+qi}, s{t+3}")
    s_wo = 82
    for e4 in range(4):
        c(f"s_add_u32 s{t}, s2, {e4}",
          f"s_and_b32 s{t}, s{t}, 3",
          f"s_mul_i32 s{s_wo+e4}, s{t}, 98304")
    c(f"s_cmp_eq_u32 s{s_wave}, 0",
      "s_cselect_b32 s86, 0xffff0000, -1",
      "s_mov_b32 s87, -1")
    stamp("p1")
    c("s_waitcnt lgkmcnt(0)")
    stamp("p1")
    srd(a, SX, 88, 89, 2 * MB)
    srd(a, SW, 90, 91, 512 * 1536 * 2)

    def xdma(qi, i):
        l = [f"s_add_u32 m0, s{s_xl+qi}, {L_X + i*4096}"]
        if i == 0:
            l += [f"s_cmp_lt_u32 s{s_wave}, 2",
                  f"s_cselect_b32 s{t}, {OOB}, s{s_xq+qi}",
                  ("vm", f"x{qi}", f"s_mov_b64 exec, s[86:87]\nbuffer_load_dwordx4 v{V_XD}, {sr(SX,4)}, s{t} offen lds\ns_mov_b64 exec, -1")]
        else:
            l += [f"s_add_u32 s{t}, s{s_xq+qi}, {i*32768}",
                  ("vm", f"x{qi}", f"buffer_load_dwordx4 v{V_XD}, {sr(SX,4)}, s{t} offen lds")]
        return l

    def wdma(ch):
        l = [f"s_add_u32 m0, s{s_wm0}, {(ch % NS)*12288}",
             f"s_add_u32 s{t}, s{s_wq+(ch>>2)}, s{s_wo+(ch&3)}"]
        for s in range(3):
            l.append(("vm", f"w{ch}", f"buffer_load_dwordx4 v{V_WD}, {sr(SW,4)}, s{t} offen offset:{1024*s} lds"))
        return l

    for i in range(5):
        c(xdma(0, i))
    c(wdma(0))
    srd(a, SWS, 94, 95, WS_SIZE)
    srd(a, SK, 96, 97, 2 * MB)
    srd(a, SV, 98, 99, 2 * MB)
    srd(a, SWO, 92, 93, 512 * 512 * 2)
    c("s_load_dwordx4 s[88:91], s[0:1], 48",
      "s_load_dwordx4 s[92:95], s[0:1], 64",
      "s_load_dwordx2 s[96:97], s[0:1], 80")
    TK, TV, TS = 184, 204, 212
    KF, SF, VF, OF = 228, 238, 246, 250
    UP = 112
    c(f"s_lshr_b32 s{t}, s2, 3",
      f"s_lshl_b32 s{t}, s{t}, 16",
      f"s_and_b32 s{t+1}, s2, 7",
      f"s_lshl_b32 s{t+2}, s{t+1}, 7",
      f"s_add_u32 s{t}, s{t}, s{t+2}",
      "v_and_b32 v64, 7, v0",
      "v_lshrrev_b32 v65, 3, v0",
      "v_lshlrev_b32 v66, 11, v65",
      "v_lshl_add_u32 v66, v64, 4, v66",
      f"v_add_u32 v66, s{t}, v66",
      "v_add_u32 v67, 0xfffff400, v66",
      "v_add_u32 v68, 0xfffff800, v66",
      "v_add_u32 v69, 0xfffffc00, v66")
    for ins in (f"buffer_load_dwordx4 {vr(TK,4)}, v67, {sr(SK,4)}, 0 offen",
                f"buffer_load_dwordx4 {vr(TK+4,4)}, v68, {sr(SK,4)}, 0 offen",
                f"buffer_load_dwordx4 {vr(TK+8,4)}, v69, {sr(SK,4)}, 0 offen",
                f"buffer_load_dwordx4 {vr(TK+12,4)}, v66, {sr(SK,4)}, 0 offen",
                f"buffer_load_dwordx4 {vr(TK+16,4)}, v66, {sr(SK,4)}, 0 offen offset:1024",
                f"buffer_load_dwordx4 {vr(TV,4)}, v66, {sr(SV,4)}, 0 offen",
                f"buffer_load_dwordx4 {vr(TV+4,4)}, v66, {sr(SV,4)}, 0 offen offset:1024"):
        if "notl" not in EXP:
            c(("vm", "T", ins))
    c("s_waitcnt lgkmcnt(0)")
    srd(a, SSK, 88, 89, 4096)
    srd(a, SKK, 90, 91, 2 * MB)
    srd(a, SOUT, 94, 95, 2 * MB)
    srd(a, SDBG, 96, 97, 256)
    c(f"s_lshl_b32 s{t+3}, s2, 2",
      f"s_load_dword s{s_D}, s[92:93], s{t+3}",
      f"s_getreg_b32 s{s_xcc}, hwreg(HW_REG_XCC_ID)",
      f"s_and_b32 s{s_xcc}, s{s_xcc}, 15",
      f"s_lshl_b32 s{t+2}, s{t+1}, 9",
      "v_lshlrev_b32 v67, 6, v64")
    for d in range(4):
        c(("vm", "T", f"buffer_load_dwordx4 {vr(TS+4*d,4)}, v67, {sr(SSK,4)}, s{t+2} offen offset:{16*d}"))
    Lq = a.label("noep")
    c(f"s_or_b32 s{t}, s2, s{s_wave}",
      f"s_cmp_lg_u32 s{t}, 0",
      f"s_cbranch_scc1 {Lq}",
      f"s_memrealtime s[{t+4}:{t+5}]",
      "s_waitcnt lgkmcnt(0)",
      f"s_or_b32 s{t+4}, s{t+4}, 1",
      f"v_mov_b32 v70, s{t+4}",
      f"v_mov_b32 v71, s{t+5}",
      "s_mov_b64 exec, 1",
      f"buffer_store_dwordx2 v[70:71], v{V_Z}, {sr(SDBG,4)}, 0 offen sc1",
      "s_mov_b64 exec, -1",
      f"{Lq}:")
    c(wdma(1))
    k = []
    k += [f"v_bfe_u32 v70, v{V_LANE}, 2, 2",
          f"v_and_b32 v71, 1, v{V_Q}",
          "v_lshlrev_b32 v71, 1, v71",
          "v_lshrrev_b32 v72, 1, v70",
          "v_or_b32 v71, v71, v72",
          f"v_xor_b32 v72, s{s_wave}, v71",
          "v_lshlrev_b32 v72, 5, v72",
          "v_lshl_add_u32 v72, v70, 7, v72",
          f"v_and_b32 v73, 3, v{V_LANE}",
          "v_lshl_add_u32 v72, v73, 3, v72",
          f"v_mul_u32_u24 v74, 3072, v{V_Q}",
          "v_add_u32 v72, v72, v74",
          f"v_add_u32 v{V_BB}, {L_R}, v72",
          f"v_lshl_add_u32 v72, v{V_Q}, 3, v70",
          "v_lshlrev_b32 v72, 7, v72",
          "v_lshl_add_u32 v72, v73, 3, v72",
          f"v_add_u32 v72, {L_R}, v72"]
    for nt in range(4):
        k += [f"v_xor_b32 v74, {nt}, v71", f"v_lshl_add_u32 v{V_WO+nt}, v74, 5, v72"]
    k += [f"s_lshl_b32 s{t+2}, s{s_wave}, 10"]
    for e4 in range(4):
        k += [f"s_add_u32 s{t+3}, s2, {e4}",
              f"s_and_b32 s{t+3}, s{t+3}, 3",
              f"s_lshl_b32 s{t+3}, s{t+3}, 2",
              f"v_add_u32 v70, s{t+3}, v{V_Q}",
              f"v_xor_b32 v70, v70, v{V_LAM}",
              "v_lshlrev_b32 v70, 4, v70",
              f"v_lshl_add_u32 v70, v{V_LAM}, 8, v70",
              f"v_subrev_u32 v70, s{t+2}, v70"]
        for qi in range(4):
            k.append(f"v_add_u32 v{VAE+4*qi+e4}, s{s_xl+qi}, v70")
    k += [f"v_lshlrev_b32 v{V_ROW}, 11, v{V_LAM}",
          f"v_lshl_add_u32 v{V_ROW}, v{V_Q}, 3, v{V_ROW}",
          f"v_lshlrev_b32 v{V_L8}, 3, v{V_LANE}",
          f"v_lshlrev_b32 v70, 2, v{V_Q}",
          f"v_mov_b32 v72, {NEG}",
          f"s_cmp_eq_u32 s{s_b}, 0",
          f"s_cselect_b32 s{t+2}, -1, 0",
          f"s_mov_b32 s{t+3}, s{t+2}"]
    for r in range(4):
        k += [f"v_add_u32 v71, {r}, v70",
              f"v_sub_u32 v71, v{V_LAM}, v71",
              "v_cmp_gt_u32 vcc, 8, v71",
              "v_add_u32 v71, 16, v71",
              f"v_cmp_gt_u32 {sr(t+4,2)}, 8, v71",
              f"v_cndmask_b32 v{BC+r}, v72, 0, vcc",
              f"v_cndmask_b32 v{74+r}, 0, -1, vcc",
              f"v_cndmask_b32 v{BP+r}, v72, 0, {sr(t+4,2)}",
              f"v_cndmask_b32 v{78+r}, 0, -1, {sr(t+4,2)}",
              f"v_cndmask_b32 v{BP1+r}, v{BP+r}, v72, {sr(t+2,2)}"]
    k.append(f"s_mov_b32 s{t+4}, 0xffff")
    for h in range(2):
        k += [f"v_bfi_b32 v{MC+h}, s{t+4}, v{74+2*h}, v{75+2*h}",
              f"v_bfi_b32 v{MP+h}, s{t+4}, v{78+2*h}, v{79+2*h}"]
    for r in range(4):
        k.append(f"v_mov_b32 v{ONES+r}, 0x3f803f80")
    k += [f"v_mul_u32_u24 v70, {XQ}, v{V_Q}",
          f"v_lshl_add_u32 v70, v{V_LAM}, 4, v70",
          f"ds_write_b128 v70, {vr(ONES,4)} offset:{L_X}"]
    k += [f"s_add_u32 s{s_stile}, s{s_wave}, 1",
          f"s_lshl_b32 s{s_stile}, s{s_stile}, 12",
          f"s_lshl_b32 s{s_flag}, s{s_rb}, 8",
          f"s_lshl_b32 s{t+2}, s{s_g}, 5",
          f"s_add_u32 s{s_flag}, s{s_flag}, s{t+2}",
          f"s_lshl_b32 s{t+2}, s{s_wave}, 3",
          f"s_add_u32 s{s_flag}, s{s_flag}, s{t+2}",
          f"s_lshr_b32 s{s_ch}, s{s_wave}, 1",
          f"s_and_b32 s{s_half}, s{s_wave}, 1",
          f"s_lshl_b32 s{s_c}, s2, 1",
          f"s_add_u32 s{s_c}, s{s_c}, s{s_ch}",
          f"s_lshl_b32 s{s_c}, s{s_c}, 12",
          f"s_mul_i32 s{s_cl}, s{s_ch}, {C_CH}"]
    c(k)
    c(wdma(2))
    stamp("p1")
    c(("wait", ["T"]))
    stamp("p1")
    tc = []
    for d in range(4):
        for r in range(5):
            tc.append(f"v_lshlrev_b32 v{KF+2*r}, 16, v{TK+4*r+d}")
            tc.append(f"v_and_b32 v{KF+2*r+1}, 0xffff0000, v{TK+4*r+d}")
        for j in range(4):
            for cc in range(2):
                src = TS + 4 * d + 2 * cc + (j >> 1)
                tc.append(f"v_and_b32 v{SF+2*j+cc}, 0xffff0000, v{src}" if j & 1 else f"v_lshlrev_b32 v{SF+2*j+cc}, 16, v{src}")
        for tt in range(2):
            tc.append(f"v_lshlrev_b32 v{VF+2*tt}, 16, v{TV+4*tt+d}")
            tc.append(f"v_and_b32 v{VF+2*tt+1}, 0xffff0000, v{TV+4*tt+d}")
        for tt in range(2):
            o = OF + 2 * tt
            tc.append(f"v_pk_mul_f32 {vr(o,2)}, {vr(KF+2*(tt+0),2)}, {vr(SF+6,2)}")
            for j in (2, 1, 0):
                tc.append(f"v_pk_fma_f32 {vr(o,2)}, {vr(KF+2*(3+tt-j),2)}, {vr(SF+2*j,2)}, {vr(o,2)}")
            tc.append(f"v_pk_mul_f32 {vr(o,2)}, {vr(o,2)}, {vr(VF+2*tt,2)}")
        tc.append(f"v_cvt_pk_bf16_f32 v{UP+2*d}, v{OF+2}, v{OF}")
        tc.append(f"v_cvt_pk_bf16_f32 v{UP+2*d+1}, v{OF+3}, v{OF+1}")
    groups = [xdma(1, i) for i in range(5)] + [wdma(3), wdma(4)]
    per = len(tc) // (len(groups) + 1)
    for i, l in enumerate(tc):
        if "notc" not in EXP:
            c(l)
        if (i + 1) % per == 0 and groups:
            c(groups.pop(0))
    assert not groups
    c("v_sub_u32 v67, 31, v65",
      "v_lshrrev_b32 v68, 2, v67",
      "v_xor_b32 v68, v68, v64",
      "v_lshlrev_b32 v68, 4, v68",
      "v_and_b32 v67, 3, v67",
      "v_lshl_add_u32 v68, v67, 2, v68",
      "v_lshl_add_u32 v68, v64, 10, v68",
      f"v_add_u32 v68, {L_TB}, v68")
    for i in range(8):
        c(f"ds_write_b32 v68, v{UP+i} offset:{128*i}")
    c("v_lshrrev_b32 v67, 3, v0",
      "v_lshrrev_b32 v68, 3, v67",
      "v_xor_b32 v68, v68, v64",
      "v_lshlrev_b32 v68, 4, v68",
      "v_lshl_add_u32 v68, v67, 7, v68",
      f"v_add_u32 v68, {L_TB}, v68",
      "v_xor_b32 v69, 64, v68",
      f"s_and_b32 s{t}, s2, 7",
      f"s_lshl_b32 s{t}, s{t}, 18",
      f"s_lshr_b32 s{t+1}, s2, 3",
      f"s_lshl_b32 s{t+1}, s{t+1}, 7",
      f"s_sub_u32 s{t}, s{t}, s{t+1}",
      f"s_add_u32 s{t}, s{t}, {U_OFF + 3968}",
      f"s_add_u32 s{t+1}, s{t}, {32*4096}",
      "v_lshlrev_b32 v67, 12, v67",
      "v_lshl_add_u32 v67, v64, 4, v67",
      "s_nop 0")
    stamp("p1")
    c(("wait", ["x0", "w0"], 0),
      "s_barrier",
      f"ds_read_b128 {vr(UP,4)}, v68",
      f"ds_read_b128 {vr(UP+4,4)}, v69 offset:4096")

    XS = [64 + 8, 96]
    XS = [184, 208]
    ACC = 108
    AQ, AK, AV = ACC, ACC + 20, ACC + 40
    SA = 168
    V_SB = 172
    V_EP = 174
    SU = 232

    def p1_reads(P, e):
        l = []
        slot = (e % NS) * 12288
        l.append(f"v_add_u32 v{V_SB}, s{s_stile}, v{VAE+e}")
        for s in range(3):
            for ss in range(2):
                l.append(f"ds_read_b64_tr_b16 {ar(12*e+4*s+2*ss,2)}, v{V_BB} offset:{slot+1024*s+512*ss}")
        for tl in range(5):
            l.append(f"ds_read_b128 {vr(XS[P]+4*tl,4)}, v{VAE+e} offset:{4096*tl}")
        l.append(f"ds_read_b128 {vr(XS[P]+20,4)}, v{V_SB}")
        return l

    c(p1_reads(0, 0))
    c(f"v_mov_b32 v{SA}, 0", f"v_mov_b32 v{SA+1}, 0", "s_waitcnt lgkmcnt(12)")
    c(("vm", "Tst", f"buffer_store_dwordx4 {vr(UP,4)}, v67, {sr(SWS,4)}, s{t} offen sc1"),
      ("vm", "Tst", f"buffer_store_dwordx4 {vr(UP+4,4)}, v67, {sr(SWS,4)}, s{t+1} offen sc1"))
    stamp()
    V_WOD = 176
    wod = [f"v_lshrrev_b32 v{V_T0}, 3, v{V_LANE}",
           f"v_bfe_u32 v{V_T0+1}, v{V_T0}, 1, 1",
           f"s_lshl_b32 s{t+5}, s{s_half}, 1",
           f"v_or_b32 v{V_T0+1}, s{t+5}, v{V_T0+1}",
           f"v_bfe_u32 v{V_WOD}, v{V_LANE}, 1, 2",
           f"v_xor_b32 v{V_T0+1}, v{V_T0+1}, v{V_WOD}",
           f"v_lshlrev_b32 v{V_T0+1}, 5, v{V_T0+1}",
           f"v_and_b32 v{V_WOD}, 1, v{V_LANE}",
           f"v_lshl_add_u32 v{V_T0+1}, v{V_WOD}, 4, v{V_T0+1}",
           f"v_lshl_add_u32 v{V_WOD}, v{V_T0}, 10, v{V_T0+1}",
           f"s_lshl_b32 s{t+6}, s{s_g}, 7",
           f"s_lshl_b32 s{t+5}, s{s_wave}, 13",
           f"s_add_u32 s{t+6}, s{t+6}, s{t+5}",
           f"s_lshl_b32 s{t+7}, s{s_wave}, 10"]

    def wodma(n):
        return [f"s_add_u32 m0, s{t+7}, {L_R + n*4096}",
                f"s_add_u32 s{t}, s{t+6}, {n*32768}",
                ("vm", "wo", f"buffer_load_dwordx4 v{V_WOD}, {sr(SWO,4)}, s{t} offen lds")]

    xsched = {0: [(2, 0), (2, 1)], 1: [(2, 2), (2, 3), (2, 4)], 2: [(3, 0), (3, 1)], 3: [(3, 2), (3, 3), (3, 4)]}
    V_HL, V_FT = 178, 182
    for e in range(16):
        P = e & 1
        need = []
        if e < 15:
            need = [f"w{e+1}"]
            if (e + 1) % 4 == 0:
                need.append(f"x{(e+1)//4}")
            if e == 4:
                need += ["Tst", "ep"]
        c(("wait", need, 0))
        if "nobar" not in EXP:
            c("s_barrier")
        sx = XS[P] + 20
        st_ops = []
        if "plain" not in EXP:
            for i in range(4):
                c(f"v_dot2_f32_bf16 v{SA}, v{sx+i}, v{ONES}, v{SA}",
                  f"v_dot2_f32_bf16 v{SA+1}, v{sx+i}, v{sx+i}, v{SA+1}")
        else:
            for i in range(4):
                st_ops += [f"v_lshlrev_b32 v{SU}, 16, v{sx+i}",
                           f"v_and_b32 v{SU+1}, 0xffff0000, v{sx+i}",
                           f"v_add_f32 v{SA}, v{SA}, v{SU}",
                           f"v_fmac_f32 v{SA+1}, v{SU}, v{SU}",
                           f"v_add_f32 v{SA}, v{SA}, v{SU+1}",
                           f"v_fmac_f32 v{SA+1}, v{SU+1}, v{SU+1}"]
        if e in (0, 2, 4, 6, 8, 10, 12, 14):
            stamp("p1")
        other = []
        if e < 15:
            other += p1_reads(1 - P, e + 1)
        if e == 0:
            other.append(("vm", "ep", f"buffer_load_dwordx2 {vr(V_EP,2)}, v{V_Z}, {sr(SDBG,4)}, 0 offen sc1"))
        if e + NS < 16:
            other += wdma(e + NS)
        for (qi, i) in xsched.get(e, []):
            other += xdma(qi, i)
        if e == 15:
            other += [f"s_lshl_b32 s{t+8}, s{s_rb}, 7",
                      f"s_add_u32 s{t+8}, s{t+8}, {F_HELLO}",
                      f"v_and_b32 v{V_T0}, 0x70, v{V_L16}",
                      ("vm", "hl", f"buffer_load_dwordx4 {vr(V_HL,4)}, v{V_T0}, {sr(SWS,4)}, s{t+8} offen sc1"),
                      f"s_lshr_b32 s{t+9}, s2, 5",
                      f"s_lshl_b32 s{t+9}, s{t+9}, 8",
                      f"s_add_u32 s{t+9}, s{t+9}, {F_T}",
                      f"v_and_b32 v{V_T0+1}, 0xf8, v{V_L8}",
                      ("vm", "hl", f"buffer_load_dwordx2 {vr(V_FT,2)}, v{V_T0+1}, {sr(SWS,4)}, s{t+9} offen sc1")]
        if e == 7 and "nopf2" not in EXP:
            other += [f"s_lshl_b32 s{t}, s2, 13",
                      f"s_lshl_b32 s{t+1}, s{s_wave}, 11",
                      f"s_add_u32 s{t}, s{t}, s{t+1}",
                      ("vm", "pf", f"buffer_load_dwordx4 v[240:243], v{V_L16}, {sr(SKK,4)}, s{t} offen"),
                      ("vm", "pf", f"buffer_load_dwordx4 v[240:243], v{V_L16}, {sr(SKK,4)}, s{t} offen offset:1024"),
                      f"v_lshlrev_b32 v236, 18, v{V_LANE}",
                      ("vm", "pf", f"buffer_load_dword v237, v236, {sr(SWS,4)}, 0 offen"),
                      ("vm", "pf", f"buffer_load_dword v237, v236, {sr(SOUT,4)}, 0 offen")]
        if e == 8 and "nopfl" not in EXP:
            other += [f"s_lshl_b32 s{t}, s{s_rb}, 8",
                      f"v_lshlrev_b32 v236, 13, v{V_Q}",
                      f"v_lshl_add_u32 v236, v{V_LAM}, 4, v236",
                      f"s_add_u32 s{t}, s{t}, {F_O1}",
                      ("vm", "pf", f"buffer_load_dword v237, v236, {sr(SWS,4)}, s{t} offen sc1"),
                      f"s_lshl_b32 s{t}, s{s_rb}, 13",
                      f"s_lshl_b32 s{t+1}, s{s_wave}, 11",
                      f"s_add_u32 s{t}, s{t}, s{t+1}",
                      f"v_lshlrev_b32 v236, 7, v{V_LAM}",
                      f"v_and_b32 v238, 1, v{V_Q}",
                      f"v_lshl_add_u32 v236, v238, 18, v236",
                      f"s_add_u32 s{t}, s{t}, {ST1_OFF}",
                      ("vm", "pf", f"buffer_load_dword v237, v236, {sr(SWS,4)}, s{t} offen sc1")]
        if e == 9 and "pfb" in EXP:
            other += [f"s_lshl_b32 s{t}, s{s_g}, 2",
                      f"s_add_u32 s{t}, s{t}, s{s_wave}",
                      f"s_lshl_b32 s{t}, s{t}, 9",
                      f"s_lshl_b32 s{t+1}, s{s_rb}, 16",
                      f"s_add_u32 s{t}, s{t}, s{t+1}",
                      f"v_and_b32 v236, 3, v{V_LANE}",
                      "v_lshlrev_b32 v236, 7, v236",
                      f"v_bfe_u32 v237, v{V_LANE}, 2, 2",
                      "v_lshl_add_u32 v236, v237, 14, v236",
                      f"v_and_b32 v237, 1, v{V_Q}",
                      "v_lshl_add_u32 v236, v237, 21, v236",
                      ("vm", "pf", f"buffer_load_dword v237, v236, {sr(SWS,4)}, s{t} offen"),
                      f"s_lshl_b32 s{t}, s{s_wave}, 15",
                      f"s_add_u32 s{t}, s{t}, s{s_rowbase}",
                      f"s_lshl_b32 s{t+1}, s{s_g}, 7",
                      f"s_add_u32 s{t}, s{t}, s{t+1}",
                      f"s_add_u32 s{t+1}, s{t}, {X2_OFF}",
                      ("vm", "pf", f"buffer_load_dword v237, v{V_ROW}, {sr(SWS,4)}, s{t+1} offen"),
                      ("vm", "pf", f"buffer_load_dword v237, v{V_ROW}, {sr(SOUT,4)}, s{t} offen")]
        if e == 10:
            other += wod
        if e == 11:
            other += wodma(15)
        if e >= 12:
            for n in range(3 * (e - 11), 3 * (e - 11) + 3):
                other += wodma(n)
        if e == 4:
            Lp, Lok, Lnf = a.label("ep"), a.label("epok"), a.label("nf")
            c(f"s_mov_b32 s{s_spin}, 0",
              f"{Lp}:",
              f"v_readfirstlane_b32 s{s_ep}, v{V_EP}",
              f"v_readfirstlane_b32 s{s_ep+1}, v{V_EP+1}",
              f"s_add_u32 s{s_spin}, s{s_spin}, 1",
              f"s_cmp_lg_u32 s{s_ep}, 0",
              f"s_cbranch_scc1 {Lok}",
              f"s_cmp_gt_u32 s{s_spin}, {SPIN_MAX}",
              f"s_cbranch_scc1 {Lok}",
              "s_sleep 2",
              f"buffer_load_dwordx2 {vr(V_EP,2)}, v{V_Z}, {sr(SDBG,4)}, 0 offen sc1",
              "s_waitcnt vmcnt(0)",
              f"s_branch {Lp}",
              f"{Lok}:",
              f"v_mov_b32 v{V_EPV}, s{s_ep}",
              f"v_mov_b32 v{V_EPV+1}, s{s_ep+1}",
              f"s_cmp_lg_u32 s{s_wave}, 0",
              f"s_cbranch_scc1 {Lnf}",
              f"v_mov_b32 v{V_HL}, s{s_ep}",
              f"v_mov_b32 v{V_HL+1}, s{s_ep+1}",
              f"v_mov_b32 v{V_HL+2}, s{s_xcc}",
              f"v_mov_b32 v{V_HL+3}, 0",
              f"s_and_b32 s{t}, s2, 7",
              f"s_lshl_b32 s{t}, s{t}, 8",
              f"s_and_b32 s{t+1}, s2, 0xf8",
              f"s_add_u32 s{t}, s{t}, s{t+1}",
              f"s_add_u32 s{t}, s{t}, {F_T}",
              f"s_lshl_b32 s{t+1}, s{s_rb}, 7",
              f"s_lshl_b32 s{t+2}, s{s_g}, 4",
              f"s_add_u32 s{t+1}, s{t+1}, s{t+2}",
              f"s_add_u32 s{t+1}, s{t+1}, {F_HELLO}",
              "s_mov_b64 exec, 1",
              f"buffer_store_dwordx2 {vr(V_HL,2)}, v{V_Z}, {sr(SWS,4)}, s{t} offen sc1",
              f"buffer_store_dwordx4 {vr(V_HL,4)}, v{V_Z}, {sr(SWS,4)}, s{t+1} offen sc1",
              "s_mov_b64 exec, -1",
              f"{Lnf}:")
        mf = []
        wq, wk, wv = ar(12 * e, 4), ar(12 * e + 4, 4), ar(12 * e + 8, 4)
        for tl in range(5):
            x = vr(XS[P] + 4 * tl, 4)
            for (acc, A_, B_) in ((AQ + 4 * tl, wq, x), (AK + 4 * tl, wk, x), (AV + 4 * tl, x, wv)):
                mf.append(f"v_mfma_f32_16x16x32_bf16 {vr(acc,4)}, {A_}, {B_}, {vr(acc,4) if e else 0}")
        mix = []
        no, ns = len(other), len(st_ops)
        io = 0
        for j, so in enumerate(st_ops):
            while io < (j + 1) * no // max(ns, 1):
                mix.append(other[io])
                io += 1
            mix.append(so)
        mix += other[io:]
        c.merge(mf, mix)
    stamp()
    HR = 64
    c(f"v_lshrrev_b32 v72, 5, v{V_LANE}",
      f"s_lshl_b32 s{t}, s{s_wave}, 1",
      f"s_add_u32 s{t}, s{t}, 8",
      f"v_add_u32 v72, s{t}, v72",
      "v_lshlrev_b32 v72, 8, v72",
      f"v_lshl_add_u32 v72, v{V_LAM}, 4, v72",
      f"v_and_b32 v73, 1, v{V_Q}",
      f"v_mul_u32_u24 v73, {XQ}, v73",
      "v_add_u32 v72, v72, v73",
      f"ds_read_b128 {vr(HR,4)}, v72 offset:{L_X}",
      f"ds_read_b128 {vr(HR+4,4)}, v72 offset:{L_X+2*XQ}",
      f"v_mov_b32 v{SA+2}, 0",
      f"v_mov_b32 v{SA+3}, 0",
      f"v_lshlrev_b32 v74, 2, v{V_LAM}")
    for r in range(4):
        c(f"v_mov_b32_dpp v{CSQ+r}, v{AQ+r} row_newbcast:0 row_mask:0xf bank_mask:0xf",
          f"v_mov_b32_dpp v{CSK+r}, v{AK+r} row_newbcast:0 row_mask:0xf bank_mask:0xf")
    c(f"ds_bpermute_b32 v{CSV}, v74, v{AV}",
      "s_waitcnt lgkmcnt(0)",
      "s_barrier")
    STA, STB = 94, 196
    QP, KP, VP = 64, 74, 84
    def read_stats(vlam8):
        l = [f"ds_read_b64 {vr(STA+2*tl,2)}, v{vlam8} offset:{128*tl}" for tl in range(5)]
        l += [f"v_lshlrev_b32 v{V_T0}, 5, v{V_Q}", f"v_add_u32 v{V_T0}, {L_ST}, v{V_T0}"]
        for tl in range(5):
            l += [f"ds_read_b128 {vr(STB+8*tl,4)}, v{V_T0} offset:{128*tl}",
                  f"ds_read_b128 {vr(STB+8*tl+4,4)}, v{V_T0} offset:{128*tl+16}"]
        return l

    def poll(check_lines, reload_lines, name, sleep=1):
        Lp, Ld = a.label(name), a.label(name + "d")
        c(f"s_mov_b32 s{s_spin}, 0", f"{Lp}:")
        c(check_lines)
        c(f"s_add_u32 s{s_spin}, s{s_spin}, 1",
          f"s_cmp_gt_u32 s{s_spin}, {SPIN_MAX}",
          f"s_cbranch_scc1 {Ld}",
          "s_nop 1",
          f"s_cbranch_vccz {Ld}",
          f"s_sleep {sleep}")
        c(reload_lines)
        c("s_waitcnt vmcnt(0)", f"s_branch {Lp}", f"{Ld}:")

    def chk_ep(regs_lo, tmp):
        l = []
        for n, lo in enumerate(regs_lo):
            if n == 0:
                l.append(f"v_xor_b32 v{tmp}, s{s_ep}, v{lo}")
            else:
                l.append(f"v_xor_b32 v{tmp+1}, s{s_ep}, v{lo}")
                l.append(f"v_or_b32 v{tmp}, v{tmp}, v{tmp+1}")
            l.append(f"v_xor_b32 v{tmp+1}, s{s_ep+1}, v{lo+1}")
            l.append(f"v_or_b32 v{tmp}, v{tmp}, v{tmp+1}")
        l.append(f"v_cmp_ne_u32 vcc, 0, v{tmp}")
        return l

    PT = 104
    c(f"v_and_b32 v{PT}, 0x70, v{V_L16}", f"v_and_b32 v{PT+1}, 0xf8, v{V_L8}")
    c(("wait", ["hl"]))
    poll(chk_ep([V_HL, V_FT], 106),
         [f"buffer_load_dwordx4 {vr(V_HL,4)}, v{PT}, {sr(SWS,4)}, s{t+8} offen sc1",
          f"buffer_load_dwordx2 {vr(V_FT,2)}, v{PT+1}, {sr(SWS,4)}, s{t+9} offen sc1"], "phl")
    c(f"v_cmp_ne_u32 vcc, s{s_xcc}, v{V_HL+2}",
      f"s_lshl_b32 s{t+3}, s{s_half}, 11",
      f"s_add_u32 s{t+4}, s{s_c}, s{t+3}",
      f"s_add_u32 s{t+4}, s{t+4}, {U_OFF}",
      f"s_add_u32 m0, s{s_cl}, s{t+3}",
      "s_nop 0",
      ("vm", "cu", f"buffer_load_dwordx4 v{V_L16}, {sr(SWS,4)}, s{t+4} offen sc1 lds"),
      ("vm", "cu", f"buffer_load_dwordx4 v{V_L16}, {sr(SWS,4)}, s{t+4} offen offset:1024 sc1 lds"),
      "s_cmp_eq_u64 vcc, 0",
      f"s_cselect_b32 s{s_loc}, 1, 0")
    V_FX, V_FI = 184, 185
    dm = []
    for i in range(2):
        g0 = [f"s_lshl_b32 s{t+3}, s{s_half}, 1",
              f"s_add_u32 s{t+3}, s{t+3}, {i}",
              f"s_mul_i32 s{t+5}, s{t+3}, {C_KS}",
              f"s_add_u32 s{t+5}, s{t+5}, s{s_cl}",
              f"s_add_u32 s{t+10+i}, s{t+5}, {C_K+32}",
              f"s_lshl_b32 s{t+3}, s{t+3}, 1",
              f"s_add_u32 s{t+12+i}, s{s_c}, s{t+3}"]
        c(g0)
        for n in range(4):
            dm.append([f"s_mov_b32 m0, s{t+10+i}", "s_nop 0",
                       ("vm", "ck", f"buffer_load_dwordx4 v{V_L16}, {sr(SKK,4)}, s{t+12+i} offen offset:{1024*n} lds")])
    for n in range(3):
        dm.append(wodma(n))
    c(f"v_add_u32 v{V_FI}, v{V_LAM}, v{V_Q}",
      f"v_subrev_u32 v{V_FI}, 16, v{V_FI}",
      f"v_max_i32 v74, 0, v{V_FI}",
      "v_lshlrev_b32 v74, 1, v74",
      ("vm", "ck", f"buffer_load_ushort v{V_FX}, v74, {sr(SKK,4)}, s{s_c} offen"))

    def with_dmas(main, groups, every):
        n = 0
        for it in main:
            c(it)
            n += 1
            if n % every == 0 and groups:
                c(groups.pop(0))

    TT = 72
    ep = []
    for i in range(8):
        ep.append(f"v_dot2_f32_bf16 v{SA+2}, v{HR+i}, v{ONES}, v{SA+2}")
        ep.append(f"v_dot2_f32_bf16 v{SA+3}, v{HR+i}, v{HR+i}, v{SA+3}")
    ep.append(("gap", 3))
    for sh in (8, 4, 2, 1):
        ep += [f"v_add_f32_dpp v{SA+2}, v{SA+2}, v{SA+2} row_ror:{sh} row_mask:0xf bank_mask:0xf",
               f"v_add_f32_dpp v{SA+3}, v{SA+3}, v{SA+3} row_ror:{sh} row_mask:0xf bank_mask:0xf",
               ("gap", 1)]
    ep += xq_reduce("v_add_f32", [SA, SA + 1, SA + 2, SA + 3], [TT, TT + 1, TT + 2, TT + 3], ("v_permlane16_swap_b32",))
    ep += xq_reduce("v_add_f32", [SA, SA + 1], [TT, TT + 1], ("v_permlane32_swap_b32",))
    ep += stats_fin([(SA, SA + 1), (SA + 2, SA + 3)], [TT, TT + 1])
    ep += [f"v_lshlrev_b32 v{TT}, 3, v{V_LAM}",
           f"s_lshr_b32 s{t+1}, s{s_stile}, 5",
           f"s_add_u32 s{t+1}, s{t+1}, {L_ST}",
           f"v_add_u32 v{TT+1}, s{t+1}, v{TT}",
           f"ds_write_b64 v{TT+1}, {vr(SA,2)}",
           f"v_lshrrev_b32 v{TT+1}, 5, v{V_LANE}",
           f"v_lshlrev_b32 v{TT+1}, 3, v{TT+1}",
           f"s_lshl_b32 s{t+1}, s{s_wave}, 4",
           f"s_add_u32 s{t+1}, s{t+1}, {L_ST + 64}",
           f"v_add_u32 v{TT+1}, s{t+1}, v{TT+1}",
           f"ds_write_b64 v{TT+1}, {vr(SA+2,2)}",
           f"v_and_b32 v{TT+1}, 0x38, v{TT}",
           f"v_add_u32 v{TT+1}, {L_ST}, v{TT+1}",
           f"v_mov_b32 v{TT+2}, 0",
           f"v_mov_b32 v{TT+3}, 1.0",
           f"ds_write_b64 v{TT+1}, {vr(TT+2,2)}",
           f"v_add_u32 v{TT}, {L_ST}, v{TT}"]
    with_dmas(ep, dm, 12)
    c("s_waitcnt lgkmcnt(0)", "s_barrier")

    c(read_stats(TT), "s_waitcnt lgkmcnt(0)")

    def normalize(tl, pk, VP):
        l = []
        mean, rstd = STA + 2 * tl, STA + 2 * tl + 1
        for (acc, cs, dst, on) in ((AQ + 4 * tl, CSQ, QP + 2 * tl, tl > 0), (AK + 4 * tl, CSK, KP + 2 * tl, True)):
            if not on:
                continue
            if pk:
                for h in range(2):
                    l.append(f"v_pk_fma_f32 {vr(acc+2*h,2)}, {vr(cs+2*h,2)}, {vr(mean,2)}, {vr(acc+2*h,2)} op_sel_hi:[1,0,1] neg_lo:[0,1,0] neg_hi:[0,1,0]")
                for h in range(2):
                    l.append(f"v_pk_mul_f32 {vr(acc+2*h,2)}, {vr(acc+2*h,2)}, {vr(mean,2)} op_sel:[0,1]")
            else:
                for r in range(4):
                    l.append(f"v_fma_f32 v{acc+r}, -v{mean}, v{cs+r}, v{acc+r}")
                for r in range(4):
                    l.append(f"v_mul_f32 v{acc+r}, v{rstd}, v{acc+r}")
            l.append(f"v_cvt_pk_bf16_f32 v{dst}, v{acc}, v{acc+1}")
            l.append(f"v_cvt_pk_bf16_f32 v{dst+1}, v{acc+2}, v{acc+3}")
        acc = AV + 4 * tl
        for r in range(4):
            l.append(f"v_fma_f32 v{acc+r}, -v{STB+8*tl+2*r}, v{CSV}, v{acc+r}")
        for r in range(4):
            l.append(f"v_mul_f32 v{acc+r}, v{STB+8*tl+2*r+1}, v{acc+r}")
        l.append(f"v_cvt_pk_bf16_f32 v{VP+2*tl}, v{acc}, v{acc+1}")
        l.append(f"v_cvt_pk_bf16_f32 v{VP+2*tl+1}, v{acc+2}, v{acc+3}")
        return l

    V_OA = 254
    s_oa = 20
    oaddr = [f"s_lshl_b32 s{t}, s{s_g}, 2",
             f"s_add_u32 s{t}, s{t}, s{s_wave}",
             f"s_lshr_b32 s{t+1}, s{t}, 1",
             f"s_lshl_b32 s{t+1}, s{t+1}, 10",
             f"s_and_b32 s{t}, s{t}, 1",
             f"s_lshl_b32 s{t}, s{t}, 9",
             f"s_add_u32 s{t}, s{t}, s{t+1}",
             f"s_lshl_b32 s{t+1}, s{s_rb}, 16",
             f"s_add_u32 s{s_oa}, s{t}, s{t+1}",
             f"v_lshrrev_b32 v{V_OA}, 1, v{V_Q}",
             f"v_lshlrev_b32 v{V_OA}, 8, v{V_OA}",
             f"v_lshl_add_u32 v{V_OA}, v{V_LAM}, 4, v{V_OA}",
             f"v_and_b32 v{V_T0+1}, 1, v{V_Q}",
             f"v_lshl_add_u32 v{V_OA}, v{V_T0+1}, 3, v{V_OA}"]

    def attn_tiles(tiles, VP, regs, pk):
        SC, SP, MX, MT, PP, OO, LL = (regs[k_] for k_ in ("SC", "SP", "MX", "MT", "PP", "OO", "LL"))
        n = len(tiles)
        l = [("gap", 2)]
        for j, i in enumerate(tiles):
            l.append(f"v_mfma_f32_16x16x16_bf16 {vr(SC+4*j,4)}, {vr(KP+2*i,2)}, {vr(QP+2*i,2)}, {vr(BC,4)}")
            l.append(f"v_mfma_f32_16x16x16_bf16 {vr(SP+4*j,4)}, {vr(KP+2*(i-1),2)}, {vr(QP+2*i,2)}, {vr(BP1 if i == 1 else BP,4)}")
        l.append(("gap", max(8 - 2 * (n - 1), 1) if n < 4 else 2))
        if n >= 2:
            pass
        for j in range(n):
            if j == n - 1 and n > 1:
                l.append(("gap", 2))
            for r in range(4):
                l.append(f"v_max_f32 v{SC+4*j+r}, v{SC+4*j+r}, v{SP+4*j+r}")
            l.append(f"v_max3_f32 v{MX+j}, v{SC+4*j}, v{SC+4*j+1}, v{SC+4*j+2}")
            l.append(f"v_max_f32 v{MX+j}, v{MX+j}, v{SC+4*j+3}")
        l += xq_reduce("v_max_f32", [MX + j for j in range(n)], [MT + j for j in range(n)])
        for j in range(n):
            l.append(f"v_mul_f32 v{MX+j}, 0x3eb8aa3b, v{MX+j}")
        for j in range(n):
            for r in range(4):
                l.append(f"v_fma_f32 v{SC+4*j+r}, v{SC+4*j+r}, s{s_cexp}, -v{MX+j}")
        for j in range(n):
            for r in range(4):
                l.append(f"v_exp_f32 v{SC+4*j+r}, v{SC+4*j+r}")
        l.append(("gap", 1))
        for j in range(n):
            l += [f"v_cvt_pk_bf16_f32 v{SP+4*j}, v{SC+4*j}, v{SC+4*j+1}",
                  f"v_cvt_pk_bf16_f32 v{SP+4*j+1}, v{SC+4*j+2}, v{SC+4*j+3}",
                  f"v_and_b32 v{PP+4*j}, v{MP}, v{SP+4*j}",
                  f"v_and_b32 v{PP+4*j+1}, v{MP+1}, v{SP+4*j+1}",
                  f"v_and_b32 v{PP+4*j+2}, v{MC}, v{SP+4*j}",
                  f"v_and_b32 v{PP+4*j+3}, v{MC+1}, v{SP+4*j+1}"]
        l.append(("gap", 2))
        for j, i in enumerate(tiles):
            l.append(f"v_mfma_f32_16x16x32_bf16 {vr(LL+4*j,4)}, {vr(ONES,4)}, {vr(PP+4*j,4)}, 0")
            l.append(f"v_mfma_f32_16x16x32_bf16 {vr(OO+4*j,4)}, {vr(VP+2*(i-1),4)}, {vr(PP+4*j,4)}, 0")
        l.append(("gap", 8))
        for j in range(n):
            l.append(f"v_rcp_f32 v{LL+4*j}, v{LL+4*j}")
        l.append(("gap", 1))
        for j in range(n):
            if pk:
                l += [f"v_pk_mul_f32 {vr(OO+4*j,2)}, {vr(OO+4*j,2)}, {vr(LL+4*j,2)} op_sel_hi:[1,0]",
                      f"v_pk_mul_f32 {vr(OO+4*j+2,2)}, {vr(OO+4*j+2,2)}, {vr(LL+4*j,2)} op_sel_hi:[1,0]"]
            else:
                l += [f"v_mul_f32 v{OO+4*j+r}, v{LL+4*j}, v{OO+4*j+r}" for r in range(4)]
            l += [f"v_cvt_pk_bf16_f32 v{OO+4*j}, v{OO+4*j}, v{OO+4*j+1}",
                  f"v_cvt_pk_bf16_f32 v{OO+4*j+1}, v{OO+4*j+2}, v{OO+4*j+3}"]
        return l

    def dual_store(lines_fn, tag, nops):
        Lg, Lj = a.label("sg"), a.label("sj")
        c(f"s_cmp_eq_u32 s{s_loc}, 0", f"s_cbranch_scc1 {Lg}")
        c(lines_fn(""))
        c(f"s_branch {Lj}", f"{Lg}:")
        c(lines_fn(" sc1"))
        c(f"{Lj}:")
        c.q += [tag] * nops

    def wave_flag(f_off, sc1_only=False):
        c(f"s_add_u32 s{t}, s{s_flag}, {f_off}", "s_mov_b64 exec, 1")
        if sc1_only:
            c(("vm", "fl", f"buffer_store_dwordx2 {vr(V_EPV,2)}, v{V_Z}, {sr(SWS,4)}, s{t} offen sc1"))
        else:
            dual_store(lambda fl: [f"buffer_store_dwordx2 {vr(V_EPV,2)}, v{V_Z}, {sr(SWS,4)}, s{t} offen{fl}"], "fl", 1)
        c("s_mov_b64 exec, -1")

    s_cexp = 17
    c(f"s_mov_b32 s{s_cexp}, 0x3eb8aa3b")
    R1 = dict(SC=108, SP=124, MX=140, MT=144, PP=148, OO=196, LL=212)
    main = []
    for tl in range(5):
        main += normalize(tl, True, VP)
    with_dmas(main, dm, 16)
    assert not dm

    def o_stores(o_off, OO, tiles):
        def f(fl):
            l = []
            for j, i in enumerate(tiles):
                l += [f"s_add_u32 s{t+1}, s{s_oa}, {(O1_OFF if (fl == '' and 'noalias' not in EXP) else o_off) + (i-1)*16384}",
                      f"buffer_store_dwordx2 {vr(OO+4*j,2)}, v{V_OA}, {sr(SWS,4)}, s{t+1} offen{fl}"]
            return l
        dual_store(f, "ost", len(tiles))

    stamp()
    CA, CB, C2, C3, C4, C5, C6 = 94, 95, 96, 97, 98, 99, 100
    c(f"v_add_u32 v{V_T0}, s{s_cl}, v{V_L8}",
      f"v_mov_b32 v{C2}, 0",
      f"v_mov_b32 v{C3}, 0",
      f"ds_write_b64 v{V_T0}, {vr(C2,2)} offset:{C_U+4096}",
      f"v_mul_u32_u24 v{C4}, {C_KS}, v{V_Q}",
      f"v_lshl_add_u32 v{C4}, v{V_LAM}, 1, v{C4}",
      f"s_add_u32 s{t+5}, s{s_cl}, {C_K}",
      f"v_add_u32 v{C4}, s{t+5}, v{C4}",
      f"v_cmp_gt_i32 vcc, 0, v{V_FI}",
      f"v_add_u32 v{CA}, 1, v{V_LAM}",
      f"v_and_b32 v{CB}, 3, v{CA}",
      f"v_mul_u32_u24 v{CB}, {C_KS}, v{CB}",
      f"v_and_b32 v{CA}, 0x1c, v{CA}",
      f"v_lshl_add_u32 v{CB}, v{CA}, 1, v{CB}",
      f"v_lshl_add_u32 v{CB}, v{V_Q}, 4, v{CB}",
      f"s_lshl_b32 s{t+3}, s{s_half}, 8",
      f"s_add_u32 s{t+3}, s{t+3}, s{s_cl}",
      f"s_add_u32 s{t+5}, s{t+3}, {C_K}",
      f"v_add_u32 v{CA}, s{t+5}, v{CB}",
      f"v_lshlrev_b32 v{CB}, 5, v{V_LAM}",
      f"v_sub_u32 v{CB}, 480, v{CB}",
      f"v_lshl_add_u32 v{CB}, v{V_Q}, 4, v{CB}",
      f"v_add_u32 v{CB}, s{t+3}, v{CB}",
      ("wait", ["ck", "cu"]),
      f"v_cndmask_b32 v{V_FX}, v{V_FX}, 0, vcc",
      f"ds_write_b16 v{C4}, v{V_FX}",
      "s_waitcnt lgkmcnt(0)", "s_barrier")
    CACC = 104
    V_FO = 232
    V_FA = 236

    def creg(P, off, n):
        return vr(136 + off, n) if P == 0 else ar(192 + off, n)

    def creads(P, rp):
        l = []
        for j in range(8):
            l.append(f"ds_read_b128 {creg(P,32+4*j,4)}, v{CB} offset:{64*rp+512*(7-j)}")
            l.append(f"ds_read_b64 {creg(P,4*j,2)}, v{CA} offset:{64*rp+512*j}")
            l.append(f"ds_read_b64 {creg(P,4*j+2,2)}, v{CA} offset:{64*rp+512*j+8}")
        return l

    def flags_load(f_off, rb_sgpr, dst, sreg):
        return [f"s_lshl_b32 s{sreg}, s{rb_sgpr}, 8",
                f"s_add_u32 s{sreg}, s{sreg}, {f_off}",
                ("vm", "fo", f"buffer_load_dwordx2 {vr(dst,2)}, v{V_FA}, {sr(SWS,4)}, s{sreg} offen sc1")]

    def flags_poll(dst, sreg, tmp, name):
        c(("wait", ["fo"]))
        poll(chk_ep([dst], tmp), [f"buffer_load_dwordx2 {vr(dst,2)}, v{V_FA}, {sr(SWS,4)}, s{sreg} offen sc1"], name)

    c(creads(0, 0))
    KEEP, UU, PR, UF = 136, 152, 160, 176
    pre_ep = [
        f"s_lshl_b32 s{t+3}, s{s_wave}, 12",
        f"s_add_u32 s{t+3}, s{t+3}, {C_RED}",
        f"v_add_u32 v{C2}, s{t+3}, v{V_L16}",
        f"s_xor_b32 s{t+3}, s{s_wave}, 1",
        f"s_lshl_b32 s{t+3}, s{t+3}, 12",
        f"s_add_u32 s{t+3}, s{t+3}, {C_RED}",
        f"v_add_u32 v{C3}, s{t+3}, v{V_L16}",
        f"v_lshlrev_b32 v{C4}, 5, v{V_LAM}",
        f"v_lshl_add_u32 v{C4}, v{V_Q}, 3, v{C4}",
        f"s_lshl_b32 s{t+3}, s{s_half}, 11",
        f"s_sub_u32 s{t+3}, s{s_cl}, s{t+3}",
        f"s_add_u32 s{t+3}, s{t+3}, {C_U + 4088 - 1536}",
        f"v_sub_u32 v{C4}, s{t+3}, v{C4}",
        f"s_lshl_b32 s{t+3}, s{s_wave}, 11",
        f"s_add_u32 s{t+3}, s{t+3}, {C_TR}",
        f"v_lshlrev_b32 v{C5}, 4, v{V_LAM}",
        f"v_lshl_add_u32 v{C5}, v{V_Q}, 2, v{C5}",
        f"v_add_u32 v{C5}, s{t+3}, v{C5}",
        f"v_add_u32 v{C6}, s{t+3}, v{V_L16}",
        f"v_lshrrev_b32 v101, 5, v{V_LANE}",
        "v_lshlrev_b32 v101, 8, v101",
        f"v_and_b32 v102, 1, v{V_Q}",
        "v_lshl_add_u32 v101, v102, 11, v101",
        f"v_lshl_add_u32 v101, v{V_LAM}, 4, v101",
        f"s_lshl_b32 s{t+4}, s{s_half}, 10",
        f"s_add_u32 s{t+4}, s{t+4}, s{s_c}",
        f"s_add_u32 s{t+4}, s{t+4}, {Y_OFF}",
        f"s_lshl_b32 s{t+3}, s{s_D}, 16",
        f"s_and_b32 s{t+5}, s{s_D}, 0xffff0000",
        f"s_cmp_eq_u32 s{s_ch}, 0",
        f"s_cselect_b32 s{t+3}, s{t+3}, s{t+5}"]
    pre_ep += [f"ds_read_b64 {vr(UU+2*i,2)}, v{C4} offset:{512*(3-i)}" for i in range(4)]
    pre_ep += ["s_waitcnt lgkmcnt(0)"]
    for i in range(4):
        pre_ep += [f"v_and_b32 v{UF+4*i}, 0xffff0000, v{UU+2*i+1}",
                   f"v_lshlrev_b32 v{UF+4*i+1}, 16, v{UU+2*i+1}",
                   f"v_and_b32 v{UF+4*i+2}, 0xffff0000, v{UU+2*i}",
                   f"v_lshlrev_b32 v{UF+4*i+3}, 16, v{UU+2*i}"]
    pre_ep += [f"v_mul_f32 v{UF+r}, s{t+3}, v{UF+r}" for r in range(16)]
    RA = dict(SC=200, SP=208, MX=216, MT=218, PP=220, OO=238, LL=246)
    opt = [f"v_and_b32 v{V_FA}, 0xf8, v{V_L8}"] + oaddr
    for pr in ([1, 2], [3, 4]):
        opt += attn_tiles(pr, VP, RA, False)
        opt.append(lambda pr=pr: o_stores(O1_OFF, RA["OO"], pr))
        opt.append(("gap", 3))
    c._dist = 100
    for rp in range(4):
        P = rp & 1
        c("s_waitcnt lgkmcnt(0)")
        if rp == 3:
            opt += pre_ep
        mf = []
        for j in range(8):
            for i in range(j, 8):
                cc = vr(CACC + 4 * i, 4) if (rp or j) else 0
                mf.append(f"v_mfma_f32_16x16x32_bf16 {vr(CACC+4*i,4)}, {creg(P,4*j,4)}, {creg(P,32+4*(i-j),4)}, {cc}")
        opt = c.merge2(mf, creads(1 - P, rp + 1) if rp < 3 else [], opt, flush=(rp == 3))
    OFR = 192

    def o_loads(o_off):
        g = []
        for st in range(4):
            for i in range(4):
                e = 4 * st + i
                l = []
                if i == 0:
                    l.append(f"s_add_u32 s{t+11}, s{t+10}, {st*4096}")
                l.append(("vm", f"o{e}", f"buffer_load_dwordx4 {ar(OFR+4*e,4)}, v{V_L16}, {sr(SWS,4)}, s{t+11} offen offset:{1024*i} sc1"))
                g.append(l)
        pre = [f"s_lshl_b32 s{t+10}, s{s_rb}, 16",
               f"s_lshl_b32 s{t+11}, s{s_wave}, 14",
               f"s_add_u32 s{t+10}, s{t+10}, s{t+11}",
               f"s_cmp_eq_u32 s{s_loc}, 0",
               f"s_cselect_b32 s{t+11}, {o_off}, {o_off if 'noalias' in EXP else O1_OFF}",
               f"s_add_u32 s{t+10}, s{t+10}, s{t+11}"]
        return pre, g

    c(("wait", ["ost"]))
    wave_flag(F_O1)
    L1, L2 = a.label("cvh"), a.label("cvj")
    c("s_nop 1", f"s_cmp_eq_u32 s{s_half}, 0", f"s_cbranch_scc0 {L1}")
    for i in range(4):
        c(f"ds_write_b128 v{C2}, {vr(CACC+16+4*i,4)} offset:{1024*i}")
    for r in range(8):
        c(f"v_pk_add_f32 {vr(KEEP+2*r,2)}, {vr(CACC+2*r,2)}, {vr(UF+2*r,2)}")
    c(f"s_branch {L2}", f"{L1}:")
    for i in range(4):
        c(f"ds_write_b128 v{C2}, {vr(CACC+4*i,4)} offset:{1024*i}")
    for r in range(8):
        c(f"v_pk_add_f32 {vr(KEEP+2*r,2)}, {vr(CACC+16+2*r,2)}, {vr(UF+2*r,2)}")
    c(f"{L2}:", "s_waitcnt lgkmcnt(0)", "s_barrier")
    c([f"ds_read_b128 {vr(PR+4*i,4)}, v{C3} offset:{1024*i}" for i in range(4)])
    c(flags_load(F_O1, s_rb, V_FO, t + 8))
    for i in range(4):
        c(f"s_waitcnt lgkmcnt({3-i})" if i == 0 else f"s_waitcnt lgkmcnt({3-i+2*i})",
          f"v_pk_add_f32 {vr(KEEP+4*i,2)}, {vr(KEEP+4*i,2)}, {vr(PR+4*i,2)}",
          f"v_pk_add_f32 {vr(KEEP+4*i+2,2)}, {vr(KEEP+4*i+2,2)}, {vr(PR+4*i+2,2)}")
        for par in range(2):
            c(f"v_cvt_pk_bf16_f32 v{UF+2*i+par}, v{KEEP+4*i+par}, v{KEEP+4*i+2+par}",
              f"ds_write_b32 v{C5}, v{UF+2*i+par} offset:{(2*i+par)*256}")
    YS = 228
    c("s_waitcnt lgkmcnt(0)",
      f"ds_read_b128 {vr(YS,4)}, v{C6}",
      f"ds_read_b128 {vr(238,4)}, v{C6} offset:1024")
    c("s_waitcnt lgkmcnt(0)",
      ("vm", "yst", f"buffer_store_dwordx4 {vr(YS,4)}, v101, {sr(SWS,4)}, s{t+4} offen sc1"),
      ("vm", "yst", f"buffer_store_dwordx4 {vr(238,4)}, v101, {sr(SWS,4)}, s{t+4} offen offset:512 sc1"))
    stamp()
    c(f"s_lshl_b32 s{t}, s{s_g}, 7", f"s_add_u32 s{s_rowbase}, s{s_rowbase}, s{t}")
    pre, og = o_loads(O1_OFF)
    c(pre)
    c(f"s_lshl_b32 s{t+7}, s{s_g}, 8",
      f"s_add_u32 s{t+7}, s{t+7}, {F_Y}",
      f"s_lshl_b32 s{t+9}, s{s_g}, 18",
      f"s_lshl_b32 s{t+1}, s{s_p}, 11",
      f"s_add_u32 s{t+9}, s{t+9}, s{t+1}",
      f"s_lshl_b32 s{t+1}, s{s_b}, 7",
      f"s_add_u32 s{t+9}, s{t+9}, s{t+1}",
      f"s_lshl_b32 s{t+1}, s{s_wave}, 16",
      f"s_add_u32 s{t+9}, s{t+9}, s{t+1}",
      f"s_add_u32 s{t+9}, s{t+9}, {Y_OFF}",
      f"s_add_u32 s22, s{t+9}, 32768",
      f"v_lshrrev_b32 v75, 3, v{V_LANE}",
      "v_lshlrev_b32 v75, 12, v75",
      f"v_and_b32 v76, 0x70, v{V_L16}",
      "v_add_u32 v75, v75, v76",
      f"s_lshl_b32 s23, s{s_wave}, 11",
      f"s_add_u32 s23, s23, {P2_YT}",
      f"v_bfe_u32 v79, v{V_LANE}, 2, 2",
      f"v_lshl_add_u32 v79, v{V_Q}, 2, v79",
      "v_lshlrev_b32 v79, 7, v79",
      f"v_and_b32 v76, 3, v{V_LANE}",
      "v_lshl_add_u32 v79, v76, 3, v79",
      f"s_lshl_b32 s{t+1}, s{s_wave}, 5",
      f"s_add_u32 s{t+1}, s{t+1}, {P2_YT}",
      f"v_add_u32 v79, s{t+1}, v79")
    fyl = f"buffer_load_dwordx2 {vr(72,2)}, v{V_FA}, {sr(SWS,4)}, s{t+7} offen sc1"
    ylds = ["s_mov_b32 m0, s23", "s_nop 0",
            f"buffer_load_dwordx4 v75, {sr(SWS,4)}, s{t+9} offen sc1 lds",
            "s_add_u32 m0, s23, 1024", "s_nop 0",
            f"buffer_load_dwordx4 v75, {sr(SWS,4)}, s22 offen sc1 lds"]
    flags_poll(V_FO, t + 8, 68, "po1")
    for g_ in og[:OPRE]:
        c(g_)
    olate = [og[OPRE:]]
    stamp()

    def y_flag():
        Lny = a.label("nfy")
        c(("wait", ["yst"]),
          "s_barrier",
          f"s_cmp_lg_u32 s{s_wave}, 0",
          f"s_cbranch_scc1 {Lny}",
          f"s_lshl_b32 s{t}, s2, 3",
          f"s_add_u32 s{t}, s{t}, {F_Y}",
          "s_mov_b64 exec, 1",
          f"buffer_store_dwordx2 {vr(V_EPV,2)}, v{V_Z}, {sr(SWS,4)}, s{t} offen sc1",
          "s_mov_b64 exec, -1",
          f"{Lny}:")

    YP, X2K = 246, 238

    def wo_phase(layer):
        first = layer == 0
        XR = 96
        c(f"s_lshl_b32 s{t+1}, s{s_wave}, 15", f"s_add_u32 s{t+5}, s{s_rowbase}, s{t+1}")
        if first:
            for nt in range(4):
                c(("vm", "xr", f"buffer_load_dwordx2 {vr(XR+2*nt,2)}, v{V_ROW}, {sr(SX,4)}, s{t+5} offen offset:{32*nt}"))
        WACC = 80
        WF = [112, 144, 176]

        def reads(P, e):
            return [f"ds_read_b64_tr_b16 {vr(WF[P]+4*nt+2*ss,2)}, v{V_WO+nt} offset:{4096*e+512*ss}"
                    for nt in range(4) for ss in range(2)]
        c(reads(0, 0), reads(1, 1))
        for e in range(16):
            P = e % 3
            if first and e == 0:
                y_flag()
            c(("wait", [f"o{e}"], 8 if e < 15 else 0))
            mf = [f"v_mfma_f32_16x16x32_bf16 {vr(WACC+4*nt,4)}, {vr(WF[P]+4*nt,4)}, {ar(OFR+4*e,4)}, {vr(WACC+4*nt,4) if e else 0}"
                  for nt in range(4)]
            sd = reads((e + 2) % 3, e + 2) if e < 14 else []
            if olate[0]:
                sd = olate[0].pop(0) + sd
            c.merge(mf, sd, 2)
        XF, X1P, G = 144, 160, 168
        if not first:
            stamp("p4")
        if first and 'stamp' not in EXP:
            stamp()
        if first:
            c(("wait", ["xr"]))
            src = XR
        else:
            src = X2K
        for i in range(8):
            c(f"v_lshlrev_b32 v{XF+2*i}, 16, v{src+i}", f"v_and_b32 v{XF+2*i+1}, 0xffff0000, v{src+i}")
        c(f"v_mov_b32 v{G}, 0", f"v_mov_b32 v{G+1}, 0", f"v_mov_b32 v{G+2}, s{s_ep}", f"v_mov_b32 v{G+3}, s{s_ep+1}")
        for i in range(8):
            c(f"v_pk_add_f32 {vr(XF+2*i,2)}, {vr(XF+2*i,2)}, {vr(WACC+2*i,2)}",
              f"v_cvt_pk_bf16_f32 v{X1P+i}, v{XF+2*i}, v{XF+2*i+1}")
        for i in range(8):
            c(f"v_dot2_f32_bf16 v{G}, v{X1P+i}, v{ONES}, v{G}", f"v_dot2_f32_bf16 v{G+1}, v{X1P+i}, v{X1P+i}, v{G+1}")
        st_off = ST1_OFF if first else ST2_OFF
        c(f"s_lshl_b32 s{t+6}, s{s_rb}, 13",
          f"s_lshl_b32 s{t+1}, s{s_wave}, 11",
          f"s_add_u32 s{t+6}, s{t+6}, s{t+1}",
          f"s_add_u32 s{t+6}, s{t+6}, {st_off}",
          f"s_lshl_b32 s{t+1}, s{s_g}, 4",
          f"s_add_u32 s{t+1}, s{t+1}, s{t+6}",
          f"v_lshlrev_b32 v74, 7, v{V_LAM}")
        c(xq_reduce("v_add_f32", [G, G + 1], [G + 4, G + 5]))
        c("s_mov_b64 exec, 0xffff")
        dual_store(lambda fl: [f"buffer_store_dwordx4 {vr(G,4)}, v74, {sr(SWS,4)}, s{t+1} offen{fl}"], "sst", 1)
        c("s_mov_b64 exec, -1")
        GR = 176
        if not first:
            stamp("p4")
        for i in range(8):
            c(f"v_lshlrev_b32 v{XF+2*i}, 16, v{X1P+i}", f"v_and_b32 v{XF+2*i+1}, 0xffff0000, v{X1P+i}")
        c(f"v_lshl_add_u32 v74, v{V_Q}, 5, v74")
        gl = [f"buffer_load_dwordx4 {vr(GR,4)}, v74, {sr(SWS,4)}, s{t+6} offen sc1",
              f"buffer_load_dwordx4 {vr(GR+4,4)}, v74, {sr(SWS,4)}, s{t+6} offen offset:16 sc1"]
        if first:
            Lyd = a.label("yd")
            c(f"s_cmp_lg_u32 s{s_wave}, 0", f"s_cbranch_scc1 {Lyd}", fyl, "s_waitcnt vmcnt(0)")
            poll(chk_ep([72], 76), [fyl], "pfy", 3)
            c(f"{Lyd}:", "s_barrier")
            c(ylds)
            if 'stamp' not in EXP:
                stamp()
        for l in gl:
            c(("vm", "gr", l))
        if first:
            c("s_waitcnt vmcnt(2)", "s_barrier")
            for nt in range(4):
                c(f"ds_read_b64_tr_b16 {vr(YP+2*nt,2)}, v79 offset:{2048*nt}")
        c(("drain",))
        if first and 'stamp' not in EXP:
            stamp()
        if not first:
            stamp("p4")
        poll(chk_ep([GR + 2, GR + 6], 76), gl, "pst")
        stamp("p4" if not first else "x2")
        c(f"v_add_f32 v{G}, v{GR}, v{GR+4}", f"v_add_f32 v{G+1}, v{GR+1}, v{GR+5}")
        c(xq_reduce("v_add_f32", [G, G + 1], [G + 4, G + 5]))
        c(stats_fin([(G, G + 1)], [G + 4]))
        c("s_waitcnt lgkmcnt(0)")
        YF, D = 192, 208
        for i in range(8):
            c(f"v_lshlrev_b32 v{YF+2*i}, 16, v{YP+i}", f"v_and_b32 v{YF+2*i+1}, 0xffff0000, v{YP+i}")
        dst = X2K if first else X1P
        for i in range(8):
            c(f"v_pk_add_f32 {vr(D+2*i,2)}, {vr(XF+2*i,2)}, {vr(G,2)} op_sel_hi:[1,0] neg_lo:[0,1] neg_hi:[0,1]",
              f"v_pk_mul_f32 {vr(D+2*i,2)}, {vr(D+2*i,2)}, {vr(G,2)} op_sel:[0,1]",
              f"v_pk_fma_f32 {vr(D+2*i,2)}, {vr(D+2*i,2)}, {vr(YF+2*i,2)}, {vr(XF+2*i,2)}",
              f"v_cvt_pk_bf16_f32 v{dst+i}, v{D+2*i}, v{D+2*i+1}")
        stamp("p4" if not first else "x2")
        WS4 = D
        for i in range(8):
            c(f"v_mov_b32 v{WS4+i}, v{dst+i}")
        if first:
            c(f"v_and_b32 v237, 1, v{V_Q}",
              "v_lshlrev_b32 v237, 5, v237",
              f"v_lshl_add_u32 v237, v{V_LAM}, 11, v237",
              f"v_lshrrev_b32 v76, 1, v{V_Q}",
              "v_lshl_add_u32 v237, v76, 4, v237")
        else:
            c("s_nop 1")
        for pr in range(2):
            for d_ in range(2):
                c(f"v_permlane16_swap_b32 v{WS4+4*pr+d_}, v{WS4+4*pr+2+d_}")
        c("s_nop 0")
        if not first:
            for pr in range(2):
                c(f"buffer_store_dwordx4 {vr(WS4+4*pr,4)}, v237, {sr(SOUT,4)}, s{t+5} offen offset:{64*pr}")
            c("s_waitcnt vmcnt(0)" if FINE == "p4" else "s_nop 0")
            stamp("p4")
            return
        c(f"s_add_u32 s{t+5}, s{t+5}, {X2_OFF}", f"v_mov_b32 v{G}, 0", f"v_mov_b32 v{G+1}, 0")
        dual_store(lambda fl: [f"buffer_store_dwordx4 {vr(WS4+4*pr,4)}, v237, {sr(SWS,4)}, s{t+5} offen offset:{64*pr}{fl}"
                               for pr in range(2)], "x2st", 2)
        for i in range(8):
            c(f"v_dot2_f32_bf16 v{G}, v{dst+i}, v{ONES}, v{G}", f"v_dot2_f32_bf16 v{G+1}, v{dst+i}, v{dst+i}, v{G+1}")
        c(f"s_lshl_b32 s{t}, s{s_rb}, 12",
          f"s_lshl_b32 s{t+1}, s{s_wave}, 10",
          f"s_add_u32 s{t}, s{t}, s{t+1}",
          f"s_lshl_b32 s{t+1}, s{s_g}, 3",
          f"s_add_u32 s{t}, s{t}, s{t+1}",
          f"s_add_u32 s{t}, s{t}, {XS_OFF}",
          f"v_lshlrev_b32 v74, 6, v{V_LAM}")
        c(xq_reduce("v_add_f32", [G, G + 1], [G + 4, G + 5]))
        c("s_mov_b64 exec, 0xffff")
        dual_store(lambda fl: [f"buffer_store_dwordx2 {vr(G,2)}, v74, {sr(SWS,4)}, s{t} offen{fl}"], "x2st", 1)
        c("s_mov_b64 exec, -1")
        stamp("x2")
        c(("drain",))
        stamp("x2")
        wave_flag(F_X2)
        Lh = a.label("nh")
        c(f"s_cmp_lg_u32 s{s_wave}, 3",
          f"s_cbranch_scc1 {Lh}",
          f"v_lshlrev_b32 v75, 10, v{V_LAM}",
          f"v_lshl_add_u32 v75, v{V_Q}, 3, v75",
          f"s_lshl_b32 s{t}, s{s_rb}, 13",
          f"s_lshl_b32 s{t+1}, s{s_g}, 7",
          f"s_add_u32 s{t}, s{t}, s{t+1}",
          f"s_add_u32 s{t}, s{t}, {HALO_OFF - 8192}",
          f"s_lshl_b32 s{t+2}, s{s_rb}, 9",
          f"s_lshl_b32 s{t+1}, s{s_g}, 3",
          f"s_add_u32 s{t+2}, s{t+2}, s{t+1}",
          f"s_add_u32 s{t+2}, s{t+2}, {HS_OFF - 512}",
          f"s_mov_b32 s{t+8}, 0xff00ff00",
          f"s_mov_b32 s{t+9}, 0xff00ff00",
          f"s_mov_b64 exec, {sr(t+8,2)}")
        for nt in range(4):
            c(f"buffer_store_dwordx2 {vr(dst+2*nt,2)}, v75, {sr(SWS,4)}, s{t} offen offset:{32*nt} sc1")
        c("s_mov_b64 exec, 0xff00",
          f"buffer_store_dwordx2 {vr(G,2)}, v74, {sr(SWS,4)}, s{t+2} offen sc1",
          "s_mov_b64 exec, -1",
          f"{Lh}:")

    wo_phase(0)
    stamp()

    c(flags_load(F_X2, s_rb, V_FO, t + 8))
    for qi in range(4):
        c(f"s_add_u32 s{s_xq+qi}, s{s_xq+qi}, {X2_OFF}")
    stamp("x2")
    flags_poll(V_FO, t + 8, 68, "px2")
    stamp("x2")
    Lh2 = a.label("nh2")
    c(f"s_cmp_lg_u32 s{s_wave}, 3",
      f"s_cbranch_scc1 {Lh2}",
      f"s_lshl_b32 s{t}, s{s_rb}, 7",
      f"s_lshl_b32 s{t+1}, s{s_g}, 3",
      f"s_add_u32 s{t}, s{t}, s{t+1}",
      f"s_add_u32 s{t}, s{t}, {F_H}",
      "s_mov_b64 exec, 1",
      f"buffer_store_dwordx2 {vr(V_EPV,2)}, v{V_Z}, {sr(SWS,4)}, s{t} offen sc1",
      "s_mov_b64 exec, -1",
      f"{Lh2}:")

    def x2dma(qi, i):
        return [f"s_add_u32 m0, s{s_xl+qi}, {L_X + i*4096}",
                f"s_add_u32 s{t}, s{s_xq+qi}, {i*32768}",
                ("vm", f"x2t{i}", f"buffer_load_dwordx4 v{V_XD}, {sr(SWS,4)}, s{t} offen sc1 lds")]
    PS = 184
    c(f"s_lshl_b32 s{t+1}, s{s_rb}, 12",
      f"s_lshl_b32 s{t+2}, s{s_wave}, 10",
      f"s_add_u32 s{t+1}, s{t+1}, s{t+2}",
      f"s_add_u32 s{t+1}, s{t+1}, {XS_OFF}",
      f"v_lshlrev_b32 v195, 6, v{V_LAM}",
      f"v_lshl_add_u32 v195, v{V_Q}, 4, v195")
    for qi in range(4):
        c(x2dma(qi, 1))
    c(("vm", "ps", f"buffer_load_dwordx4 {vr(PS,4)}, v195, {sr(SWS,4)}, s{t+1} offen sc1"))
    late = []
    for i in range(2, 5):
        for qi in range(4):
            late += x2dma(qi, i)
    c(late[:12])
    late = late[12:]
    V_HF = 190
    c(f"s_sub_u32 s{t+9}, s{s_rb}, 1",
      f"s_lshl_b32 s{t+9}, s{t+9}, 7",
      f"s_add_u32 s{t+9}, s{t+9}, {F_H}",
      f"v_and_b32 v192, 0x38, v{V_L8}")
    hld = f"buffer_load_dwordx2 {vr(V_HF,2)}, v192, {sr(SWS,4)}, s{t+9} offen sc1"
    stamp("x2")
    c(("wait", ["ps"]))
    stamp("x2")
    c(f"v_add_f32 v{SA}, v{PS}, v{PS+2}",
      f"v_add_f32 v{SA+1}, v{PS+1}, v{PS+3}")
    c(xq_reduce("v_add_f32", [SA, SA + 1], [104, 105]))
    c(stats_fin([(SA, SA + 1)], [104]))
    c(f"v_lshlrev_b32 v193, 3, v{V_LAM}",
      f"s_lshl_b32 s{t}, s{s_wave}, 7",
      f"s_add_u32 s{t}, s{t}, {L_ST + 128}",
      f"v_add_u32 v195, s{t}, v193",
      f"ds_write_b64 v195, {vr(SA,2)}",
      f"v_add_u32 v193, {L_ST}, v193",
      f"v_lshlrev_b32 v194, 5, v{V_Q}",
      f"v_add_u32 v194, {L_ST}, v194")
    V_S8, V_S32 = 193, 194

    def stat_reads(tl):
        return [f"ds_read_b64 {vr(STA+2*tl,2)}, v{V_S8} offset:{128*tl}",
                f"ds_read_b128 {vr(STB+8*tl,4)}, v{V_S32} offset:{128*tl}",
                f"ds_read_b128 {vr(STB+8*tl+4,4)}, v{V_S32} offset:{128*tl+16}"]

    XF3 = [168, 176]

    def tile_stream(tl):
        m = []
        def rd(e):
            return f"ds_read_b128 {vr(168+4*(e&3),4)}, v{VAE+e} offset:{4096*tl}"
        m += [rd(0), rd(1)]
        for e in range(16):
            if e % 2 == 0:
                if e + 2 < 16:
                    m += [rd(e + 2), rd(e + 3), "s_waitcnt lgkmcnt(2)"]
                else:
                    m.append("s_waitcnt lgkmcnt(0)")
            x = vr(168 + 4 * (e & 3), 4)
            wq, wk, wv = ar(12 * e, 4), ar(12 * e + 4, 4), ar(12 * e + 8, 4)
            for (acc, A_, B_, on) in ((AQ + 4 * tl, wq, x, tl > 0), (AK + 4 * tl, wk, x, True), (AV + 4 * tl, x, wv, True)):
                if on:
                    m.append(f"v_mfma_f32_16x16x32_bf16 {vr(acc,4)}, {A_}, {B_}, {vr(acc,4) if e else 0}")
        return m

    def R3(qt):
        return dict(SC=AQ + 4 * qt, SP=AK + 4 * qt, PP=AV + 4 * qt, LL=STB + 8 * qt, MX=STB + 8 * qt + 4, MT=STB + 8 * qt + 5, OO=108)

    PSH = 184
    s_hd = 21

    def halo_try(n, blocking):
        Lskip, Lgo = a.label("hskip"), a.label("hgo")
        c(f"s_cmp_lg_u32 s{s_hd}, 0", f"s_cbranch_scc1 {Lskip}")
        qs = list(c.q)
        c(f"s_cmp_eq_u32 s{s_b}, 0", f"s_cbranch_scc1 {Lgo}")
        c(("wait", [f"hf{n}"]))
        if not blocking:
            c(chk_ep([V_HF], PSH), "s_nop 4", f"s_cbranch_vccnz {Lskip}")
        else:
            poll(chk_ep([V_HF], PSH), [hld], "ph", 2)
        c(f"{Lgo}:")
        c(f"s_mov_b32 s{s_hd}, 1",
          f"v_lshrrev_b32 v{PSH}, 11, v{V_XD}",
          f"v_and_b32 v{PSH+1}, 0xff, v{V_XD}",
          f"v_lshl_add_u32 v{PSH}, v{PSH}, 10, v{PSH+1}",
          f"s_lshl_b32 s{t+2}, s{s_wave}, 10",
          f"s_lshl_b32 s{t}, s{s_rb}, 13",
          f"s_lshl_b32 s{t+1}, s{s_wave}, 12",
          f"s_add_u32 s{t}, s{t}, s{t+1}",
          f"s_add_u32 s{t}, s{t}, {HALO_OFF - 8192 - 8192}",
          f"s_cmp_lt_u32 s{s_wave}, 2",
          f"s_cselect_b32 s{t}, {OOB}, s{t}",
          f"s_cmp_eq_u32 s{s_b}, 0",
          f"s_cselect_b32 s{t}, {OOB}, s{t}")
        for qd in range(4):
            c(f"s_add_u32 m0, s{t+2}, {L_X + qd*XQ}",
              f"s_add_u32 s{t+1}, s{t}, {qd*256}",
              f"buffer_load_dwordx4 v{PSH}, {sr(SWS,4)}, s{t+1} offen sc1 lds")
        c(f"v_and_b32 v{PSH+1}, 7, v{V_LAM}",
          f"v_lshlrev_b32 v{PSH+1}, 6, v{PSH+1}",
          f"v_lshl_add_u32 v{PSH+1}, v{V_Q}, 4, v{PSH+1}",
          f"s_lshl_b32 s{t}, s{s_rb}, 9",
          f"s_add_u32 s{t}, s{t}, {HS_OFF - 512}",
          f"s_cmp_eq_u32 s{s_b}, 0",
          f"s_cselect_b32 s{t}, {OOB}, s{t}",
          "s_nop 1",
          f"buffer_load_dwordx4 {vr(PSH,4)}, v{PSH+1}, {sr(SWS,4)}, s{t} offen sc1",
          f"{Lskip}:")
        c.q = qs

    c(f"s_mov_b32 s{s_hd}, 0")
    stamp()
    order = [1, 2, 3, 4, 0]
    for n, tl in enumerate(order):
        side = []
        if n == 0:
            stamp("x2")
            c(("wait", ["x2t1"], 0), "s_barrier")
            stamp("x2")
            for t2 in range(1, 5):
                c(stat_reads(t2))
            side += late
            side.append(("vm", "hf1", hld))
        elif n == 1:
            c(("wait", ["x2t4"]), "s_barrier")
        elif n == 4:
            c(("drain",), "s_barrier")
        if n >= 1:
            side += [("gap", 8)] + normalize(order[n - 1], False, VP)
        if n >= 2:
            side += attn_tiles([order[n - 1]], VP, R3(order[n - 1]), False)
        if n == 4:
            HS2 = 188
            side += [f"v_add_f32 v{HS2}, v{PSH}, v{PSH+2}", f"v_add_f32 v{HS2+1}, v{PSH+1}, v{PSH+3}"]
            side += xq_reduce("v_add_f32", [HS2, HS2 + 1], [PSH, PSH + 1])
            side += stats_fin([(HS2, HS2 + 1)], [PSH])
            side += [f"v_and_b32 v{PSH}, 0x38, v{V_S8}", f"v_add_u32 v{PSH}, {(L_ST & ~0x3f) + 64}, v{PSH}"]
        stamp("p3")
        c.merge(tile_stream(tl), side)
        stamp("p3")
        if n >= 2:
            o_stores(O2_OFF, 108, [order[n - 1]])
        if n in (1, 2, 3):
            halo_try(n, n == 3)
            if n < 3:
                c(("vm", f"hf{n+1}", hld))
    c(f"ds_write_b64 v{PSH}, {vr(HS2,2)}", "s_waitcnt lgkmcnt(0)")
    c(stat_reads(0), "s_waitcnt lgkmcnt(0)")
    stamp("p3")
    c(normalize(0, True, VP))
    c(attn_tiles([1], VP, R3(1), True))
    o_stores(O2_OFF, 108, [1])
    stamp()
    stamp("p3")
    stamp("p4")
    c(("drain",))
    stamp("p4")
    wave_flag(F_O2)
    c(flags_load(F_O2, s_rb, V_FO, t + 8))
    pre, og = o_loads(O2_OFF)
    c(pre)
    flags_poll(V_FO, t + 8, 68, "po2")
    stamp("p4")
    for g_ in og[:OPRE]:
        c(g_)
    olate[0] = og[OPRE:]
    stamp("p4")
    wo_phase(1)
    if STAMP:
        c("s_waitcnt vmcnt(0) lgkmcnt(0)")
        stamp()
        c("s_memrealtime s[100:101]",
          f"s_mov_b32 s{SWS+2}, {16*MB}",
          f"s_lshl_b32 s{t}, s2, 8",
          f"s_lshl_b32 s{t+1}, s{s_wave}, 6",
          f"s_add_u32 s{t}, s{t}, s{t+1}",
          f"s_add_u32 s{t}, s{t}, {STAMP_OFF}",
          "s_waitcnt lgkmcnt(0)",
          "v_writelane_b32 v255, s100, 1",
          f"v_lshlrev_b32 v64, 2, v{V_LANE}",
          "s_mov_b64 exec, 0xffff",
          f"buffer_store_dword v255, v64, {sr(SWS,4)}, s{t} offen")
    a(f"{L_end}:")
    a("s_endpgm")
    a(f".set CODE_LIMIT, {L_end} - {label}")


def main(out_path):
    a = Asm()
    label = NAME + "_kernel"
    a('.amdgcn_target "amdgcn-amd-amdhsa--gfx950"')
    a(".text")
    gen(a, label)
    desc = f""".section .rodata,"a"
.p2align 6
.amdhsa_kernel {label}
  .amdhsa_next_free_vgpr 512
  .amdhsa_next_free_sgpr 102
  .amdhsa_accum_offset 256
  .amdhsa_group_segment_fixed_size 0
  .amdhsa_kernarg_size 96
  .amdhsa_user_sgpr_count 2
  .amdhsa_user_sgpr_kernarg_segment_ptr 1
  .amdhsa_system_sgpr_workgroup_id_x 1
.end_amdhsa_kernel
"""
    hdr = f"; @launch grid=(256,1,1) block=(256,1,1) lds={LDS_SIZE}\n"
    open(out_path, "w").write(hdr + a.text() + desc)


if __name__ == "__main__":
    if len(sys.argv) > 2:
        STAMP = True
    main(sys.argv[1])
```

```python
import sys
from gen import Asm, vr, sr, srd, kernel_header, NAME, NEG, MB

KB = 1024
O1_OFF = 0
O2_OFF = 2 * MB
X2_OFF = 4 * MB
U_OFF = 6 * MB
Y_OFF = 8 * MB
ST1_OFF = 10 * MB
ST2_OFF = ST1_OFF + 256 * KB
XS_OFF = ST2_OFF + 256 * KB
HALO_OFF = XS_OFF + 128 * KB
HS_OFF = HALO_OFF + 256 * KB
FL_OFF = HS_OFF + 16 * KB
F_HELLO = FL_OFF
F_T = F_HELLO + 4 * KB
F_Y = F_T + 2 * KB
F_O1 = F_Y + 8 * KB
F_X2 = F_O1 + 8 * KB
F_O2 = F_X2 + 8 * KB
F_H = F_O2 + 8 * KB
WS_SIZE = 11 * MB
assert F_H + 4 * KB <= WS_SIZE
STAMP_OFF = 12 * MB

L_X = 0
XQ = 20480
L_R = 81920
NS = 5
L_M = 147456
L_TB = L_M
L_ST = L_M + 8192
LDS_SIZE = 163840
C_U = 0
C_K = 4608
C_KS = 4160
C_CH = 4608 + 4 * 4160
C_RED = 2 * C_CH
C_TR = C_RED + 16384
assert C_TR + 8192 <= 81920
P2_YT = L_TB

SPIN_MAX = 40000
STAMP = False
import os
EXP = os.environ.get("EXP", "")
FINE = os.environ.get("FINE", "")
OOB = 0x7ff00000
PFS = int(os.environ.get("PFS", "11"))
OPRE = int(os.environ.get("OPRE", "6"))
DSW = float(os.environ.get("DSW", "0.5"))


def ar(a_, n=1):
    return f"a{a_}" if n == 1 else f"a[{a_}:{a_+n-1}]"


class Ctx:
    def __init__(self, a):
        self.a = a
        self.q = []
        self.count = 0

    def raw(self, s):
        for l in s.split("\n"):
            if l.strip():
                self.a(l)
                self.count += 1

    def vwait_n(self, tags):
        idx = -1
        for i, t in enumerate(self.q):
            if t in tags:
                idx = i
        if idx < 0:
            return None
        n = len(self.q) - 1 - idx
        assert n <= 63
        self.q = self.q[idx + 1:]
        return n

    def item(self, it):
        if isinstance(it, str):
            self.raw(it)
        elif it[0] == "vm":
            self.raw(it[2])
            self.q.append(it[1])
        elif it[0] == "wait":
            n = self.vwait_n(it[1])
            lg = it[2] if len(it) > 2 else None
            parts = []
            if n is not None:
                parts.append(f"vmcnt({n})")
            if lg is not None:
                parts.append(f"lgkmcnt({lg})")
            if parts:
                self.raw("s_waitcnt " + " ".join(parts))
        elif it[0] == "drain":
            self.raw("s_waitcnt vmcnt(0)")
            self.q = []
        elif it[0] == "gap":
            self.raw(f"s_nop {it[1]-1}")
        else:
            raise ValueError(it)

    def __call__(self, *its):
        for it in its:
            if isinstance(it, list):
                for x in it:
                    self.item(x)
            else:
                self.item(it)

    def merge(self, main, side, k=2):
        side = list(side)
        si = 0
        dist = 0

        def is_gap(x):
            return isinstance(x, tuple) and x[0] == "gap"

        for m in main:
            self.item(m)
            mf = isinstance(m, str) and m.startswith("v_mfma")
            dist += 3 if mf else 1
            if not mf:
                continue
            quota = k
            while quota > 0 and si < len(side):
                it = side[si]
                if is_gap(it):
                    if dist >= it[1]:
                        si += 1
                        continue
                    break
                self.item(it)
                dist = 0
                si += 1
                if isinstance(it, tuple) and it[0] == "vm":
                    quota -= 2
                elif isinstance(it, str) and it.startswith("ds_"):
                    quota -= DSW
                elif not (isinstance(it, str) and it.startswith("s_")):
                    quota -= 1
        while si < len(side):
            it = side[si]
            if is_gap(it):
                if it[1] - dist > 0:
                    self.raw(f"s_nop {it[1]-dist-1}")
            else:
                self.item(it)
                dist = 0
            si += 1


def _merge2(self, main, must, opt, flush=False):
    must = list(must)
    mi = 0
    si = 0
    dist = getattr(self, "_dist", 100)

    def is_gap(x):
        return isinstance(x, tuple) and x[0] == "gap"
    for m in main:
        self.item(m)
        dist += 3
        if mi < len(must):
            self.item(must[mi])
            mi += 1
            dist += 1
        quota = 2
        while quota > 0 and si < len(opt):
            it = opt[si]
            if is_gap(it):
                if dist >= it[1]:
                    si += 1
                    continue
                break
            if callable(it):
                it()
                quota -= 2
            else:
                self.item(it)
                if isinstance(it, str) and it.startswith("v_mfma"):
                    quota -= 2
                elif not (isinstance(it, str) and it.startswith("s_")):
                    quota -= 1
            dist = 0
            si += 1
    for x in must[mi:]:
        self.item(x)
    rest = opt[si:]
    if flush:
        for it in rest:
            if is_gap(it):
                if it[1] - dist > 0:
                    self.raw(f"s_nop {it[1]-dist-1}")
            elif callable(it):
                it()
                dist = 0
            else:
                self.item(it)
                dist = 0
        rest = []
    self._dist = dist
    return rest


Ctx.merge2 = _merge2


def xq_reduce(op, vs, ts, steps=("v_permlane16_swap_b32", "v_permlane32_swap_b32")):
    l = []
    n = len(vs)
    for sw in steps:
        for v, t in zip(vs, ts):
            l.append(f"v_mov_b32 v{t}, v{v}")
        l.append(("gap", 2 if n < 2 else 1))
        for v, t in zip(vs, ts):
            l.append(f"{sw} v{v}, v{t}")
        l.append(("gap", 2 if n < 2 else 1))
        for v, t in zip(vs, ts):
            l.append(f"{op} v{v}, v{v}, v{t}")
    return l


def stats_fin(pairs, tmps):
    l = []
    def each(f):
        for (s, q), t in zip(pairs, tmps):
            l.append(f(s, q, t))
    each(lambda s, q, t: f"v_mul_f32 v{s}, 0x3b000000, v{s}")
    each(lambda s, q, t: f"v_mul_f32 v{q}, 0x3b000000, v{q}")
    each(lambda s, q, t: f"v_fma_f32 v{q}, -v{s}, v{s}, v{q}")
    each(lambda s, q, t: f"v_max_f32 v{q}, 0, v{q}")
    each(lambda s, q, t: f"v_cvt_pk_bf16_f32 v{t}, v{s}, v{q}")
    each(lambda s, q, t: f"v_lshlrev_b32 v{s}, 16, v{t}")
    each(lambda s, q, t: f"v_and_b32 v{q}, 0xffff0000, v{t}")
    each(lambda s, q, t: f"v_add_f32 v{q}, 0x3727c5ac, v{q}")
    each(lambda s, q, t: f"v_cvt_pk_bf16_f32 v{q}, v{q}, v{q}")
    each(lambda s, q, t: f"v_lshlrev_b32 v{q}, 16, v{q}")
    each(lambda s, q, t: f"v_sqrt_f32 v{q}, v{q}")
    l.append(("gap", 1))
    each(lambda s, q, t: f"v_cvt_pk_bf16_f32 v{q}, v{q}, v{q}")
    each(lambda s, q, t: f"v_lshlrev_b32 v{q}, 16, v{q}")
    each(lambda s, q, t: f"v_rcp_f32 v{q}, v{q}")
    l.append(("gap", 1))
    return l


def gen(a, label):
    kernel_header(a, label)
    c = Ctx(a)
    L_end = a.label("end")
    SX, SW, SWS, SK, SV, SSK, SWO, SKK, SOUT, SDBG = 4, 8, 12, 16, 20, 24, 28, 32, 36, 40
    s_wave, s_rb, s_g, s_p, s_b, s_rot = 44, 45, 46, 47, 48, 49
    s_ep = 50
    s_loc, s_xcc, s_D, s_wm0, s_rowbase, s_c, s_cl, s_half, s_ch, s_spin = 52, 53, 54, 55, 56, 57, 58, 59, 60, 61
    s_xq, s_xl, s_wq = 62, 66, 70
    t = 74
    s_x0m = 16
    s_flag = 18
    s_stile = 19
    nst = [0]

    def stamp(tag=""):
        if STAMP and FINE != "none" and (tag == FINE or (tag == "" and (not FINE or nst[0] == 0))):
            i = nst[0]
            assert i < 14, i
            c("s_memtime s[100:101]", "s_waitcnt lgkmcnt(0)", f"v_writelane_b32 v255, s100, {i+2}")
            nst[0] += 1

    V_LANE, V_LAM, V_Q, V_L16, V_XD, V_WD, V_BB, V_ROW, V_Z = 1, 2, 3, 4, 5, 6, 7, 8, 9
    VAE = 10
    CSQ, CSK, CSV = 26, 30, 34
    V_L8 = 35
    V_EPV = 36
    BC, BP, BP1, MC, MP, ONES = 38, 42, 46, 50, 52, 54
    V_WO = 58
    V_T0 = 62

    c("s_cmp_ge_u32 s2, 256", f"s_cbranch_scc1 {L_end}")
    if "dbgt" in EXP:
        c("s_memrealtime s[100:101]")
    if STAMP:
        c("s_memrealtime s[100:101]", "v_mov_b32 v255, 0", "s_waitcnt lgkmcnt(0)", "v_writelane_b32 v255, s100, 0")
    stamp()
    c("s_load_dwordx4 s[88:91], s[0:1], 0",
      "s_load_dwordx2 s[92:93], s[0:1], 16",
      "s_load_dwordx4 s[96:99], s[0:1], 32",
      "s_load_dwordx2 s[94:95], s[0:1], 88")
    c(f"v_and_b32 v{V_LANE}, 63, v0",
      "v_lshrrev_b32 v62, 6, v0",
      f"v_and_b32 v{V_LAM}, 15, v{V_LANE}",
      f"v_readfirstlane_b32 s{s_wave}, v62",
      f"v_lshrrev_b32 v{V_Q}, 4, v{V_LANE}",
      f"v_lshlrev_b32 v{V_L16}, 4, v{V_LANE}",
      f"v_mov_b32 v{V_Z}, 0",
      f"s_and_b32 s{s_rb}, s2, 7",
      f"s_lshl_b32 s{s_rb}, s{s_rb}, 2",
      f"s_lshr_b32 s{s_rot}, s2, 6",
      f"s_add_u32 s{s_rb}, s{s_rb}, s{s_rot}",
      f"s_lshr_b32 s{s_g}, s2, 3",
      f"s_and_b32 s{s_g}, s{s_g}, 7",
      f"s_lshr_b32 s{s_p}, s{s_rb}, 4",
      f"s_and_b32 s{s_b}, s{s_rb}, 15")
    if "nopf" not in EXP:
        Lpf = a.label("nopf")
        c(f"s_and_b32 s{t}, s2, 0x78",
          f"s_cmp_lg_u32 s{t}, 0",
          f"s_cbranch_scc1 {Lpf}",
          f"s_getpc_b64 s[{t+2}:{t+3}]",
          f"s_and_b32 s{t+2}, s{t+2}, 0xffffff00",
          f"v_lshlrev_b32 v62, 7, v0",
          f"v_min_u32 v62, CODE_LIMIT, v62",
          f"global_load_dword v253, v62, s[{t+2}:{t+3}]",
          f"{Lpf}:")
    c(f"s_lshl_b32 s{t}, s{s_wave}, 2",
      f"v_add_u32 v62, s{t}, v{V_Q}",
      f"v_xor_b32 v62, v62, v{V_LAM}",
      "v_lshlrev_b32 v62, 4, v62",
      f"v_lshl_add_u32 v{V_XD}, v{V_Q}, 11, v62")
    c(f"v_lshrrev_b32 v62, 3, v{V_LANE}",
      f"s_lshl_b32 s{t}, s{s_wave}, 3",
      f"v_add_u32 v62, s{t}, v62",
      "v_bfe_u32 v63, v62, 3, 1",
      "v_lshlrev_b32 v63, 1, v63",
      "v_bfe_u32 v64, v62, 1, 1",
      "v_or_b32 v63, v63, v64",
      f"v_bfe_u32 v64, v{V_LANE}, 1, 2",
      "v_xor_b32 v63, v63, v64",
      "v_lshlrev_b32 v63, 5, v63",
      f"v_and_b32 v64, 1, v{V_LANE}",
      "v_lshl_add_u32 v63, v64, 4, v63",
      f"v_mul_u32_u24 v{V_WD}, 3072, v62",
      f"v_add_u32 v{V_WD}, v{V_WD}, v63")
    c(f"s_lshl_b32 s{s_rowbase}, s{s_b}, 17",
      f"s_lshl_b32 s{t}, s{s_p}, 10",
      f"s_add_u32 s{s_rowbase}, s{s_rowbase}, s{t}",
      f"s_mul_i32 s{s_wm0}, s{s_wave}, 3072",
      f"s_add_u32 s{s_wm0}, s{s_wm0}, {L_R}")
    c(f"s_lshl_b32 s{t+1}, s{s_wave}, 13",
      f"s_add_u32 s{t+1}, s{t+1}, s{s_rowbase}",
      f"s_sub_u32 s{t+1}, s{t+1}, 32768",
      f"s_lshl_b32 s{t+2}, s{s_wave}, 10",
      f"s_lshl_b32 s{t+3}, s{s_g}, 7")
    for qi in range(4):
        c(f"s_add_u32 s{t}, s{s_rot}, {qi}",
          f"s_and_b32 s{t}, s{t}, 3",
          f"s_lshl_b32 s{s_xq+qi}, s{t}, 8",
          f"s_add_u32 s{s_xq+qi}, s{s_xq+qi}, s{t+1}",
          f"s_mul_i32 s{s_xl+qi}, s{t}, {XQ}",
          f"s_add_u32 s{s_xl+qi}, s{s_xl+qi}, s{t+2}",
          f"s_mul_i32 s{s_wq+qi}, s{t}, {4*98304}",
          f"s_add_u32 s{s_wq+qi}, s{s_wq+qi}, s{t+3}")
    s_wo = 82
    for e4 in range(4):
        c(f"s_add_u32 s{t}, s2, {e4}",
          f"s_and_b32 s{t}, s{t}, 3",
          f"s_mul_i32 s{s_wo+e4}, s{t}, 98304")
    c(f"s_cmp_eq_u32 s{s_wave}, 0",
      "s_cselect_b32 s86, 0xffff0000, -1",
      "s_mov_b32 s87, -1")
    stamp("p1")
    c("s_waitcnt lgkmcnt(0)")
    stamp("p1")
    srd(a, SX, 88, 89, 2 * MB)
    srd(a, SW, 90, 91, 512 * 1536 * 2)

    def xdma(qi, i):
        l = [f"s_add_u32 m0, s{s_xl+qi}, {L_X + i*4096}"]
        if i == 0:
            l += [f"s_cmp_lt_u32 s{s_wave}, 2",
                  f"s_cselect_b32 s{t}, {OOB}, s{s_xq+qi}",
                  ("vm", f"x{qi}", f"s_mov_b64 exec, s[86:87]\nbuffer_load_dwordx4 v{V_XD}, {sr(SX,4)}, s{t} offen lds\ns_mov_b64 exec, -1")]
        else:
            l += [f"s_add_u32 s{t}, s{s_xq+qi}, {i*32768}",
                  ("vm", f"x{qi}", f"buffer_load_dwordx4 v{V_XD}, {sr(SX,4)}, s{t} offen lds")]
        return l

    def wdma(ch):
        l = [f"s_add_u32 m0, s{s_wm0}, {(ch % NS)*12288}",
             f"s_add_u32 s{t}, s{s_wq+(ch>>2)}, s{s_wo+(ch&3)}"]
        for s in range(3):
            l.append(("vm", f"w{ch}", f"buffer_load_dwordx4 v{V_WD}, {sr(SW,4)}, s{t} offen offset:{1024*s} lds"))
        return l

    for i in range(5):
        c(xdma(0, i))
    c(wdma(0))
    srd(a, SWS, 94, 95, WS_SIZE)
    srd(a, SK, 96, 97, 2 * MB)
    srd(a, SV, 98, 99, 2 * MB)
    srd(a, SWO, 92, 93, 512 * 512 * 2)
    c("s_load_dwordx4 s[88:91], s[0:1], 48",
      "s_load_dwordx4 s[92:95], s[0:1], 64",
      "s_load_dwordx2 s[96:97], s[0:1], 80")
    TK, TV, TS = 184, 204, 212
    KF, SF, VF, OF = 228, 238, 246, 250
    UP = 112
    c(f"s_lshr_b32 s{t}, s2, 3",
      f"s_lshl_b32 s{t}, s{t}, 16",
      f"s_and_b32 s{t+1}, s2, 7",
      f"s_lshl_b32 s{t+2}, s{t+1}, 7",
      f"s_add_u32 s{t}, s{t}, s{t+2}",
      "v_and_b32 v64, 7, v0",
      "v_lshrrev_b32 v65, 3, v0",
      "v_lshlrev_b32 v66, 11, v65",
      "v_lshl_add_u32 v66, v64, 4, v66",
      f"v_add_u32 v66, s{t}, v66",
      "v_add_u32 v67, 0xfffff400, v66",
      "v_add_u32 v68, 0xfffff800, v66",
      "v_add_u32 v69, 0xfffffc00, v66")
    for ins in (f"buffer_load_dwordx4 {vr(TK,4)}, v67, {sr(SK,4)}, 0 offen",
                f"buffer_load_dwordx4 {vr(TK+4,4)}, v68, {sr(SK,4)}, 0 offen",
                f"buffer_load_dwordx4 {vr(TK+8,4)}, v69, {sr(SK,4)}, 0 offen",
                f"buffer_load_dwordx4 {vr(TK+12,4)}, v66, {sr(SK,4)}, 0 offen",
                f"buffer_load_dwordx4 {vr(TK+16,4)}, v66, {sr(SK,4)}, 0 offen offset:1024",
                f"buffer_load_dwordx4 {vr(TV,4)}, v66, {sr(SV,4)}, 0 offen",
                f"buffer_load_dwordx4 {vr(TV+4,4)}, v66, {sr(SV,4)}, 0 offen offset:1024"):
        if "notl" not in EXP:
            c(("vm", "T", ins))
    c("s_waitcnt lgkmcnt(0)")
    srd(a, SSK, 88, 89, 4096)
    srd(a, SKK, 90, 91, 2 * MB)
    srd(a, SOUT, 94, 95, 2 * MB)
    srd(a, SDBG, 96, 97, 256)
    c(f"s_lshl_b32 s{t+3}, s2, 2",
      f"s_load_dword s{s_D}, s[92:93], s{t+3}",
      f"s_getreg_b32 s{s_xcc}, hwreg(HW_REG_XCC_ID)",
      f"s_and_b32 s{s_xcc}, s{s_xcc}, 15",
      f"s_lshl_b32 s{t+2}, s{t+1}, 9",
      "v_lshlrev_b32 v67, 6, v64")
    for d in range(4):
        c(("vm", "T", f"buffer_load_dwordx4 {vr(TS+4*d,4)}, v67, {sr(SSK,4)}, s{t+2} offen offset:{16*d}"))
    Lq = a.label("noep")
    c(f"s_or_b32 s{t}, s2, s{s_wave}",
      f"s_cmp_lg_u32 s{t}, 0",
      f"s_cbranch_scc1 {Lq}",
      f"s_memrealtime s[{t+4}:{t+5}]",
      "s_waitcnt lgkmcnt(0)",
      f"s_or_b32 s{t+4}, s{t+4}, 1",
      f"v_mov_b32 v70, s{t+4}",
      f"v_mov_b32 v71, s{t+5}",
      "s_mov_b64 exec, 1",
      f"buffer_store_dwordx2 v[70:71], v{V_Z}, {sr(SDBG,4)}, 0 offen sc1",
      "s_mov_b64 exec, -1",
      f"{Lq}:")
    c(wdma(1))
    k = []
    k += [f"v_bfe_u32 v70, v{V_LANE}, 2, 2",
          f"v_and_b32 v71, 1, v{V_Q}",
          "v_lshlrev_b32 v71, 1, v71",
          "v_lshrrev_b32 v72, 1, v70",
          "v_or_b32 v71, v71, v72",
          f"v_xor_b32 v72, s{s_wave}, v71",
          "v_lshlrev_b32 v72, 5, v72",
          "v_lshl_add_u32 v72, v70, 7, v72",
          f"v_and_b32 v73, 3, v{V_LANE}",
          "v_lshl_add_u32 v72, v73, 3, v72",
          f"v_mul_u32_u24 v74, 3072, v{V_Q}",
          "v_add_u32 v72, v72, v74",
          f"v_add_u32 v{V_BB}, {L_R}, v72",
          f"v_lshl_add_u32 v72, v{V_Q}, 3, v70",
          "v_lshlrev_b32 v72, 7, v72",
          "v_lshl_add_u32 v72, v73, 3, v72",
          f"v_add_u32 v72, {L_R}, v72"]
    for nt in range(4):
        k += [f"v_xor_b32 v74, {nt}, v71", f"v_lshl_add_u32 v{V_WO+nt}, v74, 5, v72"]
    k += [f"s_lshl_b32 s{t+2}, s{s_wave}, 10"]
    for e4 in range(4):
        k += [f"s_add_u32 s{t+3}, s2, {e4}",
              f"s_and_b32 s{t+3}, s{t+3}, 3",
              f"s_lshl_b32 s{t+3}, s{t+3}, 2",
              f"v_add_u32 v70, s{t+3}, v{V_Q}",
              f"v_xor_b32 v70, v70, v{V_LAM}",
              "v_lshlrev_b32 v70, 4, v70",
              f"v_lshl_add_u32 v70, v{V_LAM}, 8, v70",
              f"v_subrev_u32 v70, s{t+2}, v70"]
        for qi in range(4):
            k.append(f"v_add_u32 v{VAE+4*qi+e4}, s{s_xl+qi}, v70")
    k += [f"v_lshlrev_b32 v{V_ROW}, 11, v{V_LAM}",
          f"v_lshl_add_u32 v{V_ROW}, v{V_Q}, 3, v{V_ROW}",
          f"v_lshlrev_b32 v{V_L8}, 3, v{V_LANE}",
          f"v_lshlrev_b32 v70, 2, v{V_Q}",
          f"v_mov_b32 v72, {NEG}",
          f"s_cmp_eq_u32 s{s_b}, 0",
          f"s_cselect_b32 s{t+2}, -1, 0",
          f"s_mov_b32 s{t+3}, s{t+2}"]
    for r in range(4):
        k += [f"v_add_u32 v71, {r}, v70",
              f"v_sub_u32 v71, v{V_LAM}, v71",
              "v_cmp_gt_u32 vcc, 8, v71",
              "v_add_u32 v71, 16, v71",
              f"v_cmp_gt_u32 {sr(t+4,2)}, 8, v71",
              f"v_cndmask_b32 v{BC+r}, v72, 0, vcc",
              f"v_cndmask_b32 v{74+r}, 0, -1, vcc",
              f"v_cndmask_b32 v{BP+r}, v72, 0, {sr(t+4,2)}",
              f"v_cndmask_b32 v{78+r}, 0, -1, {sr(t+4,2)}",
              f"v_cndmask_b32 v{BP1+r}, v{BP+r}, v72, {sr(t+2,2)}"]
    k.append(f"s_mov_b32 s{t+4}, 0xffff")
    for h in range(2):
        k += [f"v_bfi_b32 v{MC+h}, s{t+4}, v{74+2*h}, v{75+2*h}",
              f"v_bfi_b32 v{MP+h}, s{t+4}, v{78+2*h}, v{79+2*h}"]
    for r in range(4):
        k.append(f"v_mov_b32 v{ONES+r}, 0x3f803f80")
    k += [f"v_mul_u32_u24 v70, {XQ}, v{V_Q}",
          f"v_lshl_add_u32 v70, v{V_LAM}, 4, v70",
          f"ds_write_b128 v70, {vr(ONES,4)} offset:{L_X}"]
    k += [f"s_add_u32 s{s_stile}, s{s_wave}, 1",
          f"s_lshl_b32 s{s_stile}, s{s_stile}, 12",
          f"s_lshl_b32 s{s_flag}, s{s_rb}, 8",
          f"s_lshl_b32 s{t+2}, s{s_g}, 5",
          f"s_add_u32 s{s_flag}, s{s_flag}, s{t+2}",
          f"s_lshl_b32 s{t+2}, s{s_wave}, 3",
          f"s_add_u32 s{s_flag}, s{s_flag}, s{t+2}",
          f"s_lshr_b32 s{s_ch}, s{s_wave}, 1",
          f"s_and_b32 s{s_half}, s{s_wave}, 1",
          f"s_lshl_b32 s{s_c}, s2, 1",
          f"s_add_u32 s{s_c}, s{s_c}, s{s_ch}",
          f"s_lshl_b32 s{s_c}, s{s_c}, 12",
          f"s_mul_i32 s{s_cl}, s{s_ch}, {C_CH}"]
    c(k)
    c(wdma(2))
    stamp("p1")
    c(("wait", ["T"]))
    stamp("p1")
    tc = []
    for d in range(4):
        for r in range(5):
            tc.append(f"v_lshlrev_b32 v{KF+2*r}, 16, v{TK+4*r+d}")
            tc.append(f"v_and_b32 v{KF+2*r+1}, 0xffff0000, v{TK+4*r+d}")
        for j in range(4):
            for cc in range(2):
                src = TS + 4 * d + 2 * cc + (j >> 1)
                tc.append(f"v_and_b32 v{SF+2*j+cc}, 0xffff0000, v{src}" if j & 1 else f"v_lshlrev_b32 v{SF+2*j+cc}, 16, v{src}")
        for tt in range(2):
            tc.append(f"v_lshlrev_b32 v{VF+2*tt}, 16, v{TV+4*tt+d}")
            tc.append(f"v_and_b32 v{VF+2*tt+1}, 0xffff0000, v{TV+4*tt+d}")
        for tt in range(2):
            o = OF + 2 * tt
            tc.append(f"v_pk_mul_f32 {vr(o,2)}, {vr(KF+2*(tt+0),2)}, {vr(SF+6,2)}")
            for j in (2, 1, 0):
                tc.append(f"v_pk_fma_f32 {vr(o,2)}, {vr(KF+2*(3+tt-j),2)}, {vr(SF+2*j,2)}, {vr(o,2)}")
            tc.append(f"v_pk_mul_f32 {vr(o,2)}, {vr(o,2)}, {vr(VF+2*tt,2)}")
        tc.append(f"v_cvt_pk_bf16_f32 v{UP+2*d}, v{OF+2}, v{OF}")
        tc.append(f"v_cvt_pk_bf16_f32 v{UP+2*d+1}, v{OF+3}, v{OF+1}")
    groups = [xdma(1, i) for i in range(5)] + [wdma(3), wdma(4)]
    per = len(tc) // (len(groups) + 1)
    for i, l in enumerate(tc):
        if "notc" not in EXP:
            c(l)
        if (i + 1) % per == 0 and groups:
            c(groups.pop(0))
    assert not groups
    c("v_sub_u32 v67, 31, v65",
      "v_lshrrev_b32 v68, 2, v67",
      "v_xor_b32 v68, v68, v64",
      "v_lshlrev_b32 v68, 4, v68",
      "v_and_b32 v67, 3, v67",
      "v_lshl_add_u32 v68, v67, 2, v68",
      "v_lshl_add_u32 v68, v64, 10, v68",
      f"v_add_u32 v68, {L_TB}, v68")
    for i in range(8):
        c(f"ds_write_b32 v68, v{UP+i} offset:{128*i}")
    c("v_lshrrev_b32 v67, 3, v0",
      "v_lshrrev_b32 v68, 3, v67",
      "v_xor_b32 v68, v68, v64",
      "v_lshlrev_b32 v68, 4, v68",
      "v_lshl_add_u32 v68, v67, 7, v68",
      f"v_add_u32 v68, {L_TB}, v68",
      "v_xor_b32 v69, 64, v68",
      f"s_and_b32 s{t}, s2, 7",
      f"s_lshl_b32 s{t}, s{t}, 18",
      f"s_lshr_b32 s{t+1}, s2, 3",
      f"s_lshl_b32 s{t+1}, s{t+1}, 7",
      f"s_sub_u32 s{t}, s{t}, s{t+1}",
      f"s_add_u32 s{t}, s{t}, {U_OFF + 3968}",
      f"s_add_u32 s{t+1}, s{t}, {32*4096}",
      "v_lshlrev_b32 v67, 12, v67",
      "v_lshl_add_u32 v67, v64, 4, v67",
      "s_nop 0")
    stamp("p1")
    c(("wait", ["x0", "w0"], 0),
      "s_barrier",
      f"ds_read_b128 {vr(UP,4)}, v68",
      f"ds_read_b128 {vr(UP+4,4)}, v69 offset:4096")

    XS = [64 + 8, 96]
    XS = [184, 208]
    ACC = 108
    AQ, AK, AV = ACC, ACC + 20, ACC + 40
    SA = 168
    V_SB = 172
    V_EP = 174
    SU = 232

    def p1_reads(P, e):
        l = []
        slot = (e % NS) * 12288
        l.append(f"v_add_u32 v{V_SB}, s{s_stile}, v{VAE+e}")
        for s in range(3):
            for ss in range(2):
                l.append(f"ds_read_b64_tr_b16 {ar(12*e+4*s+2*ss,2)}, v{V_BB} offset:{slot+1024*s+512*ss}")
        for tl in range(5):
            l.append(f"ds_read_b128 {vr(XS[P]+4*tl,4)}, v{VAE+e} offset:{4096*tl}")
        l.append(f"ds_read_b128 {vr(XS[P]+20,4)}, v{V_SB}")
        return l

    c(p1_reads(0, 0))
    c(f"v_mov_b32 v{SA}, 0", f"v_mov_b32 v{SA+1}, 0", "s_waitcnt lgkmcnt(12)")
    c(("vm", "Tst", f"buffer_store_dwordx4 {vr(UP,4)}, v67, {sr(SWS,4)}, s{t} offen sc1"),
      ("vm", "Tst", f"buffer_store_dwordx4 {vr(UP+4,4)}, v67, {sr(SWS,4)}, s{t+1} offen sc1"))
    stamp()
    V_WOD = 176
    wod = [f"v_lshrrev_b32 v{V_T0}, 3, v{V_LANE}",
           f"v_bfe_u32 v{V_T0+1}, v{V_T0}, 1, 1",
           f"s_lshl_b32 s{t+5}, s{s_half}, 1",
           f"v_or_b32 v{V_T0+1}, s{t+5}, v{V_T0+1}",
           f"v_bfe_u32 v{V_WOD}, v{V_LANE}, 1, 2",
           f"v_xor_b32 v{V_T0+1}, v{V_T0+1}, v{V_WOD}",
           f"v_lshlrev_b32 v{V_T0+1}, 5, v{V_T0+1}",
           f"v_and_b32 v{V_WOD}, 1, v{V_LANE}",
           f"v_lshl_add_u32 v{V_T0+1}, v{V_WOD}, 4, v{V_T0+1}",
           f"v_lshl_add_u32 v{V_WOD}, v{V_T0}, 10, v{V_T0+1}",
           f"s_lshl_b32 s{t+6}, s{s_g}, 7",
           f"s_lshl_b32 s{t+5}, s{s_wave}, 13",
           f"s_add_u32 s{t+6}, s{t+6}, s{t+5}",
           f"s_lshl_b32 s{t+7}, s{s_wave}, 10"]

    def wodma(n):
        return [f"s_add_u32 m0, s{t+7}, {L_R + n*4096}",
                f"s_add_u32 s{t}, s{t+6}, {n*32768}",
                ("vm", "wo", f"buffer_load_dwordx4 v{V_WOD}, {sr(SWO,4)}, s{t} offen lds")]

    xsched = {0: [(2, 0), (2, 1)], 1: [(2, 2), (2, 3), (2, 4)], 2: [(3, 0), (3, 1)], 3: [(3, 2), (3, 3), (3, 4)]}
    V_HL, V_FT = 178, 182
    for e in range(16):
        P = e & 1
        need = []
        if e < 15:
            need = [f"w{e+1}"]
            if (e + 1) % 4 == 0:
                need.append(f"x{(e+1)//4}")
            if e == 4:
                need += ["Tst", "ep"]
        c(("wait", need, 0))
        if "nobar" not in EXP:
            c("s_barrier")
        sx = XS[P] + 20
        st_ops = []
        if "plain" not in EXP:
            for i in range(4):
                c(f"v_dot2_f32_bf16 v{SA}, v{sx+i}, v{ONES}, v{SA}",
                  f"v_dot2_f32_bf16 v{SA+1}, v{sx+i}, v{sx+i}, v{SA+1}")
        else:
            for i in range(4):
                st_ops += [f"v_lshlrev_b32 v{SU}, 16, v{sx+i}",
                           f"v_and_b32 v{SU+1}, 0xffff0000, v{sx+i}",
                           f"v_add_f32 v{SA}, v{SA}, v{SU}",
                           f"v_fmac_f32 v{SA+1}, v{SU}, v{SU}",
                           f"v_add_f32 v{SA}, v{SA}, v{SU+1}",
                           f"v_fmac_f32 v{SA+1}, v{SU+1}, v{SU+1}"]
        if e in (0, 2, 4, 6, 8, 10, 12, 14):
            stamp("p1")
        other = []
        if e < 15:
            other += p1_reads(1 - P, e + 1)
        if e == 0:
            other.append(("vm", "ep", f"buffer_load_dwordx2 {vr(V_EP,2)}, v{V_Z}, {sr(SDBG,4)}, 0 offen sc1"))
        if e + NS < 16:
            other += wdma(e + NS)
        for (qi, i) in xsched.get(e, []):
            other += xdma(qi, i)
        if e == 15:
            other += [f"s_lshl_b32 s{t+8}, s{s_rb}, 7",
                      f"s_add_u32 s{t+8}, s{t+8}, {F_HELLO}",
                      f"v_and_b32 v{V_T0}, 0x70, v{V_L16}",
                      ("vm", "hl", f"buffer_load_dwordx4 {vr(V_HL,4)}, v{V_T0}, {sr(SWS,4)}, s{t+8} offen sc1"),
                      f"s_lshr_b32 s{t+9}, s2, 5",
                      f"s_lshl_b32 s{t+9}, s{t+9}, 8",
                      f"s_add_u32 s{t+9}, s{t+9}, {F_T}",
                      f"v_and_b32 v{V_T0+1}, 0xf8, v{V_L8}",
                      ("vm", "hl", f"buffer_load_dwordx2 {vr(V_FT,2)}, v{V_T0+1}, {sr(SWS,4)}, s{t+9} offen sc1")]
        if e == 7 and "nopf2" not in EXP:
            other += [f"s_lshl_b32 s{t}, s2, 13",
                      f"s_lshl_b32 s{t+1}, s{s_wave}, 11",
                      f"s_add_u32 s{t}, s{t}, s{t+1}",
                      ("vm", "pf", f"buffer_load_dwordx4 v[240:243], v{V_L16}, {sr(SKK,4)}, s{t} offen"),
                      ("vm", "pf", f"buffer_load_dwordx4 v[240:243], v{V_L16}, {sr(SKK,4)}, s{t} offen offset:1024"),
                      f"v_lshlrev_b32 v236, 18, v{V_LANE}",
                      ("vm", "pf", f"buffer_load_dword v237, v236, {sr(SWS,4)}, 0 offen"),
                      ("vm", "pf", f"buffer_load_dword v237, v236, {sr(SOUT,4)}, 0 offen")]
        if e == 8 and "nopfl" not in EXP:
            other += [f"s_lshl_b32 s{t}, s{s_rb}, 8",
                      f"v_lshlrev_b32 v236, 13, v{V_Q}",
                      f"v_lshl_add_u32 v236, v{V_LAM}, 4, v236",
                      f"s_add_u32 s{t}, s{t}, {F_O1}",
                      ("vm", "pf", f"buffer_load_dword v237, v236, {sr(SWS,4)}, s{t} offen sc1"),
                      f"s_lshl_b32 s{t}, s{s_rb}, 13",
                      f"s_lshl_b32 s{t+1}, s{s_wave}, 11",
                      f"s_add_u32 s{t}, s{t}, s{t+1}",
                      f"v_lshlrev_b32 v236, 7, v{V_LAM}",
                      f"v_and_b32 v238, 1, v{V_Q}",
                      f"v_lshl_add_u32 v236, v238, 18, v236",
                      f"s_add_u32 s{t}, s{t}, {ST1_OFF}",
                      ("vm", "pf", f"buffer_load_dword v237, v236, {sr(SWS,4)}, s{t} offen sc1")]
        if e == 9 and "pfb" in EXP:
            other += [f"s_lshl_b32 s{t}, s{s_g}, 2",
                      f"s_add_u32 s{t}, s{t}, s{s_wave}",
                      f"s_lshl_b32 s{t}, s{t}, 9",
                      f"s_lshl_b32 s{t+1}, s{s_rb}, 16",
                      f"s_add_u32 s{t}, s{t}, s{t+1}",
                      f"v_and_b32 v236, 3, v{V_LANE}",
                      "v_lshlrev_b32 v236, 7, v236",
                      f"v_bfe_u32 v237, v{V_LANE}, 2, 2",
                      "v_lshl_add_u32 v236, v237, 14, v236",
                      f"v_and_b32 v237, 1, v{V_Q}",
                      "v_lshl_add_u32 v236, v237, 21, v236",
                      ("vm", "pf", f"buffer_load_dword v237, v236, {sr(SWS,4)}, s{t} offen"),
                      f"s_lshl_b32 s{t}, s{s_wave}, 15",
                      f"s_add_u32 s{t}, s{t}, s{s_rowbase}",
                      f"s_lshl_b32 s{t+1}, s{s_g}, 7",
                      f"s_add_u32 s{t}, s{t}, s{t+1}",
                      f"s_add_u32 s{t+1}, s{t}, {X2_OFF}",
                      ("vm", "pf", f"buffer_load_dword v237, v{V_ROW}, {sr(SWS,4)}, s{t+1} offen"),
                      ("vm", "pf", f"buffer_load_dword v237, v{V_ROW}, {sr(SOUT,4)}, s{t} offen")]
        if e == 10:
            other += wod
        if e == 11:
            other += wodma(15)
        if e >= 12:
            for n in range(3 * (e - 11), 3 * (e - 11) + 3):
                other += wodma(n)
        if e == 4:
            Lp, Lok, Lnf = a.label("ep"), a.label("epok"), a.label("nf")
            c(f"s_mov_b32 s{s_spin}, 0",
              f"{Lp}:",
              f"v_readfirstlane_b32 s{s_ep}, v{V_EP}",
              f"v_readfirstlane_b32 s{s_ep+1}, v{V_EP+1}",
              f"s_add_u32 s{s_spin}, s{s_spin}, 1",
              f"s_cmp_lg_u32 s{s_ep}, 0",
              f"s_cbranch_scc1 {Lok}",
              f"s_cmp_gt_u32 s{s_spin}, {SPIN_MAX}",
              f"s_cbranch_scc1 {Lok}",
              "s_sleep 2",
              f"buffer_load_dwordx2 {vr(V_EP,2)}, v{V_Z}, {sr(SDBG,4)}, 0 offen sc1",
              "s_waitcnt vmcnt(0)",
              f"s_branch {Lp}",
              f"{Lok}:",
              f"v_mov_b32 v{V_EPV}, s{s_ep}",
              f"v_mov_b32 v{V_EPV+1}, s{s_ep+1}",
              f"s_cmp_lg_u32 s{s_wave}, 0",
              f"s_cbranch_scc1 {Lnf}",
              f"v_mov_b32 v{V_HL}, s{s_ep}",
              f"v_mov_b32 v{V_HL+1}, s{s_ep+1}",
              f"v_mov_b32 v{V_HL+2}, s{s_xcc}",
              f"v_mov_b32 v{V_HL+3}, 0",
              f"s_and_b32 s{t}, s2, 7",
              f"s_lshl_b32 s{t}, s{t}, 8",
              f"s_and_b32 s{t+1}, s2, 0xf8",
              f"s_add_u32 s{t}, s{t}, s{t+1}",
              f"s_add_u32 s{t}, s{t}, {F_T}",
              f"s_lshl_b32 s{t+1}, s{s_rb}, 7",
              f"s_lshl_b32 s{t+2}, s{s_g}, 4",
              f"s_add_u32 s{t+1}, s{t+1}, s{t+2}",
              f"s_add_u32 s{t+1}, s{t+1}, {F_HELLO}",
              "s_mov_b64 exec, 1",
              f"buffer_store_dwordx2 {vr(V_HL,2)}, v{V_Z}, {sr(SWS,4)}, s{t} offen sc1",
              f"buffer_store_dwordx4 {vr(V_HL,4)}, v{V_Z}, {sr(SWS,4)}, s{t+1} offen sc1",
              "s_mov_b64 exec, -1",
              f"{Lnf}:")
        mf = []
        wq, wk, wv = ar(12 * e, 4), ar(12 * e + 4, 4), ar(12 * e + 8, 4)
        for tl in range(5):
            x = vr(XS[P] + 4 * tl, 4)
            for (acc, A_, B_) in ((AQ + 4 * tl, wq, x), (AK + 4 * tl, wk, x), (AV + 4 * tl, x, wv)):
                mf.append(f"v_mfma_f32_16x16x32_bf16 {vr(acc,4)}, {A_}, {B_}, {vr(acc,4) if e else 0}")
        mix = []
        no, ns = len(other), len(st_ops)
        io = 0
        for j, so in enumerate(st_ops):
            while io < (j + 1) * no // max(ns, 1):
                mix.append(other[io])
                io += 1
            mix.append(so)
        mix += other[io:]
        c.merge(mf, mix)
    stamp()
    HR = 64
    c(f"v_lshrrev_b32 v72, 5, v{V_LANE}",
      f"s_lshl_b32 s{t}, s{s_wave}, 1",
      f"s_add_u32 s{t}, s{t}, 8",
      f"v_add_u32 v72, s{t}, v72",
      "v_lshlrev_b32 v72, 8, v72",
      f"v_lshl_add_u32 v72, v{V_LAM}, 4, v72",
      f"v_and_b32 v73, 1, v{V_Q}",
      f"v_mul_u32_u24 v73, {XQ}, v73",
      "v_add_u32 v72, v72, v73",
      f"ds_read_b128 {vr(HR,4)}, v72 offset:{L_X}",
      f"ds_read_b128 {vr(HR+4,4)}, v72 offset:{L_X+2*XQ}",
      f"v_mov_b32 v{SA+2}, 0",
      f"v_mov_b32 v{SA+3}, 0",
      f"v_lshlrev_b32 v74, 2, v{V_LAM}")
    for r in range(4):
        c(f"v_mov_b32_dpp v{CSQ+r}, v{AQ+r} row_newbcast:0 row_mask:0xf bank_mask:0xf",
          f"v_mov_b32_dpp v{CSK+r}, v{AK+r} row_newbcast:0 row_mask:0xf bank_mask:0xf")
    c(f"ds_bpermute_b32 v{CSV}, v74, v{AV}",
      "s_waitcnt lgkmcnt(0)",
      "s_barrier")
    STA, STB = 94, 196
    QP, KP, VP = 64, 74, 84
    def read_stats(vlam8):
        l = [f"ds_read_b64 {vr(STA+2*tl,2)}, v{vlam8} offset:{128*tl}" for tl in range(5)]
        l += [f"v_lshlrev_b32 v{V_T0}, 5, v{V_Q}", f"v_add_u32 v{V_T0}, {L_ST}, v{V_T0}"]
        for tl in range(5):
            l += [f"ds_read_b128 {vr(STB+8*tl,4)}, v{V_T0} offset:{128*tl}",
                  f"ds_read_b128 {vr(STB+8*tl+4,4)}, v{V_T0} offset:{128*tl+16}"]
        return l

    def poll(check_lines, reload_lines, name, sleep=1):
        Lp, Ld = a.label(name), a.label(name + "d")
        c(f"s_mov_b32 s{s_spin}, 0", f"{Lp}:")
        c(check_lines)
        c(f"s_add_u32 s{s_spin}, s{s_spin}, 1",
          f"s_cmp_gt_u32 s{s_spin}, {SPIN_MAX}",
          f"s_cbranch_scc1 {Ld}",
          "s_nop 1",
          f"s_cbranch_vccz {Ld}",
          f"s_sleep {sleep}")
        c(reload_lines)
        c("s_waitcnt vmcnt(0)", f"s_branch {Lp}", f"{Ld}:")

    def chk_ep(regs_lo, tmp):
        l = []
        for n, lo in enumerate(regs_lo):
            if n == 0:
                l.append(f"v_xor_b32 v{tmp}, s{s_ep}, v{lo}")
            else:
                l.append(f"v_xor_b32 v{tmp+1}, s{s_ep}, v{lo}")
                l.append(f"v_or_b32 v{tmp}, v{tmp}, v{tmp+1}")
            l.append(f"v_xor_b32 v{tmp+1}, s{s_ep+1}, v{lo+1}")
            l.append(f"v_or_b32 v{tmp}, v{tmp}, v{tmp+1}")
        l.append(f"v_cmp_ne_u32 vcc, 0, v{tmp}")
        return l

    PT = 104
    c(f"v_and_b32 v{PT}, 0x70, v{V_L16}", f"v_and_b32 v{PT+1}, 0xf8, v{V_L8}")
    c(("wait", ["hl"]))
    poll(chk_ep([V_HL, V_FT], 106),
         [f"buffer_load_dwordx4 {vr(V_HL,4)}, v{PT}, {sr(SWS,4)}, s{t+8} offen sc1",
          f"buffer_load_dwordx2 {vr(V_FT,2)}, v{PT+1}, {sr(SWS,4)}, s{t+9} offen sc1"], "phl")
    c(f"v_cmp_ne_u32 vcc, s{s_xcc}, v{V_HL+2}",
      f"s_lshl_b32 s{t+3}, s{s_half}, 11",
      f"s_add_u32 s{t+4}, s{s_c}, s{t+3}",
      f"s_add_u32 s{t+4}, s{t+4}, {U_OFF}",
      f"s_add_u32 m0, s{s_cl}, s{t+3}",
      "s_nop 0",
      ("vm", "cu", f"buffer_load_dwordx4 v{V_L16}, {sr(SWS,4)}, s{t+4} offen sc1 lds"),
      ("vm", "cu", f"buffer_load_dwordx4 v{V_L16}, {sr(SWS,4)}, s{t+4} offen offset:1024 sc1 lds"),
      "s_cmp_eq_u64 vcc, 0",
      f"s_cselect_b32 s{s_loc}, 1, 0")
    V_FX, V_FI = 184, 185
    dm = []
    for i in range(2):
        g0 = [f"s_lshl_b32 s{t+3}, s{s_half}, 1",
              f"s_add_u32 s{t+3}, s{t+3}, {i}",
              f"s_mul_i32 s{t+5}, s{t+3}, {C_KS}",
              f"s_add_u32 s{t+5}, s{t+5}, s{s_cl}",
              f"s_add_u32 s{t+10+i}, s{t+5}, {C_K+32}",
              f"s_lshl_b32 s{t+3}, s{t+3}, 1",
              f"s_add_u32 s{t+12+i}, s{s_c}, s{t+3}"]
        c(g0)
        for n in range(4):
            dm.append([f"s_mov_b32 m0, s{t+10+i}", "s_nop 0",
                       ("vm", "ck", f"buffer_load_dwordx4 v{V_L16}, {sr(SKK,4)}, s{t+12+i} offen offset:{1024*n} lds")])
    for n in range(3):
        dm.append(wodma(n))
    c(f"v_add_u32 v{V_FI}, v{V_LAM}, v{V_Q}",
      f"v_subrev_u32 v{V_FI}, 16, v{V_FI}",
      f"v_max_i32 v74, 0, v{V_FI}",
      "v_lshlrev_b32 v74, 1, v74",
      ("vm", "ck", f"buffer_load_ushort v{V_FX}, v74, {sr(SKK,4)}, s{s_c} offen"))

    def with_dmas(main, groups, every):
        n = 0
        for it in main:
            c(it)
            n += 1
            if n % every == 0 and groups:
                c(groups.pop(0))

    TT = 72
    ep = []
    for i in range(8):
        ep.append(f"v_dot2_f32_bf16 v{SA+2}, v{HR+i}, v{ONES}, v{SA+2}")
        ep.append(f"v_dot2_f32_bf16 v{SA+3}, v{HR+i}, v{HR+i}, v{SA+3}")
    ep.append(("gap", 3))
    for sh in (8, 4, 2, 1):
        ep += [f"v_add_f32_dpp v{SA+2}, v{SA+2}, v{SA+2} row_ror:{sh} row_mask:0xf bank_mask:0xf",
               f"v_add_f32_dpp v{SA+3}, v{SA+3}, v{SA+3} row_ror:{sh} row_mask:0xf bank_mask:0xf",
               ("gap", 1)]
    ep += xq_reduce("v_add_f32", [SA, SA + 1, SA + 2, SA + 3], [TT, TT + 1, TT + 2, TT + 3], ("v_permlane16_swap_b32",))
    ep += xq_reduce("v_add_f32", [SA, SA + 1], [TT, TT + 1], ("v_permlane32_swap_b32",))
    ep += stats_fin([(SA, SA + 1), (SA + 2, SA + 3)], [TT, TT + 1])
    ep += [f"v_lshlrev_b32 v{TT}, 3, v{V_LAM}",
           f"s_lshr_b32 s{t+1}, s{s_stile}, 5",
           f"s_add_u32 s{t+1}, s{t+1}, {L_ST}",
           f"v_add_u32 v{TT+1}, s{t+1}, v{TT}",
           f"ds_write_b64 v{TT+1}, {vr(SA,2)}",
           f"v_lshrrev_b32 v{TT+1}, 5, v{V_LANE}",
           f"v_lshlrev_b32 v{TT+1}, 3, v{TT+1}",
           f"s_lshl_b32 s{t+1}, s{s_wave}, 4",
           f"s_add_u32 s{t+1}, s{t+1}, {L_ST + 64}",
           f"v_add_u32 v{TT+1}, s{t+1}, v{TT+1}",
           f"ds_write_b64 v{TT+1}, {vr(SA+2,2)}",
           f"v_and_b32 v{TT+1}, 0x38, v{TT}",
           f"v_add_u32 v{TT+1}, {L_ST}, v{TT+1}",
           f"v_mov_b32 v{TT+2}, 0",
           f"v_mov_b32 v{TT+3}, 1.0",
           f"ds_write_b64 v{TT+1}, {vr(TT+2,2)}",
           f"v_add_u32 v{TT}, {L_ST}, v{TT}"]
    with_dmas(ep, dm, 12)
    c("s_waitcnt lgkmcnt(0)", "s_barrier")

    c(read_stats(TT), "s_waitcnt lgkmcnt(0)")

    def normalize(tl, pk, VP):
        l = []
        mean, rstd = STA + 2 * tl, STA + 2 * tl + 1
        for (acc, cs, dst, on) in ((AQ + 4 * tl, CSQ, QP + 2 * tl, tl > 0), (AK + 4 * tl, CSK, KP + 2 * tl, True)):
            if not on:
                continue
            if pk:
                for h in range(2):
                    l.append(f"v_pk_fma_f32 {vr(acc+2*h,2)}, {vr(cs+2*h,2)}, {vr(mean,2)}, {vr(acc+2*h,2)} op_sel_hi:[1,0,1] neg_lo:[0,1,0] neg_hi:[0,1,0]")
                for h in range(2):
                    l.append(f"v_pk_mul_f32 {vr(acc+2*h,2)}, {vr(acc+2*h,2)}, {vr(mean,2)} op_sel:[0,1]")
            else:
                for r in range(4):
                    l.append(f"v_fma_f32 v{acc+r}, -v{mean}, v{cs+r}, v{acc+r}")
                for r in range(4):
                    l.append(f"v_mul_f32 v{acc+r}, v{rstd}, v{acc+r}")
            l.append(f"v_cvt_pk_bf16_f32 v{dst}, v{acc}, v{acc+1}")
            l.append(f"v_cvt_pk_bf16_f32 v{dst+1}, v{acc+2}, v{acc+3}")
        acc = AV + 4 * tl
        for r in range(4):
            l.append(f"v_fma_f32 v{acc+r}, -v{STB+8*tl+2*r}, v{CSV}, v{acc+r}")
        for r in range(4):
            l.append(f"v_mul_f32 v{acc+r}, v{STB+8*tl+2*r+1}, v{acc+r}")
        l.append(f"v_cvt_pk_bf16_f32 v{VP+2*tl}, v{acc}, v{acc+1}")
        l.append(f"v_cvt_pk_bf16_f32 v{VP+2*tl+1}, v{acc+2}, v{acc+3}")
        return l

    V_OA = 254
    s_oa = 20
    oaddr = [f"s_lshl_b32 s{t}, s{s_g}, 2",
             f"s_add_u32 s{t}, s{t}, s{s_wave}",
             f"s_lshr_b32 s{t+1}, s{t}, 1",
             f"s_lshl_b32 s{t+1}, s{t+1}, 10",
             f"s_and_b32 s{t}, s{t}, 1",
             f"s_lshl_b32 s{t}, s{t}, 9",
             f"s_add_u32 s{t}, s{t}, s{t+1}",
             f"s_lshl_b32 s{t+1}, s{s_rb}, 16",
             f"s_add_u32 s{s_oa}, s{t}, s{t+1}",
             f"v_lshrrev_b32 v{V_OA}, 1, v{V_Q}",
             f"v_lshlrev_b32 v{V_OA}, 8, v{V_OA}",
             f"v_lshl_add_u32 v{V_OA}, v{V_LAM}, 4, v{V_OA}",
             f"v_and_b32 v{V_T0+1}, 1, v{V_Q}",
             f"v_lshl_add_u32 v{V_OA}, v{V_T0+1}, 3, v{V_OA}"]

    def attn_tiles(tiles, VP, regs, pk):
        SC, SP, MX, MT, PP, OO, LL = (regs[k_] for k_ in ("SC", "SP", "MX", "MT", "PP", "OO", "LL"))
        n = len(tiles)
        l = [("gap", 2)]
        for j, i in enumerate(tiles):
            l.append(f"v_mfma_f32_16x16x16_bf16 {vr(SC+4*j,4)}, {vr(KP+2*i,2)}, {vr(QP+2*i,2)}, {vr(BC,4)}")
            l.append(f"v_mfma_f32_16x16x16_bf16 {vr(SP+4*j,4)}, {vr(KP+2*(i-1),2)}, {vr(QP+2*i,2)}, {vr(BP1 if i == 1 else BP,4)}")
        l.append(("gap", max(8 - 2 * (n - 1), 1) if n < 4 else 2))
        if n >= 2:
            pass
        for j in range(n):
            if j == n - 1 and n > 1:
                l.append(("gap", 2))
            for r in range(4):
                l.append(f"v_max_f32 v{SC+4*j+r}, v{SC+4*j+r}, v{SP+4*j+r}")
            l.append(f"v_max3_f32 v{MX+j}, v{SC+4*j}, v{SC+4*j+1}, v{SC+4*j+2}")
            l.append(f"v_max_f32 v{MX+j}, v{MX+j}, v{SC+4*j+3}")
        l += xq_reduce("v_max_f32", [MX + j for j in range(n)], [MT + j for j in range(n)])
        for j in range(n):
            l.append(f"v_mul_f32 v{MX+j}, 0x3eb8aa3b, v{MX+j}")
        for j in range(n):
            for r in range(4):
                l.append(f"v_fma_f32 v{SC+4*j+r}, v{SC+4*j+r}, s{s_cexp}, -v{MX+j}")
        for j in range(n):
            for r in range(4):
                l.append(f"v_exp_f32 v{SC+4*j+r}, v{SC+4*j+r}")
        l.append(("gap", 1))
        for j in range(n):
            l += [f"v_cvt_pk_bf16_f32 v{SP+4*j}, v{SC+4*j}, v{SC+4*j+1}",
                  f"v_cvt_pk_bf16_f32 v{SP+4*j+1}, v{SC+4*j+2}, v{SC+4*j+3}",
                  f"v_and_b32 v{PP+4*j}, v{MP}, v{SP+4*j}",
                  f"v_and_b32 v{PP+4*j+1}, v{MP+1}, v{SP+4*j+1}",
                  f"v_and_b32 v{PP+4*j+2}, v{MC}, v{SP+4*j}",
                  f"v_and_b32 v{PP+4*j+3}, v{MC+1}, v{SP+4*j+1}"]
        l.append(("gap", 2))
        for j, i in enumerate(tiles):
            l.append(f"v_mfma_f32_16x16x32_bf16 {vr(LL+4*j,4)}, {vr(ONES,4)}, {vr(PP+4*j,4)}, 0")
            l.append(f"v_mfma_f32_16x16x32_bf16 {vr(OO+4*j,4)}, {vr(VP+2*(i-1),4)}, {vr(PP+4*j,4)}, 0")
        l.append(("gap", 8))
        for j in range(n):
            l.append(f"v_rcp_f32 v{LL+4*j}, v{LL+4*j}")
        l.append(("gap", 1))
        for j in range(n):
            if pk:
                l += [f"v_pk_mul_f32 {vr(OO+4*j,2)}, {vr(OO+4*j,2)}, {vr(LL+4*j,2)} op_sel_hi:[1,0]",
                      f"v_pk_mul_f32 {vr(OO+4*j+2,2)}, {vr(OO+4*j+2,2)}, {vr(LL+4*j,2)} op_sel_hi:[1,0]"]
            else:
                l += [f"v_mul_f32 v{OO+4*j+r}, v{LL+4*j}, v{OO+4*j+r}" for r in range(4)]
            l += [f"v_cvt_pk_bf16_f32 v{OO+4*j}, v{OO+4*j}, v{OO+4*j+1}",
                  f"v_cvt_pk_bf16_f32 v{OO+4*j+1}, v{OO+4*j+2}, v{OO+4*j+3}"]
        return l

    def dual_store(lines_fn, tag, nops):
        Lg, Lj = a.label("sg"), a.label("sj")
        c(f"s_cmp_eq_u32 s{s_loc}, 0", f"s_cbranch_scc1 {Lg}")
        c(lines_fn(""))
        c(f"s_branch {Lj}", f"{Lg}:")
        c(lines_fn(" sc1"))
        c(f"{Lj}:")
        c.q += [tag] * nops

    def wave_flag(f_off, sc1_only=False):
        c(f"s_add_u32 s{t}, s{s_flag}, {f_off}", "s_mov_b64 exec, 1")
        if sc1_only:
            c(("vm", "fl", f"buffer_store_dwordx2 {vr(V_EPV,2)}, v{V_Z}, {sr(SWS,4)}, s{t} offen sc1"))
        else:
            dual_store(lambda fl: [f"buffer_store_dwordx2 {vr(V_EPV,2)}, v{V_Z}, {sr(SWS,4)}, s{t} offen{fl}"], "fl", 1)
        c("s_mov_b64 exec, -1")

    s_cexp = 17
    c(f"s_mov_b32 s{s_cexp}, 0x3eb8aa3b")
    R1 = dict(SC=108, SP=124, MX=140, MT=144, PP=148, OO=196, LL=212)
    main = []
    for tl in range(5):
        main += normalize(tl, True, VP)
    with_dmas(main, dm, 16)
    assert not dm

    def o_stores(o_off, OO, tiles):
        def f(fl):
            l = []
            for j, i in enumerate(tiles):
                l += [f"s_add_u32 s{t+1}, s{s_oa}, {(O1_OFF if (fl == '' and 'noalias' not in EXP) else o_off) + (i-1)*16384}",
                      f"buffer_store_dwordx2 {vr(OO+4*j,2)}, v{V_OA}, {sr(SWS,4)}, s{t+1} offen{fl}"]
            return l
        dual_store(f, "ost", len(tiles))

    stamp()
    CA, CB, C2, C3, C4, C5, C6 = 94, 95, 96, 97, 98, 99, 100
    c(f"v_add_u32 v{V_T0}, s{s_cl}, v{V_L8}",
      f"v_mov_b32 v{C2}, 0",
      f"v_mov_b32 v{C3}, 0",
      f"ds_write_b64 v{V_T0}, {vr(C2,2)} offset:{C_U+4096}",
      f"v_mul_u32_u24 v{C4}, {C_KS}, v{V_Q}",
      f"v_lshl_add_u32 v{C4}, v{V_LAM}, 1, v{C4}",
      f"s_add_u32 s{t+5}, s{s_cl}, {C_K}",
      f"v_add_u32 v{C4}, s{t+5}, v{C4}",
      f"v_cmp_gt_i32 vcc, 0, v{V_FI}",
      f"v_add_u32 v{CA}, 1, v{V_LAM}",
      f"v_and_b32 v{CB}, 3, v{CA}",
      f"v_mul_u32_u24 v{CB}, {C_KS}, v{CB}",
      f"v_and_b32 v{CA}, 0x1c, v{CA}",
      f"v_lshl_add_u32 v{CB}, v{CA}, 1, v{CB}",
      f"v_lshl_add_u32 v{CB}, v{V_Q}, 4, v{CB}",
      f"s_lshl_b32 s{t+3}, s{s_half}, 8",
      f"s_add_u32 s{t+3}, s{t+3}, s{s_cl}",
      f"s_add_u32 s{t+5}, s{t+3}, {C_K}",
      f"v_add_u32 v{CA}, s{t+5}, v{CB}",
      f"v_lshlrev_b32 v{CB}, 5, v{V_LAM}",
      f"v_sub_u32 v{CB}, 480, v{CB}",
      f"v_lshl_add_u32 v{CB}, v{V_Q}, 4, v{CB}",
      f"v_add_u32 v{CB}, s{t+3}, v{CB}",
      ("wait", ["ck", "cu"]),
      f"v_cndmask_b32 v{V_FX}, v{V_FX}, 0, vcc",
      f"ds_write_b16 v{C4}, v{V_FX}",
      "s_waitcnt lgkmcnt(0)", "s_barrier")
    CACC = 104
    V_FO = 232
    V_FA = 236

    def creg(P, off, n):
        return vr(136 + off, n) if P == 0 else ar(192 + off, n)

    def creads(P, rp):
        l = []
        for j in range(8):
            l.append(f"ds_read_b128 {creg(P,32+4*j,4)}, v{CB} offset:{64*rp+512*(7-j)}")
            l.append(f"ds_read_b64 {creg(P,4*j,2)}, v{CA} offset:{64*rp+512*j}")
            l.append(f"ds_read_b64 {creg(P,4*j+2,2)}, v{CA} offset:{64*rp+512*j+8}")
        return l

    def flags_load(f_off, rb_sgpr, dst, sreg):
        return [f"s_lshl_b32 s{sreg}, s{rb_sgpr}, 8",
                f"s_add_u32 s{sreg}, s{sreg}, {f_off}",
                ("vm", "fo", f"buffer_load_dwordx2 {vr(dst,2)}, v{V_FA}, {sr(SWS,4)}, s{sreg} offen sc1")]

    def flags_poll(dst, sreg, tmp, name):
        c(("wait", ["fo"]))
        poll(chk_ep([dst], tmp), [f"buffer_load_dwordx2 {vr(dst,2)}, v{V_FA}, {sr(SWS,4)}, s{sreg} offen sc1"], name)

    c(creads(0, 0))
    KEEP, UU, PR, UF = 136, 152, 160, 176
    pre_ep = [
        f"s_lshl_b32 s{t+3}, s{s_wave}, 12",
        f"s_add_u32 s{t+3}, s{t+3}, {C_RED}",
        f"v_add_u32 v{C2}, s{t+3}, v{V_L16}",
        f"s_xor_b32 s{t+3}, s{s_wave}, 1",
        f"s_lshl_b32 s{t+3}, s{t+3}, 12",
        f"s_add_u32 s{t+3}, s{t+3}, {C_RED}",
        f"v_add_u32 v{C3}, s{t+3}, v{V_L16}",
        f"v_lshlrev_b32 v{C4}, 5, v{V_LAM}",
        f"v_lshl_add_u32 v{C4}, v{V_Q}, 3, v{C4}",
        f"s_lshl_b32 s{t+3}, s{s_half}, 11",
        f"s_sub_u32 s{t+3}, s{s_cl}, s{t+3}",
        f"s_add_u32 s{t+3}, s{t+3}, {C_U + 4088 - 1536}",
        f"v_sub_u32 v{C4}, s{t+3}, v{C4}",
        f"s_lshl_b32 s{t+3}, s{s_wave}, 11",
        f"s_add_u32 s{t+3}, s{t+3}, {C_TR}",
        f"v_lshlrev_b32 v{C5}, 4, v{V_LAM}",
        f"v_lshl_add_u32 v{C5}, v{V_Q}, 2, v{C5}",
        f"v_add_u32 v{C5}, s{t+3}, v{C5}",
        f"v_add_u32 v{C6}, s{t+3}, v{V_L16}",
        f"v_lshrrev_b32 v101, 5, v{V_LANE}",
        "v_lshlrev_b32 v101, 8, v101",
        f"v_and_b32 v102, 1, v{V_Q}",
        "v_lshl_add_u32 v101, v102, 11, v101",
        f"v_lshl_add_u32 v101, v{V_LAM}, 4, v101",
        f"s_lshl_b32 s{t+4}, s{s_half}, 10",
        f"s_add_u32 s{t+4}, s{t+4}, s{s_c}",
        f"s_add_u32 s{t+4}, s{t+4}, {Y_OFF}",
        f"s_lshl_b32 s{t+3}, s{s_D}, 16",
        f"s_and_b32 s{t+5}, s{s_D}, 0xffff0000",
        f"s_cmp_eq_u32 s{s_ch}, 0",
        f"s_cselect_b32 s{t+3}, s{t+3}, s{t+5}"]
    pre_ep += [f"ds_read_b64 {vr(UU+2*i,2)}, v{C4} offset:{512*(3-i)}" for i in range(4)]
    pre_ep += ["s_waitcnt lgkmcnt(0)"]
    for i in range(4):
        pre_ep += [f"v_and_b32 v{UF+4*i}, 0xffff0000, v{UU+2*i+1}",
                   f"v_lshlrev_b32 v{UF+4*i+1}, 16, v{UU+2*i+1}",
                   f"v_and_b32 v{UF+4*i+2}, 0xffff0000, v{UU+2*i}",
                   f"v_lshlrev_b32 v{UF+4*i+3}, 16, v{UU+2*i}"]
    pre_ep += [f"v_mul_f32 v{UF+r}, s{t+3}, v{UF+r}" for r in range(16)]
    RA = dict(SC=200, SP=208, MX=216, MT=218, PP=220, OO=238, LL=246)
    opt = [f"v_and_b32 v{V_FA}, 0xf8, v{V_L8}"] + oaddr
    for pr in ([1, 2], [3, 4]):
        opt += attn_tiles(pr, VP, RA, False)
        opt.append(lambda pr=pr: o_stores(O1_OFF, RA["OO"], pr))
        opt.append(("gap", 3))
    c._dist = 100
    for rp in range(4):
        P = rp & 1
        c("s_waitcnt lgkmcnt(0)")
        if rp == 3:
            opt += pre_ep
        mf = []
        for j in range(8):
            for i in range(j, 8):
                cc = vr(CACC + 4 * i, 4) if (rp or j) else 0
                mf.append(f"v_mfma_f32_16x16x32_bf16 {vr(CACC+4*i,4)}, {creg(P,4*j,4)}, {creg(P,32+4*(i-j),4)}, {cc}")
        opt = c.merge2(mf, creads(1 - P, rp + 1) if rp < 3 else [], opt, flush=(rp == 3))
    OFR = 192

    def o_loads(o_off):
        g = []
        for st in range(4):
            for i in range(4):
                e = 4 * st + i
                l = []
                if i == 0:
                    l.append(f"s_add_u32 s{t+11}, s{t+10}, {st*4096}")
                l.append(("vm", f"o{e}", f"buffer_load_dwordx4 {ar(OFR+4*e,4)}, v{V_L16}, {sr(SWS,4)}, s{t+11} offen offset:{1024*i} sc1"))
                g.append(l)
        pre = [f"s_lshl_b32 s{t+10}, s{s_rb}, 16",
               f"s_lshl_b32 s{t+11}, s{s_wave}, 14",
               f"s_add_u32 s{t+10}, s{t+10}, s{t+11}",
               f"s_cmp_eq_u32 s{s_loc}, 0",
               f"s_cselect_b32 s{t+11}, {o_off}, {o_off if 'noalias' in EXP else O1_OFF}",
               f"s_add_u32 s{t+10}, s{t+10}, s{t+11}"]
        return pre, g

    c(("wait", ["ost"]))
    wave_flag(F_O1)
    L1, L2 = a.label("cvh"), a.label("cvj")
    c("s_nop 1", f"s_cmp_eq_u32 s{s_half}, 0", f"s_cbranch_scc0 {L1}")
    for i in range(4):
        c(f"ds_write_b128 v{C2}, {vr(CACC+16+4*i,4)} offset:{1024*i}")
    for r in range(8):
        c(f"v_pk_add_f32 {vr(KEEP+2*r,2)}, {vr(CACC+2*r,2)}, {vr(UF+2*r,2)}")
    c(f"s_branch {L2}", f"{L1}:")
    for i in range(4):
        c(f"ds_write_b128 v{C2}, {vr(CACC+4*i,4)} offset:{1024*i}")
    for r in range(8):
        c(f"v_pk_add_f32 {vr(KEEP+2*r,2)}, {vr(CACC+16+2*r,2)}, {vr(UF+2*r,2)}")
    c(f"{L2}:", "s_waitcnt lgkmcnt(0)", "s_barrier")
    c([f"ds_read_b128 {vr(PR+4*i,4)}, v{C3} offset:{1024*i}" for i in range(4)])
    c(flags_load(F_O1, s_rb, V_FO, t + 8))
    for i in range(4):
        c(f"s_waitcnt lgkmcnt({3-i})" if i == 0 else f"s_waitcnt lgkmcnt({3-i+2*i})",
          f"v_pk_add_f32 {vr(KEEP+4*i,2)}, {vr(KEEP+4*i,2)}, {vr(PR+4*i,2)}",
          f"v_pk_add_f32 {vr(KEEP+4*i+2,2)}, {vr(KEEP+4*i+2,2)}, {vr(PR+4*i+2,2)}")
        for par in range(2):
            c(f"v_cvt_pk_bf16_f32 v{UF+2*i+par}, v{KEEP+4*i+par}, v{KEEP+4*i+2+par}",
              f"ds_write_b32 v{C5}, v{UF+2*i+par} offset:{(2*i+par)*256}")
    YS = 228
    c("s_waitcnt lgkmcnt(0)",
      f"ds_read_b128 {vr(YS,4)}, v{C6}",
      f"ds_read_b128 {vr(238,4)}, v{C6} offset:1024")
    c("s_waitcnt lgkmcnt(0)",
      ("vm", "yst", f"buffer_store_dwordx4 {vr(YS,4)}, v101, {sr(SWS,4)}, s{t+4} offen sc1"),
      ("vm", "yst", f"buffer_store_dwordx4 {vr(238,4)}, v101, {sr(SWS,4)}, s{t+4} offen offset:512 sc1"))
    stamp()
    c(f"s_lshl_b32 s{t}, s{s_g}, 7", f"s_add_u32 s{s_rowbase}, s{s_rowbase}, s{t}")
    pre, og = o_loads(O1_OFF)
    c(pre)
    c(f"s_lshl_b32 s{t+7}, s{s_g}, 8",
      f"s_add_u32 s{t+7}, s{t+7}, {F_Y}",
      f"s_lshl_b32 s{t+9}, s{s_g}, 18",
      f"s_lshl_b32 s{t+1}, s{s_p}, 11",
      f"s_add_u32 s{t+9}, s{t+9}, s{t+1}",
      f"s_lshl_b32 s{t+1}, s{s_b}, 7",
      f"s_add_u32 s{t+9}, s{t+9}, s{t+1}",
      f"s_lshl_b32 s{t+1}, s{s_wave}, 16",
      f"s_add_u32 s{t+9}, s{t+9}, s{t+1}",
      f"s_add_u32 s{t+9}, s{t+9}, {Y_OFF}",
      f"s_add_u32 s22, s{t+9}, 32768",
      f"v_lshrrev_b32 v75, 3, v{V_LANE}",
      "v_lshlrev_b32 v75, 12, v75",
      f"v_and_b32 v76, 0x70, v{V_L16}",
      "v_add_u32 v75, v75, v76",
      f"s_lshl_b32 s23, s{s_wave}, 11",
      f"s_add_u32 s23, s23, {P2_YT}",
      f"v_bfe_u32 v79, v{V_LANE}, 2, 2",
      f"v_lshl_add_u32 v79, v{V_Q}, 2, v79",
      "v_lshlrev_b32 v79, 7, v79",
      f"v_and_b32 v76, 3, v{V_LANE}",
      "v_lshl_add_u32 v79, v76, 3, v79",
      f"s_lshl_b32 s{t+1}, s{s_wave}, 5",
      f"s_add_u32 s{t+1}, s{t+1}, {P2_YT}",
      f"v_add_u32 v79, s{t+1}, v79")
    fyl = f"buffer_load_dwordx2 {vr(72,2)}, v{V_FA}, {sr(SWS,4)}, s{t+7} offen sc1"
    ylds = ["s_mov_b32 m0, s23", "s_nop 0",
            f"buffer_load_dwordx4 v75, {sr(SWS,4)}, s{t+9} offen sc1 lds",
            "s_add_u32 m0, s23, 1024", "s_nop 0",
            f"buffer_load_dwordx4 v75, {sr(SWS,4)}, s22 offen sc1 lds"]
    flags_poll(V_FO, t + 8, 68, "po1")
    for g_ in og[:OPRE]:
        c(g_)
    olate = [og[OPRE:]]
    stamp()

    def y_flag():
        Lny = a.label("nfy")
        c(("wait", ["yst"]),
          "s_barrier",
          f"s_cmp_lg_u32 s{s_wave}, 0",
          f"s_cbranch_scc1 {Lny}",
          f"s_lshl_b32 s{t}, s2, 3",
          f"s_add_u32 s{t}, s{t}, {F_Y}",
          "s_mov_b64 exec, 1",
          f"buffer_store_dwordx2 {vr(V_EPV,2)}, v{V_Z}, {sr(SWS,4)}, s{t} offen sc1",
          "s_mov_b64 exec, -1",
          f"{Lny}:")

    YP, X2K = 246, 238

    def wo_phase(layer):
        first = layer == 0
        XR = 96
        c(f"s_lshl_b32 s{t+1}, s{s_wave}, 15", f"s_add_u32 s{t+5}, s{s_rowbase}, s{t+1}")
        if first:
            for nt in range(4):
                c(("vm", "xr", f"buffer_load_dwordx2 {vr(XR+2*nt,2)}, v{V_ROW}, {sr(SX,4)}, s{t+5} offen offset:{32*nt}"))
        WACC = 80
        WF = [112, 144, 176]

        def reads(P, e):
            return [f"ds_read_b64_tr_b16 {vr(WF[P]+4*nt+2*ss,2)}, v{V_WO+nt} offset:{4096*e+512*ss}"
                    for nt in range(4) for ss in range(2)]
        c(reads(0, 0), reads(1, 1))
        for e in range(16):
            P = e % 3
            if first and e == 0:
                y_flag()
            c(("wait", [f"o{e}"], 8 if e < 15 else 0))
            mf = [f"v_mfma_f32_16x16x32_bf16 {vr(WACC+4*nt,4)}, {vr(WF[P]+4*nt,4)}, {ar(OFR+4*e,4)}, {vr(WACC+4*nt,4) if e else 0}"
                  for nt in range(4)]
            sd = reads((e + 2) % 3, e + 2) if e < 14 else []
            if olate[0]:
                sd = olate[0].pop(0) + sd
            c.merge(mf, sd, 2)
        XF, X1P, G = 144, 160, 168
        if not first:
            stamp("p4")
        if first and 'stamp' not in EXP:
            stamp()
        if first:
            c(("wait", ["xr"]))
            src = XR
        else:
            src = X2K
        for i in range(8):
            c(f"v_lshlrev_b32 v{XF+2*i}, 16, v{src+i}", f"v_and_b32 v{XF+2*i+1}, 0xffff0000, v{src+i}")
        c(f"v_mov_b32 v{G}, 0", f"v_mov_b32 v{G+1}, 0", f"v_mov_b32 v{G+2}, s{s_ep}", f"v_mov_b32 v{G+3}, s{s_ep+1}")
        for i in range(8):
            c(f"v_pk_add_f32 {vr(XF+2*i,2)}, {vr(XF+2*i,2)}, {vr(WACC+2*i,2)}",
              f"v_cvt_pk_bf16_f32 v{X1P+i}, v{XF+2*i}, v{XF+2*i+1}")
        for i in range(8):
            c(f"v_dot2_f32_bf16 v{G}, v{X1P+i}, v{ONES}, v{G}", f"v_dot2_f32_bf16 v{G+1}, v{X1P+i}, v{X1P+i}, v{G+1}")
        st_off = ST1_OFF if first else ST2_OFF
        c(f"s_lshl_b32 s{t+6}, s{s_rb}, 13",
          f"s_lshl_b32 s{t+1}, s{s_wave}, 11",
          f"s_add_u32 s{t+6}, s{t+6}, s{t+1}",
          f"s_add_u32 s{t+6}, s{t+6}, {st_off}",
          f"s_lshl_b32 s{t+1}, s{s_g}, 4",
          f"s_add_u32 s{t+1}, s{t+1}, s{t+6}",
          f"v_lshlrev_b32 v74, 7, v{V_LAM}")
        c(xq_reduce("v_add_f32", [G, G + 1], [G + 4, G + 5]))
        c("s_mov_b64 exec, 0xffff")
        dual_store(lambda fl: [f"buffer_store_dwordx4 {vr(G,4)}, v74, {sr(SWS,4)}, s{t+1} offen{fl}"], "sst", 1)
        c("s_mov_b64 exec, -1")
        GR = 176
        if not first:
            stamp("p4")
        for i in range(8):
            c(f"v_lshlrev_b32 v{XF+2*i}, 16, v{X1P+i}", f"v_and_b32 v{XF+2*i+1}, 0xffff0000, v{X1P+i}")
        c(f"v_lshl_add_u32 v74, v{V_Q}, 5, v74")
        gl = [f"buffer_load_dwordx4 {vr(GR,4)}, v74, {sr(SWS,4)}, s{t+6} offen sc1",
              f"buffer_load_dwordx4 {vr(GR+4,4)}, v74, {sr(SWS,4)}, s{t+6} offen offset:16 sc1"]
        if first:
            Lyd = a.label("yd")
            c(f"s_cmp_lg_u32 s{s_wave}, 0", f"s_cbranch_scc1 {Lyd}", fyl, "s_waitcnt vmcnt(0)")
            poll(chk_ep([72], 76), [fyl], "pfy", 3)
            c(f"{Lyd}:", "s_barrier")
            c(ylds)
            if 'stamp' not in EXP:
                stamp()
        for l in gl:
            c(("vm", "gr", l))
        if first:
            c("s_waitcnt vmcnt(2)", "s_barrier")
            for nt in range(4):
                c(f"ds_read_b64_tr_b16 {vr(YP+2*nt,2)}, v79 offset:{2048*nt}")
        c(("drain",))
        if first and 'stamp' not in EXP:
            stamp()
        if not first:
            stamp("p4")
        poll(chk_ep([GR + 2, GR + 6], 76), gl, "pst")
        stamp("p4" if not first else "x2")
        c(f"v_add_f32 v{G}, v{GR}, v{GR+4}", f"v_add_f32 v{G+1}, v{GR+1}, v{GR+5}")
        c(xq_reduce("v_add_f32", [G, G + 1], [G + 4, G + 5]))
        c(stats_fin([(G, G + 1)], [G + 4]))
        c("s_waitcnt lgkmcnt(0)")
        YF, D = 192, 208
        for i in range(8):
            c(f"v_lshlrev_b32 v{YF+2*i}, 16, v{YP+i}", f"v_and_b32 v{YF+2*i+1}, 0xffff0000, v{YP+i}")
        dst = X2K if first else X1P
        for i in range(8):
            c(f"v_pk_add_f32 {vr(D+2*i,2)}, {vr(XF+2*i,2)}, {vr(G,2)} op_sel_hi:[1,0] neg_lo:[0,1] neg_hi:[0,1]",
              f"v_pk_mul_f32 {vr(D+2*i,2)}, {vr(D+2*i,2)}, {vr(G,2)} op_sel:[0,1]",
              f"v_pk_fma_f32 {vr(D+2*i,2)}, {vr(D+2*i,2)}, {vr(YF+2*i,2)}, {vr(XF+2*i,2)}",
              f"v_cvt_pk_bf16_f32 v{dst+i}, v{D+2*i}, v{D+2*i+1}")
        stamp("p4" if not first else "x2")
        WS4 = D
        for i in range(8):
            c(f"v_mov_b32 v{WS4+i}, v{dst+i}")
        if first:
            c(f"v_and_b32 v237, 1, v{V_Q}",
              "v_lshlrev_b32 v237, 5, v237",
              f"v_lshl_add_u32 v237, v{V_LAM}, 11, v237",
              f"v_lshrrev_b32 v76, 1, v{V_Q}",
              "v_lshl_add_u32 v237, v76, 4, v237")
        else:
            c("s_nop 1")
        for pr in range(2):
            for d_ in range(2):
                c(f"v_permlane16_swap_b32 v{WS4+4*pr+d_}, v{WS4+4*pr+2+d_}")
        c("s_nop 0")
        if not first:
            for pr in range(2):
                c(f"buffer_store_dwordx4 {vr(WS4+4*pr,4)}, v237, {sr(SOUT,4)}, s{t+5} offen offset:{64*pr}")
            c("s_waitcnt vmcnt(0)" if FINE == "p4" else "s_nop 0")
            stamp("p4")
            return
        c(f"s_add_u32 s{t+5}, s{t+5}, {X2_OFF}", f"v_mov_b32 v{G}, 0", f"v_mov_b32 v{G+1}, 0")
        dual_store(lambda fl: [f"buffer_store_dwordx4 {vr(WS4+4*pr,4)}, v237, {sr(SWS,4)}, s{t+5} offen offset:{64*pr}{fl}"
                               for pr in range(2)], "x2st", 2)
        for i in range(8):
            c(f"v_dot2_f32_bf16 v{G}, v{dst+i}, v{ONES}, v{G}", f"v_dot2_f32_bf16 v{G+1}, v{dst+i}, v{dst+i}, v{G+1}")
        c(f"s_lshl_b32 s{t}, s{s_rb}, 12",
          f"s_lshl_b32 s{t+1}, s{s_wave}, 10",
          f"s_add_u32 s{t}, s{t}, s{t+1}",
          f"s_lshl_b32 s{t+1}, s{s_g}, 3",
          f"s_add_u32 s{t}, s{t}, s{t+1}",
          f"s_add_u32 s{t}, s{t}, {XS_OFF}",
          f"v_lshlrev_b32 v74, 6, v{V_LAM}")
        c(xq_reduce("v_add_f32", [G, G + 1], [G + 4, G + 5]))
        c("s_mov_b64 exec, 0xffff")
        dual_store(lambda fl: [f"buffer_store_dwordx2 {vr(G,2)}, v74, {sr(SWS,4)}, s{t} offen{fl}"], "x2st", 1)
        c("s_mov_b64 exec, -1")
        stamp("x2")
        c(("drain",))
        stamp("x2")
        wave_flag(F_X2)
        Lh = a.label("nh")
        c(f"s_cmp_lg_u32 s{s_wave}, 3",
          f"s_cbranch_scc1 {Lh}",
          f"v_lshlrev_b32 v75, 10, v{V_LAM}",
          f"v_lshl_add_u32 v75, v{V_Q}, 3, v75",
          f"s_lshl_b32 s{t}, s{s_rb}, 13",
          f"s_lshl_b32 s{t+1}, s{s_g}, 7",
          f"s_add_u32 s{t}, s{t}, s{t+1}",
          f"s_add_u32 s{t}, s{t}, {HALO_OFF - 8192}",
          f"s_lshl_b32 s{t+2}, s{s_rb}, 9",
          f"s_lshl_b32 s{t+1}, s{s_g}, 3",
          f"s_add_u32 s{t+2}, s{t+2}, s{t+1}",
          f"s_add_u32 s{t+2}, s{t+2}, {HS_OFF - 512}",
          f"s_mov_b32 s{t+8}, 0xff00ff00",
          f"s_mov_b32 s{t+9}, 0xff00ff00",
          f"s_mov_b64 exec, {sr(t+8,2)}")
        for nt in range(4):
            c(f"buffer_store_dwordx2 {vr(dst+2*nt,2)}, v75, {sr(SWS,4)}, s{t} offen offset:{32*nt} sc1")
        c("s_mov_b64 exec, 0xff00",
          f"buffer_store_dwordx2 {vr(G,2)}, v74, {sr(SWS,4)}, s{t+2} offen sc1",
          "s_mov_b64 exec, -1",
          f"{Lh}:")

    wo_phase(0)
    stamp()

    c(flags_load(F_X2, s_rb, V_FO, t + 8))
    for qi in range(4):
        c(f"s_add_u32 s{s_xq+qi}, s{s_xq+qi}, {X2_OFF}")
    stamp("x2")
    flags_poll(V_FO, t + 8, 68, "px2")
    stamp("x2")
    Lh2 = a.label("nh2")
    c(f"s_cmp_lg_u32 s{s_wave}, 3",
      f"s_cbranch_scc1 {Lh2}",
      f"s_lshl_b32 s{t}, s{s_rb}, 7",
      f"s_lshl_b32 s{t+1}, s{s_g}, 3",
      f"s_add_u32 s{t}, s{t}, s{t+1}",
      f"s_add_u32 s{t}, s{t}, {F_H}",
      "s_mov_b64 exec, 1",
      f"buffer_store_dwordx2 {vr(V_EPV,2)}, v{V_Z}, {sr(SWS,4)}, s{t} offen sc1",
      "s_mov_b64 exec, -1",
      f"{Lh2}:")

    def x2dma(qi, i):
        return [f"s_add_u32 m0, s{s_xl+qi}, {L_X + i*4096}",
                f"s_add_u32 s{t}, s{s_xq+qi}, {i*32768}",
                ("vm", f"x2t{i}", f"buffer_load_dwordx4 v{V_XD}, {sr(SWS,4)}, s{t} offen sc1 lds")]
    PS = 184
    c(f"s_lshl_b32 s{t+1}, s{s_rb}, 12",
      f"s_lshl_b32 s{t+2}, s{s_wave}, 10",
      f"s_add_u32 s{t+1}, s{t+1}, s{t+2}",
      f"s_add_u32 s{t+1}, s{t+1}, {XS_OFF}",
      f"v_lshlrev_b32 v195, 6, v{V_LAM}",
      f"v_lshl_add_u32 v195, v{V_Q}, 4, v195")
    for qi in range(4):
        c(x2dma(qi, 1))
    c(("vm", "ps", f"buffer_load_dwordx4 {vr(PS,4)}, v195, {sr(SWS,4)}, s{t+1} offen sc1"))
    late = []
    for i in range(2, 5):
        for qi in range(4):
            late += x2dma(qi, i)
    c(late[:12])
    late = late[12:]
    V_HF = 190
    c(f"s_sub_u32 s{t+9}, s{s_rb}, 1",
      f"s_lshl_b32 s{t+9}, s{t+9}, 7",
      f"s_add_u32 s{t+9}, s{t+9}, {F_H}",
      f"v_and_b32 v192, 0x38, v{V_L8}")
    hld = f"buffer_load_dwordx2 {vr(V_HF,2)}, v192, {sr(SWS,4)}, s{t+9} offen sc1"
    stamp("x2")
    c(("wait", ["ps"]))
    stamp("x2")
    c(f"v_add_f32 v{SA}, v{PS}, v{PS+2}",
      f"v_add_f32 v{SA+1}, v{PS+1}, v{PS+3}")
    c(xq_reduce("v_add_f32", [SA, SA + 1], [104, 105]))
    c(stats_fin([(SA, SA + 1)], [104]))
    c(f"v_lshlrev_b32 v193, 3, v{V_LAM}",
      f"s_lshl_b32 s{t}, s{s_wave}, 7",
      f"s_add_u32 s{t}, s{t}, {L_ST + 128}",
      f"v_add_u32 v195, s{t}, v193",
      f"ds_write_b64 v195, {vr(SA,2)}",
      f"v_add_u32 v193, {L_ST}, v193",
      f"v_lshlrev_b32 v194, 5, v{V_Q}",
      f"v_add_u32 v194, {L_ST}, v194")
    V_S8, V_S32 = 193, 194

    def stat_reads(tl):
        return [f"ds_read_b64 {vr(STA+2*tl,2)}, v{V_S8} offset:{128*tl}",
                f"ds_read_b128 {vr(STB+8*tl,4)}, v{V_S32} offset:{128*tl}",
                f"ds_read_b128 {vr(STB+8*tl+4,4)}, v{V_S32} offset:{128*tl+16}"]

    XF3 = [168, 176]

    def tile_stream(tl):
        m = []
        def rd(e):
            return f"ds_read_b128 {vr(168+4*(e&3),4)}, v{VAE+e} offset:{4096*tl}"
        m += [rd(0), rd(1)]
        for e in range(16):
            if e % 2 == 0:
                if e + 2 < 16:
                    m += [rd(e + 2), rd(e + 3), "s_waitcnt lgkmcnt(2)"]
                else:
                    m.append("s_waitcnt lgkmcnt(0)")
            x = vr(168 + 4 * (e & 3), 4)
            wq, wk, wv = ar(12 * e, 4), ar(12 * e + 4, 4), ar(12 * e + 8, 4)
            for (acc, A_, B_, on) in ((AQ + 4 * tl, wq, x, tl > 0), (AK + 4 * tl, wk, x, True), (AV + 4 * tl, x, wv, True)):
                if on:
                    m.append(f"v_mfma_f32_16x16x32_bf16 {vr(acc,4)}, {A_}, {B_}, {vr(acc,4) if e else 0}")
        return m

    def R3(qt):
        return dict(SC=AQ + 4 * qt, SP=AK + 4 * qt, PP=AV + 4 * qt, LL=STB + 8 * qt, MX=STB + 8 * qt + 4, MT=STB + 8 * qt + 5, OO=108)

    PSH = 184
    s_hd = 21

    def halo_try(n, blocking):
        Lskip, Lgo = a.label("hskip"), a.label("hgo")
        c(f"s_cmp_lg_u32 s{s_hd}, 0", f"s_cbranch_scc1 {Lskip}")
        qs = list(c.q)
        c(f"s_cmp_eq_u32 s{s_b}, 0", f"s_cbranch_scc1 {Lgo}")
        c(("wait", [f"hf{n}"]))
        if not blocking:
            c(chk_ep([V_HF], PSH), "s_nop 4", f"s_cbranch_vccnz {Lskip}")
        else:
            poll(chk_ep([V_HF], PSH), [hld], "ph", 2)
        c(f"{Lgo}:")
        c(f"s_mov_b32 s{s_hd}, 1",
          f"v_lshrrev_b32 v{PSH}, 11, v{V_XD}",
          f"v_and_b32 v{PSH+1}, 0xff, v{V_XD}",
          f"v_lshl_add_u32 v{PSH}, v{PSH}, 10, v{PSH+1}",
          f"s_lshl_b32 s{t+2}, s{s_wave}, 10",
          f"s_lshl_b32 s{t}, s{s_rb}, 13",
          f"s_lshl_b32 s{t+1}, s{s_wave}, 12",
          f"s_add_u32 s{t}, s{t}, s{t+1}",
          f"s_add_u32 s{t}, s{t}, {HALO_OFF - 8192 - 8192}",
          f"s_cmp_lt_u32 s{s_wave}, 2",
          f"s_cselect_b32 s{t}, {OOB}, s{t}",
          f"s_cmp_eq_u32 s{s_b}, 0",
          f"s_cselect_b32 s{t}, {OOB}, s{t}")
        for qd in range(4):
            c(f"s_add_u32 m0, s{t+2}, {L_X + qd*XQ}",
              f"s_add_u32 s{t+1}, s{t}, {qd*256}",
              f"buffer_load_dwordx4 v{PSH}, {sr(SWS,4)}, s{t+1} offen sc1 lds")
        c(f"v_and_b32 v{PSH+1}, 7, v{V_LAM}",
          f"v_lshlrev_b32 v{PSH+1}, 6, v{PSH+1}",
          f"v_lshl_add_u32 v{PSH+1}, v{V_Q}, 4, v{PSH+1}",
          f"s_lshl_b32 s{t}, s{s_rb}, 9",
          f"s_add_u32 s{t}, s{t}, {HS_OFF - 512}",
          f"s_cmp_eq_u32 s{s_b}, 0",
          f"s_cselect_b32 s{t}, {OOB}, s{t}",
          "s_nop 1",
          f"buffer_load_dwordx4 {vr(PSH,4)}, v{PSH+1}, {sr(SWS,4)}, s{t} offen sc1",
          f"{Lskip}:")
        c.q = qs

    c(f"s_mov_b32 s{s_hd}, 0")
    stamp()
    order = [1, 2, 3, 4, 0]
    for n, tl in enumerate(order):
        side = []
        if n == 0:
            stamp("x2")
            c(("wait", ["x2t1"], 0), "s_barrier")
            stamp("x2")
            for t2 in range(1, 5):
                c(stat_reads(t2))
            side += late
            side.append(("vm", "hf1", hld))
        elif n == 1:
            c(("wait", ["x2t4"]), "s_barrier")
        elif n == 4:
            c(("drain",), "s_barrier")
        if n >= 1:
            side += [("gap", 8)] + normalize(order[n - 1], False, VP)
        if n >= 2:
            side += attn_tiles([order[n - 1]], VP, R3(order[n - 1]), False)
        if n == 4:
            HS2 = 188
            side += [f"v_add_f32 v{HS2}, v{PSH}, v{PSH+2}", f"v_add_f32 v{HS2+1}, v{PSH+1}, v{PSH+3}"]
            side += xq_reduce("v_add_f32", [HS2, HS2 + 1], [PSH, PSH + 1])
            side += stats_fin([(HS2, HS2 + 1)], [PSH])
            side += [f"v_and_b32 v{PSH}, 0x38, v{V_S8}", f"v_add_u32 v{PSH}, {(L_ST & ~0x3f) + 64}, v{PSH}"]
        stamp("p3")
        c.merge(tile_stream(tl), side)
        stamp("p3")
        if n >= 2:
            o_stores(O2_OFF, 108, [order[n - 1]])
        if n in (1, 2, 3):
            halo_try(n, n == 3)
            if n < 3:
                c(("vm", f"hf{n+1}", hld))
    c(f"ds_write_b64 v{PSH}, {vr(HS2,2)}", "s_waitcnt lgkmcnt(0)")
    c(stat_reads(0), "s_waitcnt lgkmcnt(0)")
    stamp("p3")
    c(normalize(0, True, VP))
    c(attn_tiles([1], VP, R3(1), True))
    o_stores(O2_OFF, 108, [1])
    stamp()
    stamp("p3")
    stamp("p4")
    c(("drain",))
    stamp("p4")
    wave_flag(F_O2)
    c(flags_load(F_O2, s_rb, V_FO, t + 8))
    pre, og = o_loads(O2_OFF)
    c(pre)
    flags_poll(V_FO, t + 8, 68, "po2")
    stamp("p4")
    for g_ in og[:OPRE]:
        c(g_)
    olate[0] = og[OPRE:]
    stamp("p4")
    wo_phase(1)
    if STAMP:
        c("s_waitcnt vmcnt(0) lgkmcnt(0)")
        stamp()
        c("s_memrealtime s[100:101]",
          f"s_mov_b32 s{SWS+2}, {16*MB}",
          f"s_lshl_b32 s{t}, s2, 8",
          f"s_lshl_b32 s{t+1}, s{s_wave}, 6",
          f"s_add_u32 s{t}, s{t}, s{t+1}",
          f"s_add_u32 s{t}, s{t}, {STAMP_OFF}",
          "s_waitcnt lgkmcnt(0)",
          "v_writelane_b32 v255, s100, 1",
          f"v_lshlrev_b32 v64, 2, v{V_LANE}",
          "s_mov_b64 exec, 0xffff",
          f"buffer_store_dword v255, v64, {sr(SWS,4)}, s{t} offen")
    if "dbgt" in EXP:
        c("s_waitcnt vmcnt(0) lgkmcnt(0)",
          "s_memrealtime s[98:99]",
          "s_not_b32 s100, s100",
          "s_waitcnt lgkmcnt(0)",
          "v_mov_b32 v64, s100",
          "v_mov_b32 v65, s98",
          "s_mov_b64 exec, 1",
          f"buffer_atomic_umax v64, v{V_Z}, {sr(SDBG,4)}, 0 offen offset:8 sc1",
          f"buffer_atomic_umax v65, v{V_Z}, {sr(SDBG,4)}, 0 offen offset:12 sc1")
    a(f"{L_end}:")
    a("s_endpgm")
    a(f".set CODE_LIMIT, {L_end} - {label}")


def main(out_path):
    a = Asm()
    label = NAME + "_kernel"
    a('.amdgcn_target "amdgcn-amd-amdhsa--gfx950"')
    a(".text")
    gen(a, label)
    desc = f""".section .rodata,"a"
.p2align 6
.amdhsa_kernel {label}
  .amdhsa_next_free_vgpr 512
  .amdhsa_next_free_sgpr 102
  .amdhsa_accum_offset 256
  .amdhsa_group_segment_fixed_size 0
  .amdhsa_kernarg_size 96
  .amdhsa_user_sgpr_count 2
  .amdhsa_user_sgpr_kernarg_segment_ptr 1
  .amdhsa_system_sgpr_workgroup_id_x 1
.end_amdhsa_kernel
"""
    hdr = f"; @launch grid=(256,1,1) block=(256,1,1) lds={LDS_SIZE}\n"
    open(out_path, "w").write(hdr + a.text() + desc)


if __name__ == "__main__":
    if len(sys.argv) > 2:
        STAMP = True
    main(sys.argv[1])
```

```python
import sys
from gen import Asm, vr, sr, srd, kernel_header, NAME, NEG, MB

KB = 1024
O1_OFF = 0
O2_OFF = 2 * MB
X2_OFF = 4 * MB
U_OFF = 6 * MB
Y_OFF = 8 * MB
ST1_OFF = 10 * MB
ST2_OFF = ST1_OFF + 256 * KB
XS_OFF = ST2_OFF + 256 * KB
HALO_OFF = XS_OFF + 128 * KB
HS_OFF = HALO_OFF + 256 * KB
FL_OFF = HS_OFF + 16 * KB
F_HELLO = FL_OFF
F_T = F_HELLO + 4 * KB
F_Y = F_T + 2 * KB
F_O1 = F_Y + 8 * KB
F_X2 = F_O1 + 8 * KB
F_O2 = F_X2 + 8 * KB
F_H = F_O2 + 8 * KB
WS_SIZE = 11 * MB
assert F_H + 4 * KB <= WS_SIZE
STAMP_OFF = 12 * MB

L_X = 0
XQ = 20480
L_R = 81920
NS = 5
L_M = 147456
L_TB = L_M
L_ST = L_M + 8192
LDS_SIZE = 163840
C_U = 0
C_K = 4608
C_KS = 4160
C_CH = 4608 + 4 * 4160
C_RED = 2 * C_CH
C_TR = C_RED + 16384
assert C_TR + 8192 <= 81920
P2_YT = L_TB

SPIN_MAX = 40000
STAMP = False
import os
EXP = os.environ.get("EXP", "")
FINE = os.environ.get("FINE", "")
OOB = 0x7ff00000
PFS = int(os.environ.get("PFS", "11"))
OPRE = int(os.environ.get("OPRE", "6"))
DSW = float(os.environ.get("DSW", "0.5"))


def ar(a_, n=1):
    return f"a{a_}" if n == 1 else f"a[{a_}:{a_+n-1}]"


class Ctx:
    def __init__(self, a):
        self.a = a
        self.q = []
        self.count = 0

    def raw(self, s):
        for l in s.split("\n"):
            if l.strip():
                self.a(l)
                self.count += 1

    def vwait_n(self, tags):
        idx = -1
        for i, t in enumerate(self.q):
            if t in tags:
                idx = i
        if idx < 0:
            return None
        n = len(self.q) - 1 - idx
        assert n <= 63
        self.q = self.q[idx + 1:]
        return n

    def item(self, it):
        if isinstance(it, str):
            self.raw(it)
        elif it[0] == "vm":
            self.raw(it[2])
            self.q.append(it[1])
        elif it[0] == "wait":
            n = self.vwait_n(it[1])
            lg = it[2] if len(it) > 2 else None
            parts = []
            if n is not None:
                parts.append(f"vmcnt({n})")
            if lg is not None:
                parts.append(f"lgkmcnt({lg})")
            if parts:
                self.raw("s_waitcnt " + " ".join(parts))
        elif it[0] == "drain":
            self.raw("s_waitcnt vmcnt(0)")
            self.q = []
        elif it[0] == "gap":
            self.raw(f"s_nop {it[1]-1}")
        else:
            raise ValueError(it)

    def __call__(self, *its):
        for it in its:
            if isinstance(it, list):
                for x in it:
                    self.item(x)
            else:
                self.item(it)

    def merge(self, main, side, k=2):
        side = list(side)
        si = 0
        dist = 0

        def is_gap(x):
            return isinstance(x, tuple) and x[0] == "gap"

        for m in main:
            self.item(m)
            mf = isinstance(m, str) and m.startswith("v_mfma")
            dist += 3 if mf else 1
            if not mf:
                continue
            quota = k
            while quota > 0 and si < len(side):
                it = side[si]
                if is_gap(it):
                    if dist >= it[1]:
                        si += 1
                        continue
                    break
                self.item(it)
                dist = 0
                si += 1
                if isinstance(it, tuple) and it[0] == "vm":
                    quota -= 2
                elif isinstance(it, str) and it.startswith("ds_"):
                    quota -= DSW
                elif not (isinstance(it, str) and it.startswith("s_")):
                    quota -= 1
        while si < len(side):
            it = side[si]
            if is_gap(it):
                if it[1] - dist > 0:
                    self.raw(f"s_nop {it[1]-dist-1}")
            else:
                self.item(it)
                dist = 0
            si += 1


def _merge2(self, main, must, opt, flush=False):
    must = list(must)
    mi = 0
    si = 0
    dist = getattr(self, "_dist", 100)

    def is_gap(x):
        return isinstance(x, tuple) and x[0] == "gap"
    for m in main:
        self.item(m)
        dist += 3
        if mi < len(must):
            self.item(must[mi])
            mi += 1
            dist += 1
        quota = 2
        while quota > 0 and si < len(opt):
            it = opt[si]
            if is_gap(it):
                if dist >= it[1]:
                    si += 1
                    continue
                break
            if callable(it):
                it()
                quota -= 2
            else:
                self.item(it)
                if isinstance(it, str) and it.startswith("v_mfma"):
                    quota -= 2
                elif not (isinstance(it, str) and it.startswith("s_")):
                    quota -= 1
            dist = 0
            si += 1
    for x in must[mi:]:
        self.item(x)
    rest = opt[si:]
    if flush:
        for it in rest:
            if is_gap(it):
                if it[1] - dist > 0:
                    self.raw(f"s_nop {it[1]-dist-1}")
            elif callable(it):
                it()
                dist = 0
            else:
                self.item(it)
                dist = 0
        rest = []
    self._dist = dist
    return rest


Ctx.merge2 = _merge2


def xq_reduce(op, vs, ts, steps=("v_permlane16_swap_b32", "v_permlane32_swap_b32")):
    l = []
    n = len(vs)
    for sw in steps:
        for v, t in zip(vs, ts):
            l.append(f"v_mov_b32 v{t}, v{v}")
        l.append(("gap", 2 if n < 2 else 1))
        for v, t in zip(vs, ts):
            l.append(f"{sw} v{v}, v{t}")
        l.append(("gap", 2 if n < 2 else 1))
        for v, t in zip(vs, ts):
            l.append(f"{op} v{v}, v{v}, v{t}")
    return l


def stats_fin(pairs, tmps):
    l = []
    def each(f):
        for (s, q), t in zip(pairs, tmps):
            l.append(f(s, q, t))
    each(lambda s, q, t: f"v_mul_f32 v{s}, 0x3b000000, v{s}")
    each(lambda s, q, t: f"v_mul_f32 v{q}, 0x3b000000, v{q}")
    each(lambda s, q, t: f"v_fma_f32 v{q}, -v{s}, v{s}, v{q}")
    each(lambda s, q, t: f"v_max_f32 v{q}, 0, v{q}")
    each(lambda s, q, t: f"v_cvt_pk_bf16_f32 v{t}, v{s}, v{q}")
    each(lambda s, q, t: f"v_lshlrev_b32 v{s}, 16, v{t}")
    each(lambda s, q, t: f"v_and_b32 v{q}, 0xffff0000, v{t}")
    each(lambda s, q, t: f"v_add_f32 v{q}, 0x3727c5ac, v{q}")
    each(lambda s, q, t: f"v_cvt_pk_bf16_f32 v{q}, v{q}, v{q}")
    each(lambda s, q, t: f"v_lshlrev_b32 v{q}, 16, v{q}")
    each(lambda s, q, t: f"v_sqrt_f32 v{q}, v{q}")
    l.append(("gap", 1))
    each(lambda s, q, t: f"v_cvt_pk_bf16_f32 v{q}, v{q}, v{q}")
    each(lambda s, q, t: f"v_lshlrev_b32 v{q}, 16, v{q}")
    each(lambda s, q, t: f"v_rcp_f32 v{q}, v{q}")
    l.append(("gap", 1))
    return l


def gen(a, label):
    kernel_header(a, label)
    c = Ctx(a)
    L_end = a.label("end")
    SX, SW, SWS, SK, SV, SSK, SWO, SKK, SOUT, SDBG = 4, 8, 12, 16, 20, 24, 28, 32, 36, 40
    s_wave, s_rb, s_g, s_p, s_b, s_rot = 44, 45, 46, 47, 48, 49
    s_ep = 50
    s_loc, s_xcc, s_D, s_wm0, s_rowbase, s_c, s_cl, s_half, s_ch, s_spin = 52, 53, 54, 55, 56, 57, 58, 59, 60, 61
    s_xq, s_xl, s_wq = 62, 66, 70
    t = 74
    s_x0m = 16
    s_flag = 18
    s_stile = 19
    nst = [0]

    def stamp(tag=""):
        if STAMP and FINE != "none" and (tag == FINE or (tag == "" and (not FINE or nst[0] == 0))):
            i = nst[0]
            assert i < 14, i
            c("s_memtime s[100:101]", "s_waitcnt lgkmcnt(0)", f"v_writelane_b32 v255, s100, {i+2}")
            nst[0] += 1

    V_LANE, V_LAM, V_Q, V_L16, V_XD, V_WD, V_BB, V_ROW, V_Z = 1, 2, 3, 4, 5, 6, 7, 8, 9
    VAE = 10
    CSQ, CSK, CSV = 26, 30, 34
    V_L8 = 35
    V_EPV = 36
    BC, BP, BP1, MC, MP, ONES = 38, 42, 46, 50, 52, 54
    V_WO = 58
    V_T0 = 62

    c("s_cmp_ge_u32 s2, 256", f"s_cbranch_scc1 {L_end}")
    if "dbgt" in EXP:
        c("s_memrealtime s[100:101]")
    if STAMP:
        c("s_memrealtime s[100:101]", "v_mov_b32 v255, 0", "s_waitcnt lgkmcnt(0)", "v_writelane_b32 v255, s100, 0")
    stamp()
    c("s_load_dwordx4 s[88:91], s[0:1], 0",
      "s_load_dwordx2 s[92:93], s[0:1], 16",
      "s_load_dwordx4 s[96:99], s[0:1], 32",
      "s_load_dwordx2 s[94:95], s[0:1], 88")
    c(f"v_and_b32 v{V_LANE}, 63, v0",
      "v_lshrrev_b32 v62, 6, v0",
      f"v_and_b32 v{V_LAM}, 15, v{V_LANE}",
      f"v_readfirstlane_b32 s{s_wave}, v62",
      f"v_lshrrev_b32 v{V_Q}, 4, v{V_LANE}",
      f"v_lshlrev_b32 v{V_L16}, 4, v{V_LANE}",
      f"v_mov_b32 v{V_Z}, 0",
      f"s_and_b32 s{s_rb}, s2, 7",
      f"s_lshl_b32 s{s_rb}, s{s_rb}, 2",
      f"s_lshr_b32 s{s_rot}, s2, 6",
      f"s_add_u32 s{s_rb}, s{s_rb}, s{s_rot}",
      f"s_lshr_b32 s{s_g}, s2, 3",
      f"s_and_b32 s{s_g}, s{s_g}, 7",
      f"s_lshr_b32 s{s_p}, s{s_rb}, 4",
      f"s_and_b32 s{s_b}, s{s_rb}, 15")
    if "nopf" not in EXP:
        Lpf = a.label("nopf")
        c(f"s_and_b32 s{t}, s2, 0x78",
          f"s_cmp_lg_u32 s{t}, 0",
          f"s_cbranch_scc1 {Lpf}",
          f"s_getpc_b64 s[{t+2}:{t+3}]",
          f"s_and_b32 s{t+2}, s{t+2}, 0xffffff00",
          f"v_lshlrev_b32 v62, 7, v0",
          f"v_min_u32 v62, CODE_LIMIT, v62",
          f"global_load_dword v253, v62, s[{t+2}:{t+3}]",
          f"{Lpf}:")
    c(f"s_lshl_b32 s{t}, s{s_wave}, 2",
      f"v_add_u32 v62, s{t}, v{V_Q}",
      f"v_xor_b32 v62, v62, v{V_LAM}",
      "v_lshlrev_b32 v62, 4, v62",
      f"v_lshl_add_u32 v{V_XD}, v{V_Q}, 11, v62")
    c(f"v_lshrrev_b32 v62, 3, v{V_LANE}",
      f"s_lshl_b32 s{t}, s{s_wave}, 3",
      f"v_add_u32 v62, s{t}, v62",
      "v_bfe_u32 v63, v62, 3, 1",
      "v_lshlrev_b32 v63, 1, v63",
      "v_bfe_u32 v64, v62, 1, 1",
      "v_or_b32 v63, v63, v64",
      f"v_bfe_u32 v64, v{V_LANE}, 1, 2",
      "v_xor_b32 v63, v63, v64",
      "v_lshlrev_b32 v63, 5, v63",
      f"v_and_b32 v64, 1, v{V_LANE}",
      "v_lshl_add_u32 v63, v64, 4, v63",
      f"v_mul_u32_u24 v{V_WD}, 3072, v62",
      f"v_add_u32 v{V_WD}, v{V_WD}, v63")
    c(f"s_lshl_b32 s{s_rowbase}, s{s_b}, 17",
      f"s_lshl_b32 s{t}, s{s_p}, 10",
      f"s_add_u32 s{s_rowbase}, s{s_rowbase}, s{t}",
      f"s_mul_i32 s{s_wm0}, s{s_wave}, 3072",
      f"s_add_u32 s{s_wm0}, s{s_wm0}, {L_R}")
    c(f"s_lshl_b32 s{t+1}, s{s_wave}, 13",
      f"s_add_u32 s{t+1}, s{t+1}, s{s_rowbase}",
      f"s_sub_u32 s{t+1}, s{t+1}, 32768",
      f"s_lshl_b32 s{t+2}, s{s_wave}, 10",
      f"s_lshl_b32 s{t+3}, s{s_g}, 7")
    for qi in range(4):
        c(f"s_add_u32 s{t}, s{s_rot}, {qi}",
          f"s_and_b32 s{t}, s{t}, 3",
          f"s_lshl_b32 s{s_xq+qi}, s{t}, 8",
          f"s_add_u32 s{s_xq+qi}, s{s_xq+qi}, s{t+1}",
          f"s_mul_i32 s{s_xl+qi}, s{t}, {XQ}",
          f"s_add_u32 s{s_xl+qi}, s{s_xl+qi}, s{t+2}",
          f"s_mul_i32 s{s_wq+qi}, s{t}, {4*98304}",
          f"s_add_u32 s{s_wq+qi}, s{s_wq+qi}, s{t+3}")
    s_wo = 82
    for e4 in range(4):
        c(f"s_add_u32 s{t}, s2, {e4}",
          f"s_and_b32 s{t}, s{t}, 3",
          f"s_mul_i32 s{s_wo+e4}, s{t}, 98304")
    c(f"s_cmp_eq_u32 s{s_wave}, 0",
      "s_cselect_b32 s86, 0xffff0000, -1",
      "s_mov_b32 s87, -1")
    stamp("p1")
    c("s_waitcnt lgkmcnt(0)")
    stamp("p1")
    srd(a, SX, 88, 89, 2 * MB)
    srd(a, SW, 90, 91, 512 * 1536 * 2)

    def xdma(qi, i):
        l = [f"s_add_u32 m0, s{s_xl+qi}, {L_X + i*4096}"]
        if i == 0:
            l += [f"s_cmp_lt_u32 s{s_wave}, 2",
                  f"s_cselect_b32 s{t}, {OOB}, s{s_xq+qi}",
                  ("vm", f"x{qi}", f"s_mov_b64 exec, s[86:87]\nbuffer_load_dwordx4 v{V_XD}, {sr(SX,4)}, s{t} offen lds\ns_mov_b64 exec, -1")]
        else:
            l += [f"s_add_u32 s{t}, s{s_xq+qi}, {i*32768}",
                  ("vm", f"x{qi}", f"buffer_load_dwordx4 v{V_XD}, {sr(SX,4)}, s{t} offen lds")]
        return l

    def wdma(ch):
        l = [f"s_add_u32 m0, s{s_wm0}, {(ch % NS)*12288}",
             f"s_add_u32 s{t}, s{s_wq+(ch>>2)}, s{s_wo+(ch&3)}"]
        for s in range(3):
            l.append(("vm", f"w{ch}", f"buffer_load_dwordx4 v{V_WD}, {sr(SW,4)}, s{t} offen offset:{1024*s} lds"))
        return l

    for i in range(5):
        c(xdma(0, i))
    c(wdma(0))
    srd(a, SWS, 94, 95, WS_SIZE)
    srd(a, SK, 96, 97, 2 * MB)
    srd(a, SV, 98, 99, 2 * MB)
    srd(a, SWO, 92, 93, 512 * 512 * 2)
    c("s_load_dwordx4 s[88:91], s[0:1], 48",
      "s_load_dwordx4 s[92:95], s[0:1], 64",
      "s_load_dwordx2 s[96:97], s[0:1], 80")
    TK, TV, TS = 184, 204, 212
    KF, SF, VF, OF = 228, 238, 246, 250
    UP = 112
    c(f"s_lshr_b32 s{t}, s2, 3",
      f"s_lshl_b32 s{t}, s{t}, 16",
      f"s_and_b32 s{t+1}, s2, 7",
      f"s_lshl_b32 s{t+2}, s{t+1}, 7",
      f"s_add_u32 s{t}, s{t}, s{t+2}",
      "v_and_b32 v64, 7, v0",
      "v_lshrrev_b32 v65, 3, v0",
      "v_lshlrev_b32 v66, 11, v65",
      "v_lshl_add_u32 v66, v64, 4, v66",
      f"v_add_u32 v66, s{t}, v66",
      "v_add_u32 v67, 0xfffff400, v66",
      "v_add_u32 v68, 0xfffff800, v66",
      "v_add_u32 v69, 0xfffffc00, v66")
    for ins in (f"buffer_load_dwordx4 {vr(TK,4)}, v67, {sr(SK,4)}, 0 offen",
                f"buffer_load_dwordx4 {vr(TK+4,4)}, v68, {sr(SK,4)}, 0 offen",
                f"buffer_load_dwordx4 {vr(TK+8,4)}, v69, {sr(SK,4)}, 0 offen",
                f"buffer_load_dwordx4 {vr(TK+12,4)}, v66, {sr(SK,4)}, 0 offen",
                f"buffer_load_dwordx4 {vr(TK+16,4)}, v66, {sr(SK,4)}, 0 offen offset:1024",
                f"buffer_load_dwordx4 {vr(TV,4)}, v66, {sr(SV,4)}, 0 offen",
                f"buffer_load_dwordx4 {vr(TV+4,4)}, v66, {sr(SV,4)}, 0 offen offset:1024"):
        if "notl" not in EXP:
            c(("vm", "T", ins))
    c("s_waitcnt lgkmcnt(0)")
    srd(a, SSK, 88, 89, 4096)
    srd(a, SKK, 90, 91, 2 * MB)
    srd(a, SOUT, 94, 95, 2 * MB)
    srd(a, SDBG, 96, 97, 256)
    c(f"s_lshl_b32 s{t+3}, s2, 2",
      f"s_load_dword s{s_D}, s[92:93], s{t+3}",
      f"s_getreg_b32 s{s_xcc}, hwreg(HW_REG_XCC_ID)",
      f"s_and_b32 s{s_xcc}, s{s_xcc}, 15",
      f"s_lshl_b32 s{t+2}, s{t+1}, 9",
      "v_lshlrev_b32 v67, 6, v64")
    for d in range(4):
        c(("vm", "T", f"buffer_load_dwordx4 {vr(TS+4*d,4)}, v67, {sr(SSK,4)}, s{t+2} offen offset:{16*d}"))
    Lq = a.label("noep")
    c(f"s_or_b32 s{t}, s2, s{s_wave}",
      f"s_cmp_lg_u32 s{t}, 0",
      f"s_cbranch_scc1 {Lq}",
      f"s_memrealtime s[{t+4}:{t+5}]",
      "s_waitcnt lgkmcnt(0)",
      f"s_or_b32 s{t+4}, s{t+4}, 1",
      f"v_mov_b32 v70, s{t+4}",
      f"v_mov_b32 v71, s{t+5}",
      "s_mov_b64 exec, 1",
      f"buffer_store_dwordx2 v[70:71], v{V_Z}, {sr(SDBG,4)}, 0 offen sc1",
      "s_mov_b64 exec, -1",
      f"{Lq}:")
    c(wdma(1))
    k = []
    k += [f"v_bfe_u32 v70, v{V_LANE}, 2, 2",
          f"v_and_b32 v71, 1, v{V_Q}",
          "v_lshlrev_b32 v71, 1, v71",
          "v_lshrrev_b32 v72, 1, v70",
          "v_or_b32 v71, v71, v72",
          f"v_xor_b32 v72, s{s_wave}, v71",
          "v_lshlrev_b32 v72, 5, v72",
          "v_lshl_add_u32 v72, v70, 7, v72",
          f"v_and_b32 v73, 3, v{V_LANE}",
          "v_lshl_add_u32 v72, v73, 3, v72",
          f"v_mul_u32_u24 v74, 3072, v{V_Q}",
          "v_add_u32 v72, v72, v74",
          f"v_add_u32 v{V_BB}, {L_R}, v72",
          f"v_lshl_add_u32 v72, v{V_Q}, 3, v70",
          "v_lshlrev_b32 v72, 7, v72",
          "v_lshl_add_u32 v72, v73, 3, v72",
          f"v_add_u32 v72, {L_R}, v72"]
    for nt in range(4):
        k += [f"v_xor_b32 v74, {nt}, v71", f"v_lshl_add_u32 v{V_WO+nt}, v74, 5, v72"]
    k += [f"s_lshl_b32 s{t+2}, s{s_wave}, 10"]
    for e4 in range(4):
        k += [f"s_add_u32 s{t+3}, s2, {e4}",
              f"s_and_b32 s{t+3}, s{t+3}, 3",
              f"s_lshl_b32 s{t+3}, s{t+3}, 2",
              f"v_add_u32 v70, s{t+3}, v{V_Q}",
              f"v_xor_b32 v70, v70, v{V_LAM}",
              "v_lshlrev_b32 v70, 4, v70",
              f"v_lshl_add_u32 v70, v{V_LAM}, 8, v70",
              f"v_subrev_u32 v70, s{t+2}, v70"]
        for qi in range(4):
            k.append(f"v_add_u32 v{VAE+4*qi+e4}, s{s_xl+qi}, v70")
    k += [f"v_lshlrev_b32 v{V_ROW}, 11, v{V_LAM}",
          f"v_lshl_add_u32 v{V_ROW}, v{V_Q}, 3, v{V_ROW}",
          f"v_lshlrev_b32 v{V_L8}, 3, v{V_LANE}",
          f"v_lshlrev_b32 v70, 2, v{V_Q}",
          f"v_mov_b32 v72, {NEG}",
          f"s_cmp_eq_u32 s{s_b}, 0",
          f"s_cselect_b32 s{t+2}, -1, 0",
          f"s_mov_b32 s{t+3}, s{t+2}"]
    for r in range(4):
        k += [f"v_add_u32 v71, {r}, v70",
              f"v_sub_u32 v71, v{V_LAM}, v71",
              "v_cmp_gt_u32 vcc, 8, v71",
              "v_add_u32 v71, 16, v71",
              f"v_cmp_gt_u32 {sr(t+4,2)}, 8, v71",
              f"v_cndmask_b32 v{BC+r}, v72, 0, vcc",
              f"v_cndmask_b32 v{74+r}, 0, -1, vcc",
              f"v_cndmask_b32 v{BP+r}, v72, 0, {sr(t+4,2)}",
              f"v_cndmask_b32 v{78+r}, 0, -1, {sr(t+4,2)}",
              f"v_cndmask_b32 v{BP1+r}, v{BP+r}, v72, {sr(t+2,2)}"]
    k.append(f"s_mov_b32 s{t+4}, 0xffff")
    for h in range(2):
        k += [f"v_bfi_b32 v{MC+h}, s{t+4}, v{74+2*h}, v{75+2*h}",
              f"v_bfi_b32 v{MP+h}, s{t+4}, v{78+2*h}, v{79+2*h}"]
    for r in range(4):
        k.append(f"v_mov_b32 v{ONES+r}, 0x3f803f80")
    k += [f"v_mul_u32_u24 v70, {XQ}, v{V_Q}",
          f"v_lshl_add_u32 v70, v{V_LAM}, 4, v70",
          f"ds_write_b128 v70, {vr(ONES,4)} offset:{L_X}"]
    k += [f"s_add_u32 s{s_stile}, s{s_wave}, 1",
          f"s_lshl_b32 s{s_stile}, s{s_stile}, 12",
          f"s_lshl_b32 s{s_flag}, s{s_rb}, 8",
          f"s_lshl_b32 s{t+2}, s{s_g}, 5",
          f"s_add_u32 s{s_flag}, s{s_flag}, s{t+2}",
          f"s_lshl_b32 s{t+2}, s{s_wave}, 3",
          f"s_add_u32 s{s_flag}, s{s_flag}, s{t+2}",
          f"s_lshr_b32 s{s_ch}, s{s_wave}, 1",
          f"s_and_b32 s{s_half}, s{s_wave}, 1",
          f"s_lshl_b32 s{s_c}, s2, 1",
          f"s_add_u32 s{s_c}, s{s_c}, s{s_ch}",
          f"s_lshl_b32 s{s_c}, s{s_c}, 12",
          f"s_mul_i32 s{s_cl}, s{s_ch}, {C_CH}"]
    c(k)
    c(wdma(2))
    stamp("p1")
    c(("wait", ["T"]))
    stamp("p1")
    tc = []
    for d in range(4):
        for r in range(5):
            tc.append(f"v_lshlrev_b32 v{KF+2*r}, 16, v{TK+4*r+d}")
            tc.append(f"v_and_b32 v{KF+2*r+1}, 0xffff0000, v{TK+4*r+d}")
        for j in range(4):
            for cc in range(2):
                src = TS + 4 * d + 2 * cc + (j >> 1)
                tc.append(f"v_and_b32 v{SF+2*j+cc}, 0xffff0000, v{src}" if j & 1 else f"v_lshlrev_b32 v{SF+2*j+cc}, 16, v{src}")
        for tt in range(2):
            tc.append(f"v_lshlrev_b32 v{VF+2*tt}, 16, v{TV+4*tt+d}")
            tc.append(f"v_and_b32 v{VF+2*tt+1}, 0xffff0000, v{TV+4*tt+d}")
        for tt in range(2):
            o = OF + 2 * tt
            tc.append(f"v_pk_mul_f32 {vr(o,2)}, {vr(KF+2*(tt+0),2)}, {vr(SF+6,2)}")
            for j in (2, 1, 0):
                tc.append(f"v_pk_fma_f32 {vr(o,2)}, {vr(KF+2*(3+tt-j),2)}, {vr(SF+2*j,2)}, {vr(o,2)}")
            tc.append(f"v_pk_mul_f32 {vr(o,2)}, {vr(o,2)}, {vr(VF+2*tt,2)}")
        tc.append(f"v_cvt_pk_bf16_f32 v{UP+2*d}, v{OF+2}, v{OF}")
        tc.append(f"v_cvt_pk_bf16_f32 v{UP+2*d+1}, v{OF+3}, v{OF+1}")
    groups = [xdma(1, i) for i in range(5)] + [wdma(3), wdma(4)]
    per = len(tc) // (len(groups) + 1)
    for i, l in enumerate(tc):
        if "notc" not in EXP:
            c(l)
        if (i + 1) % per == 0 and groups:
            c(groups.pop(0))
    assert not groups
    c("v_sub_u32 v67, 31, v65",
      "v_lshrrev_b32 v68, 2, v67",
      "v_xor_b32 v68, v68, v64",
      "v_lshlrev_b32 v68, 4, v68",
      "v_and_b32 v67, 3, v67",
      "v_lshl_add_u32 v68, v67, 2, v68",
      "v_lshl_add_u32 v68, v64, 10, v68",
      f"v_add_u32 v68, {L_TB}, v68")
    for i in range(8):
        c(f"ds_write_b32 v68, v{UP+i} offset:{128*i}")
    c("v_lshrrev_b32 v67, 3, v0",
      "v_lshrrev_b32 v68, 3, v67",
      "v_xor_b32 v68, v68, v64",
      "v_lshlrev_b32 v68, 4, v68",
      "v_lshl_add_u32 v68, v67, 7, v68",
      f"v_add_u32 v68, {L_TB}, v68",
      "v_xor_b32 v69, 64, v68",
      f"s_and_b32 s{t}, s2, 7",
      f"s_lshl_b32 s{t}, s{t}, 18",
      f"s_lshr_b32 s{t+1}, s2, 3",
      f"s_lshl_b32 s{t+1}, s{t+1}, 7",
      f"s_sub_u32 s{t}, s{t}, s{t+1}",
      f"s_add_u32 s{t}, s{t}, {U_OFF + 3968}",
      f"s_add_u32 s{t+1}, s{t}, {32*4096}",
      "v_lshlrev_b32 v67, 12, v67",
      "v_lshl_add_u32 v67, v64, 4, v67",
      "s_nop 0")
    stamp("p1")
    c(("wait", ["x0", "w0"], 0),
      "s_barrier",
      f"ds_read_b128 {vr(UP,4)}, v68",
      f"ds_read_b128 {vr(UP+4,4)}, v69 offset:4096")

    XS = [64 + 8, 96]
    XS = [184, 208]
    ACC = 108
    AQ, AK, AV = ACC, ACC + 20, ACC + 40
    SA = 168
    V_SB = 172
    V_EP = 174
    SU = 232

    def p1_reads(P, e):
        l = []
        slot = (e % NS) * 12288
        l.append(f"v_add_u32 v{V_SB}, s{s_stile}, v{VAE+e}")
        for s in range(3):
            for ss in range(2):
                l.append(f"ds_read_b64_tr_b16 {ar(12*e+4*s+2*ss,2)}, v{V_BB} offset:{slot+1024*s+512*ss}")
        for tl in range(5):
            l.append(f"ds_read_b128 {vr(XS[P]+4*tl,4)}, v{VAE+e} offset:{4096*tl}")
        l.append(f"ds_read_b128 {vr(XS[P]+20,4)}, v{V_SB}")
        return l

    c(p1_reads(0, 0))
    c(f"v_mov_b32 v{SA}, 0", f"v_mov_b32 v{SA+1}, 0", "s_waitcnt lgkmcnt(12)")
    c(("vm", "Tst", f"buffer_store_dwordx4 {vr(UP,4)}, v67, {sr(SWS,4)}, s{t} offen sc1"),
      ("vm", "Tst", f"buffer_store_dwordx4 {vr(UP+4,4)}, v67, {sr(SWS,4)}, s{t+1} offen sc1"))
    stamp()
    V_WOD = 176
    wod = [f"v_lshrrev_b32 v{V_T0}, 3, v{V_LANE}",
           f"v_bfe_u32 v{V_T0+1}, v{V_T0}, 1, 1",
           f"s_lshl_b32 s{t+5}, s{s_half}, 1",
           f"v_or_b32 v{V_T0+1}, s{t+5}, v{V_T0+1}",
           f"v_bfe_u32 v{V_WOD}, v{V_LANE}, 1, 2",
           f"v_xor_b32 v{V_T0+1}, v{V_T0+1}, v{V_WOD}",
           f"v_lshlrev_b32 v{V_T0+1}, 5, v{V_T0+1}",
           f"v_and_b32 v{V_WOD}, 1, v{V_LANE}",
           f"v_lshl_add_u32 v{V_T0+1}, v{V_WOD}, 4, v{V_T0+1}",
           f"v_lshl_add_u32 v{V_WOD}, v{V_T0}, 10, v{V_T0+1}",
           f"s_lshl_b32 s{t+6}, s{s_g}, 7",
           f"s_lshl_b32 s{t+5}, s{s_wave}, 13",
           f"s_add_u32 s{t+6}, s{t+6}, s{t+5}",
           f"s_lshl_b32 s{t+7}, s{s_wave}, 10"]

    def wodma(n):
        return [f"s_add_u32 m0, s{t+7}, {L_R + n*4096}",
                f"s_add_u32 s{t}, s{t+6}, {n*32768}",
                ("vm", "wo", f"buffer_load_dwordx4 v{V_WOD}, {sr(SWO,4)}, s{t} offen lds")]

    xsched = {0: [(2, 0), (2, 1)], 1: [(2, 2), (2, 3), (2, 4)], 2: [(3, 0), (3, 1)], 3: [(3, 2), (3, 3), (3, 4)]}
    V_HL, V_FT = 178, 182
    for e in range(16):
        P = e & 1
        need = []
        if e < 15:
            need = [f"w{e+1}"]
            if (e + 1) % 4 == 0:
                need.append(f"x{(e+1)//4}")
            if e == 4:
                need += ["Tst", "ep"]
        c(("wait", need, 0))
        if "nobar" not in EXP:
            c("s_barrier")
        sx = XS[P] + 20
        st_ops = []
        if "plain" not in EXP:
            for i in range(4):
                c(f"v_dot2_f32_bf16 v{SA}, v{sx+i}, v{ONES}, v{SA}",
                  f"v_dot2_f32_bf16 v{SA+1}, v{sx+i}, v{sx+i}, v{SA+1}")
        else:
            for i in range(4):
                st_ops += [f"v_lshlrev_b32 v{SU}, 16, v{sx+i}",
                           f"v_and_b32 v{SU+1}, 0xffff0000, v{sx+i}",
                           f"v_add_f32 v{SA}, v{SA}, v{SU}",
                           f"v_fmac_f32 v{SA+1}, v{SU}, v{SU}",
                           f"v_add_f32 v{SA}, v{SA}, v{SU+1}",
                           f"v_fmac_f32 v{SA+1}, v{SU+1}, v{SU+1}"]
        if e in (0, 2, 4, 6, 8, 10, 12, 14):
            stamp("p1")
        other = []
        if e < 15:
            other += p1_reads(1 - P, e + 1)
        if e == 0:
            other.append(("vm", "ep", f"buffer_load_dwordx2 {vr(V_EP,2)}, v{V_Z}, {sr(SDBG,4)}, 0 offen sc1"))
        if e + NS < 16:
            other += wdma(e + NS)
        for (qi, i) in xsched.get(e, []):
            other += xdma(qi, i)
        if e == 15:
            other += [f"s_lshl_b32 s{t+8}, s{s_rb}, 7",
                      f"s_add_u32 s{t+8}, s{t+8}, {F_HELLO}",
                      f"v_and_b32 v{V_T0}, 0x70, v{V_L16}",
                      ("vm", "hl", f"buffer_load_dwordx4 {vr(V_HL,4)}, v{V_T0}, {sr(SWS,4)}, s{t+8} offen sc1"),
                      f"s_lshr_b32 s{t+9}, s2, 5",
                      f"s_lshl_b32 s{t+9}, s{t+9}, 8",
                      f"s_add_u32 s{t+9}, s{t+9}, {F_T}",
                      f"v_and_b32 v{V_T0+1}, 0xf8, v{V_L8}",
                      ("vm", "hl", f"buffer_load_dwordx2 {vr(V_FT,2)}, v{V_T0+1}, {sr(SWS,4)}, s{t+9} offen sc1")]
        if e == 7 and "nopf2" not in EXP:
            other += [f"s_lshl_b32 s{t}, s2, 13",
                      f"s_lshl_b32 s{t+1}, s{s_wave}, 11",
                      f"s_add_u32 s{t}, s{t}, s{t+1}",
                      ("vm", "pf", f"buffer_load_dwordx4 v[240:243], v{V_L16}, {sr(SKK,4)}, s{t} offen"),
                      ("vm", "pf", f"buffer_load_dwordx4 v[240:243], v{V_L16}, {sr(SKK,4)}, s{t} offen offset:1024"),
                      f"v_lshlrev_b32 v236, 18, v{V_LANE}",
                      ("vm", "pf", f"buffer_load_dword v237, v236, {sr(SWS,4)}, 0 offen"),
                      ("vm", "pf", f"buffer_load_dword v237, v236, {sr(SOUT,4)}, 0 offen")]
        if e == 8 and "nopfl" not in EXP:
            other += [f"s_lshl_b32 s{t}, s{s_rb}, 8",
                      f"v_lshlrev_b32 v236, 13, v{V_Q}",
                      f"v_lshl_add_u32 v236, v{V_LAM}, 4, v236",
                      f"s_add_u32 s{t}, s{t}, {F_O1}",
                      ("vm", "pf", f"buffer_load_dword v237, v236, {sr(SWS,4)}, s{t} offen sc1"),
                      f"s_lshl_b32 s{t}, s{s_rb}, 13",
                      f"s_lshl_b32 s{t+1}, s{s_wave}, 11",
                      f"s_add_u32 s{t}, s{t}, s{t+1}",
                      f"v_lshlrev_b32 v236, 7, v{V_LAM}",
                      f"v_and_b32 v238, 1, v{V_Q}",
                      f"v_lshl_add_u32 v236, v238, 18, v236",
                      f"s_add_u32 s{t}, s{t}, {ST1_OFF}",
                      ("vm", "pf", f"buffer_load_dword v237, v236, {sr(SWS,4)}, s{t} offen sc1")]
        if e == 9 and "pfb" in EXP:
            other += [f"s_lshl_b32 s{t}, s{s_g}, 2",
                      f"s_add_u32 s{t}, s{t}, s{s_wave}",
                      f"s_lshl_b32 s{t}, s{t}, 9",
                      f"s_lshl_b32 s{t+1}, s{s_rb}, 16",
                      f"s_add_u32 s{t}, s{t}, s{t+1}",
                      f"v_and_b32 v236, 3, v{V_LANE}",
                      "v_lshlrev_b32 v236, 7, v236",
                      f"v_bfe_u32 v237, v{V_LANE}, 2, 2",
                      "v_lshl_add_u32 v236, v237, 14, v236",
                      f"v_and_b32 v237, 1, v{V_Q}",
                      "v_lshl_add_u32 v236, v237, 21, v236",
                      ("vm", "pf", f"buffer_load_dword v237, v236, {sr(SWS,4)}, s{t} offen"),
                      f"s_lshl_b32 s{t}, s{s_wave}, 15",
                      f"s_add_u32 s{t}, s{t}, s{s_rowbase}",
                      f"s_lshl_b32 s{t+1}, s{s_g}, 7",
                      f"s_add_u32 s{t}, s{t}, s{t+1}",
                      f"s_add_u32 s{t+1}, s{t}, {X2_OFF}",
                      ("vm", "pf", f"buffer_load_dword v237, v{V_ROW}, {sr(SWS,4)}, s{t+1} offen"),
                      ("vm", "pf", f"buffer_load_dword v237, v{V_ROW}, {sr(SOUT,4)}, s{t} offen")]
        if e == 10:
            other += wod
        if e == 11:
            other += wodma(15)
        if e >= 12:
            for n in range(3 * (e - 11), 3 * (e - 11) + 3):
                other += wodma(n)
        if e == 4:
            Lp, Lok, Lnf = a.label("ep"), a.label("epok"), a.label("nf")
            c(f"s_mov_b32 s{s_spin}, 0",
              f"{Lp}:",
              f"v_readfirstlane_b32 s{s_ep}, v{V_EP}",
              f"v_readfirstlane_b32 s{s_ep+1}, v{V_EP+1}",
              f"s_add_u32 s{s_spin}, s{s_spin}, 1",
              f"s_cmp_lg_u32 s{s_ep}, 0",
              f"s_cbranch_scc1 {Lok}",
              f"s_cmp_gt_u32 s{s_spin}, {SPIN_MAX}",
              f"s_cbranch_scc1 {Lok}",
              "s_sleep 2",
              f"buffer_load_dwordx2 {vr(V_EP,2)}, v{V_Z}, {sr(SDBG,4)}, 0 offen sc1",
              "s_waitcnt vmcnt(0)",
              f"s_branch {Lp}",
              f"{Lok}:",
              f"v_mov_b32 v{V_EPV}, s{s_ep}",
              f"v_mov_b32 v{V_EPV+1}, s{s_ep+1}",
              f"s_cmp_lg_u32 s{s_wave}, 0",
              f"s_cbranch_scc1 {Lnf}",
              f"v_mov_b32 v{V_HL}, s{s_ep}",
              f"v_mov_b32 v{V_HL+1}, s{s_ep+1}",
              f"v_mov_b32 v{V_HL+2}, s{s_xcc}",
              f"v_mov_b32 v{V_HL+3}, 0",
              f"s_and_b32 s{t}, s2, 7",
              f"s_lshl_b32 s{t}, s{t}, 8",
              f"s_and_b32 s{t+1}, s2, 0xf8",
              f"s_add_u32 s{t}, s{t}, s{t+1}",
              f"s_add_u32 s{t}, s{t}, {F_T}",
              f"s_lshl_b32 s{t+1}, s{s_rb}, 7",
              f"s_lshl_b32 s{t+2}, s{s_g}, 4",
              f"s_add_u32 s{t+1}, s{t+1}, s{t+2}",
              f"s_add_u32 s{t+1}, s{t+1}, {F_HELLO}",
              "s_mov_b64 exec, 1",
              f"buffer_store_dwordx2 {vr(V_HL,2)}, v{V_Z}, {sr(SWS,4)}, s{t} offen sc1",
              f"buffer_store_dwordx4 {vr(V_HL,4)}, v{V_Z}, {sr(SWS,4)}, s{t+1} offen sc1",
              "s_mov_b64 exec, -1",
              f"{Lnf}:")
        mf = []
        wq, wk, wv = ar(12 * e, 4), ar(12 * e + 4, 4), ar(12 * e + 8, 4)
        for tl in range(5):
            x = vr(XS[P] + 4 * tl, 4)
            for (acc, A_, B_) in ((AQ + 4 * tl, wq, x), (AK + 4 * tl, wk, x), (AV + 4 * tl, x, wv)):
                mf.append(f"v_mfma_f32_16x16x32_bf16 {vr(acc,4)}, {A_}, {B_}, {vr(acc,4) if e else 0}")
        mix = []
        no, ns = len(other), len(st_ops)
        io = 0
        for j, so in enumerate(st_ops):
            while io < (j + 1) * no // max(ns, 1):
                mix.append(other[io])
                io += 1
            mix.append(so)
        mix += other[io:]
        c.merge(mf, mix)
    stamp()
    HR = 64
    c(f"v_lshrrev_b32 v72, 5, v{V_LANE}",
      f"s_lshl_b32 s{t}, s{s_wave}, 1",
      f"s_add_u32 s{t}, s{t}, 8",
      f"v_add_u32 v72, s{t}, v72",
      "v_lshlrev_b32 v72, 8, v72",
      f"v_lshl_add_u32 v72, v{V_LAM}, 4, v72",
      f"v_and_b32 v73, 1, v{V_Q}",
      f"v_mul_u32_u24 v73, {XQ}, v73",
      "v_add_u32 v72, v72, v73",
      f"ds_read_b128 {vr(HR,4)}, v72 offset:{L_X}",
      f"ds_read_b128 {vr(HR+4,4)}, v72 offset:{L_X+2*XQ}",
      f"v_mov_b32 v{SA+2}, 0",
      f"v_mov_b32 v{SA+3}, 0",
      f"v_lshlrev_b32 v74, 2, v{V_LAM}")
    for r in range(4):
        c(f"v_mov_b32_dpp v{CSQ+r}, v{AQ+r} row_newbcast:0 row_mask:0xf bank_mask:0xf",
          f"v_mov_b32_dpp v{CSK+r}, v{AK+r} row_newbcast:0 row_mask:0xf bank_mask:0xf")
    c(f"ds_bpermute_b32 v{CSV}, v74, v{AV}",
      "s_waitcnt lgkmcnt(0)",
      "s_barrier")
    STA, STB = 94, 196
    QP, KP, VP = 64, 74, 84
    def read_stats(vlam8):
        l = [f"ds_read_b64 {vr(STA+2*tl,2)}, v{vlam8} offset:{128*tl}" for tl in range(5)]
        l += [f"v_lshlrev_b32 v{V_T0}, 5, v{V_Q}", f"v_add_u32 v{V_T0}, {L_ST}, v{V_T0}"]
        for tl in range(5):
            l += [f"ds_read_b128 {vr(STB+8*tl,4)}, v{V_T0} offset:{128*tl}",
                  f"ds_read_b128 {vr(STB+8*tl+4,4)}, v{V_T0} offset:{128*tl+16}"]
        return l

    def poll(check_lines, reload_lines, name, sleep=1):
        Lp, Ld = a.label(name), a.label(name + "d")
        c(f"s_mov_b32 s{s_spin}, 0", f"{Lp}:")
        c(check_lines)
        c(f"s_add_u32 s{s_spin}, s{s_spin}, 1",
          f"s_cmp_gt_u32 s{s_spin}, {SPIN_MAX}",
          f"s_cbranch_scc1 {Ld}",
          "s_nop 1",
          f"s_cbranch_vccz {Ld}",
          f"s_sleep {sleep}")
        c(reload_lines)
        c("s_waitcnt vmcnt(0)", f"s_branch {Lp}", f"{Ld}:")

    def chk_ep(regs_lo, tmp):
        l = []
        for n, lo in enumerate(regs_lo):
            if n == 0:
                l.append(f"v_xor_b32 v{tmp}, s{s_ep}, v{lo}")
            else:
                l.append(f"v_xor_b32 v{tmp+1}, s{s_ep}, v{lo}")
                l.append(f"v_or_b32 v{tmp}, v{tmp}, v{tmp+1}")
            l.append(f"v_xor_b32 v{tmp+1}, s{s_ep+1}, v{lo+1}")
            l.append(f"v_or_b32 v{tmp}, v{tmp}, v{tmp+1}")
        l.append(f"v_cmp_ne_u32 vcc, 0, v{tmp}")
        return l

    PT = 104
    c(f"v_and_b32 v{PT}, 0x70, v{V_L16}", f"v_and_b32 v{PT+1}, 0xf8, v{V_L8}")
    c(("wait", ["hl"]))
    poll(chk_ep([V_HL, V_FT], 106),
         [f"buffer_load_dwordx4 {vr(V_HL,4)}, v{PT}, {sr(SWS,4)}, s{t+8} offen sc1",
          f"buffer_load_dwordx2 {vr(V_FT,2)}, v{PT+1}, {sr(SWS,4)}, s{t+9} offen sc1"], "phl")
    c(f"v_cmp_ne_u32 vcc, s{s_xcc}, v{V_HL+2}",
      f"s_lshl_b32 s{t+3}, s{s_half}, 11",
      f"s_add_u32 s{t+4}, s{s_c}, s{t+3}",
      f"s_add_u32 s{t+4}, s{t+4}, {U_OFF}",
      f"s_add_u32 m0, s{s_cl}, s{t+3}",
      "s_nop 0",
      ("vm", "cu", f"buffer_load_dwordx4 v{V_L16}, {sr(SWS,4)}, s{t+4} offen sc1 lds"),
      ("vm", "cu", f"buffer_load_dwordx4 v{V_L16}, {sr(SWS,4)}, s{t+4} offen offset:1024 sc1 lds"),
      "s_cmp_eq_u64 vcc, 0",
      f"s_cselect_b32 s{s_loc}, 1, 0")
    V_FX, V_FI = 184, 185
    dm = []
    for i in range(2):
        g0 = [f"s_lshl_b32 s{t+3}, s{s_half}, 1",
              f"s_add_u32 s{t+3}, s{t+3}, {i}",
              f"s_mul_i32 s{t+5}, s{t+3}, {C_KS}",
              f"s_add_u32 s{t+5}, s{t+5}, s{s_cl}",
              f"s_add_u32 s{t+10+i}, s{t+5}, {C_K+32}",
              f"s_lshl_b32 s{t+3}, s{t+3}, 1",
              f"s_add_u32 s{t+12+i}, s{s_c}, s{t+3}"]
        c(g0)
        for n in range(4):
            dm.append([f"s_mov_b32 m0, s{t+10+i}", "s_nop 0",
                       ("vm", "ck", f"buffer_load_dwordx4 v{V_L16}, {sr(SKK,4)}, s{t+12+i} offen offset:{1024*n} lds")])
    for n in range(3):
        dm.append(wodma(n))
    c(f"v_add_u32 v{V_FI}, v{V_LAM}, v{V_Q}",
      f"v_subrev_u32 v{V_FI}, 16, v{V_FI}",
      f"v_max_i32 v74, 0, v{V_FI}",
      "v_lshlrev_b32 v74, 1, v74",
      ("vm", "ck", f"buffer_load_ushort v{V_FX}, v74, {sr(SKK,4)}, s{s_c} offen"))

    def with_dmas(main, groups, every):
        n = 0
        for it in main:
            c(it)
            n += 1
            if n % every == 0 and groups:
                c(groups.pop(0))

    TT = 72
    ep = []
    for i in range(8):
        ep.append(f"v_dot2_f32_bf16 v{SA+2}, v{HR+i}, v{ONES}, v{SA+2}")
        ep.append(f"v_dot2_f32_bf16 v{SA+3}, v{HR+i}, v{HR+i}, v{SA+3}")
    ep.append(("gap", 3))
    for sh in (8, 4, 2, 1):
        ep += [f"v_add_f32_dpp v{SA+2}, v{SA+2}, v{SA+2} row_ror:{sh} row_mask:0xf bank_mask:0xf",
               f"v_add_f32_dpp v{SA+3}, v{SA+3}, v{SA+3} row_ror:{sh} row_mask:0xf bank_mask:0xf",
               ("gap", 1)]
    ep += xq_reduce("v_add_f32", [SA, SA + 1, SA + 2, SA + 3], [TT, TT + 1, TT + 2, TT + 3], ("v_permlane16_swap_b32",))
    ep += xq_reduce("v_add_f32", [SA, SA + 1], [TT, TT + 1], ("v_permlane32_swap_b32",))
    ep += stats_fin([(SA, SA + 1), (SA + 2, SA + 3)], [TT, TT + 1])
    ep += [f"v_lshlrev_b32 v{TT}, 3, v{V_LAM}",
           f"s_lshr_b32 s{t+1}, s{s_stile}, 5",
           f"s_add_u32 s{t+1}, s{t+1}, {L_ST}",
           f"v_add_u32 v{TT+1}, s{t+1}, v{TT}",
           f"ds_write_b64 v{TT+1}, {vr(SA,2)}",
           f"v_lshrrev_b32 v{TT+1}, 5, v{V_LANE}",
           f"v_lshlrev_b32 v{TT+1}, 3, v{TT+1}",
           f"s_lshl_b32 s{t+1}, s{s_wave}, 4",
           f"s_add_u32 s{t+1}, s{t+1}, {L_ST + 64}",
           f"v_add_u32 v{TT+1}, s{t+1}, v{TT+1}",
           f"ds_write_b64 v{TT+1}, {vr(SA+2,2)}",
           f"v_and_b32 v{TT+1}, 0x38, v{TT}",
           f"v_add_u32 v{TT+1}, {L_ST}, v{TT+1}",
           f"v_mov_b32 v{TT+2}, 0",
           f"v_mov_b32 v{TT+3}, 1.0",
           f"ds_write_b64 v{TT+1}, {vr(TT+2,2)}",
           f"v_add_u32 v{TT}, {L_ST}, v{TT}"]
    with_dmas(ep, dm, 12)
    c("s_waitcnt lgkmcnt(0)", "s_barrier")

    c(read_stats(TT), "s_waitcnt lgkmcnt(0)")

    def normalize(tl, pk, VP):
        l = []
        mean, rstd = STA + 2 * tl, STA + 2 * tl + 1
        for (acc, cs, dst, on) in ((AQ + 4 * tl, CSQ, QP + 2 * tl, tl > 0), (AK + 4 * tl, CSK, KP + 2 * tl, True)):
            if not on:
                continue
            if pk:
                for h in range(2):
                    l.append(f"v_pk_fma_f32 {vr(acc+2*h,2)}, {vr(cs+2*h,2)}, {vr(mean,2)}, {vr(acc+2*h,2)} op_sel_hi:[1,0,1] neg_lo:[0,1,0] neg_hi:[0,1,0]")
                for h in range(2):
                    l.append(f"v_pk_mul_f32 {vr(acc+2*h,2)}, {vr(acc+2*h,2)}, {vr(mean,2)} op_sel:[0,1]")
            else:
                for r in range(4):
                    l.append(f"v_fma_f32 v{acc+r}, -v{mean}, v{cs+r}, v{acc+r}")
                for r in range(4):
                    l.append(f"v_mul_f32 v{acc+r}, v{rstd}, v{acc+r}")
            l.append(f"v_cvt_pk_bf16_f32 v{dst}, v{acc}, v{acc+1}")
            l.append(f"v_cvt_pk_bf16_f32 v{dst+1}, v{acc+2}, v{acc+3}")
        acc = AV + 4 * tl
        for r in range(4):
            l.append(f"v_fma_f32 v{acc+r}, -v{STB+8*tl+2*r}, v{CSV}, v{acc+r}")
        for r in range(4):
            l.append(f"v_mul_f32 v{acc+r}, v{STB+8*tl+2*r+1}, v{acc+r}")
        l.append(f"v_cvt_pk_bf16_f32 v{VP+2*tl}, v{acc}, v{acc+1}")
        l.append(f"v_cvt_pk_bf16_f32 v{VP+2*tl+1}, v{acc+2}, v{acc+3}")
        return l

    V_OA = 254
    s_oa = 20
    oaddr = [f"s_lshl_b32 s{t}, s{s_g}, 2",
             f"s_add_u32 s{t}, s{t}, s{s_wave}",
             f"s_lshr_b32 s{t+1}, s{t}, 1",
             f"s_lshl_b32 s{t+1}, s{t+1}, 10",
             f"s_and_b32 s{t}, s{t}, 1",
             f"s_lshl_b32 s{t}, s{t}, 9",
             f"s_add_u32 s{t}, s{t}, s{t+1}",
             f"s_lshl_b32 s{t+1}, s{s_rb}, 16",
             f"s_add_u32 s{s_oa}, s{t}, s{t+1}",
             f"v_lshrrev_b32 v{V_OA}, 1, v{V_Q}",
             f"v_lshlrev_b32 v{V_OA}, 8, v{V_OA}",
             f"v_lshl_add_u32 v{V_OA}, v{V_LAM}, 4, v{V_OA}",
             f"v_and_b32 v{V_T0+1}, 1, v{V_Q}",
             f"v_lshl_add_u32 v{V_OA}, v{V_T0+1}, 3, v{V_OA}"]

    def attn_tiles(tiles, VP, regs, pk):
        SC, SP, MX, MT, PP, OO, LL = (regs[k_] for k_ in ("SC", "SP", "MX", "MT", "PP", "OO", "LL"))
        n = len(tiles)
        l = [("gap", 2)]
        for j, i in enumerate(tiles):
            l.append(f"v_mfma_f32_16x16x16_bf16 {vr(SC+4*j,4)}, {vr(KP+2*i,2)}, {vr(QP+2*i,2)}, {vr(BC,4)}")
            l.append(f"v_mfma_f32_16x16x16_bf16 {vr(SP+4*j,4)}, {vr(KP+2*(i-1),2)}, {vr(QP+2*i,2)}, {vr(BP1 if i == 1 else BP,4)}")
        l.append(("gap", max(8 - 2 * (n - 1), 1) if n < 4 else 2))
        if n >= 2:
            pass
        for j in range(n):
            if j == n - 1 and n > 1:
                l.append(("gap", 2))
            for r in range(4):
                l.append(f"v_max_f32 v{SC+4*j+r}, v{SC+4*j+r}, v{SP+4*j+r}")
            l.append(f"v_max3_f32 v{MX+j}, v{SC+4*j}, v{SC+4*j+1}, v{SC+4*j+2}")
            l.append(f"v_max_f32 v{MX+j}, v{MX+j}, v{SC+4*j+3}")
        l += xq_reduce("v_max_f32", [MX + j for j in range(n)], [MT + j for j in range(n)])
        for j in range(n):
            l.append(f"v_mul_f32 v{MX+j}, 0x3eb8aa3b, v{MX+j}")
        for j in range(n):
            for r in range(4):
                l.append(f"v_fma_f32 v{SC+4*j+r}, v{SC+4*j+r}, s{s_cexp}, -v{MX+j}")
        for j in range(n):
            for r in range(4):
                l.append(f"v_exp_f32 v{SC+4*j+r}, v{SC+4*j+r}")
        l.append(("gap", 1))
        for j in range(n):
            l += [f"v_cvt_pk_bf16_f32 v{SP+4*j}, v{SC+4*j}, v{SC+4*j+1}",
                  f"v_cvt_pk_bf16_f32 v{SP+4*j+1}, v{SC+4*j+2}, v{SC+4*j+3}",
                  f"v_and_b32 v{PP+4*j}, v{MP}, v{SP+4*j}",
                  f"v_and_b32 v{PP+4*j+1}, v{MP+1}, v{SP+4*j+1}",
                  f"v_and_b32 v{PP+4*j+2}, v{MC}, v{SP+4*j}",
                  f"v_and_b32 v{PP+4*j+3}, v{MC+1}, v{SP+4*j+1}"]
        l.append(("gap", 2))
        for j, i in enumerate(tiles):
            l.append(f"v_mfma_f32_16x16x32_bf16 {vr(LL+4*j,4)}, {vr(ONES,4)}, {vr(PP+4*j,4)}, 0")
            l.append(f"v_mfma_f32_16x16x32_bf16 {vr(OO+4*j,4)}, {vr(VP+2*(i-1),4)}, {vr(PP+4*j,4)}, 0")
        l.append(("gap", 8))
        for j in range(n):
            l.append(f"v_rcp_f32 v{LL+4*j}, v{LL+4*j}")
        l.append(("gap", 1))
        for j in range(n):
            if pk:
                l += [f"v_pk_mul_f32 {vr(OO+4*j,2)}, {vr(OO+4*j,2)}, {vr(LL+4*j,2)} op_sel_hi:[1,0]",
                      f"v_pk_mul_f32 {vr(OO+4*j+2,2)}, {vr(OO+4*j+2,2)}, {vr(LL+4*j,2)} op_sel_hi:[1,0]"]
            else:
                l += [f"v_mul_f32 v{OO+4*j+r}, v{LL+4*j}, v{OO+4*j+r}" for r in range(4)]
            l += [f"v_cvt_pk_bf16_f32 v{OO+4*j}, v{OO+4*j}, v{OO+4*j+1}",
                  f"v_cvt_pk_bf16_f32 v{OO+4*j+1}, v{OO+4*j+2}, v{OO+4*j+3}"]
        return l

    def dual_store(lines_fn, tag, nops):
        Lg, Lj = a.label("sg"), a.label("sj")
        c(f"s_cmp_eq_u32 s{s_loc}, 0", f"s_cbranch_scc1 {Lg}")
        c(lines_fn(""))
        c(f"s_branch {Lj}", f"{Lg}:")
        c(lines_fn(" sc1"))
        c(f"{Lj}:")
        c.q += [tag] * nops

    def wave_flag(f_off, sc1_only=False):
        c(f"s_add_u32 s{t}, s{s_flag}, {f_off}", "s_mov_b64 exec, 1")
        if sc1_only:
            c(("vm", "fl", f"buffer_store_dwordx2 {vr(V_EPV,2)}, v{V_Z}, {sr(SWS,4)}, s{t} offen sc1"))
        else:
            dual_store(lambda fl: [f"buffer_store_dwordx2 {vr(V_EPV,2)}, v{V_Z}, {sr(SWS,4)}, s{t} offen{fl}"], "fl", 1)
        c("s_mov_b64 exec, -1")

    s_cexp = 17
    c(f"s_mov_b32 s{s_cexp}, 0x3eb8aa3b")
    R1 = dict(SC=108, SP=124, MX=140, MT=144, PP=148, OO=196, LL=212)
    main = []
    for tl in range(5):
        main += normalize(tl, True, VP)
    with_dmas(main, dm, 16)
    assert not dm

    def o_stores(o_off, OO, tiles):
        def f(fl):
            l = []
            for j, i in enumerate(tiles):
                l += [f"s_add_u32 s{t+1}, s{s_oa}, {(O1_OFF if (fl == '' and 'noalias' not in EXP) else o_off) + (i-1)*16384}",
                      f"buffer_store_dwordx2 {vr(OO+4*j,2)}, v{V_OA}, {sr(SWS,4)}, s{t+1} offen{fl}"]
            return l
        dual_store(f, "ost", len(tiles))

    stamp()
    CA, CB, C2, C3, C4, C5, C6 = 94, 95, 96, 97, 98, 99, 100
    c(f"v_add_u32 v{V_T0}, s{s_cl}, v{V_L8}",
      f"v_mov_b32 v{C2}, 0",
      f"v_mov_b32 v{C3}, 0",
      f"ds_write_b64 v{V_T0}, {vr(C2,2)} offset:{C_U+4096}",
      f"v_mul_u32_u24 v{C4}, {C_KS}, v{V_Q}",
      f"v_lshl_add_u32 v{C4}, v{V_LAM}, 1, v{C4}",
      f"s_add_u32 s{t+5}, s{s_cl}, {C_K}",
      f"v_add_u32 v{C4}, s{t+5}, v{C4}",
      f"v_cmp_gt_i32 vcc, 0, v{V_FI}",
      f"v_add_u32 v{CA}, 1, v{V_LAM}",
      f"v_and_b32 v{CB}, 3, v{CA}",
      f"v_mul_u32_u24 v{CB}, {C_KS}, v{CB}",
      f"v_and_b32 v{CA}, 0x1c, v{CA}",
      f"v_lshl_add_u32 v{CB}, v{CA}, 1, v{CB}",
      f"v_lshl_add_u32 v{CB}, v{V_Q}, 4, v{CB}",
      f"s_lshl_b32 s{t+3}, s{s_half}, 8",
      f"s_add_u32 s{t+3}, s{t+3}, s{s_cl}",
      f"s_add_u32 s{t+5}, s{t+3}, {C_K}",
      f"v_add_u32 v{CA}, s{t+5}, v{CB}",
      f"v_lshlrev_b32 v{CB}, 5, v{V_LAM}",
      f"v_sub_u32 v{CB}, 480, v{CB}",
      f"v_lshl_add_u32 v{CB}, v{V_Q}, 4, v{CB}",
      f"v_add_u32 v{CB}, s{t+3}, v{CB}",
      ("wait", ["ck", "cu"]),
      f"v_cndmask_b32 v{V_FX}, v{V_FX}, 0, vcc",
      f"ds_write_b16 v{C4}, v{V_FX}",
      "s_waitcnt lgkmcnt(0)", "s_barrier")
    CACC = 104
    V_FO = 232
    V_FA = 236

    def creg(P, off, n):
        return vr(136 + off, n) if P == 0 else ar(192 + off, n)

    def creads(P, rp):
        l = []
        for j in range(8):
            l.append(f"ds_read_b128 {creg(P,32+4*j,4)}, v{CB} offset:{64*rp+512*(7-j)}")
            l.append(f"ds_read_b64 {creg(P,4*j,2)}, v{CA} offset:{64*rp+512*j}")
            l.append(f"ds_read_b64 {creg(P,4*j+2,2)}, v{CA} offset:{64*rp+512*j+8}")
        return l

    def flags_load(f_off, rb_sgpr, dst, sreg):
        return [f"s_lshl_b32 s{sreg}, s{rb_sgpr}, 8",
                f"s_add_u32 s{sreg}, s{sreg}, {f_off}",
                ("vm", "fo", f"buffer_load_dwordx2 {vr(dst,2)}, v{V_FA}, {sr(SWS,4)}, s{sreg} offen sc1")]

    def flags_poll(dst, sreg, tmp, name):
        c(("wait", ["fo"]))
        poll(chk_ep([dst], tmp), [f"buffer_load_dwordx2 {vr(dst,2)}, v{V_FA}, {sr(SWS,4)}, s{sreg} offen sc1"], name)

    c(creads(0, 0))
    KEEP, UU, PR, UF = 136, 152, 160, 176
    pre_ep = [
        f"s_lshl_b32 s{t+3}, s{s_wave}, 12",
        f"s_add_u32 s{t+3}, s{t+3}, {C_RED}",
        f"v_add_u32 v{C2}, s{t+3}, v{V_L16}",
        f"s_xor_b32 s{t+3}, s{s_wave}, 1",
        f"s_lshl_b32 s{t+3}, s{t+3}, 12",
        f"s_add_u32 s{t+3}, s{t+3}, {C_RED}",
        f"v_add_u32 v{C3}, s{t+3}, v{V_L16}",
        f"v_lshlrev_b32 v{C4}, 5, v{V_LAM}",
        f"v_lshl_add_u32 v{C4}, v{V_Q}, 3, v{C4}",
        f"s_lshl_b32 s{t+3}, s{s_half}, 11",
        f"s_sub_u32 s{t+3}, s{s_cl}, s{t+3}",
        f"s_add_u32 s{t+3}, s{t+3}, {C_U + 4088 - 1536}",
        f"v_sub_u32 v{C4}, s{t+3}, v{C4}",
        f"s_lshl_b32 s{t+3}, s{s_wave}, 11",
        f"s_add_u32 s{t+3}, s{t+3}, {C_TR}",
        f"v_lshlrev_b32 v{C5}, 4, v{V_LAM}",
        f"v_lshl_add_u32 v{C5}, v{V_Q}, 2, v{C5}",
        f"v_add_u32 v{C5}, s{t+3}, v{C5}",
        f"v_add_u32 v{C6}, s{t+3}, v{V_L16}",
        f"v_lshrrev_b32 v101, 5, v{V_LANE}",
        "v_lshlrev_b32 v101, 8, v101",
        f"v_and_b32 v102, 1, v{V_Q}",
        "v_lshl_add_u32 v101, v102, 11, v101",
        f"v_lshl_add_u32 v101, v{V_LAM}, 4, v101",
        f"s_lshl_b32 s{t+4}, s{s_half}, 10",
        f"s_add_u32 s{t+4}, s{t+4}, s{s_c}",
        f"s_add_u32 s{t+4}, s{t+4}, {Y_OFF}",
        f"s_lshl_b32 s{t+3}, s{s_D}, 16",
        f"s_and_b32 s{t+5}, s{s_D}, 0xffff0000",
        f"s_cmp_eq_u32 s{s_ch}, 0",
        f"s_cselect_b32 s{t+3}, s{t+3}, s{t+5}"]
    pre_ep += [f"ds_read_b64 {vr(UU+2*i,2)}, v{C4} offset:{512*(3-i)}" for i in range(4)]
    pre_ep += ["s_waitcnt lgkmcnt(0)"]
    for i in range(4):
        pre_ep += [f"v_and_b32 v{UF+4*i}, 0xffff0000, v{UU+2*i+1}",
                   f"v_lshlrev_b32 v{UF+4*i+1}, 16, v{UU+2*i+1}",
                   f"v_and_b32 v{UF+4*i+2}, 0xffff0000, v{UU+2*i}",
                   f"v_lshlrev_b32 v{UF+4*i+3}, 16, v{UU+2*i}"]
    pre_ep += [f"v_mul_f32 v{UF+r}, s{t+3}, v{UF+r}" for r in range(16)]
    RA = dict(SC=200, SP=208, MX=216, MT=218, PP=220, OO=238, LL=246)
    opt = [f"v_and_b32 v{V_FA}, 0xf8, v{V_L8}"] + oaddr
    for pr in ([1, 2], [3, 4]):
        opt += attn_tiles(pr, VP, RA, False)
        opt.append(lambda pr=pr: o_stores(O1_OFF, RA["OO"], pr))
        opt.append(("gap", 3))
    c._dist = 100
    for rp in range(4):
        P = rp & 1
        c("s_waitcnt lgkmcnt(0)")
        if rp == 3:
            opt += pre_ep
        mf = []
        for j in range(8):
            for i in range(j, 8):
                cc = vr(CACC + 4 * i, 4) if (rp or j) else 0
                mf.append(f"v_mfma_f32_16x16x32_bf16 {vr(CACC+4*i,4)}, {creg(P,4*j,4)}, {creg(P,32+4*(i-j),4)}, {cc}")
        opt = c.merge2(mf, creads(1 - P, rp + 1) if rp < 3 else [], opt, flush=(rp == 3))
    OFR = 192

    def o_loads(o_off):
        g = []
        for st in range(4):
            for i in range(4):
                e = 4 * st + i
                l = []
                if i == 0:
                    l.append(f"s_add_u32 s{t+11}, s{t+10}, {st*4096}")
                l.append(("vm", f"o{e}", f"buffer_load_dwordx4 {ar(OFR+4*e,4)}, v{V_L16}, {sr(SWS,4)}, s{t+11} offen offset:{1024*i} sc1"))
                g.append(l)
        pre = [f"s_lshl_b32 s{t+10}, s{s_rb}, 16",
               f"s_lshl_b32 s{t+11}, s{s_wave}, 14",
               f"s_add_u32 s{t+10}, s{t+10}, s{t+11}",
               f"s_cmp_eq_u32 s{s_loc}, 0",
               f"s_cselect_b32 s{t+11}, {o_off}, {o_off if 'noalias' in EXP else O1_OFF}",
               f"s_add_u32 s{t+10}, s{t+10}, s{t+11}"]
        return pre, g

    c(("wait", ["ost"]))
    wave_flag(F_O1)
    L1, L2 = a.label("cvh"), a.label("cvj")
    c("s_nop 1", f"s_cmp_eq_u32 s{s_half}, 0", f"s_cbranch_scc0 {L1}")
    for i in range(4):
        c(f"ds_write_b128 v{C2}, {vr(CACC+16+4*i,4)} offset:{1024*i}")
    for r in range(8):
        c(f"v_pk_add_f32 {vr(KEEP+2*r,2)}, {vr(CACC+2*r,2)}, {vr(UF+2*r,2)}")
    c(f"s_branch {L2}", f"{L1}:")
    for i in range(4):
        c(f"ds_write_b128 v{C2}, {vr(CACC+4*i,4)} offset:{1024*i}")
    for r in range(8):
        c(f"v_pk_add_f32 {vr(KEEP+2*r,2)}, {vr(CACC+16+2*r,2)}, {vr(UF+2*r,2)}")
    c(f"{L2}:", "s_waitcnt lgkmcnt(0)", "s_barrier")
    c([f"ds_read_b128 {vr(PR+4*i,4)}, v{C3} offset:{1024*i}" for i in range(4)])
    c(flags_load(F_O1, s_rb, V_FO, t + 8))
    for i in range(4):
        c(f"s_waitcnt lgkmcnt({3-i})" if i == 0 else f"s_waitcnt lgkmcnt({3-i+2*i})",
          f"v_pk_add_f32 {vr(KEEP+4*i,2)}, {vr(KEEP+4*i,2)}, {vr(PR+4*i,2)}",
          f"v_pk_add_f32 {vr(KEEP+4*i+2,2)}, {vr(KEEP+4*i+2,2)}, {vr(PR+4*i+2,2)}")
        for par in range(2):
            c(f"v_cvt_pk_bf16_f32 v{UF+2*i+par}, v{KEEP+4*i+par}, v{KEEP+4*i+2+par}",
              f"ds_write_b32 v{C5}, v{UF+2*i+par} offset:{(2*i+par)*256}")
    YS = 228
    c("s_waitcnt lgkmcnt(0)",
      f"ds_read_b128 {vr(YS,4)}, v{C6}",
      f"ds_read_b128 {vr(238,4)}, v{C6} offset:1024")
    c("s_waitcnt lgkmcnt(0)",
      ("vm", "yst", f"buffer_store_dwordx4 {vr(YS,4)}, v101, {sr(SWS,4)}, s{t+4} offen sc1"),
      ("vm", "yst", f"buffer_store_dwordx4 {vr(238,4)}, v101, {sr(SWS,4)}, s{t+4} offen offset:512 sc1"))
    stamp()
    c(f"s_lshl_b32 s{t}, s{s_g}, 7", f"s_add_u32 s{s_rowbase}, s{s_rowbase}, s{t}")
    pre, og = o_loads(O1_OFF)
    c(pre)
    c(f"s_lshl_b32 s{t+7}, s{s_g}, 8",
      f"s_add_u32 s{t+7}, s{t+7}, {F_Y}",
      f"s_lshl_b32 s{t+9}, s{s_g}, 18",
      f"s_lshl_b32 s{t+1}, s{s_p}, 11",
      f"s_add_u32 s{t+9}, s{t+9}, s{t+1}",
      f"s_lshl_b32 s{t+1}, s{s_b}, 7",
      f"s_add_u32 s{t+9}, s{t+9}, s{t+1}",
      f"s_lshl_b32 s{t+1}, s{s_wave}, 16",
      f"s_add_u32 s{t+9}, s{t+9}, s{t+1}",
      f"s_add_u32 s{t+9}, s{t+9}, {Y_OFF}",
      f"s_add_u32 s22, s{t+9}, 32768",
      f"v_lshrrev_b32 v75, 3, v{V_LANE}",
      "v_lshlrev_b32 v75, 12, v75",
      f"v_and_b32 v76, 0x70, v{V_L16}",
      "v_add_u32 v75, v75, v76",
      f"s_lshl_b32 s23, s{s_wave}, 11",
      f"s_add_u32 s23, s23, {P2_YT}",
      f"v_bfe_u32 v79, v{V_LANE}, 2, 2",
      f"v_lshl_add_u32 v79, v{V_Q}, 2, v79",
      "v_lshlrev_b32 v79, 7, v79",
      f"v_and_b32 v76, 3, v{V_LANE}",
      "v_lshl_add_u32 v79, v76, 3, v79",
      f"s_lshl_b32 s{t+1}, s{s_wave}, 5",
      f"s_add_u32 s{t+1}, s{t+1}, {P2_YT}",
      f"v_add_u32 v79, s{t+1}, v79")
    fyl = f"buffer_load_dwordx2 {vr(72,2)}, v{V_FA}, {sr(SWS,4)}, s{t+7} offen sc1"
    ylds = ["s_mov_b32 m0, s23", "s_nop 0",
            f"buffer_load_dwordx4 v75, {sr(SWS,4)}, s{t+9} offen sc1 lds",
            "s_add_u32 m0, s23, 1024", "s_nop 0",
            f"buffer_load_dwordx4 v75, {sr(SWS,4)}, s22 offen sc1 lds"]
    flags_poll(V_FO, t + 8, 68, "po1")
    for g_ in og[:OPRE]:
        c(g_)
    olate = [og[OPRE:]]
    stamp()

    def y_flag():
        Lny = a.label("nfy")
        c(("wait", ["yst"]),
          "s_barrier",
          f"s_cmp_lg_u32 s{s_wave}, 0",
          f"s_cbranch_scc1 {Lny}",
          f"s_lshl_b32 s{t}, s2, 3",
          f"s_add_u32 s{t}, s{t}, {F_Y}",
          "s_mov_b64 exec, 1",
          f"buffer_store_dwordx2 {vr(V_EPV,2)}, v{V_Z}, {sr(SWS,4)}, s{t} offen sc1",
          "s_mov_b64 exec, -1",
          f"{Lny}:")

    YP, X2K = 246, 238

    def wo_phase(layer):
        first = layer == 0
        XR = 96
        c(f"s_lshl_b32 s{t+1}, s{s_wave}, 15", f"s_add_u32 s{t+5}, s{s_rowbase}, s{t+1}")
        if first:
            for nt in range(4):
                c(("vm", "xr", f"buffer_load_dwordx2 {vr(XR+2*nt,2)}, v{V_ROW}, {sr(SX,4)}, s{t+5} offen offset:{32*nt}"))
        WACC = 80
        WF = [112, 144, 176]

        def reads(P, e):
            return [f"ds_read_b64_tr_b16 {vr(WF[P]+4*nt+2*ss,2)}, v{V_WO+nt} offset:{4096*e+512*ss}"
                    for nt in range(4) for ss in range(2)]
        c(reads(0, 0), reads(1, 1))
        for e in range(16):
            P = e % 3
            if first and e == 0:
                y_flag()
            c(("wait", [f"o{e}"], 8 if e < 15 else 0))
            mf = [f"v_mfma_f32_16x16x32_bf16 {vr(WACC+4*nt,4)}, {vr(WF[P]+4*nt,4)}, {ar(OFR+4*e,4)}, {vr(WACC+4*nt,4) if e else 0}"
                  for nt in range(4)]
            sd = reads((e + 2) % 3, e + 2) if e < 14 else []
            if olate[0]:
                sd = olate[0].pop(0) + sd
            c.merge(mf, sd, 2)
        XF, X1P, G = 144, 160, 168
        if not first:
            stamp("p4")
        if first and 'stamp' not in EXP:
            stamp()
        if first:
            c(("wait", ["xr"]))
            src = XR
        else:
            src = X2K
        for i in range(8):
            c(f"v_lshlrev_b32 v{XF+2*i}, 16, v{src+i}", f"v_and_b32 v{XF+2*i+1}, 0xffff0000, v{src+i}")
        c(f"v_mov_b32 v{G}, 0", f"v_mov_b32 v{G+1}, 0", f"v_mov_b32 v{G+2}, s{s_ep}", f"v_mov_b32 v{G+3}, s{s_ep+1}")
        for i in range(8):
            c(f"v_pk_add_f32 {vr(XF+2*i,2)}, {vr(XF+2*i,2)}, {vr(WACC+2*i,2)}",
              f"v_cvt_pk_bf16_f32 v{X1P+i}, v{XF+2*i}, v{XF+2*i+1}")
        for i in range(8):
            c(f"v_dot2_f32_bf16 v{G}, v{X1P+i}, v{ONES}, v{G}", f"v_dot2_f32_bf16 v{G+1}, v{X1P+i}, v{X1P+i}, v{G+1}")
        st_off = ST1_OFF if first else ST2_OFF
        c(f"s_lshl_b32 s{t+6}, s{s_rb}, 13",
          f"s_lshl_b32 s{t+1}, s{s_wave}, 11",
          f"s_add_u32 s{t+6}, s{t+6}, s{t+1}",
          f"s_add_u32 s{t+6}, s{t+6}, {st_off}",
          f"s_lshl_b32 s{t+1}, s{s_g}, 4",
          f"s_add_u32 s{t+1}, s{t+1}, s{t+6}",
          f"v_lshlrev_b32 v74, 7, v{V_LAM}")
        c(xq_reduce("v_add_f32", [G, G + 1], [G + 4, G + 5]))
        c("s_mov_b64 exec, 0xffff")
        dual_store(lambda fl: [f"buffer_store_dwordx4 {vr(G,4)}, v74, {sr(SWS,4)}, s{t+1} offen{fl}"], "sst", 1)
        c("s_mov_b64 exec, -1")
        GR = 176
        if not first:
            stamp("p4")
        for i in range(8):
            c(f"v_lshlrev_b32 v{XF+2*i}, 16, v{X1P+i}", f"v_and_b32 v{XF+2*i+1}, 0xffff0000, v{X1P+i}")
        c(f"v_lshl_add_u32 v74, v{V_Q}, 5, v74")
        gl = [f"buffer_load_dwordx4 {vr(GR,4)}, v74, {sr(SWS,4)}, s{t+6} offen sc1",
              f"buffer_load_dwordx4 {vr(GR+4,4)}, v74, {sr(SWS,4)}, s{t+6} offen offset:16 sc1"]
        if first:
            Lyd = a.label("yd")
            c(f"s_cmp_lg_u32 s{s_wave}, 0", f"s_cbranch_scc1 {Lyd}", fyl, "s_waitcnt vmcnt(0)")
            poll(chk_ep([72], 76), [fyl], "pfy", 3)
            c(f"{Lyd}:", "s_barrier")
            c(ylds)
            if 'stamp' not in EXP:
                stamp()
        for l in gl:
            c(("vm", "gr", l))
        if first:
            c("s_waitcnt vmcnt(2)", "s_barrier")
            for nt in range(4):
                c(f"ds_read_b64_tr_b16 {vr(YP+2*nt,2)}, v79 offset:{2048*nt}")
        c(("drain",))
        if first and 'stamp' not in EXP:
            stamp()
        if not first:
            stamp("p4")
        poll(chk_ep([GR + 2, GR + 6], 76), gl, "pst")
        stamp("p4" if not first else "x2")
        c(f"v_add_f32 v{G}, v{GR}, v{GR+4}", f"v_add_f32 v{G+1}, v{GR+1}, v{GR+5}")
        c(xq_reduce("v_add_f32", [G, G + 1], [G + 4, G + 5]))
        c(stats_fin([(G, G + 1)], [G + 4]))
        c("s_waitcnt lgkmcnt(0)")
        YF, D = 192, 208
        for i in range(8):
            c(f"v_lshlrev_b32 v{YF+2*i}, 16, v{YP+i}", f"v_and_b32 v{YF+2*i+1}, 0xffff0000, v{YP+i}")
        dst = X2K if first else X1P
        for i in range(8):
            c(f"v_pk_add_f32 {vr(D+2*i,2)}, {vr(XF+2*i,2)}, {vr(G,2)} op_sel_hi:[1,0] neg_lo:[0,1] neg_hi:[0,1]",
              f"v_pk_mul_f32 {vr(D+2*i,2)}, {vr(D+2*i,2)}, {vr(G,2)} op_sel:[0,1]",
              f"v_pk_fma_f32 {vr(D+2*i,2)}, {vr(D+2*i,2)}, {vr(YF+2*i,2)}, {vr(XF+2*i,2)}",
              f"v_cvt_pk_bf16_f32 v{dst+i}, v{D+2*i}, v{D+2*i+1}")
        stamp("p4" if not first else "x2")
        WS4 = D
        for i in range(8):
            c(f"v_mov_b32 v{WS4+i}, v{dst+i}")
        if first:
            c(f"v_and_b32 v237, 1, v{V_Q}",
              "v_lshlrev_b32 v237, 5, v237",
              f"v_lshl_add_u32 v237, v{V_LAM}, 11, v237",
              f"v_lshrrev_b32 v76, 1, v{V_Q}",
              "v_lshl_add_u32 v237, v76, 4, v237")
        else:
            c("s_nop 1")
        for pr in range(2):
            for d_ in range(2):
                c(f"v_permlane16_swap_b32 v{WS4+4*pr+d_}, v{WS4+4*pr+2+d_}")
        c("s_nop 0")
        if not first:
            for pr in range(2):
                c(f"buffer_store_dwordx4 {vr(WS4+4*pr,4)}, v237, {sr(SOUT,4)}, s{t+5} offen offset:{64*pr}")
            c("s_waitcnt vmcnt(0)" if FINE == "p4" else "s_nop 0")
            stamp("p4")
            return
        c(f"s_add_u32 s{t+5}, s{t+5}, {X2_OFF}", f"v_mov_b32 v{G}, 0", f"v_mov_b32 v{G+1}, 0")
        dual_store(lambda fl: [f"buffer_store_dwordx4 {vr(WS4+4*pr,4)}, v237, {sr(SWS,4)}, s{t+5} offen offset:{64*pr}{fl}"
                               for pr in range(2)], "x2st", 2)
        for i in range(8):
            c(f"v_dot2_f32_bf16 v{G}, v{dst+i}, v{ONES}, v{G}", f"v_dot2_f32_bf16 v{G+1}, v{dst+i}, v{dst+i}, v{G+1}")
        c(f"s_lshl_b32 s{t}, s{s_rb}, 12",
          f"s_lshl_b32 s{t+1}, s{s_wave}, 10",
          f"s_add_u32 s{t}, s{t}, s{t+1}",
          f"s_lshl_b32 s{t+1}, s{s_g}, 3",
          f"s_add_u32 s{t}, s{t}, s{t+1}",
          f"s_add_u32 s{t}, s{t}, {XS_OFF}",
          f"v_lshlrev_b32 v74, 6, v{V_LAM}")
        c(xq_reduce("v_add_f32", [G, G + 1], [G + 4, G + 5]))
        c("s_mov_b64 exec, 0xffff")
        dual_store(lambda fl: [f"buffer_store_dwordx2 {vr(G,2)}, v74, {sr(SWS,4)}, s{t} offen{fl}"], "x2st", 1)
        c("s_mov_b64 exec, -1")
        stamp("x2")
        c(("drain",))
        stamp("x2")
        wave_flag(F_X2)
        Lh = a.label("nh")
        c(f"s_cmp_lg_u32 s{s_wave}, 3",
          f"s_cbranch_scc1 {Lh}",
          f"v_lshlrev_b32 v75, 10, v{V_LAM}",
          f"v_lshl_add_u32 v75, v{V_Q}, 3, v75",
          f"s_lshl_b32 s{t}, s{s_rb}, 13",
          f"s_lshl_b32 s{t+1}, s{s_g}, 7",
          f"s_add_u32 s{t}, s{t}, s{t+1}",
          f"s_add_u32 s{t}, s{t}, {HALO_OFF - 8192}",
          f"s_lshl_b32 s{t+2}, s{s_rb}, 9",
          f"s_lshl_b32 s{t+1}, s{s_g}, 3",
          f"s_add_u32 s{t+2}, s{t+2}, s{t+1}",
          f"s_add_u32 s{t+2}, s{t+2}, {HS_OFF - 512}",
          f"s_mov_b32 s{t+8}, 0xff00ff00",
          f"s_mov_b32 s{t+9}, 0xff00ff00",
          f"s_mov_b64 exec, {sr(t+8,2)}")
        for nt in range(4):
            c(f"buffer_store_dwordx2 {vr(dst+2*nt,2)}, v75, {sr(SWS,4)}, s{t} offen offset:{32*nt} sc1")
        c("s_mov_b64 exec, 0xff00",
          f"buffer_store_dwordx2 {vr(G,2)}, v74, {sr(SWS,4)}, s{t+2} offen sc1",
          "s_mov_b64 exec, -1",
          f"{Lh}:")

    wo_phase(0)
    stamp()

    c(flags_load(F_X2, s_rb, V_FO, t + 8))
    for qi in range(4):
        c(f"s_add_u32 s{s_xq+qi}, s{s_xq+qi}, {X2_OFF}")
    stamp("x2")
    flags_poll(V_FO, t + 8, 68, "px2")
    stamp("x2")
    Lh2 = a.label("nh2")
    c(f"s_cmp_lg_u32 s{s_wave}, 3",
      f"s_cbranch_scc1 {Lh2}",
      f"s_lshl_b32 s{t}, s{s_rb}, 7",
      f"s_lshl_b32 s{t+1}, s{s_g}, 3",
      f"s_add_u32 s{t}, s{t}, s{t+1}",
      f"s_add_u32 s{t}, s{t}, {F_H}",
      "s_mov_b64 exec, 1",
      f"buffer_store_dwordx2 {vr(V_EPV,2)}, v{V_Z}, {sr(SWS,4)}, s{t} offen sc1",
      "s_mov_b64 exec, -1",
      f"{Lh2}:")

    def x2dma(qi, i):
        return [f"s_add_u32 m0, s{s_xl+qi}, {L_X + i*4096}",
                f"s_add_u32 s{t}, s{s_xq+qi}, {i*32768}",
                ("vm", f"x2t{i}", f"buffer_load_dwordx4 v{V_XD}, {sr(SWS,4)}, s{t} offen sc1 lds")]
    PS = 184
    c(f"s_lshl_b32 s{t+1}, s{s_rb}, 12",
      f"s_lshl_b32 s{t+2}, s{s_wave}, 10",
      f"s_add_u32 s{t+1}, s{t+1}, s{t+2}",
      f"s_add_u32 s{t+1}, s{t+1}, {XS_OFF}",
      f"v_lshlrev_b32 v195, 6, v{V_LAM}",
      f"v_lshl_add_u32 v195, v{V_Q}, 4, v195")
    for qi in range(4):
        c(x2dma(qi, 1))
    c(("vm", "ps", f"buffer_load_dwordx4 {vr(PS,4)}, v195, {sr(SWS,4)}, s{t+1} offen sc1"))
    late = []
    for i in range(2, 5):
        for qi in range(4):
            late += x2dma(qi, i)
    c(late[:12])
    late = late[12:]
    V_HF = 190
    c(f"s_sub_u32 s{t+9}, s{s_rb}, 1",
      f"s_lshl_b32 s{t+9}, s{t+9}, 7",
      f"s_add_u32 s{t+9}, s{t+9}, {F_H}",
      f"v_and_b32 v192, 0x38, v{V_L8}")
    hld = f"buffer_load_dwordx2 {vr(V_HF,2)}, v192, {sr(SWS,4)}, s{t+9} offen sc1"
    stamp("x2")
    c(("wait", ["ps"]))
    stamp("x2")
    c(f"v_add_f32 v{SA}, v{PS}, v{PS+2}",
      f"v_add_f32 v{SA+1}, v{PS+1}, v{PS+3}")
    c(xq_reduce("v_add_f32", [SA, SA + 1], [104, 105]))
    c(stats_fin([(SA, SA + 1)], [104]))
    c(f"v_lshlrev_b32 v193, 3, v{V_LAM}",
      f"s_lshl_b32 s{t}, s{s_wave}, 7",
      f"s_add_u32 s{t}, s{t}, {L_ST + 128}",
      f"v_add_u32 v195, s{t}, v193",
      f"ds_write_b64 v195, {vr(SA,2)}",
      f"v_add_u32 v193, {L_ST}, v193",
      f"v_lshlrev_b32 v194, 5, v{V_Q}",
      f"v_add_u32 v194, {L_ST}, v194")
    V_S8, V_S32 = 193, 194

    def stat_reads(tl):
        return [f"ds_read_b64 {vr(STA+2*tl,2)}, v{V_S8} offset:{128*tl}",
                f"ds_read_b128 {vr(STB+8*tl,4)}, v{V_S32} offset:{128*tl}",
                f"ds_read_b128 {vr(STB+8*tl+4,4)}, v{V_S32} offset:{128*tl+16}"]

    XF3 = [168, 176]

    def tile_stream(tl):
        m = []
        def rd(e):
            return f"ds_read_b128 {vr(168+4*(e&3),4)}, v{VAE+e} offset:{4096*tl}"
        m += [rd(0), rd(1)]
        for e in range(16):
            if e % 2 == 0:
                if e + 2 < 16:
                    m += [rd(e + 2), rd(e + 3), "s_waitcnt lgkmcnt(2)"]
                else:
                    m.append("s_waitcnt lgkmcnt(0)")
            x = vr(168 + 4 * (e & 3), 4)
            wq, wk, wv = ar(12 * e, 4), ar(12 * e + 4, 4), ar(12 * e + 8, 4)
            for (acc, A_, B_, on) in ((AQ + 4 * tl, wq, x, tl > 0), (AK + 4 * tl, wk, x, True), (AV + 4 * tl, x, wv, True)):
                if on:
                    m.append(f"v_mfma_f32_16x16x32_bf16 {vr(acc,4)}, {A_}, {B_}, {vr(acc,4) if e else 0}")
        return m

    def R3(qt):
        return dict(SC=AQ + 4 * qt, SP=AK + 4 * qt, PP=AV + 4 * qt, LL=STB + 8 * qt, MX=STB + 8 * qt + 4, MT=STB + 8 * qt + 5, OO=108)

    PSH = 184
    s_hd = 21

    def halo_try(n, blocking):
        Lskip, Lgo = a.label("hskip"), a.label("hgo")
        c(f"s_cmp_lg_u32 s{s_hd}, 0", f"s_cbranch_scc1 {Lskip}")
        qs = list(c.q)
        c(f"s_cmp_eq_u32 s{s_b}, 0", f"s_cbranch_scc1 {Lgo}")
        c(("wait", [f"hf{n}"]))
        if not blocking:
            c(chk_ep([V_HF], PSH), "s_nop 4", f"s_cbranch_vccnz {Lskip}")
        else:
            poll(chk_ep([V_HF], PSH), [hld], "ph", 2)
        c(f"{Lgo}:")
        c(f"s_mov_b32 s{s_hd}, 1",
          f"v_lshrrev_b32 v{PSH}, 11, v{V_XD}",
          f"v_and_b32 v{PSH+1}, 0xff, v{V_XD}",
          f"v_lshl_add_u32 v{PSH}, v{PSH}, 10, v{PSH+1}",
          f"s_lshl_b32 s{t+2}, s{s_wave}, 10",
          f"s_lshl_b32 s{t}, s{s_rb}, 13",
          f"s_lshl_b32 s{t+1}, s{s_wave}, 12",
          f"s_add_u32 s{t}, s{t}, s{t+1}",
          f"s_add_u32 s{t}, s{t}, {HALO_OFF - 8192 - 8192}",
          f"s_cmp_lt_u32 s{s_wave}, 2",
          f"s_cselect_b32 s{t}, {OOB}, s{t}",
          f"s_cmp_eq_u32 s{s_b}, 0",
          f"s_cselect_b32 s{t}, {OOB}, s{t}")
        for qd in range(4):
            c(f"s_add_u32 m0, s{t+2}, {L_X + qd*XQ}",
              f"s_add_u32 s{t+1}, s{t}, {qd*256}",
              f"buffer_load_dwordx4 v{PSH}, {sr(SWS,4)}, s{t+1} offen sc1 lds")
        c(f"v_and_b32 v{PSH+1}, 7, v{V_LAM}",
          f"v_lshlrev_b32 v{PSH+1}, 6, v{PSH+1}",
          f"v_lshl_add_u32 v{PSH+1}, v{V_Q}, 4, v{PSH+1}",
          f"s_lshl_b32 s{t}, s{s_rb}, 9",
          f"s_add_u32 s{t}, s{t}, {HS_OFF - 512}",
          f"s_cmp_eq_u32 s{s_b}, 0",
          f"s_cselect_b32 s{t}, {OOB}, s{t}",
          "s_nop 1",
          f"buffer_load_dwordx4 {vr(PSH,4)}, v{PSH+1}, {sr(SWS,4)}, s{t} offen sc1",
          f"{Lskip}:")
        c.q = qs

    c(f"s_mov_b32 s{s_hd}, 0")
    stamp()
    order = [1, 2, 3, 4, 0]
    for n, tl in enumerate(order):
        side = []
        if n == 0:
            stamp("x2")
            c(("wait", ["x2t1"], 0), "s_barrier")
            stamp("x2")
            for t2 in range(1, 5):
                c(stat_reads(t2))
            side += late
            side.append(("vm", "hf1", hld))
        elif n == 1:
            c(("wait", ["x2t4"]), "s_barrier")
        elif n == 4:
            c(("drain",), "s_barrier")
        if n >= 1:
            side += [("gap", 8)] + normalize(order[n - 1], False, VP)
        if n >= 2:
            side += attn_tiles([order[n - 1]], VP, R3(order[n - 1]), False)
        if n == 4:
            HS2 = 188
            side += [f"v_add_f32 v{HS2}, v{PSH}, v{PSH+2}", f"v_add_f32 v{HS2+1}, v{PSH+1}, v{PSH+3}"]
            side += xq_reduce("v_add_f32", [HS2, HS2 + 1], [PSH, PSH + 1])
            side += stats_fin([(HS2, HS2 + 1)], [PSH])
            side += [f"v_and_b32 v{PSH}, 0x38, v{V_S8}", f"v_add_u32 v{PSH}, {(L_ST & ~0x3f) + 64}, v{PSH}"]
        stamp("p3")
        c.merge(tile_stream(tl), side)
        stamp("p3")
        if n >= 2:
            o_stores(O2_OFF, 108, [order[n - 1]])
        if n in (1, 2, 3):
            halo_try(n, n == 3)
            if n < 3:
                c(("vm", f"hf{n+1}", hld))
    c(f"ds_write_b64 v{PSH}, {vr(HS2,2)}", "s_waitcnt lgkmcnt(0)")
    c(stat_reads(0), "s_waitcnt lgkmcnt(0)")
    stamp("p3")
    c(normalize(0, True, VP))
    c(attn_tiles([1], VP, R3(1), True))
    o_stores(O2_OFF, 108, [1])
    stamp()
    stamp("p3")
    stamp("p4")
    c(("drain",))
    stamp("p4")
    wave_flag(F_O2)
    c(flags_load(F_O2, s_rb, V_FO, t + 8))
    pre, og = o_loads(O2_OFF)
    c(pre)
    flags_poll(V_FO, t + 8, 68, "po2")
    stamp("p4")
    for g_ in og[:OPRE]:
        c(g_)
    olate[0] = og[OPRE:]
    stamp("p4")
    wo_phase(1)
    if STAMP:
        c("s_waitcnt vmcnt(0) lgkmcnt(0)")
        stamp()
        c("s_memrealtime s[100:101]",
          f"s_mov_b32 s{SWS+2}, {16*MB}",
          f"s_lshl_b32 s{t}, s2, 8",
          f"s_lshl_b32 s{t+1}, s{s_wave}, 6",
          f"s_add_u32 s{t}, s{t}, s{t+1}",
          f"s_add_u32 s{t}, s{t}, {STAMP_OFF}",
          "s_waitcnt lgkmcnt(0)",
          "v_writelane_b32 v255, s100, 1",
          f"v_lshlrev_b32 v64, 2, v{V_LANE}",
          "s_mov_b64 exec, 0xffff",
          f"buffer_store_dword v255, v64, {sr(SWS,4)}, s{t} offen")
    if STAMP and "dbgs" in EXP:
        Ld = a.label("nodbg")
        c("s_mov_b64 exec, -1",
          f"s_lshl_b32 s{t}, s{s_wave}, 8",
          f"s_add_u32 s{t}, s{t}, s2",
          f"s_cmp_lg_u32 s{t}, 77",
          f"s_cbranch_scc1 {Ld}",
          f"s_lshl_b32 s{t}, s{s_loc}, 8",
          f"s_or_b32 s{t}, s{t}, s{s_xcc}",
          "v_readlane_b32 s100, v255, 2",
          "s_nop 3",
          "v_subrev_u32 v255, s100, v255",
          f"v_writelane_b32 v255, s{t}, 2",
          "s_mov_b64 exec, 0xfffc",
          f"buffer_store_dword v255, v64, {sr(SDBG,4)}, 0 offen",
          f"{Ld}:")
    if "dbgt" in EXP:
        c("s_waitcnt vmcnt(0) lgkmcnt(0)",
          "s_memrealtime s[98:99]",
          "s_not_b32 s100, s100",
          "s_waitcnt lgkmcnt(0)",
          "v_mov_b32 v64, s100",
          "v_mov_b32 v65, s98",
          "s_mov_b64 exec, 1",
          f"buffer_atomic_umax v64, v{V_Z}, {sr(SDBG,4)}, 0 offen offset:8 sc1",
          f"buffer_atomic_umax v65, v{V_Z}, {sr(SDBG,4)}, 0 offen offset:12 sc1")
    a(f"{L_end}:")
    a("s_endpgm")
    a(f".set CODE_LIMIT, {L_end} - {label}")


def main(out_path):
    a = Asm()
    label = NAME + "_kernel"
    a('.amdgcn_target "amdgcn-amd-amdhsa--gfx950"')
    a(".text")
    gen(a, label)
    desc = f""".section .rodata,"a"
.p2align 6
.amdhsa_kernel {label}
  .amdhsa_next_free_vgpr 512
  .amdhsa_next_free_sgpr 102
  .amdhsa_accum_offset 256
  .amdhsa_group_segment_fixed_size 0
  .amdhsa_kernarg_size 96
  .amdhsa_user_sgpr_count 2
  .amdhsa_user_sgpr_kernarg_segment_ptr 1
  .amdhsa_system_sgpr_workgroup_id_x 1
.end_amdhsa_kernel
"""
    hdr = f"; @launch grid=(256,1,1) block=(256,1,1) lds={LDS_SIZE}\n"
    open(out_path, "w").write(hdr + a.text() + desc)


if __name__ == "__main__":
    if len(sys.argv) > 2:
        STAMP = True
    main(sys.argv[1])
```

```python
import sys
from gen import Asm, vr, sr, srd, kernel_header, NAME, NEG, MB

KB = 1024
O1_OFF = 0
O2_OFF = 2 * MB
X2_OFF = 4 * MB
U_OFF = 6 * MB
Y_OFF = 8 * MB
ST1_OFF = 10 * MB
ST2_OFF = ST1_OFF + 256 * KB
XS_OFF = ST2_OFF + 256 * KB
HALO_OFF = XS_OFF + 128 * KB
HS_OFF = HALO_OFF + 256 * KB
FL_OFF = HS_OFF + 16 * KB
F_HELLO = FL_OFF
F_T = F_HELLO + 4 * KB
F_Y = F_T + 2 * KB
F_O1 = F_Y + 8 * KB
F_X2 = F_O1 + 8 * KB
F_O2 = F_X2 + 8 * KB
F_H = F_O2 + 8 * KB
WS_SIZE = 11 * MB
assert F_H + 4 * KB <= WS_SIZE
STAMP_OFF = 12 * MB

L_X = 0
XQ = 20480
L_R = 81920
NS = 6 if "bar1" not in __import__("os").environ.get("EXP", "") else 5
L_M = 147456
L_TB = L_M
L_ST = L_M + 8192
LDS_SIZE = 163840
C_U = 0
C_K = 4608
C_KS = 4160
C_CH = 4608 + 4 * 4160
C_RED = 2 * C_CH
C_TR = C_RED + 16384
assert C_TR + 8192 <= 81920
P2_YT = L_TB

SPIN_MAX = 40000
STAMP = False
import os
EXP = os.environ.get("EXP", "")
FINE = os.environ.get("FINE", "")
OOB = 0x7ff00000
PFS = int(os.environ.get("PFS", "11"))
OPRE = int(os.environ.get("OPRE", "6"))
DSW = float(os.environ.get("DSW", "0.5"))


def ar(a_, n=1):
    return f"a{a_}" if n == 1 else f"a[{a_}:{a_+n-1}]"


class Ctx:
    def __init__(self, a):
        self.a = a
        self.q = []
        self.count = 0

    def raw(self, s):
        for l in s.split("\n"):
            if l.strip():
                self.a(l)
                self.count += 1

    def vwait_n(self, tags):
        idx = -1
        for i, t in enumerate(self.q):
            if t in tags:
                idx = i
        if idx < 0:
            return None
        n = len(self.q) - 1 - idx
        assert n <= 63
        self.q = self.q[idx + 1:]
        return n

    def item(self, it):
        if isinstance(it, str):
            self.raw(it)
        elif it[0] == "vm":
            self.raw(it[2])
            self.q.append(it[1])
        elif it[0] == "wait":
            n = self.vwait_n(it[1])
            lg = it[2] if len(it) > 2 else None
            parts = []
            if n is not None:
                parts.append(f"vmcnt({n})")
            if lg is not None:
                parts.append(f"lgkmcnt({lg})")
            if parts:
                self.raw("s_waitcnt " + " ".join(parts))
        elif it[0] == "drain":
            self.raw("s_waitcnt vmcnt(0)")
            self.q = []
        elif it[0] == "gap":
            self.raw(f"s_nop {it[1]-1}")
        else:
            raise ValueError(it)

    def __call__(self, *its):
        for it in its:
            if isinstance(it, list):
                for x in it:
                    self.item(x)
            else:
                self.item(it)

    def merge(self, main, side, k=2):
        side = list(side)
        si = 0
        dist = 0

        def is_gap(x):
            return isinstance(x, tuple) and x[0] == "gap"

        for m in main:
            self.item(m)
            mf = isinstance(m, str) and m.startswith("v_mfma")
            dist += 3 if mf else 1
            if not mf:
                continue
            quota = k
            while quota > 0 and si < len(side):
                it = side[si]
                if is_gap(it):
                    if dist >= it[1]:
                        si += 1
                        continue
                    break
                self.item(it)
                dist = 0
                si += 1
                if isinstance(it, tuple) and it[0] == "vm":
                    quota -= 2
                elif isinstance(it, str) and it.startswith("ds_"):
                    quota -= DSW
                elif not (isinstance(it, str) and it.startswith("s_")):
                    quota -= 1
        while si < len(side):
            it = side[si]
            if is_gap(it):
                if it[1] - dist > 0:
                    self.raw(f"s_nop {it[1]-dist-1}")
            else:
                self.item(it)
                dist = 0
            si += 1


def _merge2(self, main, must, opt, flush=False):
    must = list(must)
    mi = 0
    si = 0
    dist = getattr(self, "_dist", 100)

    def is_gap(x):
        return isinstance(x, tuple) and x[0] == "gap"
    for m in main:
        self.item(m)
        dist += 3
        if mi < len(must):
            self.item(must[mi])
            mi += 1
            dist += 1
        quota = 2
        while quota > 0 and si < len(opt):
            it = opt[si]
            if is_gap(it):
                if dist >= it[1]:
                    si += 1
                    continue
                break
            if callable(it):
                it()
                quota -= 2
            else:
                self.item(it)
                if isinstance(it, str) and it.startswith("v_mfma"):
                    quota -= 2
                elif not (isinstance(it, str) and it.startswith("s_")):
                    quota -= 1
            dist = 0
            si += 1
    for x in must[mi:]:
        self.item(x)
    rest = opt[si:]
    if flush:
        for it in rest:
            if is_gap(it):
                if it[1] - dist > 0:
                    self.raw(f"s_nop {it[1]-dist-1}")
            elif callable(it):
                it()
                dist = 0
            else:
                self.item(it)
                dist = 0
        rest = []
    self._dist = dist
    return rest


Ctx.merge2 = _merge2


def xq_reduce(op, vs, ts, steps=("v_permlane16_swap_b32", "v_permlane32_swap_b32")):
    l = []
    n = len(vs)
    for sw in steps:
        for v, t in zip(vs, ts):
            l.append(f"v_mov_b32 v{t}, v{v}")
        l.append(("gap", 2 if n < 2 else 1))
        for v, t in zip(vs, ts):
            l.append(f"{sw} v{v}, v{t}")
        l.append(("gap", 2 if n < 2 else 1))
        for v, t in zip(vs, ts):
            l.append(f"{op} v{v}, v{v}, v{t}")
    return l


def stats_fin(pairs, tmps):
    l = []
    def each(f):
        for (s, q), t in zip(pairs, tmps):
            l.append(f(s, q, t))
    each(lambda s, q, t: f"v_mul_f32 v{s}, 0x3b000000, v{s}")
    each(lambda s, q, t: f"v_mul_f32 v{q}, 0x3b000000, v{q}")
    each(lambda s, q, t: f"v_fma_f32 v{q}, -v{s}, v{s}, v{q}")
    each(lambda s, q, t: f"v_max_f32 v{q}, 0, v{q}")
    each(lambda s, q, t: f"v_cvt_pk_bf16_f32 v{t}, v{s}, v{q}")
    each(lambda s, q, t: f"v_lshlrev_b32 v{s}, 16, v{t}")
    each(lambda s, q, t: f"v_and_b32 v{q}, 0xffff0000, v{t}")
    each(lambda s, q, t: f"v_add_f32 v{q}, 0x3727c5ac, v{q}")
    each(lambda s, q, t: f"v_cvt_pk_bf16_f32 v{q}, v{q}, v{q}")
    each(lambda s, q, t: f"v_lshlrev_b32 v{q}, 16, v{q}")
    each(lambda s, q, t: f"v_sqrt_f32 v{q}, v{q}")
    l.append(("gap", 1))
    each(lambda s, q, t: f"v_cvt_pk_bf16_f32 v{q}, v{q}, v{q}")
    each(lambda s, q, t: f"v_lshlrev_b32 v{q}, 16, v{q}")
    each(lambda s, q, t: f"v_rcp_f32 v{q}, v{q}")
    l.append(("gap", 1))
    return l


def gen(a, label):
    kernel_header(a, label)
    c = Ctx(a)
    L_end = a.label("end")
    SX, SW, SWS, SK, SV, SSK, SWO, SKK, SOUT, SDBG = 4, 8, 12, 16, 20, 24, 28, 32, 36, 40
    s_wave, s_rb, s_g, s_p, s_b, s_rot = 44, 45, 46, 47, 48, 49
    s_ep = 50
    s_loc, s_xcc, s_D, s_wm0, s_rowbase, s_c, s_cl, s_half, s_ch, s_spin = 52, 53, 54, 55, 56, 57, 58, 59, 60, 61
    s_xq, s_xl, s_wq = 62, 66, 70
    t = 74
    s_x0m = 16
    s_flag = 18
    s_stile = 19
    nst = [0]

    def stamp(tag=""):
        if STAMP and FINE != "none" and (tag == FINE or (tag == "" and (not FINE or nst[0] == 0))):
            i = nst[0]
            assert i < 14, i
            c("s_memtime s[100:101]", "s_waitcnt lgkmcnt(0)", f"v_writelane_b32 v255, s100, {i+2}")
            nst[0] += 1

    V_LANE, V_LAM, V_Q, V_L16, V_XD, V_WD, V_BB, V_ROW, V_Z = 1, 2, 3, 4, 5, 6, 7, 8, 9
    VAE = 10
    CSQ, CSK, CSV = 26, 30, 34
    V_L8 = 35
    V_EPV = 36
    BC, BP, BP1, MC, MP, ONES = 38, 42, 46, 50, 52, 54
    V_WO = 58
    V_T0 = 62

    c("s_cmp_ge_u32 s2, 256", f"s_cbranch_scc1 {L_end}")
    if STAMP:
        c("s_memrealtime s[100:101]", "v_mov_b32 v255, 0", "s_waitcnt lgkmcnt(0)", "v_writelane_b32 v255, s100, 0")
    stamp()
    c("s_load_dwordx4 s[88:91], s[0:1], 0",
      "s_load_dwordx2 s[92:93], s[0:1], 16",
      "s_load_dwordx4 s[96:99], s[0:1], 32",
      "s_load_dwordx2 s[94:95], s[0:1], 88")
    c(f"v_and_b32 v{V_LANE}, 63, v0",
      "v_lshrrev_b32 v62, 6, v0",
      f"v_and_b32 v{V_LAM}, 15, v{V_LANE}",
      f"v_readfirstlane_b32 s{s_wave}, v62",
      f"v_lshrrev_b32 v{V_Q}, 4, v{V_LANE}",
      f"v_lshlrev_b32 v{V_L16}, 4, v{V_LANE}",
      f"v_mov_b32 v{V_Z}, 0",
      f"s_and_b32 s{s_rb}, s2, 7",
      f"s_lshl_b32 s{s_rb}, s{s_rb}, 2",
      f"s_lshr_b32 s{s_rot}, s2, 6",
      f"s_add_u32 s{s_rb}, s{s_rb}, s{s_rot}",
      f"s_lshr_b32 s{s_g}, s2, 3",
      f"s_and_b32 s{s_g}, s{s_g}, 7",
      f"s_lshr_b32 s{s_p}, s{s_rb}, 4",
      f"s_and_b32 s{s_b}, s{s_rb}, 15")
    if "nopf" not in EXP:
        Lpf = a.label("nopf")
        c(f"s_and_b32 s{t}, s2, 0x78",
          f"s_cmp_lg_u32 s{t}, 0",
          f"s_cbranch_scc1 {Lpf}",
          f"s_getpc_b64 s[{t+2}:{t+3}]",
          f"s_and_b32 s{t+2}, s{t+2}, 0xffffff00",
          f"v_lshlrev_b32 v62, 7, v0",
          f"v_min_u32 v62, CODE_LIMIT, v62",
          f"global_load_dword v253, v62, s[{t+2}:{t+3}]",
          f"{Lpf}:")
    c(f"s_lshl_b32 s{t}, s{s_wave}, 2",
      f"v_add_u32 v62, s{t}, v{V_Q}",
      f"v_xor_b32 v62, v62, v{V_LAM}",
      "v_lshlrev_b32 v62, 4, v62",
      f"v_lshl_add_u32 v{V_XD}, v{V_Q}, 11, v62")
    c(f"v_lshrrev_b32 v62, 3, v{V_LANE}",
      f"s_lshl_b32 s{t}, s{s_wave}, 3",
      f"v_add_u32 v62, s{t}, v62",
      "v_bfe_u32 v63, v62, 3, 1",
      "v_lshlrev_b32 v63, 1, v63",
      "v_bfe_u32 v64, v62, 1, 1",
      "v_or_b32 v63, v63, v64",
      f"v_bfe_u32 v64, v{V_LANE}, 1, 2",
      "v_xor_b32 v63, v63, v64",
      "v_lshlrev_b32 v63, 5, v63",
      f"v_and_b32 v64, 1, v{V_LANE}",
      "v_lshl_add_u32 v63, v64, 4, v63",
      f"v_mul_u32_u24 v{V_WD}, 3072, v62",
      f"v_add_u32 v{V_WD}, v{V_WD}, v63")
    c(f"s_lshl_b32 s{s_rowbase}, s{s_b}, 17",
      f"s_lshl_b32 s{t}, s{s_p}, 10",
      f"s_add_u32 s{s_rowbase}, s{s_rowbase}, s{t}",
      f"s_mul_i32 s{s_wm0}, s{s_wave}, 3072",
      f"s_add_u32 s{s_wm0}, s{s_wm0}, {L_R}")
    c(f"s_lshl_b32 s{t+1}, s{s_wave}, 13",
      f"s_add_u32 s{t+1}, s{t+1}, s{s_rowbase}",
      f"s_sub_u32 s{t+1}, s{t+1}, 32768",
      f"s_lshl_b32 s{t+2}, s{s_wave}, 10",
      f"s_lshl_b32 s{t+3}, s{s_g}, 7")
    for qi in range(4):
        c(f"s_add_u32 s{t}, s{s_rot}, {qi}",
          f"s_and_b32 s{t}, s{t}, 3",
          f"s_lshl_b32 s{s_xq+qi}, s{t}, 8",
          f"s_add_u32 s{s_xq+qi}, s{s_xq+qi}, s{t+1}",
          f"s_mul_i32 s{s_xl+qi}, s{t}, {XQ}",
          f"s_add_u32 s{s_xl+qi}, s{s_xl+qi}, s{t+2}",
          f"s_mul_i32 s{s_wq+qi}, s{t}, {4*98304}",
          f"s_add_u32 s{s_wq+qi}, s{s_wq+qi}, s{t+3}")
    s_wo = 82
    for e4 in range(4):
        c(f"s_add_u32 s{t}, s2, {e4}",
          f"s_and_b32 s{t}, s{t}, 3",
          f"s_mul_i32 s{s_wo+e4}, s{t}, 98304")
    c(f"s_cmp_eq_u32 s{s_wave}, 0",
      "s_cselect_b32 s86, 0xffff0000, -1",
      "s_mov_b32 s87, -1")
    stamp("p1")
    c("s_waitcnt lgkmcnt(0)")
    stamp("p1")
    srd(a, SX, 88, 89, 2 * MB)
    srd(a, SW, 90, 91, 512 * 1536 * 2)

    def xdma(qi, i):
        l = [f"s_add_u32 m0, s{s_xl+qi}, {L_X + i*4096}"]
        if i == 0:
            l += [f"s_cmp_lt_u32 s{s_wave}, 2",
                  f"s_cselect_b32 s{t}, {OOB}, s{s_xq+qi}",
                  ("vm", f"x{qi}", f"s_mov_b64 exec, s[86:87]\nbuffer_load_dwordx4 v{V_XD}, {sr(SX,4)}, s{t} offen lds\ns_mov_b64 exec, -1")]
        else:
            l += [f"s_add_u32 s{t}, s{s_xq+qi}, {i*32768}",
                  ("vm", f"x{qi}", f"buffer_load_dwordx4 v{V_XD}, {sr(SX,4)}, s{t} offen lds")]
        return l

    def wdma(ch):
        l = [f"s_add_u32 m0, s{s_wm0}, {(ch % NS)*12288}",
             f"s_add_u32 s{t}, s{s_wq+(ch>>2)}, s{s_wo+(ch&3)}"]
        for s in range(3):
            l.append(("vm", f"w{ch}", f"buffer_load_dwordx4 v{V_WD}, {sr(SW,4)}, s{t} offen offset:{1024*s} lds"))
        return l

    for i in range(5):
        c(xdma(0, i))
    c(wdma(0))
    srd(a, SWS, 94, 95, WS_SIZE)
    srd(a, SK, 96, 97, 2 * MB)
    srd(a, SV, 98, 99, 2 * MB)
    srd(a, SWO, 92, 93, 512 * 512 * 2)
    c("s_load_dwordx4 s[88:91], s[0:1], 48",
      "s_load_dwordx4 s[92:95], s[0:1], 64",
      "s_load_dwordx2 s[96:97], s[0:1], 80")
    TK, TV, TS = 184, 204, 212
    KF, SF, VF, OF = 228, 238, 246, 250
    UP = 112
    c(f"s_lshr_b32 s{t}, s2, 3",
      f"s_lshl_b32 s{t}, s{t}, 16",
      f"s_and_b32 s{t+1}, s2, 7",
      f"s_lshl_b32 s{t+2}, s{t+1}, 7",
      f"s_add_u32 s{t}, s{t}, s{t+2}",
      "v_and_b32 v64, 7, v0",
      "v_lshrrev_b32 v65, 3, v0",
      "v_lshlrev_b32 v66, 11, v65",
      "v_lshl_add_u32 v66, v64, 4, v66",
      f"v_add_u32 v66, s{t}, v66",
      "v_add_u32 v67, 0xfffff400, v66",
      "v_add_u32 v68, 0xfffff800, v66",
      "v_add_u32 v69, 0xfffffc00, v66")
    for ins in (f"buffer_load_dwordx4 {vr(TK,4)}, v67, {sr(SK,4)}, 0 offen",
                f"buffer_load_dwordx4 {vr(TK+4,4)}, v68, {sr(SK,4)}, 0 offen",
                f"buffer_load_dwordx4 {vr(TK+8,4)}, v69, {sr(SK,4)}, 0 offen",
                f"buffer_load_dwordx4 {vr(TK+12,4)}, v66, {sr(SK,4)}, 0 offen",
                f"buffer_load_dwordx4 {vr(TK+16,4)}, v66, {sr(SK,4)}, 0 offen offset:1024",
                f"buffer_load_dwordx4 {vr(TV,4)}, v66, {sr(SV,4)}, 0 offen",
                f"buffer_load_dwordx4 {vr(TV+4,4)}, v66, {sr(SV,4)}, 0 offen offset:1024"):
        if "notl" not in EXP:
            c(("vm", "T", ins))
    c("s_waitcnt lgkmcnt(0)")
    srd(a, SSK, 88, 89, 4096)
    srd(a, SKK, 90, 91, 2 * MB)
    srd(a, SOUT, 94, 95, 2 * MB)
    srd(a, SDBG, 96, 97, 256)
    c(f"s_lshl_b32 s{t+3}, s2, 2",
      f"s_load_dword s{s_D}, s[92:93], s{t+3}",
      f"s_getreg_b32 s{s_xcc}, hwreg(HW_REG_XCC_ID)",
      f"s_and_b32 s{s_xcc}, s{s_xcc}, 15",
      f"s_lshl_b32 s{t+2}, s{t+1}, 9",
      "v_lshlrev_b32 v67, 6, v64")
    for d in range(4):
        c(("vm", "T", f"buffer_load_dwordx4 {vr(TS+4*d,4)}, v67, {sr(SSK,4)}, s{t+2} offen offset:{16*d}"))
    Lq = a.label("noep")
    c(f"s_or_b32 s{t}, s2, s{s_wave}",
      f"s_cmp_lg_u32 s{t}, 0",
      f"s_cbranch_scc1 {Lq}",
      f"s_memrealtime s[{t+4}:{t+5}]",
      "s_waitcnt lgkmcnt(0)",
      f"s_or_b32 s{t+4}, s{t+4}, 1",
      f"v_mov_b32 v70, s{t+4}",
      f"v_mov_b32 v71, s{t+5}",
      "s_mov_b64 exec, 1",
      f"buffer_store_dwordx2 v[70:71], v{V_Z}, {sr(SDBG,4)}, 0 offen sc1",
      "s_mov_b64 exec, -1",
      f"{Lq}:")
    c(wdma(1))
    k = []
    k += [f"v_bfe_u32 v70, v{V_LANE}, 2, 2",
          f"v_and_b32 v71, 1, v{V_Q}",
          "v_lshlrev_b32 v71, 1, v71",
          "v_lshrrev_b32 v72, 1, v70",
          "v_or_b32 v71, v71, v72",
          f"v_xor_b32 v72, s{s_wave}, v71",
          "v_lshlrev_b32 v72, 5, v72",
          "v_lshl_add_u32 v72, v70, 7, v72",
          f"v_and_b32 v73, 3, v{V_LANE}",
          "v_lshl_add_u32 v72, v73, 3, v72",
          f"v_mul_u32_u24 v74, 3072, v{V_Q}",
          "v_add_u32 v72, v72, v74",
          f"v_add_u32 v{V_BB}, {L_R}, v72",
          f"v_lshl_add_u32 v72, v{V_Q}, 3, v70",
          "v_lshlrev_b32 v72, 7, v72",
          "v_lshl_add_u32 v72, v73, 3, v72",
          f"v_add_u32 v72, {L_R}, v72"]
    for nt in range(4):
        k += [f"v_xor_b32 v74, {nt}, v71", f"v_lshl_add_u32 v{V_WO+nt}, v74, 5, v72"]
    k += [f"s_lshl_b32 s{t+2}, s{s_wave}, 10"]
    for e4 in range(4):
        k += [f"s_add_u32 s{t+3}, s2, {e4}",
              f"s_and_b32 s{t+3}, s{t+3}, 3",
              f"s_lshl_b32 s{t+3}, s{t+3}, 2",
              f"v_add_u32 v70, s{t+3}, v{V_Q}",
              f"v_xor_b32 v70, v70, v{V_LAM}",
              "v_lshlrev_b32 v70, 4, v70",
              f"v_lshl_add_u32 v70, v{V_LAM}, 8, v70",
              f"v_subrev_u32 v70, s{t+2}, v70"]
        for qi in range(4):
            k.append(f"v_add_u32 v{VAE+4*qi+e4}, s{s_xl+qi}, v70")
    k += [f"v_lshlrev_b32 v{V_ROW}, 11, v{V_LAM}",
          f"v_lshl_add_u32 v{V_ROW}, v{V_Q}, 3, v{V_ROW}",
          f"v_lshlrev_b32 v{V_L8}, 3, v{V_LANE}",
          f"v_lshlrev_b32 v70, 2, v{V_Q}",
          f"v_mov_b32 v72, {NEG}",
          f"s_cmp_eq_u32 s{s_b}, 0",
          f"s_cselect_b32 s{t+2}, -1, 0",
          f"s_mov_b32 s{t+3}, s{t+2}"]
    for r in range(4):
        k += [f"v_add_u32 v71, {r}, v70",
              f"v_sub_u32 v71, v{V_LAM}, v71",
              "v_cmp_gt_u32 vcc, 8, v71",
              "v_add_u32 v71, 16, v71",
              f"v_cmp_gt_u32 {sr(t+4,2)}, 8, v71",
              f"v_cndmask_b32 v{BC+r}, v72, 0, vcc",
              f"v_cndmask_b32 v{74+r}, 0, -1, vcc",
              f"v_cndmask_b32 v{BP+r}, v72, 0, {sr(t+4,2)}",
              f"v_cndmask_b32 v{78+r}, 0, -1, {sr(t+4,2)}",
              f"v_cndmask_b32 v{BP1+r}, v{BP+r}, v72, {sr(t+2,2)}"]
    k.append(f"s_mov_b32 s{t+4}, 0xffff")
    for h in range(2):
        k += [f"v_bfi_b32 v{MC+h}, s{t+4}, v{74+2*h}, v{75+2*h}",
              f"v_bfi_b32 v{MP+h}, s{t+4}, v{78+2*h}, v{79+2*h}"]
    for r in range(4):
        k.append(f"v_mov_b32 v{ONES+r}, 0x3f803f80")
    k += [f"v_mul_u32_u24 v70, {XQ}, v{V_Q}",
          f"v_lshl_add_u32 v70, v{V_LAM}, 4, v70",
          f"ds_write_b128 v70, {vr(ONES,4)} offset:{L_X}"]
    k += [f"s_add_u32 s{s_stile}, s{s_wave}, 1",
          f"s_lshl_b32 s{s_stile}, s{s_stile}, 12",
          f"s_lshl_b32 s{s_flag}, s{s_rb}, 8",
          f"s_lshl_b32 s{t+2}, s{s_g}, 5",
          f"s_add_u32 s{s_flag}, s{s_flag}, s{t+2}",
          f"s_lshl_b32 s{t+2}, s{s_wave}, 3",
          f"s_add_u32 s{s_flag}, s{s_flag}, s{t+2}",
          f"s_lshr_b32 s{s_ch}, s{s_wave}, 1",
          f"s_and_b32 s{s_half}, s{s_wave}, 1",
          f"s_lshl_b32 s{s_c}, s2, 1",
          f"s_add_u32 s{s_c}, s{s_c}, s{s_ch}",
          f"s_lshl_b32 s{s_c}, s{s_c}, 12",
          f"s_mul_i32 s{s_cl}, s{s_ch}, {C_CH}"]
    c(k)
    c(wdma(2))
    stamp("p1")
    c(("wait", ["T"]))
    stamp("p1")
    tc = []
    for d in range(4):
        for r in range(5):
            tc.append(f"v_lshlrev_b32 v{KF+2*r}, 16, v{TK+4*r+d}")
            tc.append(f"v_and_b32 v{KF+2*r+1}, 0xffff0000, v{TK+4*r+d}")
        for j in range(4):
            for cc in range(2):
                src = TS + 4 * d + 2 * cc + (j >> 1)
                tc.append(f"v_and_b32 v{SF+2*j+cc}, 0xffff0000, v{src}" if j & 1 else f"v_lshlrev_b32 v{SF+2*j+cc}, 16, v{src}")
        for tt in range(2):
            tc.append(f"v_lshlrev_b32 v{VF+2*tt}, 16, v{TV+4*tt+d}")
            tc.append(f"v_and_b32 v{VF+2*tt+1}, 0xffff0000, v{TV+4*tt+d}")
        for tt in range(2):
            o = OF + 2 * tt
            tc.append(f"v_pk_mul_f32 {vr(o,2)}, {vr(KF+2*(tt+0),2)}, {vr(SF+6,2)}")
            for j in (2, 1, 0):
                tc.append(f"v_pk_fma_f32 {vr(o,2)}, {vr(KF+2*(3+tt-j),2)}, {vr(SF+2*j,2)}, {vr(o,2)}")
            tc.append(f"v_pk_mul_f32 {vr(o,2)}, {vr(o,2)}, {vr(VF+2*tt,2)}")
        tc.append(f"v_cvt_pk_bf16_f32 v{UP+2*d}, v{OF+2}, v{OF}")
        tc.append(f"v_cvt_pk_bf16_f32 v{UP+2*d+1}, v{OF+3}, v{OF+1}")
    groups = [xdma(1, i) for i in range(5)] + [wdma(3), wdma(4)]
    per = len(tc) // (len(groups) + 1)
    for i, l in enumerate(tc):
        if "notc" not in EXP:
            c(l)
        if (i + 1) % per == 0 and groups:
            c(groups.pop(0))
    assert not groups
    c("v_sub_u32 v67, 31, v65",
      "v_lshrrev_b32 v68, 2, v67",
      "v_xor_b32 v68, v68, v64",
      "v_lshlrev_b32 v68, 4, v68",
      "v_and_b32 v67, 3, v67",
      "v_lshl_add_u32 v68, v67, 2, v68",
      "v_lshl_add_u32 v68, v64, 10, v68",
      f"v_add_u32 v68, {L_TB}, v68")
    for i in range(8):
        c(f"ds_write_b32 v68, v{UP+i} offset:{128*i}")
    c("v_lshrrev_b32 v67, 3, v0",
      "v_lshrrev_b32 v68, 3, v67",
      "v_xor_b32 v68, v68, v64",
      "v_lshlrev_b32 v68, 4, v68",
      "v_lshl_add_u32 v68, v67, 7, v68",
      f"v_add_u32 v68, {L_TB}, v68",
      "v_xor_b32 v69, 64, v68",
      f"s_and_b32 s{t}, s2, 7",
      f"s_lshl_b32 s{t}, s{t}, 18",
      f"s_lshr_b32 s{t+1}, s2, 3",
      f"s_lshl_b32 s{t+1}, s{t+1}, 7",
      f"s_sub_u32 s{t}, s{t}, s{t+1}",
      f"s_add_u32 s{t}, s{t}, {U_OFF + 3968}",
      f"s_add_u32 s{t+1}, s{t}, {32*4096}",
      "v_lshlrev_b32 v67, 12, v67",
      "v_lshl_add_u32 v67, v64, 4, v67",
      "s_nop 0")
    stamp("p1")
    c(("wait", ["x0", "w0"], 0),
      "s_barrier",
      f"ds_read_b128 {vr(UP,4)}, v68",
      f"ds_read_b128 {vr(UP+4,4)}, v69 offset:4096")

    XS = [64 + 8, 96]
    XS = [184, 208]
    ACC = 108
    AQ, AK, AV = ACC, ACC + 20, ACC + 40
    SA = 168
    V_SB = 172
    V_EP = 174
    SU = 232

    def p1_reads(P, e):
        l = []
        slot = (e % NS) * 12288
        l.append(f"v_add_u32 v{V_SB}, s{s_stile}, v{VAE+e}")
        for s in range(3):
            for ss in range(2):
                l.append(f"ds_read_b64_tr_b16 {ar(12*e+4*s+2*ss,2)}, v{V_BB} offset:{slot+1024*s+512*ss}")
        for tl in range(5):
            l.append(f"ds_read_b128 {vr(XS[P]+4*tl,4)}, v{VAE+e} offset:{4096*tl}")
        l.append(f"ds_read_b128 {vr(XS[P]+20,4)}, v{V_SB}")
        return l

    c(p1_reads(0, 0))
    c(f"v_mov_b32 v{SA}, 0", f"v_mov_b32 v{SA+1}, 0", "s_waitcnt lgkmcnt(12)")
    c(("vm", "Tst", f"buffer_store_dwordx4 {vr(UP,4)}, v67, {sr(SWS,4)}, s{t} offen sc1"),
      ("vm", "Tst", f"buffer_store_dwordx4 {vr(UP+4,4)}, v67, {sr(SWS,4)}, s{t+1} offen sc1"))
    stamp()
    V_WOD = 176
    wod = [f"v_lshrrev_b32 v{V_T0}, 3, v{V_LANE}",
           f"v_bfe_u32 v{V_T0+1}, v{V_T0}, 1, 1",
           f"s_lshl_b32 s{t+5}, s{s_half}, 1",
           f"v_or_b32 v{V_T0+1}, s{t+5}, v{V_T0+1}",
           f"v_bfe_u32 v{V_WOD}, v{V_LANE}, 1, 2",
           f"v_xor_b32 v{V_T0+1}, v{V_T0+1}, v{V_WOD}",
           f"v_lshlrev_b32 v{V_T0+1}, 5, v{V_T0+1}",
           f"v_and_b32 v{V_WOD}, 1, v{V_LANE}",
           f"v_lshl_add_u32 v{V_T0+1}, v{V_WOD}, 4, v{V_T0+1}",
           f"v_lshl_add_u32 v{V_WOD}, v{V_T0}, 10, v{V_T0+1}",
           f"s_lshl_b32 s{t+6}, s{s_g}, 7",
           f"s_lshl_b32 s{t+5}, s{s_wave}, 13",
           f"s_add_u32 s{t+6}, s{t+6}, s{t+5}",
           f"s_lshl_b32 s{t+7}, s{s_wave}, 10"]

    def wodma(n):
        return [f"s_add_u32 m0, s{t+7}, {L_R + n*4096}",
                f"s_add_u32 s{t}, s{t+6}, {n*32768}",
                ("vm", "wo", f"buffer_load_dwordx4 v{V_WOD}, {sr(SWO,4)}, s{t} offen lds")]

    xsched = {0: [(2, 0), (2, 1)], 1: [(2, 2), (2, 3), (2, 4)], 2: [(3, 0), (3, 1)], 3: [(3, 2), (3, 3), (3, 4)]}
    V_HL, V_FT = 178, 182
    for e in range(16):
        P = e & 1
        need = []
        if NS == 5:
            if e < 15:
                need = [f"w{e+1}"]
                if (e + 1) % 4 == 0:
                    need.append(f"x{(e+1)//4}")
        elif e % 2 == 0:
            need = [f"w{e+1}", f"w{e+2}"]
            if (e + 2) % 4 == 0:
                need.append(f"x{(e+2)//4}")
        if e == 4:
            need += ["Tst", "ep"]
        c(("wait", need, 0))
        if NS == 5 or e % 2 == 0:
            c("s_barrier")
        sx = XS[P] + 20
        st_ops = []
        if "plain" not in EXP:
            for i in range(4):
                c(f"v_dot2_f32_bf16 v{SA}, v{sx+i}, v{ONES}, v{SA}",
                  f"v_dot2_f32_bf16 v{SA+1}, v{sx+i}, v{sx+i}, v{SA+1}")
        else:
            for i in range(4):
                st_ops += [f"v_lshlrev_b32 v{SU}, 16, v{sx+i}",
                           f"v_and_b32 v{SU+1}, 0xffff0000, v{sx+i}",
                           f"v_add_f32 v{SA}, v{SA}, v{SU}",
                           f"v_fmac_f32 v{SA+1}, v{SU}, v{SU}",
                           f"v_add_f32 v{SA}, v{SA}, v{SU+1}",
                           f"v_fmac_f32 v{SA+1}, v{SU+1}, v{SU+1}"]
        if e in (0, 2, 4, 6, 8, 10, 12, 14):
            stamp("p1")
        other = []
        if e < 15:
            other += p1_reads(1 - P, e + 1)
        if e == 0:
            other.append(("vm", "ep", f"buffer_load_dwordx2 {vr(V_EP,2)}, v{V_Z}, {sr(SDBG,4)}, 0 offen sc1"))
        if e + 5 < 16:
            other += wdma(e + 5)
        for (qi, i) in xsched.get(e, []):
            other += xdma(qi, i)
        if e == 15:
            other += [f"s_lshl_b32 s{t+8}, s{s_rb}, 7",
                      f"s_add_u32 s{t+8}, s{t+8}, {F_HELLO}",
                      f"v_and_b32 v{V_T0}, 0x70, v{V_L16}",
                      ("vm", "hl", f"buffer_load_dwordx4 {vr(V_HL,4)}, v{V_T0}, {sr(SWS,4)}, s{t+8} offen sc1"),
                      f"s_lshr_b32 s{t+9}, s2, 5",
                      f"s_lshl_b32 s{t+9}, s{t+9}, 8",
                      f"s_add_u32 s{t+9}, s{t+9}, {F_T}",
                      f"v_and_b32 v{V_T0+1}, 0xf8, v{V_L8}",
                      ("vm", "hl", f"buffer_load_dwordx2 {vr(V_FT,2)}, v{V_T0+1}, {sr(SWS,4)}, s{t+9} offen sc1")]
        if e == 7 and "nopf2" not in EXP:
            other += [f"s_lshl_b32 s{t}, s2, 13",
                      f"s_lshl_b32 s{t+1}, s{s_wave}, 11",
                      f"s_add_u32 s{t}, s{t}, s{t+1}",
                      ("vm", "pf", f"buffer_load_dwordx4 v[240:243], v{V_L16}, {sr(SKK,4)}, s{t} offen"),
                      ("vm", "pf", f"buffer_load_dwordx4 v[240:243], v{V_L16}, {sr(SKK,4)}, s{t} offen offset:1024"),
                      f"v_lshlrev_b32 v236, 18, v{V_LANE}",
                      ("vm", "pf", f"buffer_load_dword v237, v236, {sr(SWS,4)}, 0 offen"),
                      ("vm", "pf", f"buffer_load_dword v237, v236, {sr(SOUT,4)}, 0 offen")]
        if e == 8 and "nopfl" not in EXP:
            other += [f"s_lshl_b32 s{t}, s{s_rb}, 8",
                      f"v_lshlrev_b32 v236, 13, v{V_Q}",
                      f"v_lshl_add_u32 v236, v{V_LAM}, 4, v236",
                      f"s_add_u32 s{t}, s{t}, {F_O1}",
                      ("vm", "pf", f"buffer_load_dword v237, v236, {sr(SWS,4)}, s{t} offen sc1"),
                      f"s_lshl_b32 s{t}, s{s_rb}, 13",
                      f"s_lshl_b32 s{t+1}, s{s_wave}, 11",
                      f"s_add_u32 s{t}, s{t}, s{t+1}",
                      f"v_lshlrev_b32 v236, 7, v{V_LAM}",
                      f"v_and_b32 v238, 1, v{V_Q}",
                      f"v_lshl_add_u32 v236, v238, 18, v236",
                      f"s_add_u32 s{t}, s{t}, {ST1_OFF}",
                      ("vm", "pf", f"buffer_load_dword v237, v236, {sr(SWS,4)}, s{t} offen sc1")]
        if e == 9 and "pfb" in EXP:
            other += [f"s_lshl_b32 s{t}, s{s_g}, 2",
                      f"s_add_u32 s{t}, s{t}, s{s_wave}",
                      f"s_lshl_b32 s{t}, s{t}, 9",
                      f"s_lshl_b32 s{t+1}, s{s_rb}, 16",
                      f"s_add_u32 s{t}, s{t}, s{t+1}",
                      f"v_and_b32 v236, 3, v{V_LANE}",
                      "v_lshlrev_b32 v236, 7, v236",
                      f"v_bfe_u32 v237, v{V_LANE}, 2, 2",
                      "v_lshl_add_u32 v236, v237, 14, v236",
                      f"v_and_b32 v237, 1, v{V_Q}",
                      "v_lshl_add_u32 v236, v237, 21, v236",
                      ("vm", "pf", f"buffer_load_dword v237, v236, {sr(SWS,4)}, s{t} offen"),
                      f"s_lshl_b32 s{t}, s{s_wave}, 15",
                      f"s_add_u32 s{t}, s{t}, s{s_rowbase}",
                      f"s_lshl_b32 s{t+1}, s{s_g}, 7",
                      f"s_add_u32 s{t}, s{t}, s{t+1}",
                      f"s_add_u32 s{t+1}, s{t}, {X2_OFF}",
                      ("vm", "pf", f"buffer_load_dword v237, v{V_ROW}, {sr(SWS,4)}, s{t+1} offen"),
                      ("vm", "pf", f"buffer_load_dword v237, v{V_ROW}, {sr(SOUT,4)}, s{t} offen")]
        if e == 10:
            other += wod
        if NS == 5:
            wsch = {11: [15], 12: [3, 4, 5], 13: [6, 7, 8], 14: [9, 10, 11], 15: [12, 13, 14]}
        else:
            wsch = {12: [12, 13, 14], 13: [15, 0, 1], 14: [2, 3, 4], 15: [5, 6, 7]}
        for n in wsch.get(e, []):
            other += wodma(n)
        if e == 4:
            Lp, Lok, Lnf = a.label("ep"), a.label("epok"), a.label("nf")
            c(f"s_mov_b32 s{s_spin}, 0",
              f"{Lp}:",
              f"v_readfirstlane_b32 s{s_ep}, v{V_EP}",
              f"v_readfirstlane_b32 s{s_ep+1}, v{V_EP+1}",
              f"s_add_u32 s{s_spin}, s{s_spin}, 1",
              f"s_cmp_lg_u32 s{s_ep}, 0",
              f"s_cbranch_scc1 {Lok}",
              f"s_cmp_gt_u32 s{s_spin}, {SPIN_MAX}",
              f"s_cbranch_scc1 {Lok}",
              "s_sleep 2",
              f"buffer_load_dwordx2 {vr(V_EP,2)}, v{V_Z}, {sr(SDBG,4)}, 0 offen sc1",
              "s_waitcnt vmcnt(0)",
              f"s_branch {Lp}",
              f"{Lok}:",
              f"v_mov_b32 v{V_EPV}, s{s_ep}",
              f"v_mov_b32 v{V_EPV+1}, s{s_ep+1}",
              f"s_cmp_lg_u32 s{s_wave}, 0",
              f"s_cbranch_scc1 {Lnf}",
              f"v_mov_b32 v{V_HL}, s{s_ep}",
              f"v_mov_b32 v{V_HL+1}, s{s_ep+1}",
              f"v_mov_b32 v{V_HL+2}, s{s_xcc}",
              f"v_mov_b32 v{V_HL+3}, 0",
              f"s_and_b32 s{t}, s2, 7",
              f"s_lshl_b32 s{t}, s{t}, 8",
              f"s_and_b32 s{t+1}, s2, 0xf8",
              f"s_add_u32 s{t}, s{t}, s{t+1}",
              f"s_add_u32 s{t}, s{t}, {F_T}",
              f"s_lshl_b32 s{t+1}, s{s_rb}, 7",
              f"s_lshl_b32 s{t+2}, s{s_g}, 4",
              f"s_add_u32 s{t+1}, s{t+1}, s{t+2}",
              f"s_add_u32 s{t+1}, s{t+1}, {F_HELLO}",
              "s_mov_b64 exec, 1",
              f"buffer_store_dwordx2 {vr(V_HL,2)}, v{V_Z}, {sr(SWS,4)}, s{t} offen sc1",
              f"buffer_store_dwordx4 {vr(V_HL,4)}, v{V_Z}, {sr(SWS,4)}, s{t+1} offen sc1",
              "s_mov_b64 exec, -1",
              f"{Lnf}:")
        mf = []
        wq, wk, wv = ar(12 * e, 4), ar(12 * e + 4, 4), ar(12 * e + 8, 4)
        for tl in range(5):
            x = vr(XS[P] + 4 * tl, 4)
            for (acc, A_, B_) in ((AQ + 4 * tl, wq, x), (AK + 4 * tl, wk, x), (AV + 4 * tl, x, wv)):
                mf.append(f"v_mfma_f32_16x16x32_bf16 {vr(acc,4)}, {A_}, {B_}, {vr(acc,4) if e else 0}")
        mix = []
        no, ns = len(other), len(st_ops)
        io = 0
        for j, so in enumerate(st_ops):
            while io < (j + 1) * no // max(ns, 1):
                mix.append(other[io])
                io += 1
            mix.append(so)
        mix += other[io:]
        c.merge(mf, mix)
    stamp()
    HR = 64
    c(f"v_lshrrev_b32 v72, 5, v{V_LANE}",
      f"s_lshl_b32 s{t}, s{s_wave}, 1",
      f"s_add_u32 s{t}, s{t}, 8",
      f"v_add_u32 v72, s{t}, v72",
      "v_lshlrev_b32 v72, 8, v72",
      f"v_lshl_add_u32 v72, v{V_LAM}, 4, v72",
      f"v_and_b32 v73, 1, v{V_Q}",
      f"v_mul_u32_u24 v73, {XQ}, v73",
      "v_add_u32 v72, v72, v73",
      f"ds_read_b128 {vr(HR,4)}, v72 offset:{L_X}",
      f"ds_read_b128 {vr(HR+4,4)}, v72 offset:{L_X+2*XQ}",
      f"v_mov_b32 v{SA+2}, 0",
      f"v_mov_b32 v{SA+3}, 0",
      f"v_lshlrev_b32 v74, 2, v{V_LAM}")
    for r in range(4):
        c(f"v_mov_b32_dpp v{CSQ+r}, v{AQ+r} row_newbcast:0 row_mask:0xf bank_mask:0xf",
          f"v_mov_b32_dpp v{CSK+r}, v{AK+r} row_newbcast:0 row_mask:0xf bank_mask:0xf")
    c(f"ds_bpermute_b32 v{CSV}, v74, v{AV}",
      "s_waitcnt lgkmcnt(0)",
      "s_barrier")
    STA, STB = 94, 196
    QP, KP, VP = 64, 74, 84
    def read_stats(vlam8):
        l = [f"ds_read_b64 {vr(STA+2*tl,2)}, v{vlam8} offset:{128*tl}" for tl in range(5)]
        l += [f"v_lshlrev_b32 v{V_T0}, 5, v{V_Q}", f"v_add_u32 v{V_T0}, {L_ST}, v{V_T0}"]
        for tl in range(5):
            l += [f"ds_read_b128 {vr(STB+8*tl,4)}, v{V_T0} offset:{128*tl}",
                  f"ds_read_b128 {vr(STB+8*tl+4,4)}, v{V_T0} offset:{128*tl+16}"]
        return l

    def poll(check_lines, reload_lines, name, sleep=1):
        Lp, Ld = a.label(name), a.label(name + "d")
        c(f"s_mov_b32 s{s_spin}, 0", f"{Lp}:")
        c(check_lines)
        c(f"s_add_u32 s{s_spin}, s{s_spin}, 1",
          f"s_cmp_gt_u32 s{s_spin}, {SPIN_MAX}",
          f"s_cbranch_scc1 {Ld}",
          "s_nop 1",
          f"s_cbranch_vccz {Ld}",
          f"s_sleep {sleep}")
        c(reload_lines)
        c("s_waitcnt vmcnt(0)", f"s_branch {Lp}", f"{Ld}:")

    def chk_ep(regs_lo, tmp):
        l = []
        for n, lo in enumerate(regs_lo):
            if n == 0:
                l.append(f"v_xor_b32 v{tmp}, s{s_ep}, v{lo}")
            else:
                l.append(f"v_xor_b32 v{tmp+1}, s{s_ep}, v{lo}")
                l.append(f"v_or_b32 v{tmp}, v{tmp}, v{tmp+1}")
            l.append(f"v_xor_b32 v{tmp+1}, s{s_ep+1}, v{lo+1}")
            l.append(f"v_or_b32 v{tmp}, v{tmp}, v{tmp+1}")
        l.append(f"v_cmp_ne_u32 vcc, 0, v{tmp}")
        return l

    PT = 104
    c(f"v_and_b32 v{PT}, 0x70, v{V_L16}", f"v_and_b32 v{PT+1}, 0xf8, v{V_L8}")
    c(("wait", ["hl"]))
    poll(chk_ep([V_HL, V_FT], 106),
         [f"buffer_load_dwordx4 {vr(V_HL,4)}, v{PT}, {sr(SWS,4)}, s{t+8} offen sc1",
          f"buffer_load_dwordx2 {vr(V_FT,2)}, v{PT+1}, {sr(SWS,4)}, s{t+9} offen sc1"], "phl")
    c(f"v_cmp_ne_u32 vcc, s{s_xcc}, v{V_HL+2}",
      f"s_lshl_b32 s{t+3}, s{s_half}, 11",
      f"s_add_u32 s{t+4}, s{s_c}, s{t+3}",
      f"s_add_u32 s{t+4}, s{t+4}, {U_OFF}",
      f"s_add_u32 m0, s{s_cl}, s{t+3}",
      "s_nop 0",
      ("vm", "cu", f"buffer_load_dwordx4 v{V_L16}, {sr(SWS,4)}, s{t+4} offen sc1 lds"),
      ("vm", "cu", f"buffer_load_dwordx4 v{V_L16}, {sr(SWS,4)}, s{t+4} offen offset:1024 sc1 lds"),
      "s_cmp_eq_u64 vcc, 0",
      f"s_cselect_b32 s{s_loc}, 1, 0")
    V_FX, V_FI = 184, 185
    dm = []
    for i in range(2):
        g0 = [f"s_lshl_b32 s{t+3}, s{s_half}, 1",
              f"s_add_u32 s{t+3}, s{t+3}, {i}",
              f"s_mul_i32 s{t+5}, s{t+3}, {C_KS}",
              f"s_add_u32 s{t+5}, s{t+5}, s{s_cl}",
              f"s_add_u32 s{t+10+i}, s{t+5}, {C_K+32}",
              f"s_lshl_b32 s{t+3}, s{t+3}, 1",
              f"s_add_u32 s{t+12+i}, s{s_c}, s{t+3}"]
        c(g0)
        for n in range(4):
            dm.append([f"s_mov_b32 m0, s{t+10+i}", "s_nop 0",
                       ("vm", "ck", f"buffer_load_dwordx4 v{V_L16}, {sr(SKK,4)}, s{t+12+i} offen offset:{1024*n} lds")])
    for n in ((0, 1, 2) if NS == 5 else (8, 9, 10, 11)):
        dm.append(wodma(n))
    c(f"v_add_u32 v{V_FI}, v{V_LAM}, v{V_Q}",
      f"v_subrev_u32 v{V_FI}, 16, v{V_FI}",
      f"v_max_i32 v74, 0, v{V_FI}",
      "v_lshlrev_b32 v74, 1, v74",
      ("vm", "ck", f"buffer_load_ushort v{V_FX}, v74, {sr(SKK,4)}, s{s_c} offen"))

    def with_dmas(main, groups, every):
        n = 0
        for it in main:
            c(it)
            n += 1
            if n % every == 0 and groups:
                c(groups.pop(0))

    TT = 72
    ep = []
    for i in range(8):
        ep.append(f"v_dot2_f32_bf16 v{SA+2}, v{HR+i}, v{ONES}, v{SA+2}")
        ep.append(f"v_dot2_f32_bf16 v{SA+3}, v{HR+i}, v{HR+i}, v{SA+3}")
    ep.append(("gap", 3))
    for sh in (8, 4, 2, 1):
        ep += [f"v_add_f32_dpp v{SA+2}, v{SA+2}, v{SA+2} row_ror:{sh} row_mask:0xf bank_mask:0xf",
               f"v_add_f32_dpp v{SA+3}, v{SA+3}, v{SA+3} row_ror:{sh} row_mask:0xf bank_mask:0xf",
               ("gap", 1)]
    ep += xq_reduce("v_add_f32", [SA, SA + 1, SA + 2, SA + 3], [TT, TT + 1, TT + 2, TT + 3], ("v_permlane16_swap_b32",))
    ep += xq_reduce("v_add_f32", [SA, SA + 1], [TT, TT + 1], ("v_permlane32_swap_b32",))
    ep += stats_fin([(SA, SA + 1), (SA + 2, SA + 3)], [TT, TT + 1])
    ep += [f"v_lshlrev_b32 v{TT}, 3, v{V_LAM}",
           f"s_lshr_b32 s{t+1}, s{s_stile}, 5",
           f"s_add_u32 s{t+1}, s{t+1}, {L_ST}",
           f"v_add_u32 v{TT+1}, s{t+1}, v{TT}",
           f"ds_write_b64 v{TT+1}, {vr(SA,2)}",
           f"v_lshrrev_b32 v{TT+1}, 5, v{V_LANE}",
           f"v_lshlrev_b32 v{TT+1}, 3, v{TT+1}",
           f"s_lshl_b32 s{t+1}, s{s_wave}, 4",
           f"s_add_u32 s{t+1}, s{t+1}, {L_ST + 64}",
           f"v_add_u32 v{TT+1}, s{t+1}, v{TT+1}",
           f"ds_write_b64 v{TT+1}, {vr(SA+2,2)}",
           f"v_and_b32 v{TT+1}, 0x38, v{TT}",
           f"v_add_u32 v{TT+1}, {L_ST}, v{TT+1}",
           f"v_mov_b32 v{TT+2}, 0",
           f"v_mov_b32 v{TT+3}, 1.0",
           f"ds_write_b64 v{TT+1}, {vr(TT+2,2)}",
           f"v_add_u32 v{TT}, {L_ST}, v{TT}"]
    with_dmas(ep, dm, 12)
    c("s_waitcnt lgkmcnt(0)", "s_barrier")

    c(read_stats(TT), "s_waitcnt lgkmcnt(0)")

    def normalize(tl, pk, VP):
        l = []
        mean, rstd = STA + 2 * tl, STA + 2 * tl + 1
        for (acc, cs, dst, on) in ((AQ + 4 * tl, CSQ, QP + 2 * tl, tl > 0), (AK + 4 * tl, CSK, KP + 2 * tl, True)):
            if not on:
                continue
            if pk:
                for h in range(2):
                    l.append(f"v_pk_fma_f32 {vr(acc+2*h,2)}, {vr(cs+2*h,2)}, {vr(mean,2)}, {vr(acc+2*h,2)} op_sel_hi:[1,0,1] neg_lo:[0,1,0] neg_hi:[0,1,0]")
                for h in range(2):
                    l.append(f"v_pk_mul_f32 {vr(acc+2*h,2)}, {vr(acc+2*h,2)}, {vr(mean,2)} op_sel:[0,1]")
            else:
                for r in range(4):
                    l.append(f"v_fma_f32 v{acc+r}, -v{mean}, v{cs+r}, v{acc+r}")
                for r in range(4):
                    l.append(f"v_mul_f32 v{acc+r}, v{rstd}, v{acc+r}")
            l.append(f"v_cvt_pk_bf16_f32 v{dst}, v{acc}, v{acc+1}")
            l.append(f"v_cvt_pk_bf16_f32 v{dst+1}, v{acc+2}, v{acc+3}")
        acc = AV + 4 * tl
        for r in range(4):
            l.append(f"v_fma_f32 v{acc+r}, -v{STB+8*tl+2*r}, v{CSV}, v{acc+r}")
        for r in range(4):
            l.append(f"v_mul_f32 v{acc+r}, v{STB+8*tl+2*r+1}, v{acc+r}")
        l.append(f"v_cvt_pk_bf16_f32 v{VP+2*tl}, v{acc}, v{acc+1}")
        l.append(f"v_cvt_pk_bf16_f32 v{VP+2*tl+1}, v{acc+2}, v{acc+3}")
        return l

    V_OA = 254
    s_oa = 20
    oaddr = [f"s_lshl_b32 s{t}, s{s_g}, 2",
             f"s_add_u32 s{t}, s{t}, s{s_wave}",
             f"s_lshr_b32 s{t+1}, s{t}, 1",
             f"s_lshl_b32 s{t+1}, s{t+1}, 10",
             f"s_and_b32 s{t}, s{t}, 1",
             f"s_lshl_b32 s{t}, s{t}, 9",
             f"s_add_u32 s{t}, s{t}, s{t+1}",
             f"s_lshl_b32 s{t+1}, s{s_rb}, 16",
             f"s_add_u32 s{s_oa}, s{t}, s{t+1}",
             f"v_lshrrev_b32 v{V_OA}, 1, v{V_Q}",
             f"v_lshlrev_b32 v{V_OA}, 8, v{V_OA}",
             f"v_lshl_add_u32 v{V_OA}, v{V_LAM}, 4, v{V_OA}",
             f"v_and_b32 v{V_T0+1}, 1, v{V_Q}",
             f"v_lshl_add_u32 v{V_OA}, v{V_T0+1}, 3, v{V_OA}"]

    def attn_tiles(tiles, VP, regs, pk):
        SC, SP, MX, MT, PP, OO, LL = (regs[k_] for k_ in ("SC", "SP", "MX", "MT", "PP", "OO", "LL"))
        n = len(tiles)
        l = [("gap", 2)]
        for j, i in enumerate(tiles):
            l.append(f"v_mfma_f32_16x16x16_bf16 {vr(SC+4*j,4)}, {vr(KP+2*i,2)}, {vr(QP+2*i,2)}, {vr(BC,4)}")
            l.append(f"v_mfma_f32_16x16x16_bf16 {vr(SP+4*j,4)}, {vr(KP+2*(i-1),2)}, {vr(QP+2*i,2)}, {vr(BP1 if i == 1 else BP,4)}")
        l.append(("gap", max(8 - 2 * (n - 1), 1) if n < 4 else 2))
        if n >= 2:
            pass
        for j in range(n):
            if j == n - 1 and n > 1:
                l.append(("gap", 2))
            for r in range(4):
                l.append(f"v_max_f32 v{SC+4*j+r}, v{SC+4*j+r}, v{SP+4*j+r}")
            l.append(f"v_max3_f32 v{MX+j}, v{SC+4*j}, v{SC+4*j+1}, v{SC+4*j+2}")
            l.append(f"v_max_f32 v{MX+j}, v{MX+j}, v{SC+4*j+3}")
        l += xq_reduce("v_max_f32", [MX + j for j in range(n)], [MT + j for j in range(n)])
        for j in range(n):
            l.append(f"v_mul_f32 v{MX+j}, 0x3eb8aa3b, v{MX+j}")
        for j in range(n):
            for r in range(4):
                l.append(f"v_fma_f32 v{SC+4*j+r}, v{SC+4*j+r}, s{s_cexp}, -v{MX+j}")
        for j in range(n):
            for r in range(4):
                l.append(f"v_exp_f32 v{SC+4*j+r}, v{SC+4*j+r}")
        l.append(("gap", 1))
        for j in range(n):
            l += [f"v_cvt_pk_bf16_f32 v{SP+4*j}, v{SC+4*j}, v{SC+4*j+1}",
                  f"v_cvt_pk_bf16_f32 v{SP+4*j+1}, v{SC+4*j+2}, v{SC+4*j+3}",
                  f"v_and_b32 v{PP+4*j}, v{MP}, v{SP+4*j}",
                  f"v_and_b32 v{PP+4*j+1}, v{MP+1}, v{SP+4*j+1}",
                  f"v_and_b32 v{PP+4*j+2}, v{MC}, v{SP+4*j}",
                  f"v_and_b32 v{PP+4*j+3}, v{MC+1}, v{SP+4*j+1}"]
        l.append(("gap", 2))
        for j, i in enumerate(tiles):
            l.append(f"v_mfma_f32_16x16x32_bf16 {vr(LL+4*j,4)}, {vr(ONES,4)}, {vr(PP+4*j,4)}, 0")
            l.append(f"v_mfma_f32_16x16x32_bf16 {vr(OO+4*j,4)}, {vr(VP+2*(i-1),4)}, {vr(PP+4*j,4)}, 0")
        l.append(("gap", 8))
        for j in range(n):
            l.append(f"v_rcp_f32 v{LL+4*j}, v{LL+4*j}")
        l.append(("gap", 1))
        for j in range(n):
            if pk:
                l += [f"v_pk_mul_f32 {vr(OO+4*j,2)}, {vr(OO+4*j,2)}, {vr(LL+4*j,2)} op_sel_hi:[1,0]",
                      f"v_pk_mul_f32 {vr(OO+4*j+2,2)}, {vr(OO+4*j+2,2)}, {vr(LL+4*j,2)} op_sel_hi:[1,0]"]
            else:
                l += [f"v_mul_f32 v{OO+4*j+r}, v{LL+4*j}, v{OO+4*j+r}" for r in range(4)]
            l += [f"v_cvt_pk_bf16_f32 v{OO+4*j}, v{OO+4*j}, v{OO+4*j+1}",
                  f"v_cvt_pk_bf16_f32 v{OO+4*j+1}, v{OO+4*j+2}, v{OO+4*j+3}"]
        return l

    def dual_store(lines_fn, tag, nops):
        Lg, Lj = a.label("sg"), a.label("sj")
        c(f"s_cmp_eq_u32 s{s_loc}, 0", f"s_cbranch_scc1 {Lg}")
        c(lines_fn(""))
        c(f"s_branch {Lj}", f"{Lg}:")
        c(lines_fn(" sc1"))
        c(f"{Lj}:")
        c.q += [tag] * nops

    def wave_flag(f_off, sc1_only=False):
        c(f"s_add_u32 s{t}, s{s_flag}, {f_off}", "s_mov_b64 exec, 1")
        if sc1_only:
            c(("vm", "fl", f"buffer_store_dwordx2 {vr(V_EPV,2)}, v{V_Z}, {sr(SWS,4)}, s{t} offen sc1"))
        else:
            dual_store(lambda fl: [f"buffer_store_dwordx2 {vr(V_EPV,2)}, v{V_Z}, {sr(SWS,4)}, s{t} offen{fl}"], "fl", 1)
        c("s_mov_b64 exec, -1")

    s_cexp = 17
    c(f"s_mov_b32 s{s_cexp}, 0x3eb8aa3b")
    R1 = dict(SC=108, SP=124, MX=140, MT=144, PP=148, OO=196, LL=212)
    main = []
    for tl in range(5):
        main += normalize(tl, True, VP)
    with_dmas(main, dm, 16)
    assert not dm

    def o_stores(o_off, OO, tiles):
        def f(fl):
            l = []
            for j, i in enumerate(tiles):
                l += [f"s_add_u32 s{t+1}, s{s_oa}, {(O1_OFF if (fl == '' and 'noalias' not in EXP) else o_off) + (i-1)*16384}",
                      f"buffer_store_dwordx2 {vr(OO+4*j,2)}, v{V_OA}, {sr(SWS,4)}, s{t+1} offen{fl}"]
            return l
        dual_store(f, "ost", len(tiles))

    stamp()
    CA, CB, C2, C3, C4, C5, C6 = 94, 95, 96, 97, 98, 99, 100
    c(f"v_add_u32 v{V_T0}, s{s_cl}, v{V_L8}",
      f"v_mov_b32 v{C2}, 0",
      f"v_mov_b32 v{C3}, 0",
      f"ds_write_b64 v{V_T0}, {vr(C2,2)} offset:{C_U+4096}",
      f"v_mul_u32_u24 v{C4}, {C_KS}, v{V_Q}",
      f"v_lshl_add_u32 v{C4}, v{V_LAM}, 1, v{C4}",
      f"s_add_u32 s{t+5}, s{s_cl}, {C_K}",
      f"v_add_u32 v{C4}, s{t+5}, v{C4}",
      f"v_cmp_gt_i32 vcc, 0, v{V_FI}",
      f"v_add_u32 v{CA}, 1, v{V_LAM}",
      f"v_and_b32 v{CB}, 3, v{CA}",
      f"v_mul_u32_u24 v{CB}, {C_KS}, v{CB}",
      f"v_and_b32 v{CA}, 0x1c, v{CA}",
      f"v_lshl_add_u32 v{CB}, v{CA}, 1, v{CB}",
      f"v_lshl_add_u32 v{CB}, v{V_Q}, 4, v{CB}",
      f"s_lshl_b32 s{t+3}, s{s_half}, 8",
      f"s_add_u32 s{t+3}, s{t+3}, s{s_cl}",
      f"s_add_u32 s{t+5}, s{t+3}, {C_K}",
      f"v_add_u32 v{CA}, s{t+5}, v{CB}",
      f"v_lshlrev_b32 v{CB}, 5, v{V_LAM}",
      f"v_sub_u32 v{CB}, 480, v{CB}",
      f"v_lshl_add_u32 v{CB}, v{V_Q}, 4, v{CB}",
      f"v_add_u32 v{CB}, s{t+3}, v{CB}",
      ("wait", ["ck", "cu"]),
      f"v_cndmask_b32 v{V_FX}, v{V_FX}, 0, vcc",
      f"ds_write_b16 v{C4}, v{V_FX}",
      "s_waitcnt lgkmcnt(0)", "s_barrier")
    CACC = 104
    V_FO = 232
    V_FA = 236

    def creg(P, off, n):
        return vr(136 + off, n) if P == 0 else ar(192 + off, n)

    def creads(P, rp):
        l = []
        for j in range(8):
            l.append(f"ds_read_b128 {creg(P,32+4*j,4)}, v{CB} offset:{64*rp+512*(7-j)}")
            l.append(f"ds_read_b64 {creg(P,4*j,2)}, v{CA} offset:{64*rp+512*j}")
            l.append(f"ds_read_b64 {creg(P,4*j+2,2)}, v{CA} offset:{64*rp+512*j+8}")
        return l

    def flags_load(f_off, rb_sgpr, dst, sreg):
        return [f"s_lshl_b32 s{sreg}, s{rb_sgpr}, 8",
                f"s_add_u32 s{sreg}, s{sreg}, {f_off}",
                ("vm", "fo", f"buffer_load_dwordx2 {vr(dst,2)}, v{V_FA}, {sr(SWS,4)}, s{sreg} offen sc1")]

    def flags_poll(dst, sreg, tmp, name):
        c(("wait", ["fo"]))
        poll(chk_ep([dst], tmp), [f"buffer_load_dwordx2 {vr(dst,2)}, v{V_FA}, {sr(SWS,4)}, s{sreg} offen sc1"], name)

    c(creads(0, 0))
    KEEP, UU, PR, UF = 136, 152, 160, 176
    pre_ep = [
        f"s_lshl_b32 s{t+3}, s{s_wave}, 12",
        f"s_add_u32 s{t+3}, s{t+3}, {C_RED}",
        f"v_add_u32 v{C2}, s{t+3}, v{V_L16}",
        f"s_xor_b32 s{t+3}, s{s_wave}, 1",
        f"s_lshl_b32 s{t+3}, s{t+3}, 12",
        f"s_add_u32 s{t+3}, s{t+3}, {C_RED}",
        f"v_add_u32 v{C3}, s{t+3}, v{V_L16}",
        f"v_lshlrev_b32 v{C4}, 5, v{V_LAM}",
        f"v_lshl_add_u32 v{C4}, v{V_Q}, 3, v{C4}",
        f"s_lshl_b32 s{t+3}, s{s_half}, 11",
        f"s_sub_u32 s{t+3}, s{s_cl}, s{t+3}",
        f"s_add_u32 s{t+3}, s{t+3}, {C_U + 4088 - 1536}",
        f"v_sub_u32 v{C4}, s{t+3}, v{C4}",
        f"s_lshl_b32 s{t+3}, s{s_wave}, 11",
        f"s_add_u32 s{t+3}, s{t+3}, {C_TR}",
        f"v_lshlrev_b32 v{C5}, 4, v{V_LAM}",
        f"v_lshl_add_u32 v{C5}, v{V_Q}, 2, v{C5}",
        f"v_add_u32 v{C5}, s{t+3}, v{C5}",
        f"v_add_u32 v{C6}, s{t+3}, v{V_L16}",
        f"v_lshrrev_b32 v101, 5, v{V_LANE}",
        "v_lshlrev_b32 v101, 8, v101",
        f"v_and_b32 v102, 1, v{V_Q}",
        "v_lshl_add_u32 v101, v102, 11, v101",
        f"v_lshl_add_u32 v101, v{V_LAM}, 4, v101",
        f"s_lshl_b32 s{t+4}, s{s_half}, 10",
        f"s_add_u32 s{t+4}, s{t+4}, s{s_c}",
        f"s_add_u32 s{t+4}, s{t+4}, {Y_OFF}",
        f"s_lshl_b32 s{t+3}, s{s_D}, 16",
        f"s_and_b32 s{t+5}, s{s_D}, 0xffff0000",
        f"s_cmp_eq_u32 s{s_ch}, 0",
        f"s_cselect_b32 s{t+3}, s{t+3}, s{t+5}"]
    pre_ep += [f"ds_read_b64 {vr(UU+2*i,2)}, v{C4} offset:{512*(3-i)}" for i in range(4)]
    pre_ep += ["s_waitcnt lgkmcnt(0)"]
    for i in range(4):
        pre_ep += [f"v_and_b32 v{UF+4*i}, 0xffff0000, v{UU+2*i+1}",
                   f"v_lshlrev_b32 v{UF+4*i+1}, 16, v{UU+2*i+1}",
                   f"v_and_b32 v{UF+4*i+2}, 0xffff0000, v{UU+2*i}",
                   f"v_lshlrev_b32 v{UF+4*i+3}, 16, v{UU+2*i}"]
    pre_ep += [f"v_mul_f32 v{UF+r}, s{t+3}, v{UF+r}" for r in range(16)]
    RA = dict(SC=200, SP=208, MX=216, MT=218, PP=220, OO=238, LL=246)
    opt = [f"v_and_b32 v{V_FA}, 0xf8, v{V_L8}"] + oaddr
    for pr in ([1, 2], [3, 4]):
        opt += attn_tiles(pr, VP, RA, False)
        opt.append(lambda pr=pr: o_stores(O1_OFF, RA["OO"], pr))
        opt.append(("gap", 3))
    c._dist = 100
    for rp in range(4):
        P = rp & 1
        c("s_waitcnt lgkmcnt(0)")
        if rp == 3:
            opt += pre_ep
        mf = []
        for j in range(8):
            for i in range(j, 8):
                cc = vr(CACC + 4 * i, 4) if (rp or j) else 0
                mf.append(f"v_mfma_f32_16x16x32_bf16 {vr(CACC+4*i,4)}, {creg(P,4*j,4)}, {creg(P,32+4*(i-j),4)}, {cc}")
        opt = c.merge2(mf, creads(1 - P, rp + 1) if rp < 3 else [], opt, flush=(rp == 3))
    OFR = 192

    def o_loads(o_off):
        g = []
        for st in range(4):
            for i in range(4):
                e = 4 * st + i
                l = []
                if i == 0:
                    l.append(f"s_add_u32 s{t+11}, s{t+10}, {st*4096}")
                l.append(("vm", f"o{e}", f"buffer_load_dwordx4 {ar(OFR+4*e,4)}, v{V_L16}, {sr(SWS,4)}, s{t+11} offen offset:{1024*i} sc1"))
                g.append(l)
        pre = [f"s_lshl_b32 s{t+10}, s{s_rb}, 16",
               f"s_lshl_b32 s{t+11}, s{s_wave}, 14",
               f"s_add_u32 s{t+10}, s{t+10}, s{t+11}",
               f"s_cmp_eq_u32 s{s_loc}, 0",
               f"s_cselect_b32 s{t+11}, {o_off}, {o_off if 'noalias' in EXP else O1_OFF}",
               f"s_add_u32 s{t+10}, s{t+10}, s{t+11}"]
        return pre, g

    c(("wait", ["ost"]))
    wave_flag(F_O1)
    L1, L2 = a.label("cvh"), a.label("cvj")
    c("s_nop 1", f"s_cmp_eq_u32 s{s_half}, 0", f"s_cbranch_scc0 {L1}")
    for i in range(4):
        c(f"ds_write_b128 v{C2}, {vr(CACC+16+4*i,4)} offset:{1024*i}")
    for r in range(8):
        c(f"v_pk_add_f32 {vr(KEEP+2*r,2)}, {vr(CACC+2*r,2)}, {vr(UF+2*r,2)}")
    c(f"s_branch {L2}", f"{L1}:")
    for i in range(4):
        c(f"ds_write_b128 v{C2}, {vr(CACC+4*i,4)} offset:{1024*i}")
    for r in range(8):
        c(f"v_pk_add_f32 {vr(KEEP+2*r,2)}, {vr(CACC+16+2*r,2)}, {vr(UF+2*r,2)}")
    c(f"{L2}:", "s_waitcnt lgkmcnt(0)", "s_barrier")
    c([f"ds_read_b128 {vr(PR+4*i,4)}, v{C3} offset:{1024*i}" for i in range(4)])
    c(flags_load(F_O1, s_rb, V_FO, t + 8))
    for i in range(4):
        c(f"s_waitcnt lgkmcnt({3-i})" if i == 0 else f"s_waitcnt lgkmcnt({3-i+2*i})",
          f"v_pk_add_f32 {vr(KEEP+4*i,2)}, {vr(KEEP+4*i,2)}, {vr(PR+4*i,2)}",
          f"v_pk_add_f32 {vr(KEEP+4*i+2,2)}, {vr(KEEP+4*i+2,2)}, {vr(PR+4*i+2,2)}")
        for par in range(2):
            c(f"v_cvt_pk_bf16_f32 v{UF+2*i+par}, v{KEEP+4*i+par}, v{KEEP+4*i+2+par}",
              f"ds_write_b32 v{C5}, v{UF+2*i+par} offset:{(2*i+par)*256}")
    YS = 228
    c("s_waitcnt lgkmcnt(0)",
      f"ds_read_b128 {vr(YS,4)}, v{C6}",
      f"ds_read_b128 {vr(238,4)}, v{C6} offset:1024")
    c("s_waitcnt lgkmcnt(0)",
      ("vm", "yst", f"buffer_store_dwordx4 {vr(YS,4)}, v101, {sr(SWS,4)}, s{t+4} offen sc1"),
      ("vm", "yst", f"buffer_store_dwordx4 {vr(238,4)}, v101, {sr(SWS,4)}, s{t+4} offen offset:512 sc1"))
    stamp()
    c(f"s_lshl_b32 s{t}, s{s_g}, 7", f"s_add_u32 s{s_rowbase}, s{s_rowbase}, s{t}")
    pre, og = o_loads(O1_OFF)
    c(pre)
    c(f"s_lshl_b32 s{t+7}, s{s_g}, 8",
      f"s_add_u32 s{t+7}, s{t+7}, {F_Y}",
      f"s_lshl_b32 s{t+9}, s{s_g}, 18",
      f"s_lshl_b32 s{t+1}, s{s_p}, 11",
      f"s_add_u32 s{t+9}, s{t+9}, s{t+1}",
      f"s_lshl_b32 s{t+1}, s{s_b}, 7",
      f"s_add_u32 s{t+9}, s{t+9}, s{t+1}",
      f"s_lshl_b32 s{t+1}, s{s_wave}, 16",
      f"s_add_u32 s{t+9}, s{t+9}, s{t+1}",
      f"s_add_u32 s{t+9}, s{t+9}, {Y_OFF}",
      f"s_add_u32 s22, s{t+9}, 32768",
      f"v_lshrrev_b32 v75, 3, v{V_LANE}",
      "v_lshlrev_b32 v75, 12, v75",
      f"v_and_b32 v76, 0x70, v{V_L16}",
      "v_add_u32 v75, v75, v76",
      f"s_lshl_b32 s23, s{s_wave}, 11",
      f"s_add_u32 s23, s23, {P2_YT}",
      f"v_bfe_u32 v79, v{V_LANE}, 2, 2",
      f"v_lshl_add_u32 v79, v{V_Q}, 2, v79",
      "v_lshlrev_b32 v79, 7, v79",
      f"v_and_b32 v76, 3, v{V_LANE}",
      "v_lshl_add_u32 v79, v76, 3, v79",
      f"s_lshl_b32 s{t+1}, s{s_wave}, 5",
      f"s_add_u32 s{t+1}, s{t+1}, {P2_YT}",
      f"v_add_u32 v79, s{t+1}, v79")
    fyl = f"buffer_load_dwordx2 {vr(72,2)}, v{V_FA}, {sr(SWS,4)}, s{t+7} offen sc1"
    ylds = ["s_mov_b32 m0, s23", "s_nop 0",
            f"buffer_load_dwordx4 v75, {sr(SWS,4)}, s{t+9} offen sc1 lds",
            "s_add_u32 m0, s23, 1024", "s_nop 0",
            f"buffer_load_dwordx4 v75, {sr(SWS,4)}, s22 offen sc1 lds"]
    flags_poll(V_FO, t + 8, 68, "po1")
    for g_ in og[:OPRE]:
        c(g_)
    olate = [og[OPRE:]]
    stamp()

    def y_flag():
        Lny = a.label("nfy")
        c(("wait", ["yst"]),
          "s_barrier",
          f"s_cmp_lg_u32 s{s_wave}, 0",
          f"s_cbranch_scc1 {Lny}",
          f"s_lshl_b32 s{t}, s2, 3",
          f"s_add_u32 s{t}, s{t}, {F_Y}",
          "s_mov_b64 exec, 1",
          f"buffer_store_dwordx2 {vr(V_EPV,2)}, v{V_Z}, {sr(SWS,4)}, s{t} offen sc1",
          "s_mov_b64 exec, -1",
          f"{Lny}:")

    YP, X2K = 246, 238

    def wo_phase(layer):
        first = layer == 0
        XR = 96
        c(f"s_lshl_b32 s{t+1}, s{s_wave}, 15", f"s_add_u32 s{t+5}, s{s_rowbase}, s{t+1}")
        if first:
            for nt in range(4):
                c(("vm", "xr", f"buffer_load_dwordx2 {vr(XR+2*nt,2)}, v{V_ROW}, {sr(SX,4)}, s{t+5} offen offset:{32*nt}"))
        WACC = 80
        WF = [112, 144, 176]

        def reads(P, e):
            return [f"ds_read_b64_tr_b16 {vr(WF[P]+4*nt+2*ss,2)}, v{V_WO+nt} offset:{4096*e+512*ss}"
                    for nt in range(4) for ss in range(2)]
        c(reads(0, 0), reads(1, 1))
        for e in range(16):
            P = e % 3
            if first and e == 0:
                y_flag()
            c(("wait", [f"o{e}"], 8 if e < 15 else 0))
            mf = [f"v_mfma_f32_16x16x32_bf16 {vr(WACC+4*nt,4)}, {vr(WF[P]+4*nt,4)}, {ar(OFR+4*e,4)}, {vr(WACC+4*nt,4) if e else 0}"
                  for nt in range(4)]
            sd = reads((e + 2) % 3, e + 2) if e < 14 else []
            if olate[0]:
                sd = olate[0].pop(0) + sd
            c.merge(mf, sd, 2)
        XF, X1P, G = 144, 160, 168
        if not first:
            stamp("p4")
        if first and 'stamp' not in EXP:
            stamp()
        if first:
            c(("wait", ["xr"]))
            src = XR
        else:
            src = X2K
        for i in range(8):
            c(f"v_lshlrev_b32 v{XF+2*i}, 16, v{src+i}", f"v_and_b32 v{XF+2*i+1}, 0xffff0000, v{src+i}")
        c(f"v_mov_b32 v{G}, 0", f"v_mov_b32 v{G+1}, 0", f"v_mov_b32 v{G+2}, s{s_ep}", f"v_mov_b32 v{G+3}, s{s_ep+1}")
        for i in range(8):
            c(f"v_pk_add_f32 {vr(XF+2*i,2)}, {vr(XF+2*i,2)}, {vr(WACC+2*i,2)}",
              f"v_cvt_pk_bf16_f32 v{X1P+i}, v{XF+2*i}, v{XF+2*i+1}")
        for i in range(8):
            c(f"v_dot2_f32_bf16 v{G}, v{X1P+i}, v{ONES}, v{G}", f"v_dot2_f32_bf16 v{G+1}, v{X1P+i}, v{X1P+i}, v{G+1}")
        st_off = ST1_OFF if first else ST2_OFF
        c(f"s_lshl_b32 s{t+6}, s{s_rb}, 13",
          f"s_lshl_b32 s{t+1}, s{s_wave}, 11",
          f"s_add_u32 s{t+6}, s{t+6}, s{t+1}",
          f"s_add_u32 s{t+6}, s{t+6}, {st_off}",
          f"s_lshl_b32 s{t+1}, s{s_g}, 8",
          f"s_add_u32 s{t+1}, s{t+1}, s{t+6}")
        c(xq_reduce("v_add_f32", [G, G + 1], [G + 4, G + 5]))
        c("s_mov_b64 exec, 0xffff")
        dual_store(lambda fl: [f"buffer_store_dwordx4 {vr(G,4)}, v{V_L16}, {sr(SWS,4)}, s{t+1} offen{fl}"], "sst", 1)
        c("s_mov_b64 exec, -1")
        GR = 176
        if not first:
            stamp("p4")
        for i in range(8):
            c(f"v_lshlrev_b32 v{XF+2*i}, 16, v{X1P+i}", f"v_and_b32 v{XF+2*i+1}, 0xffff0000, v{X1P+i}")
        gl = [f"buffer_load_dwordx4 {vr(GR,4)}, v{V_L16}, {sr(SWS,4)}, s{t+6} offen sc1",
              f"buffer_load_dwordx4 {vr(GR+4,4)}, v{V_L16}, {sr(SWS,4)}, s{t+6} offen offset:1024 sc1"]
        if first:
            Lyd = a.label("yd")
            c(f"s_cmp_lg_u32 s{s_wave}, 0", f"s_cbranch_scc1 {Lyd}", fyl, "s_waitcnt vmcnt(0)")
            poll(chk_ep([72], 76), [fyl], "pfy", 3)
            c(f"{Lyd}:", "s_barrier")
            c(ylds)
            if 'stamp' not in EXP:
                stamp()
        for l in gl:
            c(("vm", "gr", l))
        if first:
            c("s_waitcnt vmcnt(2)", "s_barrier")
            for nt in range(4):
                c(f"ds_read_b64_tr_b16 {vr(YP+2*nt,2)}, v79 offset:{2048*nt}")
        c(("drain",))
        if first and 'stamp' not in EXP:
            stamp()
        if not first:
            stamp("p4")
        poll(chk_ep([GR + 2, GR + 6], 76), gl, "pst")
        stamp("p4" if not first else "x2")
        c(f"v_add_f32 v{G}, v{GR}, v{GR+4}", f"v_add_f32 v{G+1}, v{GR+1}, v{GR+5}")
        c(xq_reduce("v_add_f32", [G, G + 1], [G + 4, G + 5]))
        c(stats_fin([(G, G + 1)], [G + 4]))
        c("s_waitcnt lgkmcnt(0)")
        YF, D = 192, 208
        for i in range(8):
            c(f"v_lshlrev_b32 v{YF+2*i}, 16, v{YP+i}", f"v_and_b32 v{YF+2*i+1}, 0xffff0000, v{YP+i}")
        dst = X2K if first else X1P
        for i in range(8):
            c(f"v_pk_add_f32 {vr(D+2*i,2)}, {vr(XF+2*i,2)}, {vr(G,2)} op_sel_hi:[1,0] neg_lo:[0,1] neg_hi:[0,1]",
              f"v_pk_mul_f32 {vr(D+2*i,2)}, {vr(D+2*i,2)}, {vr(G,2)} op_sel:[0,1]",
              f"v_pk_fma_f32 {vr(D+2*i,2)}, {vr(D+2*i,2)}, {vr(YF+2*i,2)}, {vr(XF+2*i,2)}",
              f"v_cvt_pk_bf16_f32 v{dst+i}, v{D+2*i}, v{D+2*i+1}")
        stamp("p4" if not first else "x2")
        WS4 = D
        for i in range(8):
            c(f"v_mov_b32 v{WS4+i}, v{dst+i}")
        if first:
            c(f"v_and_b32 v237, 1, v{V_Q}",
              "v_lshlrev_b32 v237, 5, v237",
              f"v_lshl_add_u32 v237, v{V_LAM}, 11, v237",
              f"v_lshrrev_b32 v76, 1, v{V_Q}",
              "v_lshl_add_u32 v237, v76, 4, v237")
        else:
            c("s_nop 1")
        for pr in range(2):
            for d_ in range(2):
                c(f"v_permlane16_swap_b32 v{WS4+4*pr+d_}, v{WS4+4*pr+2+d_}")
        c("s_nop 0")
        if not first:
            for pr in range(2):
                c(f"buffer_store_dwordx4 {vr(WS4+4*pr,4)}, v237, {sr(SOUT,4)}, s{t+5} offen offset:{64*pr}")
            c("s_waitcnt vmcnt(0)" if FINE == "p4" else "s_nop 0")
            stamp("p4")
            return
        c(f"s_add_u32 s{t+5}, s{t+5}, {X2_OFF}", f"v_mov_b32 v{G}, 0", f"v_mov_b32 v{G+1}, 0")
        dual_store(lambda fl: [f"buffer_store_dwordx4 {vr(WS4+4*pr,4)}, v237, {sr(SWS,4)}, s{t+5} offen offset:{64*pr}{fl}"
                               for pr in range(2)], "x2st", 2)
        for i in range(8):
            c(f"v_dot2_f32_bf16 v{G}, v{dst+i}, v{ONES}, v{G}", f"v_dot2_f32_bf16 v{G+1}, v{dst+i}, v{dst+i}, v{G+1}")
        c(f"s_lshl_b32 s{t}, s{s_rb}, 12",
          f"s_lshl_b32 s{t+1}, s{s_wave}, 10",
          f"s_add_u32 s{t}, s{t}, s{t+1}",
          f"s_lshl_b32 s{t+1}, s{s_g}, 7",
          f"s_add_u32 s{t}, s{t}, s{t+1}",
          f"s_add_u32 s{t}, s{t}, {XS_OFF}")
        c(xq_reduce("v_add_f32", [G, G + 1], [G + 4, G + 5]))
        c("s_mov_b64 exec, 0xffff")
        dual_store(lambda fl: [f"buffer_store_dwordx2 {vr(G,2)}, v{V_L8}, {sr(SWS,4)}, s{t} offen{fl}"], "x2st", 1)
        c("s_mov_b64 exec, -1")
        stamp("x2")
        c(("drain",))
        stamp("x2")
        wave_flag(F_X2)
        Lh = a.label("nh")
        c(f"s_cmp_lg_u32 s{s_wave}, 3",
          f"s_cbranch_scc1 {Lh}",
          f"v_lshlrev_b32 v75, 10, v{V_LAM}",
          f"v_lshl_add_u32 v75, v{V_Q}, 3, v75",
          f"s_lshl_b32 s{t}, s{s_rb}, 13",
          f"s_lshl_b32 s{t+1}, s{s_g}, 7",
          f"s_add_u32 s{t}, s{t}, s{t+1}",
          f"s_add_u32 s{t}, s{t}, {HALO_OFF - 8192}",
          f"s_lshl_b32 s{t+2}, s{s_rb}, 9",
          f"s_lshl_b32 s{t+1}, s{s_g}, 6",
          f"s_add_u32 s{t+2}, s{t+2}, s{t+1}",
          f"s_add_u32 s{t+2}, s{t+2}, {HS_OFF - 64}",
          f"s_mov_b32 s{t+8}, 0xff00ff00",
          f"s_mov_b32 s{t+9}, 0xff00ff00",
          f"s_mov_b64 exec, {sr(t+8,2)}")
        for nt in range(4):
            c(f"buffer_store_dwordx2 {vr(dst+2*nt,2)}, v75, {sr(SWS,4)}, s{t} offen offset:{32*nt} sc1")
        c("s_mov_b64 exec, 0xff00",
          f"buffer_store_dwordx2 {vr(G,2)}, v{V_L8}, {sr(SWS,4)}, s{t+2} offen sc1",
          "s_mov_b64 exec, -1",
          f"{Lh}:")

    wo_phase(0)
    stamp()

    c(flags_load(F_X2, s_rb, V_FO, t + 8))
    for qi in range(4):
        c(f"s_add_u32 s{s_xq+qi}, s{s_xq+qi}, {X2_OFF}")
    stamp("x2")
    flags_poll(V_FO, t + 8, 68, "px2")
    stamp("x2")
    Lh2 = a.label("nh2")
    c(f"s_cmp_lg_u32 s{s_wave}, 3",
      f"s_cbranch_scc1 {Lh2}",
      f"s_lshl_b32 s{t}, s{s_rb}, 7",
      f"s_lshl_b32 s{t+1}, s{s_g}, 3",
      f"s_add_u32 s{t}, s{t}, s{t+1}",
      f"s_add_u32 s{t}, s{t}, {F_H}",
      "s_mov_b64 exec, 1",
      f"buffer_store_dwordx2 {vr(V_EPV,2)}, v{V_Z}, {sr(SWS,4)}, s{t} offen sc1",
      "s_mov_b64 exec, -1",
      f"{Lh2}:")

    def x2dma(qi, i):
        return [f"s_add_u32 m0, s{s_xl+qi}, {L_X + i*4096}",
                f"s_add_u32 s{t}, s{s_xq+qi}, {i*32768}",
                ("vm", f"x2t{i}", f"buffer_load_dwordx4 v{V_XD}, {sr(SWS,4)}, s{t} offen sc1 lds")]
    PS = 184
    c(f"s_lshl_b32 s{t+1}, s{s_rb}, 12",
      f"s_lshl_b32 s{t+2}, s{s_wave}, 10",
      f"s_add_u32 s{t+1}, s{t+1}, s{t+2}",
      f"s_add_u32 s{t+1}, s{t+1}, {XS_OFF}")
    for qi in range(4):
        c(x2dma(qi, 1))
    c(("vm", "ps", f"buffer_load_dwordx2 {vr(PS,2)}, v{V_L8}, {sr(SWS,4)}, s{t+1} offen sc1"),
      ("vm", "ps", f"buffer_load_dwordx2 {vr(PS+2,2)}, v{V_L8}, {sr(SWS,4)}, s{t+1} offen offset:512 sc1"))
    late = []
    for i in range(2, 5):
        for qi in range(4):
            late += x2dma(qi, i)
    c(late[:12])
    late = late[12:]
    V_HF = 190
    c(f"s_sub_u32 s{t+9}, s{s_rb}, 1",
      f"s_lshl_b32 s{t+9}, s{t+9}, 7",
      f"s_add_u32 s{t+9}, s{t+9}, {F_H}",
      f"v_and_b32 v192, 0x38, v{V_L8}")
    hld = f"buffer_load_dwordx2 {vr(V_HF,2)}, v192, {sr(SWS,4)}, s{t+9} offen sc1"
    stamp("x2")
    c(("wait", ["ps"]))
    stamp("x2")
    c(f"v_add_f32 v{SA}, v{PS}, v{PS+2}",
      f"v_add_f32 v{SA+1}, v{PS+1}, v{PS+3}")
    c(xq_reduce("v_add_f32", [SA, SA + 1], [104, 105]))
    c(stats_fin([(SA, SA + 1)], [104]))
    c(f"v_lshlrev_b32 v193, 3, v{V_LAM}",
      f"s_lshl_b32 s{t}, s{s_wave}, 7",
      f"s_add_u32 s{t}, s{t}, {L_ST + 128}",
      f"v_add_u32 v195, s{t}, v193",
      f"ds_write_b64 v195, {vr(SA,2)}",
      f"v_add_u32 v193, {L_ST}, v193",
      f"v_lshlrev_b32 v194, 5, v{V_Q}",
      f"v_add_u32 v194, {L_ST}, v194")
    V_S8, V_S32 = 193, 194

    def stat_reads(tl):
        return [f"ds_read_b64 {vr(STA+2*tl,2)}, v{V_S8} offset:{128*tl}",
                f"ds_read_b128 {vr(STB+8*tl,4)}, v{V_S32} offset:{128*tl}",
                f"ds_read_b128 {vr(STB+8*tl+4,4)}, v{V_S32} offset:{128*tl+16}"]

    XF3 = [168, 176]

    def tile_stream(tl):
        m = []
        def rd(e):
            return f"ds_read_b128 {vr(168+4*(e&3),4)}, v{VAE+e} offset:{4096*tl}"
        m += [rd(0), rd(1)]
        for e in range(16):
            if e % 2 == 0:
                if e + 2 < 16:
                    m += [rd(e + 2), rd(e + 3), "s_waitcnt lgkmcnt(2)"]
                else:
                    m.append("s_waitcnt lgkmcnt(0)")
            x = vr(168 + 4 * (e & 3), 4)
            wq, wk, wv = ar(12 * e, 4), ar(12 * e + 4, 4), ar(12 * e + 8, 4)
            for (acc, A_, B_, on) in ((AQ + 4 * tl, wq, x, tl > 0), (AK + 4 * tl, wk, x, True), (AV + 4 * tl, x, wv, True)):
                if on:
                    m.append(f"v_mfma_f32_16x16x32_bf16 {vr(acc,4)}, {A_}, {B_}, {vr(acc,4) if e else 0}")
        return m

    def R3(qt):
        return dict(SC=AQ + 4 * qt, SP=AK + 4 * qt, PP=AV + 4 * qt, LL=STB + 8 * qt, MX=STB + 8 * qt + 4, MT=STB + 8 * qt + 5, OO=108)

    PSH = 184
    s_hd = 21

    def halo_try(n, blocking):
        Lskip, Lgo = a.label("hskip"), a.label("hgo")
        c(f"s_cmp_lg_u32 s{s_hd}, 0", f"s_cbranch_scc1 {Lskip}")
        qs = list(c.q)
        c(f"s_cmp_eq_u32 s{s_b}, 0", f"s_cbranch_scc1 {Lgo}")
        c(("wait", [f"hf{n}"]))
        if not blocking:
            c(chk_ep([V_HF], PSH), "s_nop 4", f"s_cbranch_vccnz {Lskip}")
        else:
            poll(chk_ep([V_HF], PSH), [hld], "ph", 2)
        c(f"{Lgo}:")
        c(f"s_mov_b32 s{s_hd}, 1",
          f"v_lshrrev_b32 v{PSH}, 11, v{V_XD}",
          f"v_and_b32 v{PSH+1}, 0xff, v{V_XD}",
          f"v_lshl_add_u32 v{PSH}, v{PSH}, 10, v{PSH+1}",
          f"s_lshl_b32 s{t+2}, s{s_wave}, 10",
          f"s_lshl_b32 s{t}, s{s_rb}, 13",
          f"s_lshl_b32 s{t+1}, s{s_wave}, 12",
          f"s_add_u32 s{t}, s{t}, s{t+1}",
          f"s_add_u32 s{t}, s{t}, {HALO_OFF - 8192 - 8192}",
          f"s_cmp_lt_u32 s{s_wave}, 2",
          f"s_cselect_b32 s{t}, {OOB}, s{t}",
          f"s_cmp_eq_u32 s{s_b}, 0",
          f"s_cselect_b32 s{t}, {OOB}, s{t}")
        for qd in range(4):
            c(f"s_add_u32 m0, s{t+2}, {L_X + qd*XQ}",
              f"s_add_u32 s{t+1}, s{t}, {qd*256}",
              f"buffer_load_dwordx4 v{PSH}, {sr(SWS,4)}, s{t+1} offen sc1 lds")
        c(f"v_and_b32 v{PSH+1}, 7, v{V_LAM}",
          f"v_lshlrev_b32 v{PSH+1}, 3, v{PSH+1}",
          f"v_lshl_add_u32 v195, v{V_Q}, 6, v{PSH+1}",
          f"s_lshl_b32 s{t}, s{s_rb}, 9",
          f"s_add_u32 s{t}, s{t}, {HS_OFF - 512}",
          f"s_cmp_eq_u32 s{s_b}, 0",
          f"s_cselect_b32 s{t}, {OOB}, s{t}",
          "s_nop 1",
          f"buffer_load_dwordx2 {vr(PSH,2)}, v195, {sr(SWS,4)}, s{t} offen sc1",
          f"buffer_load_dwordx2 {vr(PSH+2,2)}, v195, {sr(SWS,4)}, s{t} offen offset:256 sc1",
          f"{Lskip}:")
        c.q = qs

    c(f"s_mov_b32 s{s_hd}, 0")
    stamp()
    order = [1, 2, 3, 4, 0]
    for n, tl in enumerate(order):
        side = []
        if n == 0:
            stamp("x2")
            c(("wait", ["x2t1"], 0), "s_barrier")
            stamp("x2")
            for t2 in range(1, 5):
                c(stat_reads(t2))
            side += late
            side.append(("vm", "hf1", hld))
        elif n == 1:
            c(("wait", ["x2t4"]), "s_barrier")
        elif n == 4:
            c(("drain",), "s_barrier")
        if n >= 1:
            side += [("gap", 8)] + normalize(order[n - 1], False, VP)
        if n >= 2:
            side += attn_tiles([order[n - 1]], VP, R3(order[n - 1]), False)
        if n == 4:
            HS2 = 188
            side += [f"v_add_f32 v{HS2}, v{PSH}, v{PSH+2}", f"v_add_f32 v{HS2+1}, v{PSH+1}, v{PSH+3}"]
            side += xq_reduce("v_add_f32", [HS2, HS2 + 1], [PSH, PSH + 1])
            side += stats_fin([(HS2, HS2 + 1)], [PSH])
            side += [f"v_and_b32 v{PSH}, 0x38, v{V_S8}", f"v_add_u32 v{PSH}, {(L_ST & ~0x3f) + 64}, v{PSH}"]
        stamp("p3")
        c.merge(tile_stream(tl), side)
        stamp("p3")
        if n >= 2:
            o_stores(O2_OFF, 108, [order[n - 1]])
        if n in (1, 2, 3):
            halo_try(n, n == 3)
            if n < 3:
                c(("vm", f"hf{n+1}", hld))
    c(f"ds_write_b64 v{PSH}, {vr(HS2,2)}", "s_waitcnt lgkmcnt(0)")
    c(stat_reads(0), "s_waitcnt lgkmcnt(0)")
    stamp("p3")
    c(normalize(0, True, VP))
    c(attn_tiles([1], VP, R3(1), True))
    o_stores(O2_OFF, 108, [1])
    stamp()
    stamp("p3")
    stamp("p4")
    c(("drain",))
    stamp("p4")
    wave_flag(F_O2)
    c(flags_load(F_O2, s_rb, V_FO, t + 8))
    pre, og = o_loads(O2_OFF)
    c(pre)
    flags_poll(V_FO, t + 8, 68, "po2")
    stamp("p4")
    for g_ in og[:OPRE]:
        c(g_)
    olate[0] = og[OPRE:]
    stamp("p4")
    wo_phase(1)
    if STAMP:
        c("s_waitcnt vmcnt(0) lgkmcnt(0)")
        stamp()
        c("s_memrealtime s[100:101]",
          f"s_mov_b32 s{SWS+2}, {16*MB}",
          f"s_lshl_b32 s{t}, s2, 8",
          f"s_lshl_b32 s{t+1}, s{s_wave}, 6",
          f"s_add_u32 s{t}, s{t}, s{t+1}",
          f"s_add_u32 s{t}, s{t}, {STAMP_OFF}",
          "s_waitcnt lgkmcnt(0)",
          "v_writelane_b32 v255, s100, 1",
          f"v_lshlrev_b32 v64, 2, v{V_LANE}",
          "s_mov_b64 exec, 0xffff",
          f"buffer_store_dword v255, v64, {sr(SWS,4)}, s{t} offen")
    a(f"{L_end}:")
    a("s_endpgm")
    a(f".set CODE_LIMIT, {L_end} - {label}")


def main(out_path):
    a = Asm()
    label = NAME + "_kernel"
    a('.amdgcn_target "amdgcn-amd-amdhsa--gfx950"')
    a(".text")
    gen(a, label)
    desc = f""".section .rodata,"a"
.p2align 6
.amdhsa_kernel {label}
  .amdhsa_next_free_vgpr 512
  .amdhsa_next_free_sgpr 102
  .amdhsa_accum_offset 256
  .amdhsa_group_segment_fixed_size 0
  .amdhsa_kernarg_size 96
  .amdhsa_user_sgpr_count 2
  .amdhsa_user_sgpr_kernarg_segment_ptr 1
  .amdhsa_system_sgpr_workgroup_id_x 1
.end_amdhsa_kernel
"""
    hdr = f"; @launch grid=(256,1,1) block=(256,1,1) lds={LDS_SIZE}\n"
    open(out_path, "w").write(hdr + a.text() + desc)


if __name__ == "__main__":
    if len(sys.argv) > 2:
        STAMP = True
    main(sys.argv[1])
```

```python
import sys
from gen import Asm, vr, sr, srd, kernel_header, NAME, NEG, MB

KB = 1024
O1_OFF = 0
O2_OFF = 2 * MB
X2_OFF = 4 * MB
U_OFF = 6 * MB
Y_OFF = 8 * MB
ST1_OFF = 10 * MB
ST2_OFF = ST1_OFF + 256 * KB
XS_OFF = ST2_OFF + 256 * KB
HALO_OFF = XS_OFF + 128 * KB
HS_OFF = HALO_OFF + 256 * KB
FL_OFF = HS_OFF + 16 * KB
F_HELLO = FL_OFF
F_T = F_HELLO + 4 * KB
F_Y = F_T + 2 * KB
F_O1 = F_Y + 8 * KB
F_X2 = F_O1 + 8 * KB
F_O2 = F_X2 + 8 * KB
F_H = F_O2 + 8 * KB
WS_SIZE = 11 * MB
assert F_H + 4 * KB <= WS_SIZE
STAMP_OFF = 12 * MB

L_X = 0
XQ = 20480
L_R = 81920
NS = 6 if "bar1" not in __import__("os").environ.get("EXP", "") else 5
L_M = 147456
L_TB = L_M
L_ST = L_M + 8192
LDS_SIZE = 163840
C_U = 0
C_K = 4608
C_KS = 4160
C_CH = 4608 + 4 * 4160
C_RED = 2 * C_CH
C_TR = C_RED + 16384
assert C_TR + 8192 <= 81920
P2_YT = L_TB

SPIN_MAX = 40000
STAMP = False
import os
EXP = os.environ.get("EXP", "")
FINE = os.environ.get("FINE", "")
OOB = 0x7ff00000
PFS = int(os.environ.get("PFS", "11"))
OPRE = int(os.environ.get("OPRE", "6"))
KMAJ = "tilemaj" not in EXP
DSW = float(os.environ.get("DSW", "0.5"))


def ar(a_, n=1):
    return f"a{a_}" if n == 1 else f"a[{a_}:{a_+n-1}]"


class Ctx:
    def __init__(self, a):
        self.a = a
        self.q = []
        self.count = 0

    def raw(self, s):
        for l in s.split("\n"):
            if l.strip():
                self.a(l)
                self.count += 1

    def vwait_n(self, tags):
        idx = -1
        for i, t in enumerate(self.q):
            if t in tags:
                idx = i
        if idx < 0:
            return None
        n = len(self.q) - 1 - idx
        assert n <= 63
        self.q = self.q[idx + 1:]
        return n

    def item(self, it):
        if isinstance(it, str):
            self.raw(it)
        elif it[0] == "vm":
            self.raw(it[2])
            self.q.append(it[1])
        elif it[0] == "wait":
            n = self.vwait_n(it[1])
            lg = it[2] if len(it) > 2 else None
            parts = []
            if n is not None:
                parts.append(f"vmcnt({n})")
            if lg is not None:
                parts.append(f"lgkmcnt({lg})")
            if parts:
                self.raw("s_waitcnt " + " ".join(parts))
        elif it[0] == "drain":
            self.raw("s_waitcnt vmcnt(0)")
            self.q = []
        elif it[0] == "gap":
            self.raw(f"s_nop {it[1]-1}")
        else:
            raise ValueError(it)

    def __call__(self, *its):
        for it in its:
            if isinstance(it, list):
                for x in it:
                    self.item(x)
            else:
                self.item(it)

    def merge(self, main, side, k=2):
        side = list(side)
        si = 0
        dist = 0

        def is_gap(x):
            return isinstance(x, tuple) and x[0] == "gap"

        for m in main:
            self.item(m)
            mf = isinstance(m, str) and m.startswith("v_mfma")
            dist += 3 if mf else 1
            if not mf:
                continue
            quota = k
            while quota > 0 and si < len(side):
                it = side[si]
                if is_gap(it):
                    if dist >= it[1]:
                        si += 1
                        continue
                    break
                self.item(it)
                dist = 0
                si += 1
                if isinstance(it, tuple) and it[0] == "vm":
                    quota -= 2
                elif isinstance(it, str) and it.startswith("ds_"):
                    quota -= DSW
                elif not (isinstance(it, str) and it.startswith("s_")):
                    quota -= 1
        while si < len(side):
            it = side[si]
            if is_gap(it):
                if it[1] - dist > 0:
                    self.raw(f"s_nop {it[1]-dist-1}")
            else:
                self.item(it)
                dist = 0
            si += 1


def _merge2(self, main, must, opt, flush=False):
    must = list(must)
    mi = 0
    si = 0
    dist = getattr(self, "_dist", 100)

    def is_gap(x):
        return isinstance(x, tuple) and x[0] == "gap"
    for m in main:
        self.item(m)
        dist += 3
        if mi < len(must):
            self.item(must[mi])
            mi += 1
            dist += 1
        quota = 2
        while quota > 0 and si < len(opt):
            it = opt[si]
            if is_gap(it):
                if dist >= it[1]:
                    si += 1
                    continue
                break
            if callable(it):
                it()
                quota -= 2
            else:
                self.item(it)
                if isinstance(it, str) and it.startswith("v_mfma"):
                    quota -= 2
                elif not (isinstance(it, str) and it.startswith("s_")):
                    quota -= 1
            dist = 0
            si += 1
    for x in must[mi:]:
        self.item(x)
    rest = opt[si:]
    if flush:
        for it in rest:
            if is_gap(it):
                if it[1] - dist > 0:
                    self.raw(f"s_nop {it[1]-dist-1}")
            elif callable(it):
                it()
                dist = 0
            else:
                self.item(it)
                dist = 0
        rest = []
    self._dist = dist
    return rest


Ctx.merge2 = _merge2


def xq_reduce(op, vs, ts, steps=("v_permlane16_swap_b32", "v_permlane32_swap_b32")):
    l = []
    n = len(vs)
    for sw in steps:
        for v, t in zip(vs, ts):
            l.append(f"v_mov_b32 v{t}, v{v}")
        l.append(("gap", 2 if n < 2 else 1))
        for v, t in zip(vs, ts):
            l.append(f"{sw} v{v}, v{t}")
        l.append(("gap", 2 if n < 2 else 1))
        for v, t in zip(vs, ts):
            l.append(f"{op} v{v}, v{v}, v{t}")
    return l


def stats_fin(pairs, tmps):
    l = []
    def each(f):
        for (s, q), t in zip(pairs, tmps):
            l.append(f(s, q, t))
    each(lambda s, q, t: f"v_mul_f32 v{s}, 0x3b000000, v{s}")
    each(lambda s, q, t: f"v_mul_f32 v{q}, 0x3b000000, v{q}")
    each(lambda s, q, t: f"v_fma_f32 v{q}, -v{s}, v{s}, v{q}")
    each(lambda s, q, t: f"v_max_f32 v{q}, 0, v{q}")
    each(lambda s, q, t: f"v_cvt_pk_bf16_f32 v{t}, v{s}, v{q}")
    each(lambda s, q, t: f"v_lshlrev_b32 v{s}, 16, v{t}")
    each(lambda s, q, t: f"v_and_b32 v{q}, 0xffff0000, v{t}")
    each(lambda s, q, t: f"v_add_f32 v{q}, 0x3727c5ac, v{q}")
    each(lambda s, q, t: f"v_cvt_pk_bf16_f32 v{q}, v{q}, v{q}")
    each(lambda s, q, t: f"v_lshlrev_b32 v{q}, 16, v{q}")
    each(lambda s, q, t: f"v_sqrt_f32 v{q}, v{q}")
    l.append(("gap", 1))
    each(lambda s, q, t: f"v_cvt_pk_bf16_f32 v{q}, v{q}, v{q}")
    each(lambda s, q, t: f"v_lshlrev_b32 v{q}, 16, v{q}")
    each(lambda s, q, t: f"v_rcp_f32 v{q}, v{q}")
    l.append(("gap", 1))
    return l


def gen(a, label):
    kernel_header(a, label)
    c = Ctx(a)
    L_end = a.label("end")
    SX, SW, SWS, SK, SV, SSK, SWO, SKK, SOUT, SDBG = 4, 8, 12, 16, 20, 24, 28, 32, 36, 40
    s_wave, s_rb, s_g, s_p, s_b, s_rot = 44, 45, 46, 47, 48, 49
    s_ep = 50
    s_loc, s_xcc, s_D, s_wm0, s_rowbase, s_c, s_cl, s_half, s_ch, s_spin = 52, 53, 54, 55, 56, 57, 58, 59, 60, 61
    s_xq, s_xl, s_wq = 62, 66, 70
    t = 74
    s_x0m = 16
    s_flag = 18
    s_stile = 19
    nst = [0]

    def stamp(tag=""):
        if STAMP and FINE != "none" and (tag == FINE or (tag == "" and (not FINE or nst[0] == 0))):
            i = nst[0]
            assert i < 14, i
            c("s_memtime s[100:101]", "s_waitcnt lgkmcnt(0)", f"v_writelane_b32 v255, s100, {i+2}")
            nst[0] += 1

    V_LANE, V_LAM, V_Q, V_L16, V_XD, V_WD, V_BB, V_ROW, V_Z = 1, 2, 3, 4, 5, 6, 7, 8, 9
    VAE = 10
    CSQ, CSK, CSV = 26, 30, 34
    V_L8 = 35
    V_EPV = 36
    BC, BP, BP1, MC, MP, ONES = 38, 42, 46, 50, 52, 54
    V_WO = 58
    V_T0 = 62

    c("s_cmp_ge_u32 s2, 256", f"s_cbranch_scc1 {L_end}")
    if STAMP:
        c("s_memrealtime s[100:101]", "v_mov_b32 v255, 0", "s_waitcnt lgkmcnt(0)", "v_writelane_b32 v255, s100, 0")
    stamp()
    c("s_load_dwordx4 s[88:91], s[0:1], 0",
      "s_load_dwordx2 s[92:93], s[0:1], 16",
      "s_load_dwordx4 s[96:99], s[0:1], 32",
      "s_load_dwordx2 s[94:95], s[0:1], 88")
    c(f"v_and_b32 v{V_LANE}, 63, v0",
      "v_lshrrev_b32 v62, 6, v0",
      f"v_and_b32 v{V_LAM}, 15, v{V_LANE}",
      f"v_readfirstlane_b32 s{s_wave}, v62",
      f"v_lshrrev_b32 v{V_Q}, 4, v{V_LANE}",
      f"v_lshlrev_b32 v{V_L16}, 4, v{V_LANE}",
      f"v_mov_b32 v{V_Z}, 0",
      f"s_and_b32 s{s_rb}, s2, 7",
      f"s_lshl_b32 s{s_rb}, s{s_rb}, 2",
      f"s_lshr_b32 s{s_rot}, s2, 6",
      f"s_add_u32 s{s_rb}, s{s_rb}, s{s_rot}",
      f"s_lshr_b32 s{s_g}, s2, 3",
      f"s_and_b32 s{s_g}, s{s_g}, 7",
      f"s_lshr_b32 s{s_p}, s{s_rb}, 4",
      f"s_and_b32 s{s_b}, s{s_rb}, 15")
    if "nopf" not in EXP:
        Lpf = a.label("nopf")
        c(f"s_and_b32 s{t}, s2, 0x78",
          f"s_cmp_lg_u32 s{t}, 0",
          f"s_cbranch_scc1 {Lpf}",
          f"s_getpc_b64 s[{t+2}:{t+3}]",
          f"s_and_b32 s{t+2}, s{t+2}, 0xffffff00",
          f"v_lshlrev_b32 v62, 7, v0",
          f"v_min_u32 v62, CODE_LIMIT, v62",
          f"global_load_dword v253, v62, s[{t+2}:{t+3}]",
          f"{Lpf}:")
    c(f"s_lshl_b32 s{t}, s{s_wave}, 2",
      f"v_add_u32 v62, s{t}, v{V_Q}",
      f"v_xor_b32 v62, v62, v{V_LAM}",
      "v_lshlrev_b32 v62, 4, v62",
      f"v_lshl_add_u32 v{V_XD}, v{V_Q}, 11, v62")
    c(f"v_lshrrev_b32 v62, 3, v{V_LANE}",
      f"s_lshl_b32 s{t}, s{s_wave}, 3",
      f"v_add_u32 v62, s{t}, v62",
      "v_bfe_u32 v63, v62, 3, 1",
      "v_lshlrev_b32 v63, 1, v63",
      "v_bfe_u32 v64, v62, 1, 1",
      "v_or_b32 v63, v63, v64",
      f"v_bfe_u32 v64, v{V_LANE}, 1, 2",
      "v_xor_b32 v63, v63, v64",
      "v_lshlrev_b32 v63, 5, v63",
      f"v_and_b32 v64, 1, v{V_LANE}",
      "v_lshl_add_u32 v63, v64, 4, v63",
      f"v_mul_u32_u24 v{V_WD}, 3072, v62",
      f"v_add_u32 v{V_WD}, v{V_WD}, v63")
    c(f"s_lshl_b32 s{s_rowbase}, s{s_b}, 17",
      f"s_lshl_b32 s{t}, s{s_p}, 10",
      f"s_add_u32 s{s_rowbase}, s{s_rowbase}, s{t}",
      f"s_mul_i32 s{s_wm0}, s{s_wave}, 3072",
      f"s_add_u32 s{s_wm0}, s{s_wm0}, {L_R}")
    c(f"s_lshl_b32 s{t+1}, s{s_wave}, 13",
      f"s_add_u32 s{t+1}, s{t+1}, s{s_rowbase}",
      f"s_sub_u32 s{t+1}, s{t+1}, 32768",
      f"s_lshl_b32 s{t+2}, s{s_wave}, 10",
      f"s_lshl_b32 s{t+3}, s{s_g}, 7")
    for qi in range(4):
        c(f"s_add_u32 s{t}, s{s_rot}, {qi}",
          f"s_and_b32 s{t}, s{t}, 3",
          f"s_lshl_b32 s{s_xq+qi}, s{t}, 8",
          f"s_add_u32 s{s_xq+qi}, s{s_xq+qi}, s{t+1}",
          f"s_mul_i32 s{s_xl+qi}, s{t}, {XQ}",
          f"s_add_u32 s{s_xl+qi}, s{s_xl+qi}, s{t+2}",
          f"s_mul_i32 s{s_wq+qi}, s{t}, {4*98304}",
          f"s_add_u32 s{s_wq+qi}, s{s_wq+qi}, s{t+3}")
    s_wo = 82
    for e4 in range(4):
        c(f"s_add_u32 s{t}, s2, {e4}",
          f"s_and_b32 s{t}, s{t}, 3",
          f"s_mul_i32 s{s_wo+e4}, s{t}, 98304")
    c(f"s_cmp_eq_u32 s{s_wave}, 0",
      "s_cselect_b32 s86, 0xffff0000, -1",
      "s_mov_b32 s87, -1")
    stamp("p1")
    c("s_waitcnt lgkmcnt(0)")
    stamp("p1")
    srd(a, SX, 88, 89, 2 * MB)
    srd(a, SW, 90, 91, 512 * 1536 * 2)

    def xdma(qi, i):
        l = [f"s_add_u32 m0, s{s_xl+qi}, {L_X + i*4096}"]
        if i == 0:
            l += [f"s_cmp_lt_u32 s{s_wave}, 2",
                  f"s_cselect_b32 s{t}, {OOB}, s{s_xq+qi}",
                  ("vm", f"x{qi}", f"s_mov_b64 exec, s[86:87]\nbuffer_load_dwordx4 v{V_XD}, {sr(SX,4)}, s{t} offen lds\ns_mov_b64 exec, -1")]
        else:
            l += [f"s_add_u32 s{t}, s{s_xq+qi}, {i*32768}",
                  ("vm", f"x{qi}", f"buffer_load_dwordx4 v{V_XD}, {sr(SX,4)}, s{t} offen lds")]
        return l

    def wdma(ch):
        l = [f"s_add_u32 m0, s{s_wm0}, {(ch % NS)*12288}",
             f"s_add_u32 s{t}, s{s_wq+(ch>>2)}, s{s_wo+(ch&3)}"]
        for s in range(3):
            l.append(("vm", f"w{ch}", f"buffer_load_dwordx4 v{V_WD}, {sr(SW,4)}, s{t} offen offset:{1024*s} lds"))
        return l

    for i in range(5):
        c(xdma(0, i))
    c(wdma(0))
    srd(a, SWS, 94, 95, WS_SIZE)
    srd(a, SK, 96, 97, 2 * MB)
    srd(a, SV, 98, 99, 2 * MB)
    srd(a, SWO, 92, 93, 512 * 512 * 2)
    c("s_load_dwordx4 s[88:91], s[0:1], 48",
      "s_load_dwordx4 s[92:95], s[0:1], 64",
      "s_load_dwordx2 s[96:97], s[0:1], 80")
    TK, TV, TS = 184, 204, 212
    KF, SF, VF, OF = 228, 238, 246, 250
    UP = 112
    c(f"s_lshr_b32 s{t}, s2, 3",
      f"s_lshl_b32 s{t}, s{t}, 16",
      f"s_and_b32 s{t+1}, s2, 7",
      f"s_lshl_b32 s{t+2}, s{t+1}, 7",
      f"s_add_u32 s{t}, s{t}, s{t+2}",
      "v_and_b32 v64, 7, v0",
      "v_lshrrev_b32 v65, 3, v0",
      "v_lshlrev_b32 v66, 11, v65",
      "v_lshl_add_u32 v66, v64, 4, v66",
      f"v_add_u32 v66, s{t}, v66",
      "v_add_u32 v67, 0xfffff400, v66",
      "v_add_u32 v68, 0xfffff800, v66",
      "v_add_u32 v69, 0xfffffc00, v66")
    for ins in (f"buffer_load_dwordx4 {vr(TK,4)}, v67, {sr(SK,4)}, 0 offen",
                f"buffer_load_dwordx4 {vr(TK+4,4)}, v68, {sr(SK,4)}, 0 offen",
                f"buffer_load_dwordx4 {vr(TK+8,4)}, v69, {sr(SK,4)}, 0 offen",
                f"buffer_load_dwordx4 {vr(TK+12,4)}, v66, {sr(SK,4)}, 0 offen",
                f"buffer_load_dwordx4 {vr(TK+16,4)}, v66, {sr(SK,4)}, 0 offen offset:1024",
                f"buffer_load_dwordx4 {vr(TV,4)}, v66, {sr(SV,4)}, 0 offen",
                f"buffer_load_dwordx4 {vr(TV+4,4)}, v66, {sr(SV,4)}, 0 offen offset:1024"):
        if "notl" not in EXP:
            c(("vm", "T", ins))
    c("s_waitcnt lgkmcnt(0)")
    srd(a, SSK, 88, 89, 4096)
    srd(a, SKK, 90, 91, 2 * MB)
    srd(a, SOUT, 94, 95, 2 * MB)
    srd(a, SDBG, 96, 97, 256)
    c(f"s_lshl_b32 s{t+3}, s2, 2",
      f"s_load_dword s{s_D}, s[92:93], s{t+3}",
      f"s_getreg_b32 s{s_xcc}, hwreg(HW_REG_XCC_ID)",
      f"s_and_b32 s{s_xcc}, s{s_xcc}, 15",
      f"s_lshl_b32 s{t+2}, s{t+1}, 9",
      "v_lshlrev_b32 v67, 6, v64")
    for d in range(4):
        c(("vm", "T", f"buffer_load_dwordx4 {vr(TS+4*d,4)}, v67, {sr(SSK,4)}, s{t+2} offen offset:{16*d}"))
    Lq = a.label("noep")
    c(f"s_or_b32 s{t}, s2, s{s_wave}",
      f"s_cmp_lg_u32 s{t}, 0",
      f"s_cbranch_scc1 {Lq}",
      f"s_memrealtime s[{t+4}:{t+5}]",
      "s_waitcnt lgkmcnt(0)",
      f"s_or_b32 s{t+4}, s{t+4}, 1",
      f"v_mov_b32 v70, s{t+4}",
      f"v_mov_b32 v71, s{t+5}",
      "s_mov_b64 exec, 1",
      f"buffer_store_dwordx2 v[70:71], v{V_Z}, {sr(SDBG,4)}, 0 offen sc1",
      "s_mov_b64 exec, -1",
      f"{Lq}:")
    c(wdma(1))
    k = []
    k += [f"v_bfe_u32 v70, v{V_LANE}, 2, 2",
          f"v_and_b32 v71, 1, v{V_Q}",
          "v_lshlrev_b32 v71, 1, v71",
          "v_lshrrev_b32 v72, 1, v70",
          "v_or_b32 v71, v71, v72",
          f"v_xor_b32 v72, s{s_wave}, v71",
          "v_lshlrev_b32 v72, 5, v72",
          "v_lshl_add_u32 v72, v70, 7, v72",
          f"v_and_b32 v73, 3, v{V_LANE}",
          "v_lshl_add_u32 v72, v73, 3, v72",
          f"v_mul_u32_u24 v74, 3072, v{V_Q}",
          "v_add_u32 v72, v72, v74",
          f"v_add_u32 v{V_BB}, {L_R}, v72",
          f"v_lshl_add_u32 v72, v{V_Q}, 3, v70",
          "v_lshlrev_b32 v72, 7, v72",
          "v_lshl_add_u32 v72, v73, 3, v72",
          f"v_add_u32 v72, {L_R}, v72"]
    for nt in range(4):
        k += [f"v_xor_b32 v74, {nt}, v71", f"v_lshl_add_u32 v{V_WO+nt}, v74, 5, v72"]
    k += [f"s_lshl_b32 s{t+2}, s{s_wave}, 10"]
    for e4 in range(4):
        k += [f"s_add_u32 s{t+3}, s2, {e4}",
              f"s_and_b32 s{t+3}, s{t+3}, 3",
              f"s_lshl_b32 s{t+3}, s{t+3}, 2",
              f"v_add_u32 v70, s{t+3}, v{V_Q}",
              f"v_xor_b32 v70, v70, v{V_LAM}",
              "v_lshlrev_b32 v70, 4, v70",
              f"v_lshl_add_u32 v70, v{V_LAM}, 8, v70",
              f"v_subrev_u32 v70, s{t+2}, v70"]
        for qi in range(4):
            k.append(f"v_add_u32 v{VAE+4*qi+e4}, s{s_xl+qi}, v70")
    k += [f"v_lshlrev_b32 v{V_ROW}, 11, v{V_LAM}",
          f"v_lshl_add_u32 v{V_ROW}, v{V_Q}, 3, v{V_ROW}",
          f"v_lshlrev_b32 v{V_L8}, 3, v{V_LANE}",
          f"v_lshlrev_b32 v70, 2, v{V_Q}",
          f"v_mov_b32 v72, {NEG}",
          f"s_cmp_eq_u32 s{s_b}, 0",
          f"s_cselect_b32 s{t+2}, -1, 0",
          f"s_mov_b32 s{t+3}, s{t+2}"]
    for r in range(4):
        k += [f"v_add_u32 v71, {r}, v70",
              f"v_sub_u32 v71, v{V_LAM}, v71",
              "v_cmp_gt_u32 vcc, 8, v71",
              "v_add_u32 v71, 16, v71",
              f"v_cmp_gt_u32 {sr(t+4,2)}, 8, v71",
              f"v_cndmask_b32 v{BC+r}, v72, 0, vcc",
              f"v_cndmask_b32 v{74+r}, 0, -1, vcc",
              f"v_cndmask_b32 v{BP+r}, v72, 0, {sr(t+4,2)}",
              f"v_cndmask_b32 v{78+r}, 0, -1, {sr(t+4,2)}",
              f"v_cndmask_b32 v{BP1+r}, v{BP+r}, v72, {sr(t+2,2)}"]
    k.append(f"s_mov_b32 s{t+4}, 0xffff")
    for h in range(2):
        k += [f"v_bfi_b32 v{MC+h}, s{t+4}, v{74+2*h}, v{75+2*h}",
              f"v_bfi_b32 v{MP+h}, s{t+4}, v{78+2*h}, v{79+2*h}"]
    for r in range(4):
        k.append(f"v_mov_b32 v{ONES+r}, 0x3f803f80")
    k += [f"v_mul_u32_u24 v70, {XQ}, v{V_Q}",
          f"v_lshl_add_u32 v70, v{V_LAM}, 4, v70",
          f"ds_write_b128 v70, {vr(ONES,4)} offset:{L_X}"]
    k += [f"s_add_u32 s{s_stile}, s{s_wave}, 1",
          f"s_lshl_b32 s{s_stile}, s{s_stile}, 12",
          f"s_lshl_b32 s{s_flag}, s{s_rb}, 8",
          f"s_lshl_b32 s{t+2}, s{s_g}, 5",
          f"s_add_u32 s{s_flag}, s{s_flag}, s{t+2}",
          f"s_lshl_b32 s{t+2}, s{s_wave}, 3",
          f"s_add_u32 s{s_flag}, s{s_flag}, s{t+2}",
          f"s_lshr_b32 s{s_ch}, s{s_wave}, 1",
          f"s_and_b32 s{s_half}, s{s_wave}, 1",
          f"s_lshl_b32 s{s_c}, s2, 1",
          f"s_add_u32 s{s_c}, s{s_c}, s{s_ch}",
          f"s_lshl_b32 s{s_c}, s{s_c}, 12",
          f"s_mul_i32 s{s_cl}, s{s_ch}, {C_CH}"]
    c(k)
    c(wdma(2))
    stamp("p1")
    c(("wait", ["T"]))
    stamp("p1")
    tc = []
    for d in range(4):
        for r in range(5):
            tc.append(f"v_lshlrev_b32 v{KF+2*r}, 16, v{TK+4*r+d}")
            tc.append(f"v_and_b32 v{KF+2*r+1}, 0xffff0000, v{TK+4*r+d}")
        for j in range(4):
            for cc in range(2):
                src = TS + 4 * d + 2 * cc + (j >> 1)
                tc.append(f"v_and_b32 v{SF+2*j+cc}, 0xffff0000, v{src}" if j & 1 else f"v_lshlrev_b32 v{SF+2*j+cc}, 16, v{src}")
        for tt in range(2):
            tc.append(f"v_lshlrev_b32 v{VF+2*tt}, 16, v{TV+4*tt+d}")
            tc.append(f"v_and_b32 v{VF+2*tt+1}, 0xffff0000, v{TV+4*tt+d}")
        for tt in range(2):
            o = OF + 2 * tt
            tc.append(f"v_pk_mul_f32 {vr(o,2)}, {vr(KF+2*(tt+0),2)}, {vr(SF+6,2)}")
            for j in (2, 1, 0):
                tc.append(f"v_pk_fma_f32 {vr(o,2)}, {vr(KF+2*(3+tt-j),2)}, {vr(SF+2*j,2)}, {vr(o,2)}")
            tc.append(f"v_pk_mul_f32 {vr(o,2)}, {vr(o,2)}, {vr(VF+2*tt,2)}")
        tc.append(f"v_cvt_pk_bf16_f32 v{UP+2*d}, v{OF+2}, v{OF}")
        tc.append(f"v_cvt_pk_bf16_f32 v{UP+2*d+1}, v{OF+3}, v{OF+1}")
    groups = [xdma(1, i) for i in range(5)] + [wdma(3), wdma(4)]
    per = len(tc) // (len(groups) + 1)
    for i, l in enumerate(tc):
        if "notc" not in EXP:
            c(l)
        if (i + 1) % per == 0 and groups:
            c(groups.pop(0))
    assert not groups
    c("v_sub_u32 v67, 31, v65",
      "v_lshrrev_b32 v68, 2, v67",
      "v_xor_b32 v68, v68, v64",
      "v_lshlrev_b32 v68, 4, v68",
      "v_and_b32 v67, 3, v67",
      "v_lshl_add_u32 v68, v67, 2, v68",
      "v_lshl_add_u32 v68, v64, 10, v68",
      f"v_add_u32 v68, {L_TB}, v68")
    for i in range(8):
        c(f"ds_write_b32 v68, v{UP+i} offset:{128*i}")
    c("v_lshrrev_b32 v67, 3, v0",
      "v_lshrrev_b32 v68, 3, v67",
      "v_xor_b32 v68, v68, v64",
      "v_lshlrev_b32 v68, 4, v68",
      "v_lshl_add_u32 v68, v67, 7, v68",
      f"v_add_u32 v68, {L_TB}, v68",
      "v_xor_b32 v69, 64, v68",
      f"s_and_b32 s{t}, s2, 7",
      f"s_lshl_b32 s{t}, s{t}, 18",
      f"s_lshr_b32 s{t+1}, s2, 3",
      f"s_lshl_b32 s{t+1}, s{t+1}, 7",
      f"s_sub_u32 s{t}, s{t}, s{t+1}",
      f"s_add_u32 s{t}, s{t}, {U_OFF + 3968}",
      f"s_add_u32 s{t+1}, s{t}, {32*4096}",
      "v_lshlrev_b32 v67, 12, v67",
      "v_lshl_add_u32 v67, v64, 4, v67",
      "s_nop 0")
    stamp("p1")
    c(("wait", ["x0", "w0"], 0),
      "s_barrier",
      f"ds_read_b128 {vr(UP,4)}, v68",
      f"ds_read_b128 {vr(UP+4,4)}, v69 offset:4096")

    XS = [64 + 8, 96]
    XS = [184, 208]
    ACC = 108
    AQ, AK, AV = ACC, ACC + 20, ACC + 40
    SA = 168
    V_SB = 172
    V_EP = 174
    SU = 232

    def p1_reads(P, e):
        l = []
        slot = (e % NS) * 12288
        l.append(f"v_add_u32 v{V_SB}, s{s_stile}, v{VAE+e}")
        for s in range(3):
            for ss in range(2):
                l.append(f"ds_read_b64_tr_b16 {ar(12*e+4*s+2*ss,2)}, v{V_BB} offset:{slot+1024*s+512*ss}")
        for tl in range(5):
            l.append(f"ds_read_b128 {vr(XS[P]+4*tl,4)}, v{VAE+e} offset:{4096*tl}")
        l.append(f"ds_read_b128 {vr(XS[P]+20,4)}, v{V_SB}")
        return l

    c(p1_reads(0, 0))
    c(f"v_mov_b32 v{SA}, 0", f"v_mov_b32 v{SA+1}, 0", "s_waitcnt lgkmcnt(12)")
    c(("vm", "Tst", f"buffer_store_dwordx4 {vr(UP,4)}, v67, {sr(SWS,4)}, s{t} offen sc1"),
      ("vm", "Tst", f"buffer_store_dwordx4 {vr(UP+4,4)}, v67, {sr(SWS,4)}, s{t+1} offen sc1"))
    stamp()
    V_WOD = 176
    wod = [f"v_lshrrev_b32 v{V_T0}, 3, v{V_LANE}",
           f"v_bfe_u32 v{V_T0+1}, v{V_T0}, 1, 1",
           f"s_lshl_b32 s{t+5}, s{s_half}, 1",
           f"v_or_b32 v{V_T0+1}, s{t+5}, v{V_T0+1}",
           f"v_bfe_u32 v{V_WOD}, v{V_LANE}, 1, 2",
           f"v_xor_b32 v{V_T0+1}, v{V_T0+1}, v{V_WOD}",
           f"v_lshlrev_b32 v{V_T0+1}, 5, v{V_T0+1}",
           f"v_and_b32 v{V_WOD}, 1, v{V_LANE}",
           f"v_lshl_add_u32 v{V_T0+1}, v{V_WOD}, 4, v{V_T0+1}",
           f"v_lshl_add_u32 v{V_WOD}, v{V_T0}, 10, v{V_T0+1}",
           f"s_lshl_b32 s{t+6}, s{s_g}, 7",
           f"s_lshl_b32 s{t+5}, s{s_wave}, 13",
           f"s_add_u32 s{t+6}, s{t+6}, s{t+5}",
           f"s_lshl_b32 s{t+7}, s{s_wave}, 10"]

    def wodma(n):
        return [f"s_add_u32 m0, s{t+7}, {L_R + n*4096}",
                f"s_add_u32 s{t}, s{t+6}, {n*32768}",
                ("vm", "wo", f"buffer_load_dwordx4 v{V_WOD}, {sr(SWO,4)}, s{t} offen lds")]

    xsched = {0: [(2, 0), (2, 1)], 1: [(2, 2), (2, 3), (2, 4)], 2: [(3, 0), (3, 1)], 3: [(3, 2), (3, 3), (3, 4)]}
    V_HL, V_FT = 178, 182
    for e in range(16):
        P = e & 1
        need = []
        if NS == 5:
            if e < 15:
                need = [f"w{e+1}"]
                if (e + 1) % 4 == 0:
                    need.append(f"x{(e+1)//4}")
        elif e % 2 == 0:
            need = [f"w{e+1}", f"w{e+2}"]
            if (e + 2) % 4 == 0:
                need.append(f"x{(e+2)//4}")
        if e == 4:
            need += ["Tst", "ep"]
        c(("wait", need, 0))
        if NS == 5 or e % 2 == 0:
            c("s_barrier")
        sx = XS[P] + 20
        st_ops = []
        if "plain" not in EXP:
            for i in range(4):
                c(f"v_dot2_f32_bf16 v{SA}, v{sx+i}, v{ONES}, v{SA}",
                  f"v_dot2_f32_bf16 v{SA+1}, v{sx+i}, v{sx+i}, v{SA+1}")
        else:
            for i in range(4):
                st_ops += [f"v_lshlrev_b32 v{SU}, 16, v{sx+i}",
                           f"v_and_b32 v{SU+1}, 0xffff0000, v{sx+i}",
                           f"v_add_f32 v{SA}, v{SA}, v{SU}",
                           f"v_fmac_f32 v{SA+1}, v{SU}, v{SU}",
                           f"v_add_f32 v{SA}, v{SA}, v{SU+1}",
                           f"v_fmac_f32 v{SA+1}, v{SU+1}, v{SU+1}"]
        if e in (0, 2, 4, 6, 8, 10, 12, 14):
            stamp("p1")
        other = []
        if e < 15:
            other += p1_reads(1 - P, e + 1)
        if e == 0:
            other.append(("vm", "ep", f"buffer_load_dwordx2 {vr(V_EP,2)}, v{V_Z}, {sr(SDBG,4)}, 0 offen sc1"))
        if e + 5 < 16:
            other += wdma(e + 5)
        for (qi, i) in xsched.get(e, []):
            other += xdma(qi, i)
        if e == 15:
            other += [f"s_lshl_b32 s{t+8}, s{s_rb}, 7",
                      f"s_add_u32 s{t+8}, s{t+8}, {F_HELLO}",
                      f"v_and_b32 v{V_T0}, 0x70, v{V_L16}",
                      ("vm", "hl", f"buffer_load_dwordx4 {vr(V_HL,4)}, v{V_T0}, {sr(SWS,4)}, s{t+8} offen sc1"),
                      f"s_lshr_b32 s{t+9}, s2, 5",
                      f"s_lshl_b32 s{t+9}, s{t+9}, 8",
                      f"s_add_u32 s{t+9}, s{t+9}, {F_T}",
                      f"v_and_b32 v{V_T0+1}, 0xf8, v{V_L8}",
                      ("vm", "hl", f"buffer_load_dwordx2 {vr(V_FT,2)}, v{V_T0+1}, {sr(SWS,4)}, s{t+9} offen sc1")]
        if e == 7 and "nopf2" not in EXP:
            other += [f"s_lshl_b32 s{t}, s2, 13",
                      f"s_lshl_b32 s{t+1}, s{s_wave}, 11",
                      f"s_add_u32 s{t}, s{t}, s{t+1}",
                      ("vm", "pf", f"buffer_load_dwordx4 v[240:243], v{V_L16}, {sr(SKK,4)}, s{t} offen"),
                      ("vm", "pf", f"buffer_load_dwordx4 v[240:243], v{V_L16}, {sr(SKK,4)}, s{t} offen offset:1024"),
                      f"v_lshlrev_b32 v236, 18, v{V_LANE}",
                      ("vm", "pf", f"buffer_load_dword v237, v236, {sr(SWS,4)}, 0 offen"),
                      ("vm", "pf", f"buffer_load_dword v237, v236, {sr(SOUT,4)}, 0 offen")]
        if e == 8 and "nopfl" not in EXP:
            other += [f"s_lshl_b32 s{t}, s{s_rb}, 8",
                      f"v_lshlrev_b32 v236, 13, v{V_Q}",
                      f"v_lshl_add_u32 v236, v{V_LAM}, 4, v236",
                      f"s_add_u32 s{t}, s{t}, {F_O1}",
                      ("vm", "pf", f"buffer_load_dword v237, v236, {sr(SWS,4)}, s{t} offen sc1"),
                      f"s_lshl_b32 s{t}, s{s_rb}, 13",
                      f"s_lshl_b32 s{t+1}, s{s_wave}, 11",
                      f"s_add_u32 s{t}, s{t}, s{t+1}",
                      f"v_lshlrev_b32 v236, 7, v{V_LAM}",
                      f"v_and_b32 v238, 1, v{V_Q}",
                      f"v_lshl_add_u32 v236, v238, 18, v236",
                      f"s_add_u32 s{t}, s{t}, {ST1_OFF}",
                      ("vm", "pf", f"buffer_load_dword v237, v236, {sr(SWS,4)}, s{t} offen sc1")]
        if e == 9 and "pfb" in EXP:
            other += [f"s_lshl_b32 s{t}, s{s_g}, 2",
                      f"s_add_u32 s{t}, s{t}, s{s_wave}",
                      f"s_lshl_b32 s{t}, s{t}, 9",
                      f"s_lshl_b32 s{t+1}, s{s_rb}, 16",
                      f"s_add_u32 s{t}, s{t}, s{t+1}",
                      f"v_and_b32 v236, 3, v{V_LANE}",
                      "v_lshlrev_b32 v236, 7, v236",
                      f"v_bfe_u32 v237, v{V_LANE}, 2, 2",
                      "v_lshl_add_u32 v236, v237, 14, v236",
                      f"v_and_b32 v237, 1, v{V_Q}",
                      "v_lshl_add_u32 v236, v237, 21, v236",
                      ("vm", "pf", f"buffer_load_dword v237, v236, {sr(SWS,4)}, s{t} offen"),
                      f"s_lshl_b32 s{t}, s{s_wave}, 15",
                      f"s_add_u32 s{t}, s{t}, s{s_rowbase}",
                      f"s_lshl_b32 s{t+1}, s{s_g}, 7",
                      f"s_add_u32 s{t}, s{t}, s{t+1}",
                      f"s_add_u32 s{t+1}, s{t}, {X2_OFF}",
                      ("vm", "pf", f"buffer_load_dword v237, v{V_ROW}, {sr(SWS,4)}, s{t+1} offen"),
                      ("vm", "pf", f"buffer_load_dword v237, v{V_ROW}, {sr(SOUT,4)}, s{t} offen")]
        if e == 10:
            other += wod
        if NS == 5:
            wsch = {11: [15], 12: [3, 4, 5], 13: [6, 7, 8], 14: [9, 10, 11], 15: [12, 13, 14]}
        else:
            wsch = {12: [12, 13, 14], 13: [15, 0, 1], 14: [2, 3, 4], 15: [5, 6, 7]}
        for n in wsch.get(e, []):
            other += wodma(n)
        if e == 4:
            Lp, Lok, Lnf = a.label("ep"), a.label("epok"), a.label("nf")
            c(f"s_mov_b32 s{s_spin}, 0",
              f"{Lp}:",
              f"v_readfirstlane_b32 s{s_ep}, v{V_EP}",
              f"v_readfirstlane_b32 s{s_ep+1}, v{V_EP+1}",
              f"s_add_u32 s{s_spin}, s{s_spin}, 1",
              f"s_cmp_lg_u32 s{s_ep}, 0",
              f"s_cbranch_scc1 {Lok}",
              f"s_cmp_gt_u32 s{s_spin}, {SPIN_MAX}",
              f"s_cbranch_scc1 {Lok}",
              "s_sleep 2",
              f"buffer_load_dwordx2 {vr(V_EP,2)}, v{V_Z}, {sr(SDBG,4)}, 0 offen sc1",
              "s_waitcnt vmcnt(0)",
              f"s_branch {Lp}",
              f"{Lok}:",
              f"v_mov_b32 v{V_EPV}, s{s_ep}",
              f"v_mov_b32 v{V_EPV+1}, s{s_ep+1}",
              f"s_cmp_lg_u32 s{s_wave}, 0",
              f"s_cbranch_scc1 {Lnf}",
              f"v_mov_b32 v{V_HL}, s{s_ep}",
              f"v_mov_b32 v{V_HL+1}, s{s_ep+1}",
              f"v_mov_b32 v{V_HL+2}, s{s_xcc}",
              f"v_mov_b32 v{V_HL+3}, 0",
              f"s_and_b32 s{t}, s2, 7",
              f"s_lshl_b32 s{t}, s{t}, 8",
              f"s_and_b32 s{t+1}, s2, 0xf8",
              f"s_add_u32 s{t}, s{t}, s{t+1}",
              f"s_add_u32 s{t}, s{t}, {F_T}",
              f"s_lshl_b32 s{t+1}, s{s_rb}, 7",
              f"s_lshl_b32 s{t+2}, s{s_g}, 4",
              f"s_add_u32 s{t+1}, s{t+1}, s{t+2}",
              f"s_add_u32 s{t+1}, s{t+1}, {F_HELLO}",
              "s_mov_b64 exec, 1",
              f"buffer_store_dwordx2 {vr(V_HL,2)}, v{V_Z}, {sr(SWS,4)}, s{t} offen sc1",
              f"buffer_store_dwordx4 {vr(V_HL,4)}, v{V_Z}, {sr(SWS,4)}, s{t+1} offen sc1",
              "s_mov_b64 exec, -1",
              f"{Lnf}:")
        mf = []
        wq, wk, wv = ar(12 * e, 4), ar(12 * e + 4, 4), ar(12 * e + 8, 4)
        for tl in range(5):
            x = vr(XS[P] + 4 * tl, 4)
            for (acc, A_, B_) in ((AQ + 4 * tl, wq, x), (AK + 4 * tl, wk, x), (AV + 4 * tl, x, wv)):
                mf.append(f"v_mfma_f32_16x16x32_bf16 {vr(acc,4)}, {A_}, {B_}, {vr(acc,4) if e else 0}")
        mix = []
        no, ns = len(other), len(st_ops)
        io = 0
        for j, so in enumerate(st_ops):
            while io < (j + 1) * no // max(ns, 1):
                mix.append(other[io])
                io += 1
            mix.append(so)
        mix += other[io:]
        c.merge(mf, mix)
    stamp()
    HR = 64
    c(f"v_lshrrev_b32 v72, 5, v{V_LANE}",
      f"s_lshl_b32 s{t}, s{s_wave}, 1",
      f"s_add_u32 s{t}, s{t}, 8",
      f"v_add_u32 v72, s{t}, v72",
      "v_lshlrev_b32 v72, 8, v72",
      f"v_lshl_add_u32 v72, v{V_LAM}, 4, v72",
      f"v_and_b32 v73, 1, v{V_Q}",
      f"v_mul_u32_u24 v73, {XQ}, v73",
      "v_add_u32 v72, v72, v73",
      f"ds_read_b128 {vr(HR,4)}, v72 offset:{L_X}",
      f"ds_read_b128 {vr(HR+4,4)}, v72 offset:{L_X+2*XQ}",
      f"v_mov_b32 v{SA+2}, 0",
      f"v_mov_b32 v{SA+3}, 0",
      f"v_lshlrev_b32 v74, 2, v{V_LAM}")
    for r in range(4):
        c(f"v_mov_b32_dpp v{CSQ+r}, v{AQ+r} row_newbcast:0 row_mask:0xf bank_mask:0xf",
          f"v_mov_b32_dpp v{CSK+r}, v{AK+r} row_newbcast:0 row_mask:0xf bank_mask:0xf")
    c(f"ds_bpermute_b32 v{CSV}, v74, v{AV}",
      "s_waitcnt lgkmcnt(0)",
      "s_barrier")
    STA, STB = 94, 196
    QP, KP, VP = 64, 74, 84
    def read_stats(vlam8):
        l = [f"ds_read_b64 {vr(STA+2*tl,2)}, v{vlam8} offset:{128*tl}" for tl in range(5)]
        l += [f"v_lshlrev_b32 v{V_T0}, 5, v{V_Q}", f"v_add_u32 v{V_T0}, {L_ST}, v{V_T0}"]
        for tl in range(5):
            l += [f"ds_read_b128 {vr(STB+8*tl,4)}, v{V_T0} offset:{128*tl}",
                  f"ds_read_b128 {vr(STB+8*tl+4,4)}, v{V_T0} offset:{128*tl+16}"]
        return l

    def poll(check_lines, reload_lines, name, sleep=1):
        Lp, Ld = a.label(name), a.label(name + "d")
        c(f"s_mov_b32 s{s_spin}, 0", f"{Lp}:")
        c(check_lines)
        c(f"s_add_u32 s{s_spin}, s{s_spin}, 1",
          f"s_cmp_gt_u32 s{s_spin}, {SPIN_MAX}",
          f"s_cbranch_scc1 {Ld}",
          "s_nop 1",
          f"s_cbranch_vccz {Ld}",
          f"s_sleep {sleep}")
        c(reload_lines)
        c("s_waitcnt vmcnt(0)", f"s_branch {Lp}", f"{Ld}:")

    def chk_ep(regs_lo, tmp):
        l = []
        for n, lo in enumerate(regs_lo):
            if n == 0:
                l.append(f"v_xor_b32 v{tmp}, s{s_ep}, v{lo}")
            else:
                l.append(f"v_xor_b32 v{tmp+1}, s{s_ep}, v{lo}")
                l.append(f"v_or_b32 v{tmp}, v{tmp}, v{tmp+1}")
            l.append(f"v_xor_b32 v{tmp+1}, s{s_ep+1}, v{lo+1}")
            l.append(f"v_or_b32 v{tmp}, v{tmp}, v{tmp+1}")
        l.append(f"v_cmp_ne_u32 vcc, 0, v{tmp}")
        return l

    PT = 104
    c(f"v_and_b32 v{PT}, 0x70, v{V_L16}", f"v_and_b32 v{PT+1}, 0xf8, v{V_L8}")
    c(("wait", ["hl"]))
    poll(chk_ep([V_HL, V_FT], 106),
         [f"buffer_load_dwordx4 {vr(V_HL,4)}, v{PT}, {sr(SWS,4)}, s{t+8} offen sc1",
          f"buffer_load_dwordx2 {vr(V_FT,2)}, v{PT+1}, {sr(SWS,4)}, s{t+9} offen sc1"], "phl")
    c(f"v_cmp_ne_u32 vcc, s{s_xcc}, v{V_HL+2}",
      f"s_lshl_b32 s{t+3}, s{s_half}, 11",
      f"s_add_u32 s{t+4}, s{s_c}, s{t+3}",
      f"s_add_u32 s{t+4}, s{t+4}, {U_OFF}",
      f"s_add_u32 m0, s{s_cl}, s{t+3}",
      "s_nop 0",
      ("vm", "cu", f"buffer_load_dwordx4 v{V_L16}, {sr(SWS,4)}, s{t+4} offen sc1 lds"),
      ("vm", "cu", f"buffer_load_dwordx4 v{V_L16}, {sr(SWS,4)}, s{t+4} offen offset:1024 sc1 lds"),
      "s_cmp_eq_u64 vcc, 0",
      f"s_cselect_b32 s{s_loc}, 1, 0")
    V_FX, V_FI = 184, 185
    dm = []
    for i in range(2):
        g0 = [f"s_lshl_b32 s{t+3}, s{s_half}, 1",
              f"s_add_u32 s{t+3}, s{t+3}, {i}",
              f"s_mul_i32 s{t+5}, s{t+3}, {C_KS}",
              f"s_add_u32 s{t+5}, s{t+5}, s{s_cl}",
              f"s_add_u32 s{t+10+i}, s{t+5}, {C_K+32}",
              f"s_lshl_b32 s{t+3}, s{t+3}, 1",
              f"s_add_u32 s{t+12+i}, s{s_c}, s{t+3}"]
        c(g0)
        for n in range(4):
            dm.append([f"s_mov_b32 m0, s{t+10+i}", "s_nop 0",
                       ("vm", "ck", f"buffer_load_dwordx4 v{V_L16}, {sr(SKK,4)}, s{t+12+i} offen offset:{1024*n} lds")])
    for n in ((0, 1, 2) if NS == 5 else (8, 9, 10, 11)):
        dm.append(wodma(n))
    c(f"v_add_u32 v{V_FI}, v{V_LAM}, v{V_Q}",
      f"v_subrev_u32 v{V_FI}, 16, v{V_FI}",
      f"v_max_i32 v74, 0, v{V_FI}",
      "v_lshlrev_b32 v74, 1, v74",
      ("vm", "ck", f"buffer_load_ushort v{V_FX}, v74, {sr(SKK,4)}, s{s_c} offen"))

    def with_dmas(main, groups, every):
        n = 0
        for it in main:
            c(it)
            n += 1
            if n % every == 0 and groups:
                c(groups.pop(0))

    TT = 72
    ep = []
    for i in range(8):
        ep.append(f"v_dot2_f32_bf16 v{SA+2}, v{HR+i}, v{ONES}, v{SA+2}")
        ep.append(f"v_dot2_f32_bf16 v{SA+3}, v{HR+i}, v{HR+i}, v{SA+3}")
    ep.append(("gap", 3))
    for sh in (8, 4, 2, 1):
        ep += [f"v_add_f32_dpp v{SA+2}, v{SA+2}, v{SA+2} row_ror:{sh} row_mask:0xf bank_mask:0xf",
               f"v_add_f32_dpp v{SA+3}, v{SA+3}, v{SA+3} row_ror:{sh} row_mask:0xf bank_mask:0xf",
               ("gap", 1)]
    ep += xq_reduce("v_add_f32", [SA, SA + 1, SA + 2, SA + 3], [TT, TT + 1, TT + 2, TT + 3], ("v_permlane16_swap_b32",))
    ep += xq_reduce("v_add_f32", [SA, SA + 1], [TT, TT + 1], ("v_permlane32_swap_b32",))
    ep += stats_fin([(SA, SA + 1), (SA + 2, SA + 3)], [TT, TT + 1])
    ep += [f"v_lshlrev_b32 v{TT}, 3, v{V_LAM}",
           f"s_lshr_b32 s{t+1}, s{s_stile}, 5",
           f"s_add_u32 s{t+1}, s{t+1}, {L_ST}",
           f"v_add_u32 v{TT+1}, s{t+1}, v{TT}",
           f"ds_write_b64 v{TT+1}, {vr(SA,2)}",
           f"v_lshrrev_b32 v{TT+1}, 5, v{V_LANE}",
           f"v_lshlrev_b32 v{TT+1}, 3, v{TT+1}",
           f"s_lshl_b32 s{t+1}, s{s_wave}, 4",
           f"s_add_u32 s{t+1}, s{t+1}, {L_ST + 64}",
           f"v_add_u32 v{TT+1}, s{t+1}, v{TT+1}",
           f"ds_write_b64 v{TT+1}, {vr(SA+2,2)}",
           f"v_and_b32 v{TT+1}, 0x38, v{TT}",
           f"v_add_u32 v{TT+1}, {L_ST}, v{TT+1}",
           f"v_mov_b32 v{TT+2}, 0",
           f"v_mov_b32 v{TT+3}, 1.0",
           f"ds_write_b64 v{TT+1}, {vr(TT+2,2)}",
           f"v_add_u32 v{TT}, {L_ST}, v{TT}"]
    with_dmas(ep, dm, 12)
    c("s_waitcnt lgkmcnt(0)", "s_barrier")

    c(read_stats(TT), "s_waitcnt lgkmcnt(0)")

    def normalize(tl, pk, VP):
        l = []
        mean, rstd = STA + 2 * tl, STA + 2 * tl + 1
        for (acc, cs, dst, on) in ((AQ + 4 * tl, CSQ, QP + 2 * tl, tl > 0), (AK + 4 * tl, CSK, KP + 2 * tl, True)):
            if not on:
                continue
            if pk:
                for h in range(2):
                    l.append(f"v_pk_fma_f32 {vr(acc+2*h,2)}, {vr(cs+2*h,2)}, {vr(mean,2)}, {vr(acc+2*h,2)} op_sel_hi:[1,0,1] neg_lo:[0,1,0] neg_hi:[0,1,0]")
                for h in range(2):
                    l.append(f"v_pk_mul_f32 {vr(acc+2*h,2)}, {vr(acc+2*h,2)}, {vr(mean,2)} op_sel:[0,1]")
            else:
                for r in range(4):
                    l.append(f"v_fma_f32 v{acc+r}, -v{mean}, v{cs+r}, v{acc+r}")
                for r in range(4):
                    l.append(f"v_mul_f32 v{acc+r}, v{rstd}, v{acc+r}")
            l.append(f"v_cvt_pk_bf16_f32 v{dst}, v{acc}, v{acc+1}")
            l.append(f"v_cvt_pk_bf16_f32 v{dst+1}, v{acc+2}, v{acc+3}")
        acc = AV + 4 * tl
        for r in range(4):
            l.append(f"v_fma_f32 v{acc+r}, -v{STB+8*tl+2*r}, v{CSV}, v{acc+r}")
        for r in range(4):
            l.append(f"v_mul_f32 v{acc+r}, v{STB+8*tl+2*r+1}, v{acc+r}")
        l.append(f"v_cvt_pk_bf16_f32 v{VP+2*tl}, v{acc}, v{acc+1}")
        l.append(f"v_cvt_pk_bf16_f32 v{VP+2*tl+1}, v{acc+2}, v{acc+3}")
        return l

    V_OA = 254
    s_oa = 20
    oaddr = [f"s_lshl_b32 s{t}, s{s_g}, 2",
             f"s_add_u32 s{t}, s{t}, s{s_wave}",
             f"s_lshr_b32 s{t+1}, s{t}, 1",
             f"s_lshl_b32 s{t+1}, s{t+1}, 10",
             f"s_and_b32 s{t}, s{t}, 1",
             f"s_lshl_b32 s{t}, s{t}, 9",
             f"s_add_u32 s{t}, s{t}, s{t+1}",
             f"s_lshl_b32 s{t+1}, s{s_rb}, 16",
             f"s_add_u32 s{s_oa}, s{t}, s{t+1}",
             f"v_lshrrev_b32 v{V_OA}, 1, v{V_Q}",
             f"v_lshlrev_b32 v{V_OA}, 8, v{V_OA}",
             f"v_lshl_add_u32 v{V_OA}, v{V_LAM}, 4, v{V_OA}",
             f"v_and_b32 v{V_T0+1}, 1, v{V_Q}",
             f"v_lshl_add_u32 v{V_OA}, v{V_T0+1}, 3, v{V_OA}"]

    def attn_tiles(tiles, VP, regs, pk):
        SC, SP, MX, MT, PP, OO, LL = (regs[k_] for k_ in ("SC", "SP", "MX", "MT", "PP", "OO", "LL"))
        n = len(tiles)
        l = [("gap", 2)]
        for j, i in enumerate(tiles):
            l.append(f"v_mfma_f32_16x16x16_bf16 {vr(SC+4*j,4)}, {vr(KP+2*i,2)}, {vr(QP+2*i,2)}, {vr(BC,4)}")
            l.append(f"v_mfma_f32_16x16x16_bf16 {vr(SP+4*j,4)}, {vr(KP+2*(i-1),2)}, {vr(QP+2*i,2)}, {vr(BP1 if i == 1 else BP,4)}")
        l.append(("gap", max(8 - 2 * (n - 1), 1) if n < 4 else 2))
        if n >= 2:
            pass
        for j in range(n):
            if j == n - 1 and n > 1:
                l.append(("gap", 2))
            for r in range(4):
                l.append(f"v_max_f32 v{SC+4*j+r}, v{SC+4*j+r}, v{SP+4*j+r}")
            l.append(f"v_max3_f32 v{MX+j}, v{SC+4*j}, v{SC+4*j+1}, v{SC+4*j+2}")
            l.append(f"v_max_f32 v{MX+j}, v{MX+j}, v{SC+4*j+3}")
        l += xq_reduce("v_max_f32", [MX + j for j in range(n)], [MT + j for j in range(n)])
        for j in range(n):
            l.append(f"v_mul_f32 v{MX+j}, 0x3eb8aa3b, v{MX+j}")
        for j in range(n):
            for r in range(4):
                l.append(f"v_fma_f32 v{SC+4*j+r}, v{SC+4*j+r}, s{s_cexp}, -v{MX+j}")
        for j in range(n):
            for r in range(4):
                l.append(f"v_exp_f32 v{SC+4*j+r}, v{SC+4*j+r}")
        l.append(("gap", 1))
        for j in range(n):
            l += [f"v_cvt_pk_bf16_f32 v{SP+4*j}, v{SC+4*j}, v{SC+4*j+1}",
                  f"v_cvt_pk_bf16_f32 v{SP+4*j+1}, v{SC+4*j+2}, v{SC+4*j+3}",
                  f"v_and_b32 v{PP+4*j}, v{MP}, v{SP+4*j}",
                  f"v_and_b32 v{PP+4*j+1}, v{MP+1}, v{SP+4*j+1}",
                  f"v_and_b32 v{PP+4*j+2}, v{MC}, v{SP+4*j}",
                  f"v_and_b32 v{PP+4*j+3}, v{MC+1}, v{SP+4*j+1}"]
        l.append(("gap", 2))
        for j, i in enumerate(tiles):
            l.append(f"v_mfma_f32_16x16x32_bf16 {vr(LL+4*j,4)}, {vr(ONES,4)}, {vr(PP+4*j,4)}, 0")
            l.append(f"v_mfma_f32_16x16x32_bf16 {vr(OO+4*j,4)}, {vr(VP+2*(i-1),4)}, {vr(PP+4*j,4)}, 0")
        l.append(("gap", 8))
        for j in range(n):
            l.append(f"v_rcp_f32 v{LL+4*j}, v{LL+4*j}")
        l.append(("gap", 1))
        for j in range(n):
            if pk:
                l += [f"v_pk_mul_f32 {vr(OO+4*j,2)}, {vr(OO+4*j,2)}, {vr(LL+4*j,2)} op_sel_hi:[1,0]",
                      f"v_pk_mul_f32 {vr(OO+4*j+2,2)}, {vr(OO+4*j+2,2)}, {vr(LL+4*j,2)} op_sel_hi:[1,0]"]
            else:
                l += [f"v_mul_f32 v{OO+4*j+r}, v{LL+4*j}, v{OO+4*j+r}" for r in range(4)]
            l += [f"v_cvt_pk_bf16_f32 v{OO+4*j}, v{OO+4*j}, v{OO+4*j+1}",
                  f"v_cvt_pk_bf16_f32 v{OO+4*j+1}, v{OO+4*j+2}, v{OO+4*j+3}"]
        return l

    def dual_store(lines_fn, tag, nops):
        Lg, Lj = a.label("sg"), a.label("sj")
        c(f"s_cmp_eq_u32 s{s_loc}, 0", f"s_cbranch_scc1 {Lg}")
        c(lines_fn(""))
        c(f"s_branch {Lj}", f"{Lg}:")
        c(lines_fn(" sc1"))
        c(f"{Lj}:")
        c.q += [tag] * nops

    def wave_flag(f_off, sc1_only=False):
        c(f"s_add_u32 s{t}, s{s_flag}, {f_off}", "s_mov_b64 exec, 1")
        if sc1_only:
            c(("vm", "fl", f"buffer_store_dwordx2 {vr(V_EPV,2)}, v{V_Z}, {sr(SWS,4)}, s{t} offen sc1"))
        else:
            dual_store(lambda fl: [f"buffer_store_dwordx2 {vr(V_EPV,2)}, v{V_Z}, {sr(SWS,4)}, s{t} offen{fl}"], "fl", 1)
        c("s_mov_b64 exec, -1")

    s_cexp = 17
    c(f"s_mov_b32 s{s_cexp}, 0x3eb8aa3b")
    R1 = dict(SC=108, SP=124, MX=140, MT=144, PP=148, OO=196, LL=212)
    main = []
    for tl in range(5):
        main += normalize(tl, True, VP)
    with_dmas(main, dm, 16)
    assert not dm

    def o_stores(o_off, OO, tiles):
        def f(fl):
            l = []
            for j, i in enumerate(tiles):
                l += [f"s_add_u32 s{t+1}, s{s_oa}, {(O1_OFF if (fl == '' and 'noalias' not in EXP) else o_off) + (i-1)*16384}",
                      f"buffer_store_dwordx2 {vr(OO+4*j,2)}, v{V_OA}, {sr(SWS,4)}, s{t+1} offen{fl}"]
            return l
        dual_store(f, "ost", len(tiles))

    stamp()
    CA, CB, C2, C3, C4, C5, C6 = 94, 95, 96, 97, 98, 99, 100
    c(f"v_add_u32 v{V_T0}, s{s_cl}, v{V_L8}",
      f"v_mov_b32 v{C2}, 0",
      f"v_mov_b32 v{C3}, 0",
      f"ds_write_b64 v{V_T0}, {vr(C2,2)} offset:{C_U+4096}",
      f"v_mul_u32_u24 v{C4}, {C_KS}, v{V_Q}",
      f"v_lshl_add_u32 v{C4}, v{V_LAM}, 1, v{C4}",
      f"s_add_u32 s{t+5}, s{s_cl}, {C_K}",
      f"v_add_u32 v{C4}, s{t+5}, v{C4}",
      f"v_cmp_gt_i32 vcc, 0, v{V_FI}",
      f"v_add_u32 v{CA}, 1, v{V_LAM}",
      f"v_and_b32 v{CB}, 3, v{CA}",
      f"v_mul_u32_u24 v{CB}, {C_KS}, v{CB}",
      f"v_and_b32 v{CA}, 0x1c, v{CA}",
      f"v_lshl_add_u32 v{CB}, v{CA}, 1, v{CB}",
      f"v_lshl_add_u32 v{CB}, v{V_Q}, 4, v{CB}",
      f"s_lshl_b32 s{t+3}, s{s_half}, 8",
      f"s_add_u32 s{t+3}, s{t+3}, s{s_cl}",
      f"s_add_u32 s{t+5}, s{t+3}, {C_K}",
      f"v_add_u32 v{CA}, s{t+5}, v{CB}",
      f"v_lshlrev_b32 v{CB}, 5, v{V_LAM}",
      f"v_sub_u32 v{CB}, 480, v{CB}",
      f"v_lshl_add_u32 v{CB}, v{V_Q}, 4, v{CB}",
      f"v_add_u32 v{CB}, s{t+3}, v{CB}",
      ("wait", ["ck", "cu"]),
      f"v_cndmask_b32 v{V_FX}, v{V_FX}, 0, vcc",
      f"ds_write_b16 v{C4}, v{V_FX}",
      "s_waitcnt lgkmcnt(0)", "s_barrier")
    CACC = 104
    V_FO = 232
    V_FA = 236

    def creg(P, off, n):
        return vr(136 + off, n) if P == 0 else ar(192 + off, n)

    def creads(P, rp):
        l = []
        for j in range(8):
            l.append(f"ds_read_b128 {creg(P,32+4*j,4)}, v{CB} offset:{64*rp+512*(7-j)}")
            l.append(f"ds_read_b64 {creg(P,4*j,2)}, v{CA} offset:{64*rp+512*j}")
            l.append(f"ds_read_b64 {creg(P,4*j+2,2)}, v{CA} offset:{64*rp+512*j+8}")
        return l

    def flags_load(f_off, rb_sgpr, dst, sreg):
        return [f"s_lshl_b32 s{sreg}, s{rb_sgpr}, 8",
                f"s_add_u32 s{sreg}, s{sreg}, {f_off}",
                ("vm", "fo", f"buffer_load_dwordx2 {vr(dst,2)}, v{V_FA}, {sr(SWS,4)}, s{sreg} offen sc1")]

    def flags_poll(dst, sreg, tmp, name):
        c(("wait", ["fo"]))
        poll(chk_ep([dst], tmp), [f"buffer_load_dwordx2 {vr(dst,2)}, v{V_FA}, {sr(SWS,4)}, s{sreg} offen sc1"], name)

    c(creads(0, 0))
    KEEP, UU, PR, UF = 136, 152, 160, 176
    pre_ep = [
        f"s_lshl_b32 s{t+3}, s{s_wave}, 12",
        f"s_add_u32 s{t+3}, s{t+3}, {C_RED}",
        f"v_add_u32 v{C2}, s{t+3}, v{V_L16}",
        f"s_xor_b32 s{t+3}, s{s_wave}, 1",
        f"s_lshl_b32 s{t+3}, s{t+3}, 12",
        f"s_add_u32 s{t+3}, s{t+3}, {C_RED}",
        f"v_add_u32 v{C3}, s{t+3}, v{V_L16}",
        f"v_lshlrev_b32 v{C4}, 5, v{V_LAM}",
        f"v_lshl_add_u32 v{C4}, v{V_Q}, 3, v{C4}",
        f"s_lshl_b32 s{t+3}, s{s_half}, 11",
        f"s_sub_u32 s{t+3}, s{s_cl}, s{t+3}",
        f"s_add_u32 s{t+3}, s{t+3}, {C_U + 4088 - 1536}",
        f"v_sub_u32 v{C4}, s{t+3}, v{C4}",
        f"s_lshl_b32 s{t+3}, s{s_wave}, 11",
        f"s_add_u32 s{t+3}, s{t+3}, {C_TR}",
        f"v_lshlrev_b32 v{C5}, 4, v{V_LAM}",
        f"v_lshl_add_u32 v{C5}, v{V_Q}, 2, v{C5}",
        f"v_add_u32 v{C5}, s{t+3}, v{C5}",
        f"v_add_u32 v{C6}, s{t+3}, v{V_L16}",
        f"v_lshrrev_b32 v101, 5, v{V_LANE}",
        "v_lshlrev_b32 v101, 8, v101",
        f"v_and_b32 v102, 1, v{V_Q}",
        "v_lshl_add_u32 v101, v102, 11, v101",
        f"v_lshl_add_u32 v101, v{V_LAM}, 4, v101",
        f"s_lshl_b32 s{t+4}, s{s_half}, 10",
        f"s_add_u32 s{t+4}, s{t+4}, s{s_c}",
        f"s_add_u32 s{t+4}, s{t+4}, {Y_OFF}",
        f"s_lshl_b32 s{t+3}, s{s_D}, 16",
        f"s_and_b32 s{t+5}, s{s_D}, 0xffff0000",
        f"s_cmp_eq_u32 s{s_ch}, 0",
        f"s_cselect_b32 s{t+3}, s{t+3}, s{t+5}"]
    pre_ep += [f"ds_read_b64 {vr(UU+2*i,2)}, v{C4} offset:{512*(3-i)}" for i in range(4)]
    pre_ep += ["s_waitcnt lgkmcnt(0)"]
    for i in range(4):
        pre_ep += [f"v_and_b32 v{UF+4*i}, 0xffff0000, v{UU+2*i+1}",
                   f"v_lshlrev_b32 v{UF+4*i+1}, 16, v{UU+2*i+1}",
                   f"v_and_b32 v{UF+4*i+2}, 0xffff0000, v{UU+2*i}",
                   f"v_lshlrev_b32 v{UF+4*i+3}, 16, v{UU+2*i}"]
    pre_ep += [f"v_mul_f32 v{UF+r}, s{t+3}, v{UF+r}" for r in range(16)]
    RA = dict(SC=200, SP=208, MX=216, MT=218, PP=220, OO=238, LL=246)
    opt = [f"v_and_b32 v{V_FA}, 0xf8, v{V_L8}"] + oaddr
    for pr in ([1, 2], [3, 4]):
        opt += attn_tiles(pr, VP, RA, False)
        opt.append(lambda pr=pr: o_stores(O1_OFF, RA["OO"], pr))
        opt.append(("gap", 3))
    c._dist = 100
    for rp in range(4):
        P = rp & 1
        c("s_waitcnt lgkmcnt(0)")
        if rp == 3:
            opt += pre_ep
        mf = []
        for j in range(8):
            for i in range(j, 8):
                cc = vr(CACC + 4 * i, 4) if (rp or j) else 0
                mf.append(f"v_mfma_f32_16x16x32_bf16 {vr(CACC+4*i,4)}, {creg(P,4*j,4)}, {creg(P,32+4*(i-j),4)}, {cc}")
        opt = c.merge2(mf, creads(1 - P, rp + 1) if rp < 3 else [], opt, flush=(rp == 3))
    OFR = 192

    def o_loads(o_off):
        g = []
        for st in range(4):
            for i in range(4):
                e = 4 * st + i
                l = []
                if i == 0:
                    l.append(f"s_add_u32 s{t+11}, s{t+10}, {st*4096}")
                l.append(("vm", f"o{e}", f"buffer_load_dwordx4 {ar(OFR+4*e,4)}, v{V_L16}, {sr(SWS,4)}, s{t+11} offen offset:{1024*i} sc1"))
                g.append(l)
        pre = [f"s_lshl_b32 s{t+10}, s{s_rb}, 16",
               f"s_lshl_b32 s{t+11}, s{s_wave}, 14",
               f"s_add_u32 s{t+10}, s{t+10}, s{t+11}",
               f"s_cmp_eq_u32 s{s_loc}, 0",
               f"s_cselect_b32 s{t+11}, {o_off}, {o_off if 'noalias' in EXP else O1_OFF}",
               f"s_add_u32 s{t+10}, s{t+10}, s{t+11}"]
        return pre, g

    c(("wait", ["ost"]))
    wave_flag(F_O1)
    L1, L2 = a.label("cvh"), a.label("cvj")
    c("s_nop 1", f"s_cmp_eq_u32 s{s_half}, 0", f"s_cbranch_scc0 {L1}")
    for i in range(4):
        c(f"ds_write_b128 v{C2}, {vr(CACC+16+4*i,4)} offset:{1024*i}")
    for r in range(8):
        c(f"v_pk_add_f32 {vr(KEEP+2*r,2)}, {vr(CACC+2*r,2)}, {vr(UF+2*r,2)}")
    c(f"s_branch {L2}", f"{L1}:")
    for i in range(4):
        c(f"ds_write_b128 v{C2}, {vr(CACC+4*i,4)} offset:{1024*i}")
    for r in range(8):
        c(f"v_pk_add_f32 {vr(KEEP+2*r,2)}, {vr(CACC+16+2*r,2)}, {vr(UF+2*r,2)}")
    c(f"{L2}:", "s_waitcnt lgkmcnt(0)", "s_barrier")
    c([f"ds_read_b128 {vr(PR+4*i,4)}, v{C3} offset:{1024*i}" for i in range(4)])
    c(flags_load(F_O1, s_rb, V_FO, t + 8))
    for i in range(4):
        c(f"s_waitcnt lgkmcnt({3-i})" if i == 0 else f"s_waitcnt lgkmcnt({3-i+2*i})",
          f"v_pk_add_f32 {vr(KEEP+4*i,2)}, {vr(KEEP+4*i,2)}, {vr(PR+4*i,2)}",
          f"v_pk_add_f32 {vr(KEEP+4*i+2,2)}, {vr(KEEP+4*i+2,2)}, {vr(PR+4*i+2,2)}")
        for par in range(2):
            c(f"v_cvt_pk_bf16_f32 v{UF+2*i+par}, v{KEEP+4*i+par}, v{KEEP+4*i+2+par}",
              f"ds_write_b32 v{C5}, v{UF+2*i+par} offset:{(2*i+par)*256}")
    YS = 228
    c("s_waitcnt lgkmcnt(0)",
      f"ds_read_b128 {vr(YS,4)}, v{C6}",
      f"ds_read_b128 {vr(238,4)}, v{C6} offset:1024")
    c("s_waitcnt lgkmcnt(0)",
      ("vm", "yst", f"buffer_store_dwordx4 {vr(YS,4)}, v101, {sr(SWS,4)}, s{t+4} offen sc1"),
      ("vm", "yst", f"buffer_store_dwordx4 {vr(238,4)}, v101, {sr(SWS,4)}, s{t+4} offen offset:512 sc1"))
    stamp()
    c(f"s_lshl_b32 s{t}, s{s_g}, 7", f"s_add_u32 s{s_rowbase}, s{s_rowbase}, s{t}")
    pre, og = o_loads(O1_OFF)
    c(pre)
    c(f"s_lshl_b32 s{t+7}, s{s_g}, 8",
      f"s_add_u32 s{t+7}, s{t+7}, {F_Y}",
      f"s_lshl_b32 s{t+9}, s{s_g}, 18",
      f"s_lshl_b32 s{t+1}, s{s_p}, 11",
      f"s_add_u32 s{t+9}, s{t+9}, s{t+1}",
      f"s_lshl_b32 s{t+1}, s{s_b}, 7",
      f"s_add_u32 s{t+9}, s{t+9}, s{t+1}",
      f"s_lshl_b32 s{t+1}, s{s_wave}, 16",
      f"s_add_u32 s{t+9}, s{t+9}, s{t+1}",
      f"s_add_u32 s{t+9}, s{t+9}, {Y_OFF}",
      f"s_add_u32 s22, s{t+9}, 32768",
      f"v_lshrrev_b32 v75, 3, v{V_LANE}",
      "v_lshlrev_b32 v75, 12, v75",
      f"v_and_b32 v76, 0x70, v{V_L16}",
      "v_add_u32 v75, v75, v76",
      f"s_lshl_b32 s23, s{s_wave}, 11",
      f"s_add_u32 s23, s23, {P2_YT}",
      f"v_bfe_u32 v79, v{V_LANE}, 2, 2",
      f"v_lshl_add_u32 v79, v{V_Q}, 2, v79",
      "v_lshlrev_b32 v79, 7, v79",
      f"v_and_b32 v76, 3, v{V_LANE}",
      "v_lshl_add_u32 v79, v76, 3, v79",
      f"s_lshl_b32 s{t+1}, s{s_wave}, 5",
      f"s_add_u32 s{t+1}, s{t+1}, {P2_YT}",
      f"v_add_u32 v79, s{t+1}, v79")
    fyl = f"buffer_load_dwordx2 {vr(72,2)}, v{V_FA}, {sr(SWS,4)}, s{t+7} offen sc1"
    ylds = ["s_mov_b32 m0, s23", "s_nop 0",
            f"buffer_load_dwordx4 v75, {sr(SWS,4)}, s{t+9} offen sc1 lds",
            "s_add_u32 m0, s23, 1024", "s_nop 0",
            f"buffer_load_dwordx4 v75, {sr(SWS,4)}, s22 offen sc1 lds"]
    flags_poll(V_FO, t + 8, 68, "po1")
    for g_ in og[:OPRE]:
        c(g_)
    olate = [og[OPRE:]]
    stamp()

    def y_flag():
        Lny = a.label("nfy")
        c(("wait", ["yst"]),
          "s_barrier",
          f"s_cmp_lg_u32 s{s_wave}, 0",
          f"s_cbranch_scc1 {Lny}",
          f"s_lshl_b32 s{t}, s2, 3",
          f"s_add_u32 s{t}, s{t}, {F_Y}",
          "s_mov_b64 exec, 1",
          f"buffer_store_dwordx2 {vr(V_EPV,2)}, v{V_Z}, {sr(SWS,4)}, s{t} offen sc1",
          "s_mov_b64 exec, -1",
          f"{Lny}:")

    YP, X2K = 246, 238

    def wo_phase(layer):
        first = layer == 0
        XR = 96
        c(f"s_lshl_b32 s{t+1}, s{s_wave}, 15", f"s_add_u32 s{t+5}, s{s_rowbase}, s{t+1}")
        if first:
            for nt in range(4):
                c(("vm", "xr", f"buffer_load_dwordx2 {vr(XR+2*nt,2)}, v{V_ROW}, {sr(SX,4)}, s{t+5} offen offset:{32*nt}"))
        WACC = 80
        WF = [112, 144, 176]

        def reads(P, e):
            return [f"ds_read_b64_tr_b16 {vr(WF[P]+4*nt+2*ss,2)}, v{V_WO+nt} offset:{4096*e+512*ss}"
                    for nt in range(4) for ss in range(2)]
        c(reads(0, 0), reads(1, 1))
        for e in range(16):
            P = e % 3
            if first and e == 0:
                y_flag()
            c(("wait", [f"o{e}"], 8 if e < 15 else 0))
            mf = [f"v_mfma_f32_16x16x32_bf16 {vr(WACC+4*nt,4)}, {vr(WF[P]+4*nt,4)}, {ar(OFR+4*e,4)}, {vr(WACC+4*nt,4) if e else 0}"
                  for nt in range(4)]
            sd = reads((e + 2) % 3, e + 2) if e < 14 else []
            if olate[0]:
                sd = olate[0].pop(0) + sd
            c.merge(mf, sd, 2)
        XF, X1P, G = 144, 160, 168
        if not first:
            stamp("p4")
        if first and 'stamp' not in EXP:
            stamp()
        if first:
            c(("wait", ["xr"]))
            src = XR
        else:
            src = X2K
        for i in range(8):
            c(f"v_lshlrev_b32 v{XF+2*i}, 16, v{src+i}", f"v_and_b32 v{XF+2*i+1}, 0xffff0000, v{src+i}")
        c(f"v_mov_b32 v{G}, 0", f"v_mov_b32 v{G+1}, 0", f"v_mov_b32 v{G+2}, s{s_ep}", f"v_mov_b32 v{G+3}, s{s_ep+1}")
        for i in range(8):
            c(f"v_pk_add_f32 {vr(XF+2*i,2)}, {vr(XF+2*i,2)}, {vr(WACC+2*i,2)}",
              f"v_cvt_pk_bf16_f32 v{X1P+i}, v{XF+2*i}, v{XF+2*i+1}")
        for i in range(8):
            c(f"v_dot2_f32_bf16 v{G}, v{X1P+i}, v{ONES}, v{G}", f"v_dot2_f32_bf16 v{G+1}, v{X1P+i}, v{X1P+i}, v{G+1}")
        st_off = ST1_OFF if first else ST2_OFF
        c(f"s_lshl_b32 s{t+6}, s{s_rb}, 13",
          f"s_lshl_b32 s{t+1}, s{s_wave}, 11",
          f"s_add_u32 s{t+6}, s{t+6}, s{t+1}",
          f"s_add_u32 s{t+6}, s{t+6}, {st_off}",
          f"s_lshl_b32 s{t+1}, s{s_g}, 8",
          f"s_add_u32 s{t+1}, s{t+1}, s{t+6}")
        c(xq_reduce("v_add_f32", [G, G + 1], [G + 4, G + 5]))
        c("s_mov_b64 exec, 0xffff")
        dual_store(lambda fl: [f"buffer_store_dwordx4 {vr(G,4)}, v{V_L16}, {sr(SWS,4)}, s{t+1} offen{fl}"], "sst", 1)
        c("s_mov_b64 exec, -1")
        GR = 176
        if not first:
            stamp("p4")
        for i in range(8):
            c(f"v_lshlrev_b32 v{XF+2*i}, 16, v{X1P+i}", f"v_and_b32 v{XF+2*i+1}, 0xffff0000, v{X1P+i}")
        gl = [f"buffer_load_dwordx4 {vr(GR,4)}, v{V_L16}, {sr(SWS,4)}, s{t+6} offen sc1",
              f"buffer_load_dwordx4 {vr(GR+4,4)}, v{V_L16}, {sr(SWS,4)}, s{t+6} offen offset:1024 sc1"]
        if first:
            Lyd = a.label("yd")
            c(f"s_cmp_lg_u32 s{s_wave}, 0", f"s_cbranch_scc1 {Lyd}", fyl, "s_waitcnt vmcnt(0)")
            poll(chk_ep([72], 76), [fyl], "pfy", 3)
            c(f"{Lyd}:", "s_barrier")
            c(ylds)
            if 'stamp' not in EXP:
                stamp()
        for l in gl:
            c(("vm", "gr", l))
        if first:
            c("s_waitcnt vmcnt(2)", "s_barrier")
            for nt in range(4):
                c(f"ds_read_b64_tr_b16 {vr(YP+2*nt,2)}, v79 offset:{2048*nt}")
        c(("drain",))
        if first and 'stamp' not in EXP:
            stamp()
        if not first:
            stamp("p4")
        poll(chk_ep([GR + 2, GR + 6], 76), gl, "pst")
        stamp("p4" if not first else "x2")
        c(f"v_add_f32 v{G}, v{GR}, v{GR+4}", f"v_add_f32 v{G+1}, v{GR+1}, v{GR+5}")
        c(xq_reduce("v_add_f32", [G, G + 1], [G + 4, G + 5]))
        c(stats_fin([(G, G + 1)], [G + 4]))
        c("s_waitcnt lgkmcnt(0)")
        YF, D = 192, 208
        for i in range(8):
            c(f"v_lshlrev_b32 v{YF+2*i}, 16, v{YP+i}", f"v_and_b32 v{YF+2*i+1}, 0xffff0000, v{YP+i}")
        dst = X2K if first else X1P
        for i in range(8):
            c(f"v_pk_add_f32 {vr(D+2*i,2)}, {vr(XF+2*i,2)}, {vr(G,2)} op_sel_hi:[1,0] neg_lo:[0,1] neg_hi:[0,1]",
              f"v_pk_mul_f32 {vr(D+2*i,2)}, {vr(D+2*i,2)}, {vr(G,2)} op_sel:[0,1]",
              f"v_pk_fma_f32 {vr(D+2*i,2)}, {vr(D+2*i,2)}, {vr(YF+2*i,2)}, {vr(XF+2*i,2)}",
              f"v_cvt_pk_bf16_f32 v{dst+i}, v{D+2*i}, v{D+2*i+1}")
        stamp("p4" if not first else "x2")
        WS4 = D
        for i in range(8):
            c(f"v_mov_b32 v{WS4+i}, v{dst+i}")
        if first:
            c(f"v_and_b32 v237, 1, v{V_Q}",
              "v_lshlrev_b32 v237, 5, v237",
              f"v_lshl_add_u32 v237, v{V_LAM}, 11, v237",
              f"v_lshrrev_b32 v76, 1, v{V_Q}",
              "v_lshl_add_u32 v237, v76, 4, v237")
        else:
            c("s_nop 1")
        for pr in range(2):
            for d_ in range(2):
                c(f"v_permlane16_swap_b32 v{WS4+4*pr+d_}, v{WS4+4*pr+2+d_}")
        c("s_nop 0")
        if not first:
            for pr in range(2):
                c(f"buffer_store_dwordx4 {vr(WS4+4*pr,4)}, v237, {sr(SOUT,4)}, s{t+5} offen offset:{64*pr}" + (" sc1" if "outsc1" in EXP else "") + (" nt" if "outnt" in EXP else ""))
            c("s_waitcnt vmcnt(0)" if FINE == "p4" else "s_nop 0")
            stamp("p4")
            return
        c(f"s_add_u32 s{t+5}, s{t+5}, {X2_OFF}", f"v_mov_b32 v{G}, 0", f"v_mov_b32 v{G+1}, 0")
        dual_store(lambda fl: [f"buffer_store_dwordx4 {vr(WS4+4*pr,4)}, v237, {sr(SWS,4)}, s{t+5} offen offset:{64*pr}{fl}"
                               for pr in range(2)], "x2st", 2)
        for i in range(8):
            c(f"v_dot2_f32_bf16 v{G}, v{dst+i}, v{ONES}, v{G}", f"v_dot2_f32_bf16 v{G+1}, v{dst+i}, v{dst+i}, v{G+1}")
        c(f"s_lshl_b32 s{t}, s{s_rb}, 12",
          f"s_lshl_b32 s{t+1}, s{s_wave}, 10",
          f"s_add_u32 s{t}, s{t}, s{t+1}",
          f"s_lshl_b32 s{t+1}, s{s_g}, 7",
          f"s_add_u32 s{t}, s{t}, s{t+1}",
          f"s_add_u32 s{t}, s{t}, {XS_OFF}")
        c(xq_reduce("v_add_f32", [G, G + 1], [G + 4, G + 5]))
        c("s_mov_b64 exec, 0xffff")
        dual_store(lambda fl: [f"buffer_store_dwordx2 {vr(G,2)}, v{V_L8}, {sr(SWS,4)}, s{t} offen{fl}"], "x2st", 1)
        c("s_mov_b64 exec, -1")
        stamp("x2")
        c(("drain",))
        stamp("x2")
        wave_flag(F_X2)
        Lh = a.label("nh")
        c(f"s_cmp_lg_u32 s{s_wave}, 3",
          f"s_cbranch_scc1 {Lh}",
          "v_lshrrev_b32 v75, 1, v237",
          "v_and_b32 v75, 0xfc00, v75",
          "v_and_b32 v76, 0x30, v237",
          "v_or_b32 v75, v75, v76",
          f"s_lshl_b32 s{t}, s{s_rb}, 13",
          f"s_lshl_b32 s{t+1}, s{s_g}, 7",
          f"s_add_u32 s{t}, s{t}, s{t+1}",
          f"s_add_u32 s{t}, s{t}, {HALO_OFF - 8192}",
          f"s_lshl_b32 s{t+2}, s{s_rb}, 9",
          f"s_lshl_b32 s{t+1}, s{s_g}, 6",
          f"s_add_u32 s{t+2}, s{t+2}, s{t+1}",
          f"s_add_u32 s{t+2}, s{t+2}, {HS_OFF - 64}",
          f"s_mov_b32 s{t+8}, 0xff00ff00",
          f"s_mov_b32 s{t+9}, 0xff00ff00",
          f"s_mov_b64 exec, {sr(t+8,2)}")
        for pr in range(2):
            c(f"buffer_store_dwordx4 {vr(WS4+4*pr,4)}, v75, {sr(SWS,4)}, s{t} offen offset:{64*pr} sc1")
        c("s_mov_b64 exec, 0xff00",
          f"buffer_store_dwordx2 {vr(G,2)}, v{V_L8}, {sr(SWS,4)}, s{t+2} offen sc1",
          "s_mov_b64 exec, -1",
          f"{Lh}:")

    wo_phase(0)
    stamp()

    c(flags_load(F_X2, s_rb, V_FO, t + 8))
    for qi in range(4):
        c(f"s_add_u32 s{s_xq+qi}, s{s_xq+qi}, {X2_OFF}")
    stamp("x2")
    flags_poll(V_FO, t + 8, 68, "px2")
    stamp("x2")
    Lh2 = a.label("nh2")
    c(f"s_cmp_lg_u32 s{s_wave}, 3",
      f"s_cbranch_scc1 {Lh2}",
      f"s_lshl_b32 s{t}, s{s_rb}, 7",
      f"s_lshl_b32 s{t+1}, s{s_g}, 3",
      f"s_add_u32 s{t}, s{t}, s{t+1}",
      f"s_add_u32 s{t}, s{t}, {F_H}",
      "s_mov_b64 exec, 1",
      f"buffer_store_dwordx2 {vr(V_EPV,2)}, v{V_Z}, {sr(SWS,4)}, s{t} offen sc1",
      "s_mov_b64 exec, -1",
      f"{Lh2}:")

    def x2dma(qi, i):
        return [f"s_add_u32 m0, s{s_xl+qi}, {L_X + i*4096}",
                f"s_add_u32 s{t}, s{s_xq+qi}, {i*32768}",
                ("vm", f"x2q{qi}" if KMAJ else f"x2t{i}", f"buffer_load_dwordx4 v{V_XD}, {sr(SWS,4)}, s{t} offen sc1 lds")]
    PS = 184
    c(f"s_lshl_b32 s{t+1}, s{s_rb}, 12",
      f"s_lshl_b32 s{t+2}, s{s_wave}, 10",
      f"s_add_u32 s{t+1}, s{t+1}, s{t+2}",
      f"s_add_u32 s{t+1}, s{t+1}, {XS_OFF}")
    for qi in range(4):
        c(x2dma(0, qi + 1) if KMAJ else x2dma(qi, 1))
    c(("vm", "ps", f"buffer_load_dwordx2 {vr(PS,2)}, v{V_L8}, {sr(SWS,4)}, s{t+1} offen sc1"),
      ("vm", "ps", f"buffer_load_dwordx2 {vr(PS+2,2)}, v{V_L8}, {sr(SWS,4)}, s{t+1} offen offset:512 sc1"))
    late = []
    for i in range(2, 5):
        for qi in range(4):
            late += x2dma(i - 1, qi + 1) if KMAJ else x2dma(qi, i)
    c(late[:12])
    late = late[12:]
    V_HF = 190
    c(f"s_sub_u32 s{t+9}, s{s_rb}, 1",
      f"s_lshl_b32 s{t+9}, s{t+9}, 7",
      f"s_add_u32 s{t+9}, s{t+9}, {F_H}",
      f"v_and_b32 v192, 0x38, v{V_L8}")
    hld = f"buffer_load_dwordx2 {vr(V_HF,2)}, v192, {sr(SWS,4)}, s{t+9} offen sc1"
    S3 = 188 if KMAJ else SA
    own = [("wait", ["ps"]),
           f"v_add_f32 v{S3}, v{PS}, v{PS+2}",
           f"v_add_f32 v{S3+1}, v{PS+1}, v{PS+3}"]
    own += xq_reduce("v_add_f32", [S3, S3 + 1], [104, 105])
    own += stats_fin([(S3, S3 + 1)], [104])
    own += [f"v_lshlrev_b32 v193, 3, v{V_LAM}",
            f"s_lshl_b32 s{t+3}, s{s_wave}, 7",
            f"s_add_u32 s{t+3}, s{t+3}, {L_ST + 128}",
            f"v_add_u32 v195, s{t+3}, v193",
            f"ds_write_b64 v195, {vr(S3,2)}",
            f"v_add_u32 v193, {L_ST}, v193",
            f"v_lshlrev_b32 v194, 5, v{V_Q}",
            f"v_add_u32 v194, {L_ST}, v194"]
    if not KMAJ:
        c(own)
    V_S8, V_S32 = 193, 194

    def stat_reads(tl):
        return [f"ds_read_b64 {vr(STA+2*tl,2)}, v{V_S8} offset:{128*tl}",
                f"ds_read_b128 {vr(STB+8*tl,4)}, v{V_S32} offset:{128*tl}",
                f"ds_read_b128 {vr(STB+8*tl+4,4)}, v{V_S32} offset:{128*tl+16}"]

    XF3 = [168, 176]

    def tile_stream(tl):
        m = []
        def rd(e):
            return f"ds_read_b128 {vr(168+4*(e&3),4)}, v{VAE+e} offset:{4096*tl}"
        m += [rd(0), rd(1)]
        for e in range(16):
            if e % 2 == 0:
                if e + 2 < 16:
                    m += [rd(e + 2), rd(e + 3), "s_waitcnt lgkmcnt(2)"]
                else:
                    m.append("s_waitcnt lgkmcnt(0)")
            x = vr(168 + 4 * (e & 3), 4)
            wq, wk, wv = ar(12 * e, 4), ar(12 * e + 4, 4), ar(12 * e + 8, 4)
            for (acc, A_, B_, on) in ((AQ + 4 * tl, wq, x, tl > 0), (AK + 4 * tl, wk, x, True), (AV + 4 * tl, x, wv, True)):
                if on:
                    m.append(f"v_mfma_f32_16x16x32_bf16 {vr(acc,4)}, {A_}, {B_}, {vr(acc,4) if e else 0}")
        return m

    def R3(qt):
        return dict(SC=AQ + 4 * qt, SP=AK + 4 * qt, PP=AV + 4 * qt, LL=STB + 8 * qt, MX=STB + 8 * qt + 4, MT=STB + 8 * qt + 5, OO=108)

    PSH = 184
    s_hd = 21

    def halo_try(n, blocking):
        Lskip, Lgo = a.label("hskip"), a.label("hgo")
        c(f"s_cmp_lg_u32 s{s_hd}, 0", f"s_cbranch_scc1 {Lskip}")
        qs = list(c.q)
        c(f"s_cmp_eq_u32 s{s_b}, 0", f"s_cbranch_scc1 {Lgo}")
        c(("wait", [f"hf{n}"]))
        if not blocking:
            c(chk_ep([V_HF], PSH), "s_nop 4", f"s_cbranch_vccnz {Lskip}")
        else:
            poll(chk_ep([V_HF], PSH), [hld], "ph", 2)
        c(f"{Lgo}:")
        c(f"s_mov_b32 s{s_hd}, 1",
          f"v_lshrrev_b32 v{PSH}, 11, v{V_XD}",
          f"v_and_b32 v{PSH+1}, 0xff, v{V_XD}",
          f"v_lshl_add_u32 v{PSH}, v{PSH}, 10, v{PSH+1}",
          f"s_lshl_b32 s{t+2}, s{s_wave}, 10",
          f"s_lshl_b32 s{t}, s{s_rb}, 13",
          f"s_lshl_b32 s{t+1}, s{s_wave}, 12",
          f"s_add_u32 s{t}, s{t}, s{t+1}",
          f"s_add_u32 s{t}, s{t}, {HALO_OFF - 8192 - 8192}",
          f"s_cmp_lt_u32 s{s_wave}, 2",
          f"s_cselect_b32 s{t}, {OOB}, s{t}",
          f"s_cmp_eq_u32 s{s_b}, 0",
          f"s_cselect_b32 s{t}, {OOB}, s{t}")
        for qd in range(4):
            c(f"s_add_u32 m0, s{t+2}, {L_X + qd*XQ}",
              f"s_add_u32 s{t+1}, s{t}, {qd*256}",
              f"buffer_load_dwordx4 v{PSH}, {sr(SWS,4)}, s{t+1} offen sc1 lds")
        c(f"v_and_b32 v{PSH+1}, 7, v{V_LAM}",
          f"v_lshlrev_b32 v{PSH+1}, 3, v{PSH+1}",
          f"v_lshl_add_u32 v195, v{V_Q}, 6, v{PSH+1}",
          f"s_lshl_b32 s{t}, s{s_rb}, 9",
          f"s_add_u32 s{t}, s{t}, {HS_OFF - 512}",
          f"s_cmp_eq_u32 s{s_b}, 0",
          f"s_cselect_b32 s{t}, {OOB}, s{t}",
          "s_nop 1",
          f"buffer_load_dwordx2 {vr(PSH,2)}, v195, {sr(SWS,4)}, s{t} offen sc1",
          f"buffer_load_dwordx2 {vr(PSH+2,2)}, v195, {sr(SWS,4)}, s{t} offen offset:256 sc1",
          f"{Lskip}:")
        c.q = qs

    c(f"s_mov_b32 s{s_hd}, 0")
    stamp()
    if KMAJ:
        XK = [168, 64]

        def kreads(P, e):
            return [f"ds_read_b128 {vr(XK[P]+4*(tl-1),4)}, v{VAE+e} offset:{4096*tl}" for tl in range(1, 5)]
        stamp("p3")
        c(("wait", ["x2q0"]), "s_barrier")
        stamp("p3")
        c(kreads(0, 0))
        for e in range(16):
            P = e & 1
            if e == 3:
                c(("wait", ["x2q1"], 0), "s_barrier")
            elif e == 6:
                c(("wait", ["x2q3"], 0), "s_barrier")
            else:
                c("s_waitcnt lgkmcnt(0)")
            if e in (3, 7, 12):
                stamp("p3")
            must = kreads(1 - P, e + 1) if e < 15 else []
            opt = []
            if e < 2:
                must += late[12 * e:12 * e + 12]
            if e == 2:
                opt = own
                must.append(("vm", "hf1", hld))
            if 8 <= e < 12:
                must += stat_reads(e - 7)
            mf = []
            wq, wk, wv = ar(12 * e, 4), ar(12 * e + 4, 4), ar(12 * e + 8, 4)
            for tl in range(1, 5):
                x = vr(XK[P] + 4 * (tl - 1), 4)
                for (acc, A_, B_) in ((AQ + 4 * tl, wq, x), (AK + 4 * tl, wk, x), (AV + 4 * tl, x, wv)):
                    mf.append(f"v_mfma_f32_16x16x32_bf16 {vr(acc,4)}, {A_}, {B_}, {vr(acc,4) if e else 0}")
            c.merge(mf, must + opt)
            if e == 7:
                halo_try(1, False)
                c(("vm", "hf2", hld))
            if e == 12:
                halo_try(2, False)
                c(("vm", "hf3", hld))
        stamp("p3")
        halo_try(3, True)
        c(("drain",), "s_barrier")
        stamp("p3")
        HS2 = 188
        side = [f"v_add_f32 v{HS2}, v{PSH}, v{PSH+2}", f"v_add_f32 v{HS2+1}, v{PSH+1}, v{PSH+3}"]
        side += xq_reduce("v_add_f32", [HS2, HS2 + 1], [PSH, PSH + 1])
        side += stats_fin([(HS2, HS2 + 1)], [PSH])
        side += [f"v_and_b32 v{PSH}, 0x38, v{V_S8}", f"v_add_u32 v{PSH}, {(L_ST & ~0x3f) + 64}, v{PSH}"]
        side += normalize(1, False, VP)
        c.merge(tile_stream(0), side)
        stamp("p3")
        c(f"ds_write_b64 v{PSH}, {vr(HS2,2)}", "s_waitcnt lgkmcnt(0)")
        c(stat_reads(0))
        for tl in (2, 3, 4):
            c(normalize(tl, True, VP))
        c("s_waitcnt lgkmcnt(0)")
        c(normalize(0, True, VP))
        stamp("p3")
        c(attn_tiles([1, 2, 3, 4], VP, R1, True))
        o_stores(O2_OFF, R1["OO"], [1, 2, 3, 4])
    else:
        order = [1, 2, 3, 4, 0]
        for n, tl in enumerate(order):
            side = []
            if n == 0:
                stamp("x2")
                c(("wait", ["x2t1"], 0), "s_barrier")
                stamp("x2")
                for t2 in range(1, 5):
                    c(stat_reads(t2))
                side += late
                side.append(("vm", "hf1", hld))
            elif n == 1:
                c(("wait", ["x2t4"]), "s_barrier")
            elif n == 4:
                c(("drain",), "s_barrier")
            if n >= 1:
                side += [("gap", 8)] + normalize(order[n - 1], False, VP)
            if n >= 2:
                side += attn_tiles([order[n - 1]], VP, R3(order[n - 1]), False)
            if n == 4:
                HS2 = 188
                side += [f"v_add_f32 v{HS2}, v{PSH}, v{PSH+2}", f"v_add_f32 v{HS2+1}, v{PSH+1}, v{PSH+3}"]
                side += xq_reduce("v_add_f32", [HS2, HS2 + 1], [PSH, PSH + 1])
                side += stats_fin([(HS2, HS2 + 1)], [PSH])
                side += [f"v_and_b32 v{PSH}, 0x38, v{V_S8}", f"v_add_u32 v{PSH}, {(L_ST & ~0x3f) + 64}, v{PSH}"]
            stamp("p3")
            c.merge(tile_stream(tl), side)
            stamp("p3")
            if n >= 2:
                o_stores(O2_OFF, 108, [order[n - 1]])
            if n in (1, 2, 3):
                halo_try(n, n == 3)
                if n < 3:
                    c(("vm", f"hf{n+1}", hld))
        c(f"ds_write_b64 v{PSH}, {vr(HS2,2)}", "s_waitcnt lgkmcnt(0)")
        c(stat_reads(0), "s_waitcnt lgkmcnt(0)")
        stamp("p3")
        c(normalize(0, True, VP))
        c(attn_tiles([1], VP, R3(1), True))
        o_stores(O2_OFF, 108, [1])
    stamp()
    stamp("p3")
    stamp("p4")
    c(("drain",))
    stamp("p4")
    wave_flag(F_O2)
    c(flags_load(F_O2, s_rb, V_FO, t + 8))
    pre, og = o_loads(O2_OFF)
    c(pre)
    flags_poll(V_FO, t + 8, 68, "po2")
    stamp("p4")
    for g_ in og[:OPRE]:
        c(g_)
    olate[0] = og[OPRE:]
    stamp("p4")
    wo_phase(1)
    if STAMP:
        c("s_waitcnt vmcnt(0) lgkmcnt(0)")
        stamp()
        c("s_memrealtime s[100:101]",
          f"s_mov_b32 s{SWS+2}, {16*MB}",
          f"s_lshl_b32 s{t}, s2, 8",
          f"s_lshl_b32 s{t+1}, s{s_wave}, 6",
          f"s_add_u32 s{t}, s{t}, s{t+1}",
          f"s_add_u32 s{t}, s{t}, {STAMP_OFF}",
          "s_waitcnt lgkmcnt(0)",
          "v_writelane_b32 v255, s100, 1",
          f"v_lshlrev_b32 v64, 2, v{V_LANE}",
          "s_mov_b64 exec, 0xffff",
          f"buffer_store_dword v255, v64, {sr(SWS,4)}, s{t} offen")
    a(f"{L_end}:")
    a("s_endpgm")
    a(f".set CODE_LIMIT, {L_end} - {label}")


def main(out_path):
    a = Asm()
    label = NAME + "_kernel"
    a('.amdgcn_target "amdgcn-amd-amdhsa--gfx950"')
    a(".text")
    gen(a, label)
    desc = f""".section .rodata,"a"
.p2align 6
.amdhsa_kernel {label}
  .amdhsa_next_free_vgpr 512
  .amdhsa_next_free_sgpr 102
  .amdhsa_accum_offset 256
  .amdhsa_group_segment_fixed_size 0
  .amdhsa_kernarg_size 96
  .amdhsa_user_sgpr_count 2
  .amdhsa_user_sgpr_kernarg_segment_ptr 1
  .amdhsa_system_sgpr_workgroup_id_x 1
.end_amdhsa_kernel
"""
    hdr = f"; @launch grid=(256,1,1) block=(256,1,1) lds={LDS_SIZE}\n"
    open(out_path, "w").write(hdr + a.text() + desc)


if __name__ == "__main__":
    if len(sys.argv) > 2:
        STAMP = True
    main(sys.argv[1])
```

```python
import sys
from gen import Asm, vr, sr, srd, kernel_header, NAME, NEG, MB

KB = 1024
O1_OFF = 0
O2_OFF = 2 * MB
X2_OFF = 4 * MB
U_OFF = 6 * MB
Y_OFF = 8 * MB
ST1_OFF = 10 * MB
ST2_OFF = ST1_OFF + 256 * KB
XS_OFF = ST2_OFF + 256 * KB
HALO_OFF = XS_OFF + 128 * KB
HS_OFF = HALO_OFF + 256 * KB
FL_OFF = HS_OFF + 16 * KB
F_HELLO = FL_OFF
F_T = F_HELLO + 4 * KB
F_Y = F_T + 2 * KB
F_O1 = F_Y + 8 * KB
F_X2 = F_O1 + 8 * KB
F_O2 = F_X2 + 8 * KB
F_H = F_O2 + 8 * KB
WS_SIZE = 11 * MB
assert F_H + 4 * KB <= WS_SIZE
STAMP_OFF = 12 * MB

L_X = 0
XQ = 20480
L_R = 81920
NS = 6 if "bar1" not in __import__("os").environ.get("EXP", "") else 5
L_M = 147456
L_TB = L_M
L_ST = L_M + 8192
LDS_SIZE = 163840
C_U = 0
C_K = 4608
C_KS = 4160
C_CH = 4608 + 4 * 4160
C_RED = 2 * C_CH
C_TR = C_RED + 16384
assert C_TR + 8192 <= 81920
P2_YT = L_TB

SPIN_MAX = 40000
STAMP = False
import os
EXP = os.environ.get("EXP", "")
FINE = os.environ.get("FINE", "")
OOB = 0x7ff00000
PFS = int(os.environ.get("PFS", "11"))
OPRE = int(os.environ.get("OPRE", "6"))
KMAJ = "tilemaj" not in EXP
DSW = float(os.environ.get("DSW", "0.5"))


def ar(a_, n=1):
    return f"a{a_}" if n == 1 else f"a[{a_}:{a_+n-1}]"


class Ctx:
    def __init__(self, a):
        self.a = a
        self.q = []
        self.count = 0

    def raw(self, s):
        for l in s.split("\n"):
            if l.strip():
                self.a(l)
                self.count += 1

    def vwait_n(self, tags):
        idx = -1
        for i, t in enumerate(self.q):
            if t in tags:
                idx = i
        if idx < 0:
            return None
        n = len(self.q) - 1 - idx
        assert n <= 63
        self.q = self.q[idx + 1:]
        return n

    def item(self, it):
        if isinstance(it, str):
            self.raw(it)
        elif it[0] == "vm":
            self.raw(it[2])
            self.q.append(it[1])
        elif it[0] == "wait":
            n = self.vwait_n(it[1])
            lg = it[2] if len(it) > 2 else None
            parts = []
            if n is not None:
                parts.append(f"vmcnt({n})")
            if lg is not None:
                parts.append(f"lgkmcnt({lg})")
            if parts:
                self.raw("s_waitcnt " + " ".join(parts))
        elif it[0] == "drain":
            self.raw("s_waitcnt vmcnt(0)")
            self.q = []
        elif it[0] == "gap":
            self.raw(f"s_nop {it[1]-1}")
        else:
            raise ValueError(it)

    def __call__(self, *its):
        for it in its:
            if isinstance(it, list):
                for x in it:
                    self.item(x)
            else:
                self.item(it)

    def merge(self, main, side, k=2):
        side = list(side)
        si = 0
        dist = 0

        def is_gap(x):
            return isinstance(x, tuple) and x[0] == "gap"

        for m in main:
            self.item(m)
            mf = isinstance(m, str) and m.startswith("v_mfma")
            dist += 3 if mf else 1
            if not mf:
                continue
            quota = k
            while quota > 0 and si < len(side):
                it = side[si]
                if is_gap(it):
                    if dist >= it[1]:
                        si += 1
                        continue
                    break
                self.item(it)
                dist = 0
                si += 1
                if isinstance(it, tuple) and it[0] == "vm":
                    quota -= 2
                elif isinstance(it, str) and it.startswith("ds_"):
                    quota -= DSW
                elif not (isinstance(it, str) and it.startswith("s_")):
                    quota -= 1
        while si < len(side):
            it = side[si]
            if is_gap(it):
                if it[1] - dist > 0:
                    self.raw(f"s_nop {it[1]-dist-1}")
            else:
                self.item(it)
                dist = 0
            si += 1


def _merge2(self, main, must, opt, flush=False):
    must = list(must)
    mi = 0
    si = 0
    dist = getattr(self, "_dist", 100)

    def is_gap(x):
        return isinstance(x, tuple) and x[0] == "gap"
    for m in main:
        self.item(m)
        dist += 3
        if mi < len(must):
            self.item(must[mi])
            mi += 1
            dist += 1
        quota = 2
        while quota > 0 and si < len(opt):
            it = opt[si]
            if is_gap(it):
                if dist >= it[1]:
                    si += 1
                    continue
                break
            if callable(it):
                it()
                quota -= 2
            else:
                self.item(it)
                if isinstance(it, str) and it.startswith("v_mfma"):
                    quota -= 2
                elif not (isinstance(it, str) and it.startswith("s_")):
                    quota -= 1
            dist = 0
            si += 1
    for x in must[mi:]:
        self.item(x)
    rest = opt[si:]
    if flush:
        for it in rest:
            if is_gap(it):
                if it[1] - dist > 0:
                    self.raw(f"s_nop {it[1]-dist-1}")
            elif callable(it):
                it()
                dist = 0
            else:
                self.item(it)
                dist = 0
        rest = []
    self._dist = dist
    return rest


Ctx.merge2 = _merge2


def xq_reduce(op, vs, ts, steps=("v_permlane16_swap_b32", "v_permlane32_swap_b32")):
    l = []
    n = len(vs)
    for sw in steps:
        for v, t in zip(vs, ts):
            l.append(f"v_mov_b32 v{t}, v{v}")
        l.append(("gap", 2 if n < 2 else 1))
        for v, t in zip(vs, ts):
            l.append(f"{sw} v{v}, v{t}")
        l.append(("gap", 2 if n < 2 else 1))
        for v, t in zip(vs, ts):
            l.append(f"{op} v{v}, v{v}, v{t}")
    return l


def stats_fin(pairs, tmps):
    l = []
    def each(f):
        for (s, q), t in zip(pairs, tmps):
            l.append(f(s, q, t))
    each(lambda s, q, t: f"v_mul_f32 v{s}, 0x3b000000, v{s}")
    each(lambda s, q, t: f"v_mul_f32 v{q}, 0x3b000000, v{q}")
    each(lambda s, q, t: f"v_fma_f32 v{q}, -v{s}, v{s}, v{q}")
    each(lambda s, q, t: f"v_max_f32 v{q}, 0, v{q}")
    each(lambda s, q, t: f"v_cvt_pk_bf16_f32 v{t}, v{s}, v{q}")
    each(lambda s, q, t: f"v_lshlrev_b32 v{s}, 16, v{t}")
    each(lambda s, q, t: f"v_and_b32 v{q}, 0xffff0000, v{t}")
    each(lambda s, q, t: f"v_add_f32 v{q}, 0x3727c5ac, v{q}")
    each(lambda s, q, t: f"v_cvt_pk_bf16_f32 v{q}, v{q}, v{q}")
    each(lambda s, q, t: f"v_lshlrev_b32 v{q}, 16, v{q}")
    each(lambda s, q, t: f"v_sqrt_f32 v{q}, v{q}")
    l.append(("gap", 1))
    each(lambda s, q, t: f"v_cvt_pk_bf16_f32 v{q}, v{q}, v{q}")
    each(lambda s, q, t: f"v_lshlrev_b32 v{q}, 16, v{q}")
    each(lambda s, q, t: f"v_rcp_f32 v{q}, v{q}")
    l.append(("gap", 1))
    return l


def gen(a, label):
    kernel_header(a, label)
    c = Ctx(a)
    L_end = a.label("end")
    SX, SW, SWS, SK, SV, SSK, SWO, SKK, SOUT, SDBG = 4, 8, 12, 16, 20, 24, 28, 32, 36, 40
    s_wave, s_rb, s_g, s_p, s_b, s_rot = 44, 45, 46, 47, 48, 49
    s_ep = 50
    s_loc, s_xcc, s_D, s_wm0, s_rowbase, s_c, s_cl, s_half, s_ch, s_spin = 52, 53, 54, 55, 56, 57, 58, 59, 60, 61
    s_xq, s_xl, s_wq = 62, 66, 70
    t = 74
    s_x0m = 16
    s_flag = 18
    s_stile = 19
    nst = [0]

    def stamp(tag=""):
        if STAMP and FINE != "none" and (tag == FINE or (tag == "" and (not FINE or nst[0] == 0))):
            i = nst[0]
            assert i < 14, i
            c("s_memtime s[100:101]", "s_waitcnt lgkmcnt(0)", f"v_writelane_b32 v255, s100, {i+2}")
            nst[0] += 1

    V_LANE, V_LAM, V_Q, V_L16, V_XD, V_WD, V_BB, V_ROW, V_Z = 1, 2, 3, 4, 5, 6, 7, 8, 9
    VAE = 10
    CSQ, CSK, CSV = 26, 30, 34
    V_L8 = 35
    V_EPV = 36
    BC, BP, BP1, MC, MP, ONES = 38, 42, 46, 50, 52, 54
    V_WO = 58
    V_T0 = 62

    c("s_cmp_ge_u32 s2, 256", f"s_cbranch_scc1 {L_end}")
    if STAMP:
        c("s_memrealtime s[100:101]", "v_mov_b32 v255, 0", "s_waitcnt lgkmcnt(0)", "v_writelane_b32 v255, s100, 0")
    stamp()
    c("s_load_dwordx4 s[88:91], s[0:1], 0",
      "s_load_dwordx2 s[92:93], s[0:1], 16",
      "s_load_dwordx4 s[96:99], s[0:1], 32",
      "s_load_dwordx2 s[94:95], s[0:1], 88")
    c(f"v_and_b32 v{V_LANE}, 63, v0",
      "v_lshrrev_b32 v62, 6, v0",
      f"v_and_b32 v{V_LAM}, 15, v{V_LANE}",
      f"v_readfirstlane_b32 s{s_wave}, v62",
      f"v_lshrrev_b32 v{V_Q}, 4, v{V_LANE}",
      f"v_lshlrev_b32 v{V_L16}, 4, v{V_LANE}",
      f"v_mov_b32 v{V_Z}, 0",
      f"s_and_b32 s{s_rb}, s2, 7",
      f"s_lshl_b32 s{s_rb}, s{s_rb}, 2",
      f"s_lshr_b32 s{s_rot}, s2, 6",
      f"s_add_u32 s{s_rb}, s{s_rb}, s{s_rot}",
      f"s_lshr_b32 s{s_g}, s2, 3",
      f"s_and_b32 s{s_g}, s{s_g}, 7",
      f"s_lshr_b32 s{s_p}, s{s_rb}, 4",
      f"s_and_b32 s{s_b}, s{s_rb}, 15")
    if "nopf" not in EXP:
        Lpf = a.label("nopf")
        c(f"s_and_b32 s{t}, s2, 0x78",
          f"s_cmp_lg_u32 s{t}, 0",
          f"s_cbranch_scc1 {Lpf}",
          f"s_getpc_b64 s[{t+2}:{t+3}]",
          f"s_and_b32 s{t+2}, s{t+2}, 0xffffff00",
          f"v_lshlrev_b32 v62, 7, v0",
          f"v_min_u32 v62, CODE_LIMIT, v62",
          f"global_load_dword v253, v62, s[{t+2}:{t+3}]",
          f"{Lpf}:")
    c(f"s_lshl_b32 s{t}, s{s_wave}, 2",
      f"v_add_u32 v62, s{t}, v{V_Q}",
      f"v_xor_b32 v62, v62, v{V_LAM}",
      "v_lshlrev_b32 v62, 4, v62",
      f"v_lshl_add_u32 v{V_XD}, v{V_Q}, 11, v62")
    c(f"v_lshrrev_b32 v62, 3, v{V_LANE}",
      f"s_lshl_b32 s{t}, s{s_wave}, 3",
      f"v_add_u32 v62, s{t}, v62",
      "v_bfe_u32 v63, v62, 3, 1",
      "v_lshlrev_b32 v63, 1, v63",
      "v_bfe_u32 v64, v62, 1, 1",
      "v_or_b32 v63, v63, v64",
      f"v_bfe_u32 v64, v{V_LANE}, 1, 2",
      "v_xor_b32 v63, v63, v64",
      "v_lshlrev_b32 v63, 5, v63",
      f"v_and_b32 v64, 1, v{V_LANE}",
      "v_lshl_add_u32 v63, v64, 4, v63",
      f"v_mul_u32_u24 v{V_WD}, 3072, v62",
      f"v_add_u32 v{V_WD}, v{V_WD}, v63")
    c(f"s_lshl_b32 s{s_rowbase}, s{s_b}, 17",
      f"s_lshl_b32 s{t}, s{s_p}, 10",
      f"s_add_u32 s{s_rowbase}, s{s_rowbase}, s{t}",
      f"s_mul_i32 s{s_wm0}, s{s_wave}, 3072",
      f"s_add_u32 s{s_wm0}, s{s_wm0}, {L_R}")
    c(f"s_lshl_b32 s{t+1}, s{s_wave}, 13",
      f"s_add_u32 s{t+1}, s{t+1}, s{s_rowbase}",
      f"s_sub_u32 s{t+1}, s{t+1}, 32768",
      f"s_lshl_b32 s{t+2}, s{s_wave}, 10",
      f"s_lshl_b32 s{t+3}, s{s_g}, 7")
    for qi in range(4):
        c(f"s_add_u32 s{t}, s{s_rot}, {qi}",
          f"s_and_b32 s{t}, s{t}, 3",
          f"s_lshl_b32 s{s_xq+qi}, s{t}, 8",
          f"s_add_u32 s{s_xq+qi}, s{s_xq+qi}, s{t+1}",
          f"s_mul_i32 s{s_xl+qi}, s{t}, {XQ}",
          f"s_add_u32 s{s_xl+qi}, s{s_xl+qi}, s{t+2}",
          f"s_mul_i32 s{s_wq+qi}, s{t}, {4*98304}",
          f"s_add_u32 s{s_wq+qi}, s{s_wq+qi}, s{t+3}")
    s_wo = 82
    for e4 in range(4):
        c(f"s_add_u32 s{t}, s2, {e4}",
          f"s_and_b32 s{t}, s{t}, 3",
          f"s_mul_i32 s{s_wo+e4}, s{t}, 98304")
    c(f"s_cmp_eq_u32 s{s_wave}, 0",
      "s_cselect_b32 s86, 0xffff0000, -1",
      "s_mov_b32 s87, -1")
    stamp("p1")
    c("s_waitcnt lgkmcnt(0)")
    stamp("p1")
    srd(a, SX, 88, 89, 2 * MB)
    srd(a, SW, 90, 91, 512 * 1536 * 2)

    def xdma(qi, i):
        l = [f"s_add_u32 m0, s{s_xl+qi}, {L_X + i*4096}"]
        if i == 0:
            l += [f"s_cmp_lt_u32 s{s_wave}, 2",
                  f"s_cselect_b32 s{t}, {OOB}, s{s_xq+qi}",
                  ("vm", f"x{qi}", f"s_mov_b64 exec, s[86:87]\nbuffer_load_dwordx4 v{V_XD}, {sr(SX,4)}, s{t} offen lds\ns_mov_b64 exec, -1")]
        else:
            l += [f"s_add_u32 s{t}, s{s_xq+qi}, {i*32768}",
                  ("vm", f"x{qi}", f"buffer_load_dwordx4 v{V_XD}, {sr(SX,4)}, s{t} offen lds")]
        return l

    def wdma(ch):
        l = [f"s_add_u32 m0, s{s_wm0}, {(ch % NS)*12288}",
             f"s_add_u32 s{t}, s{s_wq+(ch>>2)}, s{s_wo+(ch&3)}"]
        for s in range(3):
            l.append(("vm", f"w{ch}", f"buffer_load_dwordx4 v{V_WD}, {sr(SW,4)}, s{t} offen offset:{1024*s} lds"))
        return l

    TF = int(os.environ.get("TF", "0"))
    if TF == 0:
        for i in range(5):
            c(xdma(0, i))
        c(wdma(0))
    elif TF == 2:
        c(xdma(0, 1), wdma(0))
    srd(a, SWS, 94, 95, WS_SIZE)
    srd(a, SK, 96, 97, 2 * MB)
    srd(a, SV, 98, 99, 2 * MB)
    srd(a, SWO, 92, 93, 512 * 512 * 2)
    c("s_load_dwordx4 s[88:91], s[0:1], 48",
      "s_load_dwordx4 s[92:95], s[0:1], 64",
      "s_load_dwordx2 s[96:97], s[0:1], 80")
    TK, TV, TS = 184, 204, 212
    KF, SF, VF, OF = 228, 238, 246, 250
    UP = 112
    c(f"s_lshr_b32 s{t}, s2, 3",
      f"s_lshl_b32 s{t}, s{t}, 16",
      f"s_and_b32 s{t+1}, s2, 7",
      f"s_lshl_b32 s{t+2}, s{t+1}, 7",
      f"s_add_u32 s{t}, s{t}, s{t+2}",
      "v_and_b32 v64, 7, v0",
      "v_lshrrev_b32 v65, 3, v0",
      "v_lshlrev_b32 v66, 11, v65",
      "v_lshl_add_u32 v66, v64, 4, v66",
      f"v_add_u32 v66, s{t}, v66",
      "v_add_u32 v67, 0xfffff400, v66",
      "v_add_u32 v68, 0xfffff800, v66",
      "v_add_u32 v69, 0xfffffc00, v66")
    for ins in (f"buffer_load_dwordx4 {vr(TK,4)}, v67, {sr(SK,4)}, 0 offen",
                f"buffer_load_dwordx4 {vr(TK+4,4)}, v68, {sr(SK,4)}, 0 offen",
                f"buffer_load_dwordx4 {vr(TK+8,4)}, v69, {sr(SK,4)}, 0 offen",
                f"buffer_load_dwordx4 {vr(TK+12,4)}, v66, {sr(SK,4)}, 0 offen",
                f"buffer_load_dwordx4 {vr(TK+16,4)}, v66, {sr(SK,4)}, 0 offen offset:1024",
                f"buffer_load_dwordx4 {vr(TV,4)}, v66, {sr(SV,4)}, 0 offen",
                f"buffer_load_dwordx4 {vr(TV+4,4)}, v66, {sr(SV,4)}, 0 offen offset:1024"):
        if "notl" not in EXP:
            c(("vm", "T", ins))
    c("s_waitcnt lgkmcnt(0)")
    srd(a, SSK, 88, 89, 4096)
    srd(a, SKK, 90, 91, 2 * MB)
    srd(a, SOUT, 94, 95, 2 * MB)
    srd(a, SDBG, 96, 97, 256)
    c(f"s_lshl_b32 s{t+3}, s2, 2",
      f"s_load_dword s{s_D}, s[92:93], s{t+3}",
      f"s_getreg_b32 s{s_xcc}, hwreg(HW_REG_XCC_ID)",
      f"s_and_b32 s{s_xcc}, s{s_xcc}, 15",
      f"s_lshl_b32 s{t+2}, s{t+1}, 9",
      "v_lshlrev_b32 v67, 6, v64")
    for d in range(4):
        c(("vm", "T", f"buffer_load_dwordx4 {vr(TS+4*d,4)}, v67, {sr(SSK,4)}, s{t+2} offen offset:{16*d}"))
    Lq = a.label("noep")
    c(f"s_or_b32 s{t}, s2, s{s_wave}",
      f"s_cmp_lg_u32 s{t}, 0",
      f"s_cbranch_scc1 {Lq}",
      f"s_memrealtime s[{t+4}:{t+5}]",
      "s_waitcnt lgkmcnt(0)",
      f"s_or_b32 s{t+4}, s{t+4}, 1",
      f"v_mov_b32 v70, s{t+4}",
      f"v_mov_b32 v71, s{t+5}",
      "s_mov_b64 exec, 1",
      f"buffer_store_dwordx2 v[70:71], v{V_Z}, {sr(SDBG,4)}, 0 offen sc1",
      "s_mov_b64 exec, -1",
      f"{Lq}:")
    if TF == 1:
        for i in range(5):
            c(xdma(0, i))
        c(wdma(0))
    elif TF == 2:
        for i in (0, 2, 3, 4):
            c(xdma(0, i))
    else:
        c(wdma(1))
    k = []
    k += [f"v_bfe_u32 v70, v{V_LANE}, 2, 2",
          f"v_and_b32 v71, 1, v{V_Q}",
          "v_lshlrev_b32 v71, 1, v71",
          "v_lshrrev_b32 v72, 1, v70",
          "v_or_b32 v71, v71, v72",
          f"v_xor_b32 v72, s{s_wave}, v71",
          "v_lshlrev_b32 v72, 5, v72",
          "v_lshl_add_u32 v72, v70, 7, v72",
          f"v_and_b32 v73, 3, v{V_LANE}",
          "v_lshl_add_u32 v72, v73, 3, v72",
          f"v_mul_u32_u24 v74, 3072, v{V_Q}",
          "v_add_u32 v72, v72, v74",
          f"v_add_u32 v{V_BB}, {L_R}, v72",
          f"v_lshl_add_u32 v72, v{V_Q}, 3, v70",
          "v_lshlrev_b32 v72, 7, v72",
          "v_lshl_add_u32 v72, v73, 3, v72",
          f"v_add_u32 v72, {L_R}, v72"]
    for nt in range(4):
        k += [f"v_xor_b32 v74, {nt}, v71", f"v_lshl_add_u32 v{V_WO+nt}, v74, 5, v72"]
    k += [f"s_lshl_b32 s{t+2}, s{s_wave}, 10"]
    for e4 in range(4):
        k += [f"s_add_u32 s{t+3}, s2, {e4}",
              f"s_and_b32 s{t+3}, s{t+3}, 3",
              f"s_lshl_b32 s{t+3}, s{t+3}, 2",
              f"v_add_u32 v70, s{t+3}, v{V_Q}",
              f"v_xor_b32 v70, v70, v{V_LAM}",
              "v_lshlrev_b32 v70, 4, v70",
              f"v_lshl_add_u32 v70, v{V_LAM}, 8, v70",
              f"v_subrev_u32 v70, s{t+2}, v70"]
        for qi in range(4):
            k.append(f"v_add_u32 v{VAE+4*qi+e4}, s{s_xl+qi}, v70")
    k += [f"v_lshlrev_b32 v{V_ROW}, 11, v{V_LAM}",
          f"v_lshl_add_u32 v{V_ROW}, v{V_Q}, 3, v{V_ROW}",
          f"v_lshlrev_b32 v{V_L8}, 3, v{V_LANE}",
          f"v_lshlrev_b32 v70, 2, v{V_Q}",
          f"v_mov_b32 v72, {NEG}",
          f"s_cmp_eq_u32 s{s_b}, 0",
          f"s_cselect_b32 s{t+2}, -1, 0",
          f"s_mov_b32 s{t+3}, s{t+2}"]
    for r in range(4):
        k += [f"v_add_u32 v71, {r}, v70",
              f"v_sub_u32 v71, v{V_LAM}, v71",
              "v_cmp_gt_u32 vcc, 8, v71",
              "v_add_u32 v71, 16, v71",
              f"v_cmp_gt_u32 {sr(t+4,2)}, 8, v71",
              f"v_cndmask_b32 v{BC+r}, v72, 0, vcc",
              f"v_cndmask_b32 v{74+r}, 0, -1, vcc",
              f"v_cndmask_b32 v{BP+r}, v72, 0, {sr(t+4,2)}",
              f"v_cndmask_b32 v{78+r}, 0, -1, {sr(t+4,2)}",
              f"v_cndmask_b32 v{BP1+r}, v{BP+r}, v72, {sr(t+2,2)}"]
    k.append(f"s_mov_b32 s{t+4}, 0xffff")
    for h in range(2):
        k += [f"v_bfi_b32 v{MC+h}, s{t+4}, v{74+2*h}, v{75+2*h}",
              f"v_bfi_b32 v{MP+h}, s{t+4}, v{78+2*h}, v{79+2*h}"]
    for r in range(4):
        k.append(f"v_mov_b32 v{ONES+r}, 0x3f803f80")
    k += [f"v_mul_u32_u24 v70, {XQ}, v{V_Q}",
          f"v_lshl_add_u32 v70, v{V_LAM}, 4, v70",
          f"ds_write_b128 v70, {vr(ONES,4)} offset:{L_X}"]
    k += [f"s_add_u32 s{s_stile}, s{s_wave}, 1",
          f"s_lshl_b32 s{s_stile}, s{s_stile}, 12",
          f"s_lshl_b32 s{s_flag}, s{s_rb}, 8",
          f"s_lshl_b32 s{t+2}, s{s_g}, 5",
          f"s_add_u32 s{s_flag}, s{s_flag}, s{t+2}",
          f"s_lshl_b32 s{t+2}, s{s_wave}, 3",
          f"s_add_u32 s{s_flag}, s{s_flag}, s{t+2}",
          f"s_lshr_b32 s{s_ch}, s{s_wave}, 1",
          f"s_and_b32 s{s_half}, s{s_wave}, 1",
          f"s_lshl_b32 s{s_c}, s2, 1",
          f"s_add_u32 s{s_c}, s{s_c}, s{s_ch}",
          f"s_lshl_b32 s{s_c}, s{s_c}, 12",
          f"s_mul_i32 s{s_cl}, s{s_ch}, {C_CH}"]
    c(k)
    if TF == 0:
        c(wdma(2))
    stamp("p1")
    c(("wait", ["T"]))
    stamp("p1")
    tc = []
    for d in range(4):
        for r in range(5):
            tc.append(f"v_lshlrev_b32 v{KF+2*r}, 16, v{TK+4*r+d}")
            tc.append(f"v_and_b32 v{KF+2*r+1}, 0xffff0000, v{TK+4*r+d}")
        for j in range(4):
            for cc in range(2):
                src = TS + 4 * d + 2 * cc + (j >> 1)
                tc.append(f"v_and_b32 v{SF+2*j+cc}, 0xffff0000, v{src}" if j & 1 else f"v_lshlrev_b32 v{SF+2*j+cc}, 16, v{src}")
        for tt in range(2):
            tc.append(f"v_lshlrev_b32 v{VF+2*tt}, 16, v{TV+4*tt+d}")
            tc.append(f"v_and_b32 v{VF+2*tt+1}, 0xffff0000, v{TV+4*tt+d}")
        for tt in range(2):
            o = OF + 2 * tt
            tc.append(f"v_pk_mul_f32 {vr(o,2)}, {vr(KF+2*(tt+0),2)}, {vr(SF+6,2)}")
            for j in (2, 1, 0):
                tc.append(f"v_pk_fma_f32 {vr(o,2)}, {vr(KF+2*(3+tt-j),2)}, {vr(SF+2*j,2)}, {vr(o,2)}")
            tc.append(f"v_pk_mul_f32 {vr(o,2)}, {vr(o,2)}, {vr(VF+2*tt,2)}")
        tc.append(f"v_cvt_pk_bf16_f32 v{UP+2*d}, v{OF+2}, v{OF}")
        tc.append(f"v_cvt_pk_bf16_f32 v{UP+2*d+1}, v{OF+3}, v{OF+1}")
    groups = ([wdma(1), wdma(2)] if TF else []) + [xdma(1, i) for i in range(5)] + [wdma(3), wdma(4)]
    per = len(tc) // (len(groups) + 1)
    for i, l in enumerate(tc):
        if "notc" not in EXP:
            c(l)
        if (i + 1) % per == 0 and groups:
            c(groups.pop(0))
    assert not groups
    c("v_sub_u32 v67, 31, v65",
      "v_lshrrev_b32 v68, 2, v67",
      "v_xor_b32 v68, v68, v64",
      "v_lshlrev_b32 v68, 4, v68",
      "v_and_b32 v67, 3, v67",
      "v_lshl_add_u32 v68, v67, 2, v68",
      "v_lshl_add_u32 v68, v64, 10, v68",
      f"v_add_u32 v68, {L_TB}, v68")
    for i in range(8):
        c(f"ds_write_b32 v68, v{UP+i} offset:{128*i}")
    c("v_lshrrev_b32 v67, 3, v0",
      "v_lshrrev_b32 v68, 3, v67",
      "v_xor_b32 v68, v68, v64",
      "v_lshlrev_b32 v68, 4, v68",
      "v_lshl_add_u32 v68, v67, 7, v68",
      f"v_add_u32 v68, {L_TB}, v68",
      "v_xor_b32 v69, 64, v68",
      f"s_and_b32 s{t}, s2, 7",
      f"s_lshl_b32 s{t}, s{t}, 18",
      f"s_lshr_b32 s{t+1}, s2, 3",
      f"s_lshl_b32 s{t+1}, s{t+1}, 7",
      f"s_sub_u32 s{t}, s{t}, s{t+1}",
      f"s_add_u32 s{t}, s{t}, {U_OFF + 3968}",
      f"s_add_u32 s{t+1}, s{t}, {32*4096}",
      "v_lshlrev_b32 v67, 12, v67",
      "v_lshl_add_u32 v67, v64, 4, v67",
      "s_nop 0")
    stamp("p1")
    c(("wait", ["x0", "w0"], 0),
      "s_barrier",
      f"ds_read_b128 {vr(UP,4)}, v68",
      f"ds_read_b128 {vr(UP+4,4)}, v69 offset:4096")

    XS = [64 + 8, 96]
    XS = [184, 208]
    ACC = 108
    AQ, AK, AV = ACC, ACC + 20, ACC + 40
    SA = 168
    V_SB = 172
    V_EP = 174
    SU = 232

    def p1_reads(P, e):
        l = []
        slot = (e % NS) * 12288
        l.append(f"v_add_u32 v{V_SB}, s{s_stile}, v{VAE+e}")
        for s in range(3):
            for ss in range(2):
                if "xnotr" not in EXP:
                    l.append(f"ds_read_b64_tr_b16 {ar(12*e+4*s+2*ss,2)}, v{V_BB} offset:{slot+1024*s+512*ss}")
        for tl in range(5):
            l.append(f"ds_read_b128 {vr(XS[P]+4*tl,4)}, v{VAE+e} offset:{4096*tl}")
        l.append(f"ds_read_b128 {vr(XS[P]+20,4)}, v{V_SB}")
        return l

    c(p1_reads(0, 0))
    c(f"v_mov_b32 v{SA}, 0", f"v_mov_b32 v{SA+1}, 0", "s_waitcnt lgkmcnt(12)")
    c(("vm", "Tst", f"buffer_store_dwordx4 {vr(UP,4)}, v67, {sr(SWS,4)}, s{t} offen sc1"),
      ("vm", "Tst", f"buffer_store_dwordx4 {vr(UP+4,4)}, v67, {sr(SWS,4)}, s{t+1} offen sc1"))
    stamp()
    V_WOD = 176
    wod = [f"v_lshrrev_b32 v{V_T0}, 3, v{V_LANE}",
           f"v_bfe_u32 v{V_T0+1}, v{V_T0}, 1, 1",
           f"s_lshl_b32 s{t+5}, s{s_half}, 1",
           f"v_or_b32 v{V_T0+1}, s{t+5}, v{V_T0+1}",
           f"v_bfe_u32 v{V_WOD}, v{V_LANE}, 1, 2",
           f"v_xor_b32 v{V_T0+1}, v{V_T0+1}, v{V_WOD}",
           f"v_lshlrev_b32 v{V_T0+1}, 5, v{V_T0+1}",
           f"v_and_b32 v{V_WOD}, 1, v{V_LANE}",
           f"v_lshl_add_u32 v{V_T0+1}, v{V_WOD}, 4, v{V_T0+1}",
           f"v_lshl_add_u32 v{V_WOD}, v{V_T0}, 10, v{V_T0+1}",
           f"s_lshl_b32 s{t+6}, s{s_g}, 7",
           f"s_lshl_b32 s{t+5}, s{s_wave}, 13",
           f"s_add_u32 s{t+6}, s{t+6}, s{t+5}",
           f"s_lshl_b32 s{t+7}, s{s_wave}, 10"]

    def wodma(n):
        return [f"s_add_u32 m0, s{t+7}, {L_R + n*4096}",
                f"s_add_u32 s{t}, s{t+6}, {n*32768}",
                ("vm", "wo", f"buffer_load_dwordx4 v{V_WOD}, {sr(SWO,4)}, s{t} offen lds")]

    xsched = {0: [(2, 0), (2, 1)], 1: [(2, 2), (2, 3), (2, 4)], 2: [(3, 0), (3, 1)], 3: [(3, 2), (3, 3), (3, 4)]}
    V_HL, V_FT = 178, 182
    for e in range(16):
        P = e & 1
        need = []
        if NS == 5:
            if e < 15:
                need = [f"w{e+1}"]
                if (e + 1) % 4 == 0:
                    need.append(f"x{(e+1)//4}")
        elif e % 2 == 0:
            need = [f"w{e+1}", f"w{e+2}"]
            if (e + 2) % 4 == 0:
                need.append(f"x{(e+2)//4}")
        if e == 4:
            need += ["Tst", "ep"]
        c(("wait", need, 0))
        if NS == 5 or e % 2 == 0:
            c("s_barrier")
        sx = XS[P] + 20
        st_ops = []
        if "xnodot" in EXP:
            pass
        elif "plain" not in EXP:
            for i in range(4):
                c(f"v_dot2_f32_bf16 v{SA}, v{sx+i}, v{ONES}, v{SA}",
                  f"v_dot2_f32_bf16 v{SA+1}, v{sx+i}, v{sx+i}, v{SA+1}")
        else:
            for i in range(4):
                st_ops += [f"v_lshlrev_b32 v{SU}, 16, v{sx+i}",
                           f"v_and_b32 v{SU+1}, 0xffff0000, v{sx+i}",
                           f"v_add_f32 v{SA}, v{SA}, v{SU}",
                           f"v_fmac_f32 v{SA+1}, v{SU}, v{SU}",
                           f"v_add_f32 v{SA}, v{SA}, v{SU+1}",
                           f"v_fmac_f32 v{SA+1}, v{SU+1}, v{SU+1}"]
        if e in (0, 2, 4, 6, 8, 10, 12, 14):
            stamp("p1")
        other = []
        if e < 15:
            other += p1_reads(1 - P, e + 1)
        if e == 0:
            other.append(("vm", "ep", f"buffer_load_dwordx2 {vr(V_EP,2)}, v{V_Z}, {sr(SDBG,4)}, 0 offen sc1"))
        if e + 5 < 16 and "xnodma" not in EXP:
            other += wdma(e + 5)
        for (qi, i) in xsched.get(e, []):
            other += xdma(qi, i)
        if e == 15:
            other += [f"s_lshl_b32 s{t+8}, s{s_rb}, 7",
                      f"s_add_u32 s{t+8}, s{t+8}, {F_HELLO}",
                      f"v_and_b32 v{V_T0}, 0x70, v{V_L16}",
                      ("vm", "hl", f"buffer_load_dwordx4 {vr(V_HL,4)}, v{V_T0}, {sr(SWS,4)}, s{t+8} offen sc1"),
                      f"s_lshr_b32 s{t+9}, s2, 5",
                      f"s_lshl_b32 s{t+9}, s{t+9}, 8",
                      f"s_add_u32 s{t+9}, s{t+9}, {F_T}",
                      f"v_and_b32 v{V_T0+1}, 0xf8, v{V_L8}",
                      ("vm", "hl", f"buffer_load_dwordx2 {vr(V_FT,2)}, v{V_T0+1}, {sr(SWS,4)}, s{t+9} offen sc1")]
        if e == 7 and "nopf2" not in EXP:
            other += [f"s_lshl_b32 s{t}, s2, 13",
                      f"s_lshl_b32 s{t+1}, s{s_wave}, 11",
                      f"s_add_u32 s{t}, s{t}, s{t+1}",
                      ("vm", "pf", f"buffer_load_dwordx4 v[240:243], v{V_L16}, {sr(SKK,4)}, s{t} offen"),
                      ("vm", "pf", f"buffer_load_dwordx4 v[240:243], v{V_L16}, {sr(SKK,4)}, s{t} offen offset:1024"),
                      f"v_lshlrev_b32 v236, 18, v{V_LANE}",
                      ("vm", "pf", f"buffer_load_dword v237, v236, {sr(SWS,4)}, 0 offen"),
                      ("vm", "pf", f"buffer_load_dword v237, v236, {sr(SOUT,4)}, 0 offen")]
        if e == 8 and "nopfl" not in EXP:
            other += [f"s_lshl_b32 s{t}, s{s_rb}, 8",
                      f"v_lshlrev_b32 v236, 13, v{V_Q}",
                      f"v_lshl_add_u32 v236, v{V_LAM}, 4, v236",
                      f"s_add_u32 s{t}, s{t}, {F_O1}",
                      ("vm", "pf", f"buffer_load_dword v237, v236, {sr(SWS,4)}, s{t} offen sc1"),
                      f"s_lshl_b32 s{t}, s{s_rb}, 13",
                      f"s_lshl_b32 s{t+1}, s{s_wave}, 11",
                      f"s_add_u32 s{t}, s{t}, s{t+1}",
                      f"v_lshlrev_b32 v236, 7, v{V_LAM}",
                      f"v_and_b32 v238, 1, v{V_Q}",
                      f"v_lshl_add_u32 v236, v238, 18, v236",
                      f"s_add_u32 s{t}, s{t}, {ST1_OFF}",
                      ("vm", "pf", f"buffer_load_dword v237, v236, {sr(SWS,4)}, s{t} offen sc1")]
        if e == 9 and "pfb" in EXP:
            other += [f"s_lshl_b32 s{t}, s{s_g}, 2",
                      f"s_add_u32 s{t}, s{t}, s{s_wave}",
                      f"s_lshl_b32 s{t}, s{t}, 9",
                      f"s_lshl_b32 s{t+1}, s{s_rb}, 16",
                      f"s_add_u32 s{t}, s{t}, s{t+1}",
                      f"v_and_b32 v236, 3, v{V_LANE}",
                      "v_lshlrev_b32 v236, 7, v236",
                      f"v_bfe_u32 v237, v{V_LANE}, 2, 2",
                      "v_lshl_add_u32 v236, v237, 14, v236",
                      f"v_and_b32 v237, 1, v{V_Q}",
                      "v_lshl_add_u32 v236, v237, 21, v236",
                      ("vm", "pf", f"buffer_load_dword v237, v236, {sr(SWS,4)}, s{t} offen"),
                      f"s_lshl_b32 s{t}, s{s_wave}, 15",
                      f"s_add_u32 s{t}, s{t}, s{s_rowbase}",
                      f"s_lshl_b32 s{t+1}, s{s_g}, 7",
                      f"s_add_u32 s{t}, s{t}, s{t+1}",
                      f"s_add_u32 s{t+1}, s{t}, {X2_OFF}",
                      ("vm", "pf", f"buffer_load_dword v237, v{V_ROW}, {sr(SWS,4)}, s{t+1} offen"),
                      ("vm", "pf", f"buffer_load_dword v237, v{V_ROW}, {sr(SOUT,4)}, s{t} offen")]
        if e == 10:
            other += wod
        if NS == 5:
            wsch = {11: [15], 12: [3, 4, 5], 13: [6, 7, 8], 14: [9, 10, 11], 15: [12, 13, 14]}
        else:
            wsch = {12: [12, 13, 14], 13: [15, 0, 1], 14: [2, 3, 4], 15: [5, 6, 7]}
        for n in wsch.get(e, []):
            if "xnodma" not in EXP:
                other += wodma(n)
        if e == 4:
            Lp, Lok, Lnf = a.label("ep"), a.label("epok"), a.label("nf")
            c(f"s_mov_b32 s{s_spin}, 0",
              f"{Lp}:",
              f"v_readfirstlane_b32 s{s_ep}, v{V_EP}",
              f"v_readfirstlane_b32 s{s_ep+1}, v{V_EP+1}",
              f"s_add_u32 s{s_spin}, s{s_spin}, 1",
              f"s_cmp_lg_u32 s{s_ep}, 0",
              f"s_cbranch_scc1 {Lok}",
              f"s_cmp_gt_u32 s{s_spin}, {SPIN_MAX}",
              f"s_cbranch_scc1 {Lok}",
              "s_sleep 2",
              f"buffer_load_dwordx2 {vr(V_EP,2)}, v{V_Z}, {sr(SDBG,4)}, 0 offen sc1",
              "s_waitcnt vmcnt(0)",
              f"s_branch {Lp}",
              f"{Lok}:",
              f"v_mov_b32 v{V_EPV}, s{s_ep}",
              f"v_mov_b32 v{V_EPV+1}, s{s_ep+1}",
              f"s_cmp_lg_u32 s{s_wave}, 0",
              f"s_cbranch_scc1 {Lnf}",
              f"v_mov_b32 v{V_HL}, s{s_ep}",
              f"v_mov_b32 v{V_HL+1}, s{s_ep+1}",
              f"v_mov_b32 v{V_HL+2}, s{s_xcc}",
              f"v_mov_b32 v{V_HL+3}, 0",
              f"s_and_b32 s{t}, s2, 7",
              f"s_lshl_b32 s{t}, s{t}, 8",
              f"s_and_b32 s{t+1}, s2, 0xf8",
              f"s_add_u32 s{t}, s{t}, s{t+1}",
              f"s_add_u32 s{t}, s{t}, {F_T}",
              f"s_lshl_b32 s{t+1}, s{s_rb}, 7",
              f"s_lshl_b32 s{t+2}, s{s_g}, 4",
              f"s_add_u32 s{t+1}, s{t+1}, s{t+2}",
              f"s_add_u32 s{t+1}, s{t+1}, {F_HELLO}",
              "s_mov_b64 exec, 1",
              f"buffer_store_dwordx2 {vr(V_HL,2)}, v{V_Z}, {sr(SWS,4)}, s{t} offen sc1",
              f"buffer_store_dwordx4 {vr(V_HL,4)}, v{V_Z}, {sr(SWS,4)}, s{t+1} offen sc1",
              "s_mov_b64 exec, -1",
              f"{Lnf}:")
        mf = []
        wq, wk, wv = ar(12 * e, 4), ar(12 * e + 4, 4), ar(12 * e + 8, 4)
        for tl in range(5):
            x = vr(XS[P] + 4 * tl, 4)
            for (acc, A_, B_) in ((AQ + 4 * tl, wq, x), (AK + 4 * tl, wk, x), (AV + 4 * tl, x, wv)):
                mf.append(f"v_mfma_f32_16x16x32_bf16 {vr(acc,4)}, {A_}, {B_}, {vr(acc,4) if e else 0}")
        mix = []
        no, ns = len(other), len(st_ops)
        io = 0
        for j, so in enumerate(st_ops):
            while io < (j + 1) * no // max(ns, 1):
                mix.append(other[io])
                io += 1
            mix.append(so)
        mix += other[io:]
        c.merge(mf, mix)
    stamp()
    HR = 64
    c(f"v_lshrrev_b32 v72, 5, v{V_LANE}",
      f"s_lshl_b32 s{t}, s{s_wave}, 1",
      f"s_add_u32 s{t}, s{t}, 8",
      f"v_add_u32 v72, s{t}, v72",
      "v_lshlrev_b32 v72, 8, v72",
      f"v_lshl_add_u32 v72, v{V_LAM}, 4, v72",
      f"v_and_b32 v73, 1, v{V_Q}",
      f"v_mul_u32_u24 v73, {XQ}, v73",
      "v_add_u32 v72, v72, v73",
      f"ds_read_b128 {vr(HR,4)}, v72 offset:{L_X}",
      f"ds_read_b128 {vr(HR+4,4)}, v72 offset:{L_X+2*XQ}",
      f"v_mov_b32 v{SA+2}, 0",
      f"v_mov_b32 v{SA+3}, 0",
      f"v_lshlrev_b32 v74, 2, v{V_LAM}")
    for r in range(4):
        c(f"v_mov_b32_dpp v{CSQ+r}, v{AQ+r} row_newbcast:0 row_mask:0xf bank_mask:0xf",
          f"v_mov_b32_dpp v{CSK+r}, v{AK+r} row_newbcast:0 row_mask:0xf bank_mask:0xf")
    c(f"ds_bpermute_b32 v{CSV}, v74, v{AV}",
      "s_waitcnt lgkmcnt(0)",
      "s_barrier")
    STA, STB = 94, 196
    QP, KP, VP = 64, 74, 84
    def read_stats(vlam8):
        l = [f"ds_read_b64 {vr(STA+2*tl,2)}, v{vlam8} offset:{128*tl}" for tl in range(5)]
        l += [f"v_lshlrev_b32 v{V_T0}, 5, v{V_Q}", f"v_add_u32 v{V_T0}, {L_ST}, v{V_T0}"]
        for tl in range(5):
            l += [f"ds_read_b128 {vr(STB+8*tl,4)}, v{V_T0} offset:{128*tl}",
                  f"ds_read_b128 {vr(STB+8*tl+4,4)}, v{V_T0} offset:{128*tl+16}"]
        return l

    def poll(check_lines, reload_lines, name, sleep=1):
        Lp, Ld = a.label(name), a.label(name + "d")
        c(f"s_mov_b32 s{s_spin}, 0", f"{Lp}:")
        c(check_lines)
        c(f"s_add_u32 s{s_spin}, s{s_spin}, 1",
          f"s_cmp_gt_u32 s{s_spin}, {SPIN_MAX}",
          f"s_cbranch_scc1 {Ld}",
          "s_nop 1",
          f"s_cbranch_vccz {Ld}",
          f"s_sleep {sleep}")
        c(reload_lines)
        c("s_waitcnt vmcnt(0)", f"s_branch {Lp}", f"{Ld}:")

    def chk_ep(regs_lo, tmp):
        l = []
        for n, lo in enumerate(regs_lo):
            if n == 0:
                l.append(f"v_xor_b32 v{tmp}, s{s_ep}, v{lo}")
            else:
                l.append(f"v_xor_b32 v{tmp+1}, s{s_ep}, v{lo}")
                l.append(f"v_or_b32 v{tmp}, v{tmp}, v{tmp+1}")
            l.append(f"v_xor_b32 v{tmp+1}, s{s_ep+1}, v{lo+1}")
            l.append(f"v_or_b32 v{tmp}, v{tmp}, v{tmp+1}")
        l.append(f"v_cmp_ne_u32 vcc, 0, v{tmp}")
        return l

    PT = 104
    c(f"v_and_b32 v{PT}, 0x70, v{V_L16}", f"v_and_b32 v{PT+1}, 0xf8, v{V_L8}")
    c(("wait", ["hl"]))
    poll(chk_ep([V_HL, V_FT], 106),
         [f"buffer_load_dwordx4 {vr(V_HL,4)}, v{PT}, {sr(SWS,4)}, s{t+8} offen sc1",
          f"buffer_load_dwordx2 {vr(V_FT,2)}, v{PT+1}, {sr(SWS,4)}, s{t+9} offen sc1"], "phl")
    c(f"v_cmp_ne_u32 vcc, s{s_xcc}, v{V_HL+2}",
      f"s_lshl_b32 s{t+3}, s{s_half}, 11",
      f"s_add_u32 s{t+4}, s{s_c}, s{t+3}",
      f"s_add_u32 s{t+4}, s{t+4}, {U_OFF}",
      f"s_add_u32 m0, s{s_cl}, s{t+3}",
      "s_nop 0",
      ("vm", "cu", f"buffer_load_dwordx4 v{V_L16}, {sr(SWS,4)}, s{t+4} offen sc1 lds"),
      ("vm", "cu", f"buffer_load_dwordx4 v{V_L16}, {sr(SWS,4)}, s{t+4} offen offset:1024 sc1 lds"),
      "s_cmp_eq_u64 vcc, 0",
      f"s_cselect_b32 s{s_loc}, 1, 0")
    V_FX, V_FI = 184, 185
    dm = []
    for i in range(2):
        g0 = [f"s_lshl_b32 s{t+3}, s{s_half}, 1",
              f"s_add_u32 s{t+3}, s{t+3}, {i}",
              f"s_mul_i32 s{t+5}, s{t+3}, {C_KS}",
              f"s_add_u32 s{t+5}, s{t+5}, s{s_cl}",
              f"s_add_u32 s{t+10+i}, s{t+5}, {C_K+32}",
              f"s_lshl_b32 s{t+3}, s{t+3}, 1",
              f"s_add_u32 s{t+12+i}, s{s_c}, s{t+3}"]
        c(g0)
        for n in range(4):
            dm.append([f"s_mov_b32 m0, s{t+10+i}", "s_nop 0",
                       ("vm", "ck", f"buffer_load_dwordx4 v{V_L16}, {sr(SKK,4)}, s{t+12+i} offen offset:{1024*n} lds")])
    for n in ((0, 1, 2) if NS == 5 else (8, 9, 10, 11)):
        dm.append(wodma(n))
    c(f"v_add_u32 v{V_FI}, v{V_LAM}, v{V_Q}",
      f"v_subrev_u32 v{V_FI}, 16, v{V_FI}",
      f"v_max_i32 v74, 0, v{V_FI}",
      "v_lshlrev_b32 v74, 1, v74",
      ("vm", "ck", f"buffer_load_ushort v{V_FX}, v74, {sr(SKK,4)}, s{s_c} offen"))

    def with_dmas(main, groups, every):
        n = 0
        for it in main:
            c(it)
            n += 1
            if n % every == 0 and groups:
                c(groups.pop(0))

    TT = 72
    ep = []
    for i in range(8):
        ep.append(f"v_dot2_f32_bf16 v{SA+2}, v{HR+i}, v{ONES}, v{SA+2}")
        ep.append(f"v_dot2_f32_bf16 v{SA+3}, v{HR+i}, v{HR+i}, v{SA+3}")
    ep.append(("gap", 3))
    for sh in (8, 4, 2, 1):
        ep += [f"v_add_f32_dpp v{SA+2}, v{SA+2}, v{SA+2} row_ror:{sh} row_mask:0xf bank_mask:0xf",
               f"v_add_f32_dpp v{SA+3}, v{SA+3}, v{SA+3} row_ror:{sh} row_mask:0xf bank_mask:0xf",
               ("gap", 1)]
    ep += xq_reduce("v_add_f32", [SA, SA + 1, SA + 2, SA + 3], [TT, TT + 1, TT + 2, TT + 3], ("v_permlane16_swap_b32",))
    ep += xq_reduce("v_add_f32", [SA, SA + 1], [TT, TT + 1], ("v_permlane32_swap_b32",))
    ep += stats_fin([(SA, SA + 1), (SA + 2, SA + 3)], [TT, TT + 1])
    ep += [f"v_lshlrev_b32 v{TT}, 3, v{V_LAM}",
           f"s_lshr_b32 s{t+1}, s{s_stile}, 5",
           f"s_add_u32 s{t+1}, s{t+1}, {L_ST}",
           f"v_add_u32 v{TT+1}, s{t+1}, v{TT}",
           f"ds_write_b64 v{TT+1}, {vr(SA,2)}",
           f"v_lshrrev_b32 v{TT+1}, 5, v{V_LANE}",
           f"v_lshlrev_b32 v{TT+1}, 3, v{TT+1}",
           f"s_lshl_b32 s{t+1}, s{s_wave}, 4",
           f"s_add_u32 s{t+1}, s{t+1}, {L_ST + 64}",
           f"v_add_u32 v{TT+1}, s{t+1}, v{TT+1}",
           f"ds_write_b64 v{TT+1}, {vr(SA+2,2)}",
           f"v_and_b32 v{TT+1}, 0x38, v{TT}",
           f"v_add_u32 v{TT+1}, {L_ST}, v{TT+1}",
           f"v_mov_b32 v{TT+2}, 0",
           f"v_mov_b32 v{TT+3}, 1.0",
           f"ds_write_b64 v{TT+1}, {vr(TT+2,2)}",
           f"v_add_u32 v{TT}, {L_ST}, v{TT}"]
    with_dmas(ep, dm, 12)
    c("s_waitcnt lgkmcnt(0)", "s_barrier")

    c(read_stats(TT), "s_waitcnt lgkmcnt(0)")

    def normalize(tl, pk, VP):
        l = []
        mean, rstd = STA + 2 * tl, STA + 2 * tl + 1
        for (acc, cs, dst, on) in ((AQ + 4 * tl, CSQ, QP + 2 * tl, tl > 0), (AK + 4 * tl, CSK, KP + 2 * tl, True)):
            if not on:
                continue
            if pk:
                for h in range(2):
                    l.append(f"v_pk_fma_f32 {vr(acc+2*h,2)}, {vr(cs+2*h,2)}, {vr(mean,2)}, {vr(acc+2*h,2)} op_sel_hi:[1,0,1] neg_lo:[0,1,0] neg_hi:[0,1,0]")
                for h in range(2):
                    l.append(f"v_pk_mul_f32 {vr(acc+2*h,2)}, {vr(acc+2*h,2)}, {vr(mean,2)} op_sel:[0,1]")
            else:
                for r in range(4):
                    l.append(f"v_fma_f32 v{acc+r}, -v{mean}, v{cs+r}, v{acc+r}")
                for r in range(4):
                    l.append(f"v_mul_f32 v{acc+r}, v{rstd}, v{acc+r}")
            l.append(f"v_cvt_pk_bf16_f32 v{dst}, v{acc}, v{acc+1}")
            l.append(f"v_cvt_pk_bf16_f32 v{dst+1}, v{acc+2}, v{acc+3}")
        acc = AV + 4 * tl
        for r in range(4):
            l.append(f"v_fma_f32 v{acc+r}, -v{STB+8*tl+2*r}, v{CSV}, v{acc+r}")
        for r in range(4):
            l.append(f"v_mul_f32 v{acc+r}, v{STB+8*tl+2*r+1}, v{acc+r}")
        l.append(f"v_cvt_pk_bf16_f32 v{VP+2*tl}, v{acc}, v{acc+1}")
        l.append(f"v_cvt_pk_bf16_f32 v{VP+2*tl+1}, v{acc+2}, v{acc+3}")
        return l

    V_OA = 254
    s_oa = 20
    oaddr = [f"s_lshl_b32 s{t}, s{s_g}, 2",
             f"s_add_u32 s{t}, s{t}, s{s_wave}",
             f"s_lshr_b32 s{t+1}, s{t}, 1",
             f"s_lshl_b32 s{t+1}, s{t+1}, 10",
             f"s_and_b32 s{t}, s{t}, 1",
             f"s_lshl_b32 s{t}, s{t}, 9",
             f"s_add_u32 s{t}, s{t}, s{t+1}",
             f"s_lshl_b32 s{t+1}, s{s_rb}, 16",
             f"s_add_u32 s{s_oa}, s{t}, s{t+1}",
             f"v_lshrrev_b32 v{V_OA}, 1, v{V_Q}",
             f"v_lshlrev_b32 v{V_OA}, 8, v{V_OA}",
             f"v_lshl_add_u32 v{V_OA}, v{V_LAM}, 4, v{V_OA}",
             f"v_and_b32 v{V_T0+1}, 1, v{V_Q}",
             f"v_lshl_add_u32 v{V_OA}, v{V_T0+1}, 3, v{V_OA}"]

    def attn_tiles(tiles, VP, regs, pk):
        SC, SP, MX, MT, PP, OO, LL = (regs[k_] for k_ in ("SC", "SP", "MX", "MT", "PP", "OO", "LL"))
        n = len(tiles)
        l = [("gap", 2)]
        for j, i in enumerate(tiles):
            l.append(f"v_mfma_f32_16x16x16_bf16 {vr(SC+4*j,4)}, {vr(KP+2*i,2)}, {vr(QP+2*i,2)}, {vr(BC,4)}")
            l.append(f"v_mfma_f32_16x16x16_bf16 {vr(SP+4*j,4)}, {vr(KP+2*(i-1),2)}, {vr(QP+2*i,2)}, {vr(BP1 if i == 1 else BP,4)}")
        l.append(("gap", max(8 - 2 * (n - 1), 1) if n < 4 else 2))
        if n >= 2:
            pass
        for j in range(n):
            if j == n - 1 and n > 1:
                l.append(("gap", 2))
            for r in range(4):
                l.append(f"v_max_f32 v{SC+4*j+r}, v{SC+4*j+r}, v{SP+4*j+r}")
            l.append(f"v_max3_f32 v{MX+j}, v{SC+4*j}, v{SC+4*j+1}, v{SC+4*j+2}")
            l.append(f"v_max_f32 v{MX+j}, v{MX+j}, v{SC+4*j+3}")
        l += xq_reduce("v_max_f32", [MX + j for j in range(n)], [MT + j for j in range(n)])
        for j in range(n):
            l.append(f"v_mul_f32 v{MX+j}, 0x3eb8aa3b, v{MX+j}")
        for j in range(n):
            for r in range(4):
                l.append(f"v_fma_f32 v{SC+4*j+r}, v{SC+4*j+r}, s{s_cexp}, -v{MX+j}")
        for j in range(n):
            for r in range(4):
                l.append(f"v_exp_f32 v{SC+4*j+r}, v{SC+4*j+r}")
        l.append(("gap", 1))
        for j in range(n):
            l += [f"v_cvt_pk_bf16_f32 v{SP+4*j}, v{SC+4*j}, v{SC+4*j+1}",
                  f"v_cvt_pk_bf16_f32 v{SP+4*j+1}, v{SC+4*j+2}, v{SC+4*j+3}",
                  f"v_and_b32 v{PP+4*j}, v{MP}, v{SP+4*j}",
                  f"v_and_b32 v{PP+4*j+1}, v{MP+1}, v{SP+4*j+1}",
                  f"v_and_b32 v{PP+4*j+2}, v{MC}, v{SP+4*j}",
                  f"v_and_b32 v{PP+4*j+3}, v{MC+1}, v{SP+4*j+1}"]
        l.append(("gap", 2))
        for j, i in enumerate(tiles):
            l.append(f"v_mfma_f32_16x16x32_bf16 {vr(LL+4*j,4)}, {vr(ONES,4)}, {vr(PP+4*j,4)}, 0")
            l.append(f"v_mfma_f32_16x16x32_bf16 {vr(OO+4*j,4)}, {vr(VP+2*(i-1),4)}, {vr(PP+4*j,4)}, 0")
        l.append(("gap", 8))
        for j in range(n):
            l.append(f"v_rcp_f32 v{LL+4*j}, v{LL+4*j}")
        l.append(("gap", 1))
        for j in range(n):
            if pk:
                l += [f"v_pk_mul_f32 {vr(OO+4*j,2)}, {vr(OO+4*j,2)}, {vr(LL+4*j,2)} op_sel_hi:[1,0]",
                      f"v_pk_mul_f32 {vr(OO+4*j+2,2)}, {vr(OO+4*j+2,2)}, {vr(LL+4*j,2)} op_sel_hi:[1,0]"]
            else:
                l += [f"v_mul_f32 v{OO+4*j+r}, v{LL+4*j}, v{OO+4*j+r}" for r in range(4)]
            l += [f"v_cvt_pk_bf16_f32 v{OO+4*j}, v{OO+4*j}, v{OO+4*j+1}",
                  f"v_cvt_pk_bf16_f32 v{OO+4*j+1}, v{OO+4*j+2}, v{OO+4*j+3}"]
        return l

    def dual_store(lines_fn, tag, nops):
        Lg, Lj = a.label("sg"), a.label("sj")
        c(f"s_cmp_eq_u32 s{s_loc}, 0", f"s_cbranch_scc1 {Lg}")
        c(lines_fn(""))
        c(f"s_branch {Lj}", f"{Lg}:")
        c(lines_fn(" sc1"))
        c(f"{Lj}:")
        c.q += [tag] * nops

    def wave_flag(f_off, sc1_only=False):
        c(f"s_add_u32 s{t}, s{s_flag}, {f_off}", "s_mov_b64 exec, 1")
        if sc1_only:
            c(("vm", "fl", f"buffer_store_dwordx2 {vr(V_EPV,2)}, v{V_Z}, {sr(SWS,4)}, s{t} offen sc1"))
        else:
            dual_store(lambda fl: [f"buffer_store_dwordx2 {vr(V_EPV,2)}, v{V_Z}, {sr(SWS,4)}, s{t} offen{fl}"], "fl", 1)
        c("s_mov_b64 exec, -1")

    s_cexp = 17
    c(f"s_mov_b32 s{s_cexp}, 0x3eb8aa3b")
    R1 = dict(SC=108, SP=124, MX=140, MT=144, PP=148, OO=196, LL=212)
    main = []
    for tl in range(5):
        main += normalize(tl, True, VP)
    with_dmas(main, dm, 16)
    assert not dm

    def o_stores(o_off, OO, tiles):
        def f(fl):
            l = []
            for j, i in enumerate(tiles):
                l += [f"s_add_u32 s{t+1}, s{s_oa}, {(O1_OFF if (fl == '' and 'noalias' not in EXP) else o_off) + (i-1)*16384}",
                      f"buffer_store_dwordx2 {vr(OO+4*j,2)}, v{V_OA}, {sr(SWS,4)}, s{t+1} offen{fl}"]
            return l
        dual_store(f, "ost", len(tiles))

    stamp()
    CA, CB, C2, C3, C4, C5, C6 = 94, 95, 96, 97, 98, 99, 100
    c(f"v_add_u32 v{V_T0}, s{s_cl}, v{V_L8}",
      f"v_mov_b32 v{C2}, 0",
      f"v_mov_b32 v{C3}, 0",
      f"ds_write_b64 v{V_T0}, {vr(C2,2)} offset:{C_U+4096}",
      f"v_mul_u32_u24 v{C4}, {C_KS}, v{V_Q}",
      f"v_lshl_add_u32 v{C4}, v{V_LAM}, 1, v{C4}",
      f"s_add_u32 s{t+5}, s{s_cl}, {C_K}",
      f"v_add_u32 v{C4}, s{t+5}, v{C4}",
      f"v_cmp_gt_i32 vcc, 0, v{V_FI}",
      f"v_add_u32 v{CA}, 1, v{V_LAM}",
      f"v_and_b32 v{CB}, 3, v{CA}",
      f"v_mul_u32_u24 v{CB}, {C_KS}, v{CB}",
      f"v_and_b32 v{CA}, 0x1c, v{CA}",
      f"v_lshl_add_u32 v{CB}, v{CA}, 1, v{CB}",
      f"v_lshl_add_u32 v{CB}, v{V_Q}, 4, v{CB}",
      f"s_lshl_b32 s{t+3}, s{s_half}, 8",
      f"s_add_u32 s{t+3}, s{t+3}, s{s_cl}",
      f"s_add_u32 s{t+5}, s{t+3}, {C_K}",
      f"v_add_u32 v{CA}, s{t+5}, v{CB}",
      f"v_lshlrev_b32 v{CB}, 5, v{V_LAM}",
      f"v_sub_u32 v{CB}, 480, v{CB}",
      f"v_lshl_add_u32 v{CB}, v{V_Q}, 4, v{CB}",
      f"v_add_u32 v{CB}, s{t+3}, v{CB}",
      ("wait", ["ck", "cu"]),
      f"v_cndmask_b32 v{V_FX}, v{V_FX}, 0, vcc",
      f"ds_write_b16 v{C4}, v{V_FX}",
      "s_waitcnt lgkmcnt(0)", "s_barrier")
    CACC = 104
    V_FO = 232
    V_FA = 236

    def creg(P, off, n):
        return vr(136 + off, n) if P == 0 else ar(192 + off, n)

    def creads(P, rp):
        l = []
        for j in range(8):
            l.append(f"ds_read_b128 {creg(P,32+4*j,4)}, v{CB} offset:{64*rp+512*(7-j)}")
            l.append(f"ds_read_b64 {creg(P,4*j,2)}, v{CA} offset:{64*rp+512*j}")
            l.append(f"ds_read_b64 {creg(P,4*j+2,2)}, v{CA} offset:{64*rp+512*j+8}")
        return l

    def flags_load(f_off, rb_sgpr, dst, sreg):
        return [f"s_lshl_b32 s{sreg}, s{rb_sgpr}, 8",
                f"s_add_u32 s{sreg}, s{sreg}, {f_off}",
                ("vm", "fo", f"buffer_load_dwordx2 {vr(dst,2)}, v{V_FA}, {sr(SWS,4)}, s{sreg} offen sc1")]

    def flags_poll(dst, sreg, tmp, name):
        c(("wait", ["fo"]))
        poll(chk_ep([dst], tmp), [f"buffer_load_dwordx2 {vr(dst,2)}, v{V_FA}, {sr(SWS,4)}, s{sreg} offen sc1"], name)

    c(creads(0, 0))
    KEEP, UU, PR, UF = 136, 152, 160, 176
    pre_ep = [
        f"s_lshl_b32 s{t+3}, s{s_wave}, 12",
        f"s_add_u32 s{t+3}, s{t+3}, {C_RED}",
        f"v_add_u32 v{C2}, s{t+3}, v{V_L16}",
        f"s_xor_b32 s{t+3}, s{s_wave}, 1",
        f"s_lshl_b32 s{t+3}, s{t+3}, 12",
        f"s_add_u32 s{t+3}, s{t+3}, {C_RED}",
        f"v_add_u32 v{C3}, s{t+3}, v{V_L16}",
        f"v_lshlrev_b32 v{C4}, 5, v{V_LAM}",
        f"v_lshl_add_u32 v{C4}, v{V_Q}, 3, v{C4}",
        f"s_lshl_b32 s{t+3}, s{s_half}, 11",
        f"s_sub_u32 s{t+3}, s{s_cl}, s{t+3}",
        f"s_add_u32 s{t+3}, s{t+3}, {C_U + 4088 - 1536}",
        f"v_sub_u32 v{C4}, s{t+3}, v{C4}",
        f"s_lshl_b32 s{t+3}, s{s_wave}, 11",
        f"s_add_u32 s{t+3}, s{t+3}, {C_TR}",
        f"v_lshlrev_b32 v{C5}, 4, v{V_LAM}",
        f"v_lshl_add_u32 v{C5}, v{V_Q}, 2, v{C5}",
        f"v_add_u32 v{C5}, s{t+3}, v{C5}",
        f"v_add_u32 v{C6}, s{t+3}, v{V_L16}",
        f"v_lshrrev_b32 v101, 5, v{V_LANE}",
        "v_lshlrev_b32 v101, 8, v101",
        f"v_and_b32 v102, 1, v{V_Q}",
        "v_lshl_add_u32 v101, v102, 11, v101",
        f"v_lshl_add_u32 v101, v{V_LAM}, 4, v101",
        f"s_lshl_b32 s{t+4}, s{s_half}, 10",
        f"s_add_u32 s{t+4}, s{t+4}, s{s_c}",
        f"s_add_u32 s{t+4}, s{t+4}, {Y_OFF}",
        f"s_lshl_b32 s{t+3}, s{s_D}, 16",
        f"s_and_b32 s{t+5}, s{s_D}, 0xffff0000",
        f"s_cmp_eq_u32 s{s_ch}, 0",
        f"s_cselect_b32 s{t+3}, s{t+3}, s{t+5}"]
    pre_ep += [f"ds_read_b64 {vr(UU+2*i,2)}, v{C4} offset:{512*(3-i)}" for i in range(4)]
    pre_ep += ["s_waitcnt lgkmcnt(0)"]
    for i in range(4):
        pre_ep += [f"v_and_b32 v{UF+4*i}, 0xffff0000, v{UU+2*i+1}",
                   f"v_lshlrev_b32 v{UF+4*i+1}, 16, v{UU+2*i+1}",
                   f"v_and_b32 v{UF+4*i+2}, 0xffff0000, v{UU+2*i}",
                   f"v_lshlrev_b32 v{UF+4*i+3}, 16, v{UU+2*i}"]
    pre_ep += [f"v_mul_f32 v{UF+r}, s{t+3}, v{UF+r}" for r in range(16)]
    RA = dict(SC=200, SP=208, MX=216, MT=218, PP=220, OO=238, LL=246)
    opt = [f"v_and_b32 v{V_FA}, 0xf8, v{V_L8}"] + oaddr
    for pr in ([1, 2], [3, 4]):
        opt += attn_tiles(pr, VP, RA, False)
        opt.append(lambda pr=pr: o_stores(O1_OFF, RA["OO"], pr))
        opt.append(("gap", 3))
    c._dist = 100
    for rp in range(4):
        P = rp & 1
        c("s_waitcnt lgkmcnt(0)")
        if rp == 3:
            opt += pre_ep
        mf = []
        for j in range(8):
            for i in range(j, 8):
                cc = vr(CACC + 4 * i, 4) if (rp or j) else 0
                mf.append(f"v_mfma_f32_16x16x32_bf16 {vr(CACC+4*i,4)}, {creg(P,4*j,4)}, {creg(P,32+4*(i-j),4)}, {cc}")
        opt = c.merge2(mf, creads(1 - P, rp + 1) if rp < 3 else [], opt, flush=(rp == 3))
    OFR = 192

    def o_loads(o_off):
        g = []
        for st in range(4):
            for i in range(4):
                e = 4 * st + i
                l = []
                if i == 0:
                    l.append(f"s_add_u32 s{t+11}, s{t+10}, {st*4096}")
                l.append(("vm", f"o{e}", f"buffer_load_dwordx4 {ar(OFR+4*e,4)}, v{V_L16}, {sr(SWS,4)}, s{t+11} offen offset:{1024*i} sc1"))
                g.append(l)
        pre = [f"s_lshl_b32 s{t+10}, s{s_rb}, 16",
               f"s_lshl_b32 s{t+11}, s{s_wave}, 14",
               f"s_add_u32 s{t+10}, s{t+10}, s{t+11}",
               f"s_cmp_eq_u32 s{s_loc}, 0",
               f"s_cselect_b32 s{t+11}, {o_off}, {o_off if 'noalias' in EXP else O1_OFF}",
               f"s_add_u32 s{t+10}, s{t+10}, s{t+11}"]
        return pre, g

    c(("wait", ["ost"]))
    wave_flag(F_O1)
    L1, L2 = a.label("cvh"), a.label("cvj")
    c("s_nop 1", f"s_cmp_eq_u32 s{s_half}, 0", f"s_cbranch_scc0 {L1}")
    for i in range(4):
        c(f"ds_write_b128 v{C2}, {vr(CACC+16+4*i,4)} offset:{1024*i}")
    for r in range(8):
        c(f"v_pk_add_f32 {vr(KEEP+2*r,2)}, {vr(CACC+2*r,2)}, {vr(UF+2*r,2)}")
    c(f"s_branch {L2}", f"{L1}:")
    for i in range(4):
        c(f"ds_write_b128 v{C2}, {vr(CACC+4*i,4)} offset:{1024*i}")
    for r in range(8):
        c(f"v_pk_add_f32 {vr(KEEP+2*r,2)}, {vr(CACC+16+2*r,2)}, {vr(UF+2*r,2)}")
    c(f"{L2}:", "s_waitcnt lgkmcnt(0)", "s_barrier")
    c([f"ds_read_b128 {vr(PR+4*i,4)}, v{C3} offset:{1024*i}" for i in range(4)])
    c(flags_load(F_O1, s_rb, V_FO, t + 8))
    for i in range(4):
        c(f"s_waitcnt lgkmcnt({3-i})" if i == 0 else f"s_waitcnt lgkmcnt({3-i+2*i})",
          f"v_pk_add_f32 {vr(KEEP+4*i,2)}, {vr(KEEP+4*i,2)}, {vr(PR+4*i,2)}",
          f"v_pk_add_f32 {vr(KEEP+4*i+2,2)}, {vr(KEEP+4*i+2,2)}, {vr(PR+4*i+2,2)}")
        for par in range(2):
            c(f"v_cvt_pk_bf16_f32 v{UF+2*i+par}, v{KEEP+4*i+par}, v{KEEP+4*i+2+par}",
              f"ds_write_b32 v{C5}, v{UF+2*i+par} offset:{(2*i+par)*256}")
    YS = 228
    c("s_waitcnt lgkmcnt(0)",
      f"ds_read_b128 {vr(YS,4)}, v{C6}",
      f"ds_read_b128 {vr(238,4)}, v{C6} offset:1024")
    c("s_waitcnt lgkmcnt(0)",
      ("vm", "yst", f"buffer_store_dwordx4 {vr(YS,4)}, v101, {sr(SWS,4)}, s{t+4} offen sc1"),
      ("vm", "yst", f"buffer_store_dwordx4 {vr(238,4)}, v101, {sr(SWS,4)}, s{t+4} offen offset:512 sc1"))
    stamp()
    c(f"s_lshl_b32 s{t}, s{s_g}, 7", f"s_add_u32 s{s_rowbase}, s{s_rowbase}, s{t}")
    pre, og = o_loads(O1_OFF)
    c(pre)
    c(f"s_lshl_b32 s{t+7}, s{s_g}, 8",
      f"s_add_u32 s{t+7}, s{t+7}, {F_Y}",
      f"s_lshl_b32 s{t+9}, s{s_g}, 18",
      f"s_lshl_b32 s{t+1}, s{s_p}, 11",
      f"s_add_u32 s{t+9}, s{t+9}, s{t+1}",
      f"s_lshl_b32 s{t+1}, s{s_b}, 7",
      f"s_add_u32 s{t+9}, s{t+9}, s{t+1}",
      f"s_lshl_b32 s{t+1}, s{s_wave}, 16",
      f"s_add_u32 s{t+9}, s{t+9}, s{t+1}",
      f"s_add_u32 s{t+9}, s{t+9}, {Y_OFF}",
      f"s_add_u32 s22, s{t+9}, 32768",
      f"v_lshrrev_b32 v75, 3, v{V_LANE}",
      "v_lshlrev_b32 v75, 12, v75",
      f"v_and_b32 v76, 0x70, v{V_L16}",
      "v_add_u32 v75, v75, v76",
      f"s_lshl_b32 s23, s{s_wave}, 11",
      f"s_add_u32 s23, s23, {P2_YT}",
      f"v_bfe_u32 v79, v{V_LANE}, 2, 2",
      f"v_lshl_add_u32 v79, v{V_Q}, 2, v79",
      "v_lshlrev_b32 v79, 7, v79",
      f"v_and_b32 v76, 3, v{V_LANE}",
      "v_lshl_add_u32 v79, v76, 3, v79",
      f"s_lshl_b32 s{t+1}, s{s_wave}, 5",
      f"s_add_u32 s{t+1}, s{t+1}, {P2_YT}",
      f"v_add_u32 v79, s{t+1}, v79")
    fyl = f"buffer_load_dwordx2 {vr(72,2)}, v{V_FA}, {sr(SWS,4)}, s{t+7} offen sc1"
    ylds = ["s_mov_b32 m0, s23", "s_nop 0",
            f"buffer_load_dwordx4 v75, {sr(SWS,4)}, s{t+9} offen sc1 lds",
            "s_add_u32 m0, s23, 1024", "s_nop 0",
            f"buffer_load_dwordx4 v75, {sr(SWS,4)}, s22 offen sc1 lds"]
    flags_poll(V_FO, t + 8, 68, "po1")
    for g_ in og[:OPRE]:
        c(g_)
    olate = [og[OPRE:]]
    stamp()

    def y_flag():
        Lny = a.label("nfy")
        c(("wait", ["yst"]),
          "s_barrier",
          f"s_cmp_lg_u32 s{s_wave}, 0",
          f"s_cbranch_scc1 {Lny}",
          f"s_lshl_b32 s{t}, s2, 3",
          f"s_add_u32 s{t}, s{t}, {F_Y}",
          "s_mov_b64 exec, 1",
          f"buffer_store_dwordx2 {vr(V_EPV,2)}, v{V_Z}, {sr(SWS,4)}, s{t} offen sc1",
          "s_mov_b64 exec, -1",
          f"{Lny}:")

    YP, X2K = 246, 238

    def wo_phase(layer):
        first = layer == 0
        XR = 96
        c(f"s_lshl_b32 s{t+1}, s{s_wave}, 15", f"s_add_u32 s{t+5}, s{s_rowbase}, s{t+1}")
        if first:
            for nt in range(4):
                c(("vm", "xr", f"buffer_load_dwordx2 {vr(XR+2*nt,2)}, v{V_ROW}, {sr(SX,4)}, s{t+5} offen offset:{32*nt}"))
        WACC = 80
        WF = [112, 144, 176]

        def reads(P, e):
            return [f"ds_read_b64_tr_b16 {vr(WF[P]+4*nt+2*ss,2)}, v{V_WO+nt} offset:{4096*e+512*ss}"
                    for nt in range(4) for ss in range(2)]
        c(reads(0, 0), reads(1, 1))
        for e in range(16):
            P = e % 3
            if first and e == 0:
                y_flag()
            c(("wait", [f"o{e}"], 8 if e < 15 else 0))
            mf = [f"v_mfma_f32_16x16x32_bf16 {vr(WACC+4*nt,4)}, {vr(WF[P]+4*nt,4)}, {ar(OFR+4*e,4)}, {vr(WACC+4*nt,4) if e else 0}"
                  for nt in range(4)]
            sd = reads((e + 2) % 3, e + 2) if e < 14 else []
            if olate[0]:
                sd = olate[0].pop(0) + sd
            c.merge(mf, sd, 2)
        XF, X1P, G = 144, 160, 168
        if not first:
            stamp("p4")
        if first and 'stamp' not in EXP:
            stamp()
        if first:
            c(("wait", ["xr"]))
            src = XR
        else:
            src = X2K
        for i in range(8):
            c(f"v_lshlrev_b32 v{XF+2*i}, 16, v{src+i}", f"v_and_b32 v{XF+2*i+1}, 0xffff0000, v{src+i}")
        c(f"v_mov_b32 v{G}, 0", f"v_mov_b32 v{G+1}, 0", f"v_mov_b32 v{G+2}, s{s_ep}", f"v_mov_b32 v{G+3}, s{s_ep+1}")
        for i in range(8):
            c(f"v_pk_add_f32 {vr(XF+2*i,2)}, {vr(XF+2*i,2)}, {vr(WACC+2*i,2)}",
              f"v_cvt_pk_bf16_f32 v{X1P+i}, v{XF+2*i}, v{XF+2*i+1}")
        for i in range(8):
            c(f"v_dot2_f32_bf16 v{G}, v{X1P+i}, v{ONES}, v{G}", f"v_dot2_f32_bf16 v{G+1}, v{X1P+i}, v{X1P+i}, v{G+1}")
        st_off = ST1_OFF if first else ST2_OFF
        c(f"s_lshl_b32 s{t+6}, s{s_rb}, 13",
          f"s_lshl_b32 s{t+1}, s{s_wave}, 11",
          f"s_add_u32 s{t+6}, s{t+6}, s{t+1}",
          f"s_add_u32 s{t+6}, s{t+6}, {st_off}",
          f"s_lshl_b32 s{t+1}, s{s_g}, 8",
          f"s_add_u32 s{t+1}, s{t+1}, s{t+6}")
        c(xq_reduce("v_add_f32", [G, G + 1], [G + 4, G + 5]))
        c("s_mov_b64 exec, 0xffff")
        dual_store(lambda fl: [f"buffer_store_dwordx4 {vr(G,4)}, v{V_L16}, {sr(SWS,4)}, s{t+1} offen{fl}"], "sst", 1)
        c("s_mov_b64 exec, -1")
        GR = 176
        if not first:
            stamp("p4")
        for i in range(8):
            c(f"v_lshlrev_b32 v{XF+2*i}, 16, v{X1P+i}", f"v_and_b32 v{XF+2*i+1}, 0xffff0000, v{X1P+i}")
        gl = [f"buffer_load_dwordx4 {vr(GR,4)}, v{V_L16}, {sr(SWS,4)}, s{t+6} offen sc1",
              f"buffer_load_dwordx4 {vr(GR+4,4)}, v{V_L16}, {sr(SWS,4)}, s{t+6} offen offset:1024 sc1"]
        if first:
            Lyd = a.label("yd")
            c(f"s_cmp_lg_u32 s{s_wave}, 0", f"s_cbranch_scc1 {Lyd}", fyl, "s_waitcnt vmcnt(0)")
            poll(chk_ep([72], 76), [fyl], "pfy", 3)
            c(f"{Lyd}:", "s_barrier")
            c(ylds)
            if 'stamp' not in EXP:
                stamp()
        for l in gl:
            c(("vm", "gr", l))
        if first:
            c("s_waitcnt vmcnt(2)", "s_barrier")
            for nt in range(4):
                c(f"ds_read_b64_tr_b16 {vr(YP+2*nt,2)}, v79 offset:{2048*nt}")
        c(("drain",))
        if first and 'stamp' not in EXP:
            stamp()
        if not first:
            stamp("p4")
        poll(chk_ep([GR + 2, GR + 6], 76), gl, "pst")
        stamp("p4" if not first else "x2")
        c(f"v_add_f32 v{G}, v{GR}, v{GR+4}", f"v_add_f32 v{G+1}, v{GR+1}, v{GR+5}")
        c(xq_reduce("v_add_f32", [G, G + 1], [G + 4, G + 5]))
        c(stats_fin([(G, G + 1)], [G + 4]))
        c("s_waitcnt lgkmcnt(0)")
        YF, D = 192, 208
        for i in range(8):
            c(f"v_lshlrev_b32 v{YF+2*i}, 16, v{YP+i}", f"v_and_b32 v{YF+2*i+1}, 0xffff0000, v{YP+i}")
        dst = X2K if first else X1P
        for i in range(8):
            c(f"v_pk_add_f32 {vr(D+2*i,2)}, {vr(XF+2*i,2)}, {vr(G,2)} op_sel_hi:[1,0] neg_lo:[0,1] neg_hi:[0,1]",
              f"v_pk_mul_f32 {vr(D+2*i,2)}, {vr(D+2*i,2)}, {vr(G,2)} op_sel:[0,1]",
              f"v_pk_fma_f32 {vr(D+2*i,2)}, {vr(D+2*i,2)}, {vr(YF+2*i,2)}, {vr(XF+2*i,2)}",
              f"v_cvt_pk_bf16_f32 v{dst+i}, v{D+2*i}, v{D+2*i+1}")
        stamp("p4" if not first else "x2")
        WS4 = D
        for i in range(8):
            c(f"v_mov_b32 v{WS4+i}, v{dst+i}")
        if first:
            c(f"v_and_b32 v237, 1, v{V_Q}",
              "v_lshlrev_b32 v237, 5, v237",
              f"v_lshl_add_u32 v237, v{V_LAM}, 11, v237",
              f"v_lshrrev_b32 v76, 1, v{V_Q}",
              "v_lshl_add_u32 v237, v76, 4, v237")
        else:
            c("s_nop 1")
        for pr in range(2):
            for d_ in range(2):
                c(f"v_permlane16_swap_b32 v{WS4+4*pr+d_}, v{WS4+4*pr+2+d_}")
        c("s_nop 0")
        if not first:
            for pr in range(2):
                c(f"buffer_store_dwordx4 {vr(WS4+4*pr,4)}, v237, {sr(SOUT,4)}, s{t+5} offen offset:{64*pr}" + (" sc1" if "outsc1" in EXP else "") + (" nt" if "outnt" in EXP else ""))
            c("s_waitcnt vmcnt(0)" if FINE == "p4" else "s_nop 0")
            stamp("p4")
            return
        c(f"s_add_u32 s{t+5}, s{t+5}, {X2_OFF}", f"v_mov_b32 v{G}, 0", f"v_mov_b32 v{G+1}, 0")
        dual_store(lambda fl: [f"buffer_store_dwordx4 {vr(WS4+4*pr,4)}, v237, {sr(SWS,4)}, s{t+5} offen offset:{64*pr}{fl}"
                               for pr in range(2)], "x2st", 2)
        for i in range(8):
            c(f"v_dot2_f32_bf16 v{G}, v{dst+i}, v{ONES}, v{G}", f"v_dot2_f32_bf16 v{G+1}, v{dst+i}, v{dst+i}, v{G+1}")
        c(f"s_lshl_b32 s{t}, s{s_rb}, 12",
          f"s_lshl_b32 s{t+1}, s{s_wave}, 10",
          f"s_add_u32 s{t}, s{t}, s{t+1}",
          f"s_lshl_b32 s{t+1}, s{s_g}, 7",
          f"s_add_u32 s{t}, s{t}, s{t+1}",
          f"s_add_u32 s{t}, s{t}, {XS_OFF}")
        c(xq_reduce("v_add_f32", [G, G + 1], [G + 4, G + 5]))
        c("s_mov_b64 exec, 0xffff")
        dual_store(lambda fl: [f"buffer_store_dwordx2 {vr(G,2)}, v{V_L8}, {sr(SWS,4)}, s{t} offen{fl}"], "x2st", 1)
        c("s_mov_b64 exec, -1")
        stamp("x2")
        c(("drain",))
        stamp("x2")
        wave_flag(F_X2)
        Lh = a.label("nh")
        c(f"s_cmp_lg_u32 s{s_wave}, 3",
          f"s_cbranch_scc1 {Lh}",
          "v_lshrrev_b32 v75, 1, v237",
          "v_and_b32 v75, 0xfc00, v75",
          "v_and_b32 v76, 0x30, v237",
          "v_or_b32 v75, v75, v76",
          f"s_lshl_b32 s{t}, s{s_rb}, 13",
          f"s_lshl_b32 s{t+1}, s{s_g}, 7",
          f"s_add_u32 s{t}, s{t}, s{t+1}",
          f"s_add_u32 s{t}, s{t}, {HALO_OFF - 8192}",
          f"s_lshl_b32 s{t+2}, s{s_rb}, 9",
          f"s_lshl_b32 s{t+1}, s{s_g}, 6",
          f"s_add_u32 s{t+2}, s{t+2}, s{t+1}",
          f"s_add_u32 s{t+2}, s{t+2}, {HS_OFF - 64}",
          f"s_mov_b32 s{t+8}, 0xff00ff00",
          f"s_mov_b32 s{t+9}, 0xff00ff00",
          f"s_mov_b64 exec, {sr(t+8,2)}")
        for pr in range(2):
            c(f"buffer_store_dwordx4 {vr(WS4+4*pr,4)}, v75, {sr(SWS,4)}, s{t} offen offset:{64*pr} sc1")
        c("s_mov_b64 exec, 0xff00",
          f"buffer_store_dwordx2 {vr(G,2)}, v{V_L8}, {sr(SWS,4)}, s{t+2} offen sc1",
          "s_mov_b64 exec, -1",
          f"{Lh}:")

    wo_phase(0)
    stamp()

    c(flags_load(F_X2, s_rb, V_FO, t + 8))
    for qi in range(4):
        c(f"s_add_u32 s{s_xq+qi}, s{s_xq+qi}, {X2_OFF}")
    stamp("x2")
    flags_poll(V_FO, t + 8, 68, "px2")
    stamp("x2")
    Lh2 = a.label("nh2")
    c(f"s_cmp_lg_u32 s{s_wave}, 3",
      f"s_cbranch_scc1 {Lh2}",
      f"s_lshl_b32 s{t}, s{s_rb}, 7",
      f"s_lshl_b32 s{t+1}, s{s_g}, 3",
      f"s_add_u32 s{t}, s{t}, s{t+1}",
      f"s_add_u32 s{t}, s{t}, {F_H}",
      "s_mov_b64 exec, 1",
      f"buffer_store_dwordx2 {vr(V_EPV,2)}, v{V_Z}, {sr(SWS,4)}, s{t} offen sc1",
      "s_mov_b64 exec, -1",
      f"{Lh2}:")

    def x2dma(qi, i):
        return [f"s_add_u32 m0, s{s_xl+qi}, {L_X + i*4096}",
                f"s_add_u32 s{t}, s{s_xq+qi}, {i*32768}",
                ("vm", f"x2q{qi}" if KMAJ else f"x2t{i}", f"buffer_load_dwordx4 v{V_XD}, {sr(SWS,4)}, s{t} offen sc1 lds")]
    PS = 184
    c(f"s_lshl_b32 s{t+1}, s{s_rb}, 12",
      f"s_lshl_b32 s{t+2}, s{s_wave}, 10",
      f"s_add_u32 s{t+1}, s{t+1}, s{t+2}",
      f"s_add_u32 s{t+1}, s{t+1}, {XS_OFF}")
    for qi in range(4):
        c(x2dma(0, qi + 1) if KMAJ else x2dma(qi, 1))
    c(("vm", "ps", f"buffer_load_dwordx2 {vr(PS,2)}, v{V_L8}, {sr(SWS,4)}, s{t+1} offen sc1"),
      ("vm", "ps", f"buffer_load_dwordx2 {vr(PS+2,2)}, v{V_L8}, {sr(SWS,4)}, s{t+1} offen offset:512 sc1"))
    late = []
    for i in range(2, 5):
        for qi in range(4):
            late += x2dma(i - 1, qi + 1) if KMAJ else x2dma(qi, i)
    c(late[:12])
    late = late[12:]
    V_HF = 190
    c(f"s_sub_u32 s{t+9}, s{s_rb}, 1",
      f"s_lshl_b32 s{t+9}, s{t+9}, 7",
      f"s_add_u32 s{t+9}, s{t+9}, {F_H}",
      f"v_and_b32 v192, 0x38, v{V_L8}")
    hld = f"buffer_load_dwordx2 {vr(V_HF,2)}, v192, {sr(SWS,4)}, s{t+9} offen sc1"
    S3 = 188 if KMAJ else SA
    own = [("wait", ["ps"]),
           f"v_add_f32 v{S3}, v{PS}, v{PS+2}",
           f"v_add_f32 v{S3+1}, v{PS+1}, v{PS+3}"]
    own += xq_reduce("v_add_f32", [S3, S3 + 1], [104, 105])
    own += stats_fin([(S3, S3 + 1)], [104])
    own += [f"v_lshlrev_b32 v193, 3, v{V_LAM}",
            f"s_lshl_b32 s{t+3}, s{s_wave}, 7",
            f"s_add_u32 s{t+3}, s{t+3}, {L_ST + 128}",
            f"v_add_u32 v195, s{t+3}, v193",
            f"ds_write_b64 v195, {vr(S3,2)}",
            f"v_add_u32 v193, {L_ST}, v193",
            f"v_lshlrev_b32 v194, 5, v{V_Q}",
            f"v_add_u32 v194, {L_ST}, v194"]
    if not KMAJ:
        c(own)
    V_S8, V_S32 = 193, 194

    def stat_reads(tl):
        return [f"ds_read_b64 {vr(STA+2*tl,2)}, v{V_S8} offset:{128*tl}",
                f"ds_read_b128 {vr(STB+8*tl,4)}, v{V_S32} offset:{128*tl}",
                f"ds_read_b128 {vr(STB+8*tl+4,4)}, v{V_S32} offset:{128*tl+16}"]

    XF3 = [168, 176]

    def tile_stream(tl):
        m = []
        def rd(e):
            return f"ds_read_b128 {vr(168+4*(e&3),4)}, v{VAE+e} offset:{4096*tl}"
        m += [rd(0), rd(1)]
        for e in range(16):
            if e % 2 == 0:
                if e + 2 < 16:
                    m += [rd(e + 2), rd(e + 3), "s_waitcnt lgkmcnt(2)"]
                else:
                    m.append("s_waitcnt lgkmcnt(0)")
            x = vr(168 + 4 * (e & 3), 4)
            wq, wk, wv = ar(12 * e, 4), ar(12 * e + 4, 4), ar(12 * e + 8, 4)
            for (acc, A_, B_, on) in ((AQ + 4 * tl, wq, x, tl > 0), (AK + 4 * tl, wk, x, True), (AV + 4 * tl, x, wv, True)):
                if on:
                    m.append(f"v_mfma_f32_16x16x32_bf16 {vr(acc,4)}, {A_}, {B_}, {vr(acc,4) if e else 0}")
        return m

    def R3(qt):
        return dict(SC=AQ + 4 * qt, SP=AK + 4 * qt, PP=AV + 4 * qt, LL=STB + 8 * qt, MX=STB + 8 * qt + 4, MT=STB + 8 * qt + 5, OO=108)

    PSH = 184
    s_hd = 21

    def halo_try(n, blocking):
        Lskip, Lgo = a.label("hskip"), a.label("hgo")
        c(f"s_cmp_lg_u32 s{s_hd}, 0", f"s_cbranch_scc1 {Lskip}")
        qs = list(c.q)
        c(f"s_cmp_eq_u32 s{s_b}, 0", f"s_cbranch_scc1 {Lgo}")
        c(("wait", [f"hf{n}"]))
        if not blocking:
            c(chk_ep([V_HF], PSH), "s_nop 4", f"s_cbranch_vccnz {Lskip}")
        else:
            poll(chk_ep([V_HF], PSH), [hld], "ph", 2)
        c(f"{Lgo}:")
        c(f"s_mov_b32 s{s_hd}, 1",
          f"v_lshrrev_b32 v{PSH}, 11, v{V_XD}",
          f"v_and_b32 v{PSH+1}, 0xff, v{V_XD}",
          f"v_lshl_add_u32 v{PSH}, v{PSH}, 10, v{PSH+1}",
          f"s_lshl_b32 s{t+2}, s{s_wave}, 10",
          f"s_lshl_b32 s{t}, s{s_rb}, 13",
          f"s_lshl_b32 s{t+1}, s{s_wave}, 12",
          f"s_add_u32 s{t}, s{t}, s{t+1}",
          f"s_add_u32 s{t}, s{t}, {HALO_OFF - 8192 - 8192}",
          f"s_cmp_lt_u32 s{s_wave}, 2",
          f"s_cselect_b32 s{t}, {OOB}, s{t}",
          f"s_cmp_eq_u32 s{s_b}, 0",
          f"s_cselect_b32 s{t}, {OOB}, s{t}")
        for qd in range(4):
            c(f"s_add_u32 m0, s{t+2}, {L_X + qd*XQ}",
              f"s_add_u32 s{t+1}, s{t}, {qd*256}",
              f"buffer_load_dwordx4 v{PSH}, {sr(SWS,4)}, s{t+1} offen sc1 lds")
        c(f"v_and_b32 v{PSH+1}, 7, v{V_LAM}",
          f"v_lshlrev_b32 v{PSH+1}, 3, v{PSH+1}",
          f"v_lshl_add_u32 v195, v{V_Q}, 6, v{PSH+1}",
          f"s_lshl_b32 s{t}, s{s_rb}, 9",
          f"s_add_u32 s{t}, s{t}, {HS_OFF - 512}",
          f"s_cmp_eq_u32 s{s_b}, 0",
          f"s_cselect_b32 s{t}, {OOB}, s{t}",
          "s_nop 1",
          f"buffer_load_dwordx2 {vr(PSH,2)}, v195, {sr(SWS,4)}, s{t} offen sc1",
          f"buffer_load_dwordx2 {vr(PSH+2,2)}, v195, {sr(SWS,4)}, s{t} offen offset:256 sc1",
          f"{Lskip}:")
        c.q = qs

    c(f"s_mov_b32 s{s_hd}, 0")
    stamp()
    if KMAJ:
        XK = [168, 64]

        def kreads(P, e):
            return [f"ds_read_b128 {vr(XK[P]+4*(tl-1),4)}, v{VAE+e} offset:{4096*tl}" for tl in range(1, 5)]
        stamp("p3")
        c(("wait", ["x2q0"]), "s_barrier")
        stamp("p3")
        c(kreads(0, 0))
        for e in range(16):
            P = e & 1
            if e == 3:
                c(("wait", ["x2q1"], 0), "s_barrier")
            elif e == 6:
                c(("wait", ["x2q3"], 0), "s_barrier")
            else:
                c("s_waitcnt lgkmcnt(0)")
            if e in (3, 7, 12):
                stamp("p3")
            must = kreads(1 - P, e + 1) if e < 15 else []
            opt = []
            if e < 2:
                must += late[12 * e:12 * e + 12]
            if e == 2:
                opt = own
                must.append(("vm", "hf1", hld))
            if 8 <= e < 12:
                must += stat_reads(e - 7)
            mf = []
            wq, wk, wv = ar(12 * e, 4), ar(12 * e + 4, 4), ar(12 * e + 8, 4)
            for tl in range(1, 5):
                x = vr(XK[P] + 4 * (tl - 1), 4)
                for (acc, A_, B_) in ((AQ + 4 * tl, wq, x), (AK + 4 * tl, wk, x), (AV + 4 * tl, x, wv)):
                    mf.append(f"v_mfma_f32_16x16x32_bf16 {vr(acc,4)}, {A_}, {B_}, {vr(acc,4) if e else 0}")
            c.merge(mf, must + opt)
            if e == 7:
                halo_try(1, False)
                c(("vm", "hf2", hld))
            if e == 12:
                halo_try(2, False)
                c(("vm", "hf3", hld))
        stamp("p3")
        halo_try(3, True)
        c(("drain",), "s_barrier")
        stamp("p3")
        HS2 = 188
        side = [f"v_add_f32 v{HS2}, v{PSH}, v{PSH+2}", f"v_add_f32 v{HS2+1}, v{PSH+1}, v{PSH+3}"]
        side += xq_reduce("v_add_f32", [HS2, HS2 + 1], [PSH, PSH + 1])
        side += stats_fin([(HS2, HS2 + 1)], [PSH])
        side += [f"v_and_b32 v{PSH}, 0x38, v{V_S8}", f"v_add_u32 v{PSH}, {(L_ST & ~0x3f) + 64}, v{PSH}"]
        side += normalize(1, False, VP)
        c.merge(tile_stream(0), side)
        stamp("p3")
        c(f"ds_write_b64 v{PSH}, {vr(HS2,2)}", "s_waitcnt lgkmcnt(0)")
        c(stat_reads(0))
        for tl in (2, 3, 4):
            c(normalize(tl, True, VP))
        c("s_waitcnt lgkmcnt(0)")
        c(normalize(0, True, VP))
        stamp("p3")
        c(attn_tiles([1, 2, 3, 4], VP, R1, True))
        o_stores(O2_OFF, R1["OO"], [1, 2, 3, 4])
    else:
        order = [1, 2, 3, 4, 0]
        for n, tl in enumerate(order):
            side = []
            if n == 0:
                stamp("x2")
                c(("wait", ["x2t1"], 0), "s_barrier")
                stamp("x2")
                for t2 in range(1, 5):
                    c(stat_reads(t2))
                side += late
                side.append(("vm", "hf1", hld))
            elif n == 1:
                c(("wait", ["x2t4"]), "s_barrier")
            elif n == 4:
                c(("drain",), "s_barrier")
            if n >= 1:
                side += [("gap", 8)] + normalize(order[n - 1], False, VP)
            if n >= 2:
                side += attn_tiles([order[n - 1]], VP, R3(order[n - 1]), False)
            if n == 4:
                HS2 = 188
                side += [f"v_add_f32 v{HS2}, v{PSH}, v{PSH+2}", f"v_add_f32 v{HS2+1}, v{PSH+1}, v{PSH+3}"]
                side += xq_reduce("v_add_f32", [HS2, HS2 + 1], [PSH, PSH + 1])
                side += stats_fin([(HS2, HS2 + 1)], [PSH])
                side += [f"v_and_b32 v{PSH}, 0x38, v{V_S8}", f"v_add_u32 v{PSH}, {(L_ST & ~0x3f) + 64}, v{PSH}"]
            stamp("p3")
            c.merge(tile_stream(tl), side)
            stamp("p3")
            if n >= 2:
                o_stores(O2_OFF, 108, [order[n - 1]])
            if n in (1, 2, 3):
                halo_try(n, n == 3)
                if n < 3:
                    c(("vm", f"hf{n+1}", hld))
        c(f"ds_write_b64 v{PSH}, {vr(HS2,2)}", "s_waitcnt lgkmcnt(0)")
        c(stat_reads(0), "s_waitcnt lgkmcnt(0)")
        stamp("p3")
        c(normalize(0, True, VP))
        c(attn_tiles([1], VP, R3(1), True))
        o_stores(O2_OFF, 108, [1])
    stamp()
    stamp("p3")
    stamp("p4")
    c(("drain",))
    stamp("p4")
    wave_flag(F_O2)
    c(flags_load(F_O2, s_rb, V_FO, t + 8))
    pre, og = o_loads(O2_OFF)
    c(pre)
    flags_poll(V_FO, t + 8, 68, "po2")
    stamp("p4")
    for g_ in og[:OPRE]:
        c(g_)
    olate[0] = og[OPRE:]
    stamp("p4")
    wo_phase(1)
    if STAMP:
        c("s_waitcnt vmcnt(0) lgkmcnt(0)")
        stamp()
        c("s_memrealtime s[100:101]",
          f"s_mov_b32 s{SWS+2}, {16*MB}",
          f"s_lshl_b32 s{t}, s2, 8",
          f"s_lshl_b32 s{t+1}, s{s_wave}, 6",
          f"s_add_u32 s{t}, s{t}, s{t+1}",
          f"s_add_u32 s{t}, s{t}, {STAMP_OFF}",
          "s_waitcnt lgkmcnt(0)",
          "v_writelane_b32 v255, s100, 1",
          f"v_lshlrev_b32 v64, 2, v{V_LANE}",
          "s_mov_b64 exec, 0xffff",
          f"buffer_store_dword v255, v64, {sr(SWS,4)}, s{t} offen")
    a(f"{L_end}:")
    a("s_endpgm")
    a(f".set CODE_LIMIT, {L_end} - {label}")


def main(out_path):
    a = Asm()
    label = NAME + "_kernel"
    a('.amdgcn_target "amdgcn-amd-amdhsa--gfx950"')
    a(".text")
    gen(a, label)
    desc = f""".section .rodata,"a"
.p2align 6
.amdhsa_kernel {label}
  .amdhsa_next_free_vgpr 512
  .amdhsa_next_free_sgpr 102
  .amdhsa_accum_offset 256
  .amdhsa_group_segment_fixed_size 0
  .amdhsa_kernarg_size 96
  .amdhsa_user_sgpr_count 2
  .amdhsa_user_sgpr_kernarg_segment_ptr 1
  .amdhsa_system_sgpr_workgroup_id_x 1
.end_amdhsa_kernel
"""
    hdr = f"; @launch grid=(256,1,1) block=(256,1,1) lds={LDS_SIZE}\n"
    open(out_path, "w").write(hdr + a.text() + desc)


if __name__ == "__main__":
    if len(sys.argv) > 2:
        STAMP = True
    main(sys.argv[1])
```

```python
import sys
from gen import Asm, vr, sr, srd, kernel_header, NAME, NEG, MB

KB = 1024
O1_OFF = 0
O2_OFF = 2 * MB
X2_OFF = 4 * MB
U_OFF = 6 * MB
Y_OFF = 8 * MB
ST1_OFF = 10 * MB
ST2_OFF = ST1_OFF + 256 * KB
XS_OFF = ST2_OFF + 256 * KB
HALO_OFF = XS_OFF + 128 * KB
HS_OFF = HALO_OFF + 256 * KB
FL_OFF = HS_OFF + 16 * KB
F_HELLO = FL_OFF
F_T = F_HELLO + 4 * KB
F_Y = F_T + 2 * KB
F_O1 = F_Y + 8 * KB
F_X2 = F_O1 + 8 * KB
F_O2 = F_X2 + 8 * KB
F_H = F_O2 + 8 * KB
WS_SIZE = 11 * MB
assert F_H + 4 * KB <= WS_SIZE
STAMP_OFF = 12 * MB

L_X = 0
XQ = 20480
L_R = 81920
NS = 6 if "bar1" not in __import__("os").environ.get("EXP", "") else 5
L_M = 147456
L_TB = L_M
L_ST = L_M + 8192
LDS_SIZE = 163840
C_U = 0
C_K = 4608
C_KS = 4160
C_CH = 4608 + 4 * 4160
C_RED = 2 * C_CH
C_TR = C_RED + 16384
assert C_TR + 8192 <= 81920
P2_YT = L_TB

SPIN_MAX = 40000
STAMP = False
import os
EXP = os.environ.get("EXP", "")
FINE = os.environ.get("FINE", "")
OOB = 0x7ff00000
PFS = int(os.environ.get("PFS", "11"))
OPRE = int(os.environ.get("OPRE", "6"))
KMAJ = "tilemaj" not in EXP
DSW = float(os.environ.get("DSW", "0.5"))


def ar(a_, n=1):
    return f"a{a_}" if n == 1 else f"a[{a_}:{a_+n-1}]"


class Ctx:
    def __init__(self, a):
        self.a = a
        self.q = []
        self.count = 0

    def raw(self, s):
        for l in s.split("\n"):
            if l.strip():
                self.a(l)
                self.count += 1

    def vwait_n(self, tags):
        idx = -1
        for i, t in enumerate(self.q):
            if t in tags:
                idx = i
        if idx < 0:
            return None
        n = len(self.q) - 1 - idx
        assert n <= 63
        self.q = self.q[idx + 1:]
        return n

    def item(self, it):
        if isinstance(it, str):
            self.raw(it)
        elif it[0] == "vm":
            self.raw(it[2])
            self.q.append(it[1])
        elif it[0] == "wait":
            n = self.vwait_n(it[1])
            lg = it[2] if len(it) > 2 else None
            parts = []
            if n is not None:
                parts.append(f"vmcnt({n})")
            if lg is not None:
                parts.append(f"lgkmcnt({lg})")
            if parts:
                self.raw("s_waitcnt " + " ".join(parts))
        elif it[0] == "drain":
            self.raw("s_waitcnt vmcnt(0)")
            self.q = []
        elif it[0] == "gap":
            self.raw(f"s_nop {it[1]-1}")
        else:
            raise ValueError(it)

    def __call__(self, *its):
        for it in its:
            if isinstance(it, list):
                for x in it:
                    self.item(x)
            else:
                self.item(it)

    def merge(self, main, side, k=2):
        side = list(side)
        si = 0
        dist = 0

        def is_gap(x):
            return isinstance(x, tuple) and x[0] == "gap"

        for m in main:
            self.item(m)
            mf = isinstance(m, str) and m.startswith("v_mfma")
            dist += 3 if mf else 1
            if not mf:
                continue
            quota = k
            while quota > 0 and si < len(side):
                it = side[si]
                if is_gap(it):
                    if dist >= it[1]:
                        si += 1
                        continue
                    break
                self.item(it)
                dist = 0
                si += 1
                if isinstance(it, tuple) and it[0] == "vm":
                    quota -= 2
                elif isinstance(it, str) and it.startswith("ds_"):
                    quota -= DSW
                elif not (isinstance(it, str) and it.startswith("s_")):
                    quota -= 1
        while si < len(side):
            it = side[si]
            if is_gap(it):
                if it[1] - dist > 0:
                    self.raw(f"s_nop {it[1]-dist-1}")
            else:
                self.item(it)
                dist = 0
            si += 1


def _merge2(self, main, must, opt, flush=False):
    must = list(must)
    mi = 0
    si = 0
    dist = getattr(self, "_dist", 100)

    def is_gap(x):
        return isinstance(x, tuple) and x[0] == "gap"
    for m in main:
        self.item(m)
        dist += 3
        if mi < len(must):
            self.item(must[mi])
            mi += 1
            dist += 1
        quota = 2
        while quota > 0 and si < len(opt):
            it = opt[si]
            if is_gap(it):
                if dist >= it[1]:
                    si += 1
                    continue
                break
            if callable(it):
                it()
                quota -= 2
            else:
                self.item(it)
                if isinstance(it, str) and it.startswith("v_mfma"):
                    quota -= 2
                elif not (isinstance(it, str) and it.startswith("s_")):
                    quota -= 1
            dist = 0
            si += 1
    for x in must[mi:]:
        self.item(x)
    rest = opt[si:]
    if flush:
        for it in rest:
            if is_gap(it):
                if it[1] - dist > 0:
                    self.raw(f"s_nop {it[1]-dist-1}")
            elif callable(it):
                it()
                dist = 0
            else:
                self.item(it)
                dist = 0
        rest = []
    self._dist = dist
    return rest


Ctx.merge2 = _merge2


def xq_reduce(op, vs, ts, steps=("v_permlane16_swap_b32", "v_permlane32_swap_b32")):
    l = []
    n = len(vs)
    for sw in steps:
        for v, t in zip(vs, ts):
            l.append(f"v_mov_b32 v{t}, v{v}")
        l.append(("gap", 2 if n < 2 else 1))
        for v, t in zip(vs, ts):
            l.append(f"{sw} v{v}, v{t}")
        l.append(("gap", 2 if n < 2 else 1))
        for v, t in zip(vs, ts):
            l.append(f"{op} v{v}, v{v}, v{t}")
    return l


def stats_fin(pairs, tmps):
    l = []
    def each(f):
        for (s, q), t in zip(pairs, tmps):
            l.append(f(s, q, t))
    each(lambda s, q, t: f"v_mul_f32 v{s}, 0x3b000000, v{s}")
    each(lambda s, q, t: f"v_mul_f32 v{q}, 0x3b000000, v{q}")
    each(lambda s, q, t: f"v_fma_f32 v{q}, -v{s}, v{s}, v{q}")
    each(lambda s, q, t: f"v_max_f32 v{q}, 0, v{q}")
    each(lambda s, q, t: f"v_cvt_pk_bf16_f32 v{t}, v{s}, v{q}")
    each(lambda s, q, t: f"v_lshlrev_b32 v{s}, 16, v{t}")
    each(lambda s, q, t: f"v_and_b32 v{q}, 0xffff0000, v{t}")
    each(lambda s, q, t: f"v_add_f32 v{q}, 0x3727c5ac, v{q}")
    each(lambda s, q, t: f"v_cvt_pk_bf16_f32 v{q}, v{q}, v{q}")
    each(lambda s, q, t: f"v_lshlrev_b32 v{q}, 16, v{q}")
    each(lambda s, q, t: f"v_sqrt_f32 v{q}, v{q}")
    l.append(("gap", 1))
    each(lambda s, q, t: f"v_cvt_pk_bf16_f32 v{q}, v{q}, v{q}")
    each(lambda s, q, t: f"v_lshlrev_b32 v{q}, 16, v{q}")
    each(lambda s, q, t: f"v_rcp_f32 v{q}, v{q}")
    l.append(("gap", 1))
    return l


def gen(a, label):
    kernel_header(a, label)
    c = Ctx(a)
    L_end = a.label("end")
    SX, SW, SWS, SK, SV, SSK, SWO, SKK, SOUT, SDBG = 4, 8, 12, 16, 20, 24, 28, 32, 36, 40
    s_wave, s_rb, s_g, s_p, s_b, s_rot = 44, 45, 46, 47, 48, 49
    s_ep = 50
    s_loc, s_xcc, s_D, s_wm0, s_rowbase, s_c, s_cl, s_half, s_ch, s_spin = 52, 53, 54, 55, 56, 57, 58, 59, 60, 61
    s_xq, s_xl, s_wq = 62, 66, 70
    t = 74
    s_x0m = 16
    s_flag = 18
    s_stile = 19
    nst = [0]

    def stamp(tag=""):
        if STAMP and FINE != "none" and (tag == FINE or (tag == "" and (not FINE or nst[0] == 0))):
            i = nst[0]
            assert i < 14, i
            c("s_memtime s[100:101]", "s_waitcnt lgkmcnt(0)", f"v_writelane_b32 v255, s100, {i+2}")
            nst[0] += 1

    V_LANE, V_LAM, V_Q, V_L16, V_XD, V_WD, V_BB, V_ROW, V_Z = 1, 2, 3, 4, 5, 6, 7, 8, 9
    VAE = 10
    CSQ, CSK, CSV = 26, 30, 34
    V_L8 = 35
    V_EPV = 36
    BC, BP, BP1, MC, MP, ONES = 38, 42, 46, 50, 52, 54
    V_WO = 58
    V_T0 = 62

    c("s_cmp_ge_u32 s2, 256", f"s_cbranch_scc1 {L_end}")
    if STAMP:
        c("s_memrealtime s[100:101]", "v_mov_b32 v255, 0", "s_waitcnt lgkmcnt(0)", "v_writelane_b32 v255, s100, 0")
    stamp()
    c("s_load_dwordx4 s[88:91], s[0:1], 0",
      "s_load_dwordx2 s[92:93], s[0:1], 16",
      "s_load_dwordx4 s[96:99], s[0:1], 32",
      "s_load_dwordx2 s[94:95], s[0:1], 88")
    c(f"v_and_b32 v{V_LANE}, 63, v0",
      "v_lshrrev_b32 v62, 6, v0",
      f"v_and_b32 v{V_LAM}, 15, v{V_LANE}",
      f"v_readfirstlane_b32 s{s_wave}, v62",
      f"v_lshrrev_b32 v{V_Q}, 4, v{V_LANE}",
      f"v_lshlrev_b32 v{V_L16}, 4, v{V_LANE}",
      f"v_mov_b32 v{V_Z}, 0",
      f"s_and_b32 s{s_rb}, s2, 7",
      f"s_lshl_b32 s{s_rb}, s{s_rb}, 2",
      f"s_lshr_b32 s{s_rot}, s2, 6",
      f"s_add_u32 s{s_rb}, s{s_rb}, s{s_rot}",
      f"s_lshr_b32 s{s_g}, s2, 3",
      f"s_and_b32 s{s_g}, s{s_g}, 7",
      f"s_lshr_b32 s{s_p}, s{s_rb}, 4",
      f"s_and_b32 s{s_b}, s{s_rb}, 15")
    if "nopf" not in EXP:
        Lpf = a.label("nopf")
        c(f"s_and_b32 s{t}, s2, 0x78",
          f"s_cmp_lg_u32 s{t}, 0",
          f"s_cbranch_scc1 {Lpf}",
          f"s_getpc_b64 s[{t+2}:{t+3}]",
          f"s_and_b32 s{t+2}, s{t+2}, 0xffffff00",
          f"v_lshlrev_b32 v62, 7, v0",
          f"v_min_u32 v62, CODE_LIMIT, v62",
          f"global_load_dword v253, v62, s[{t+2}:{t+3}]",
          f"{Lpf}:")
    c(f"s_lshl_b32 s{t}, s{s_wave}, 2",
      f"v_add_u32 v62, s{t}, v{V_Q}",
      f"v_xor_b32 v62, v62, v{V_LAM}",
      "v_lshlrev_b32 v62, 4, v62",
      f"v_lshl_add_u32 v{V_XD}, v{V_Q}, 11, v62")
    c(f"v_lshrrev_b32 v62, 3, v{V_LANE}",
      f"s_lshl_b32 s{t}, s{s_wave}, 3",
      f"v_add_u32 v62, s{t}, v62",
      "v_bfe_u32 v63, v62, 3, 1",
      "v_lshlrev_b32 v63, 1, v63",
      "v_bfe_u32 v64, v62, 1, 1",
      "v_or_b32 v63, v63, v64",
      f"v_bfe_u32 v64, v{V_LANE}, 1, 2",
      "v_xor_b32 v63, v63, v64",
      "v_lshlrev_b32 v63, 5, v63",
      f"v_and_b32 v64, 1, v{V_LANE}",
      "v_lshl_add_u32 v63, v64, 4, v63",
      f"v_mul_u32_u24 v{V_WD}, 3072, v62",
      f"v_add_u32 v{V_WD}, v{V_WD}, v63")
    c(f"s_lshl_b32 s{s_rowbase}, s{s_b}, 17",
      f"s_lshl_b32 s{t}, s{s_p}, 10",
      f"s_add_u32 s{s_rowbase}, s{s_rowbase}, s{t}",
      f"s_mul_i32 s{s_wm0}, s{s_wave}, 3072",
      f"s_add_u32 s{s_wm0}, s{s_wm0}, {L_R}")
    c(f"s_lshl_b32 s{t+1}, s{s_wave}, 13",
      f"s_add_u32 s{t+1}, s{t+1}, s{s_rowbase}",
      f"s_sub_u32 s{t+1}, s{t+1}, 32768",
      f"s_lshl_b32 s{t+2}, s{s_wave}, 10",
      f"s_lshl_b32 s{t+3}, s{s_g}, 7")
    for qi in range(4):
        c(f"s_add_u32 s{t}, s{s_rot}, {qi}",
          f"s_and_b32 s{t}, s{t}, 3",
          f"s_lshl_b32 s{s_xq+qi}, s{t}, 8",
          f"s_add_u32 s{s_xq+qi}, s{s_xq+qi}, s{t+1}",
          f"s_mul_i32 s{s_xl+qi}, s{t}, {XQ}",
          f"s_add_u32 s{s_xl+qi}, s{s_xl+qi}, s{t+2}",
          f"s_mul_i32 s{s_wq+qi}, s{t}, {4*98304}",
          f"s_add_u32 s{s_wq+qi}, s{s_wq+qi}, s{t+3}")
    s_wo = 82
    for e4 in range(4):
        c(f"s_add_u32 s{t}, s2, {e4}",
          f"s_and_b32 s{t}, s{t}, 3",
          f"s_mul_i32 s{s_wo+e4}, s{t}, 98304")
    c(f"s_cmp_eq_u32 s{s_wave}, 0",
      "s_cselect_b32 s86, 0xffff0000, -1",
      "s_mov_b32 s87, -1")
    stamp("p1")
    c("s_waitcnt lgkmcnt(0)")
    stamp("p1")
    srd(a, SX, 88, 89, 2 * MB)
    srd(a, SW, 90, 91, 512 * 1536 * 2)

    def xdma(qi, i):
        l = [f"s_add_u32 m0, s{s_xl+qi}, {L_X + i*4096}"]
        if i == 0:
            l += [f"s_cmp_lt_u32 s{s_wave}, 2",
                  f"s_cselect_b32 s{t}, {OOB}, s{s_xq+qi}",
                  ("vm", f"x{qi}", f"s_mov_b64 exec, s[86:87]\nbuffer_load_dwordx4 v{V_XD}, {sr(SX,4)}, s{t} offen lds\ns_mov_b64 exec, -1")]
        else:
            l += [f"s_add_u32 s{t}, s{s_xq+qi}, {i*32768}",
                  ("vm", f"x{qi}", f"buffer_load_dwordx4 v{V_XD}, {sr(SX,4)}, s{t} offen lds")]
        return l

    def wdma(ch):
        l = [f"s_add_u32 m0, s{s_wm0}, {(ch % NS)*12288}",
             f"s_add_u32 s{t}, s{s_wq+(ch>>2)}, s{s_wo+(ch&3)}"]
        for s in range(3):
            l.append(("vm", f"w{ch}", f"buffer_load_dwordx4 v{V_WD}, {sr(SW,4)}, s{t} offen offset:{1024*s} lds"))
        return l

    TF = int(os.environ.get("TF", "0"))
    if TF == 0:
        for i in range(5):
            c(xdma(0, i))
        c(wdma(0))
    elif TF == 2:
        c(xdma(0, 1), wdma(0))
    if "dly0" in EXP:
        c("s_mov_b32 s100, 0", "L_dly:", ["v_add_u32 v170, 1, v170"] * 50, "s_add_u32 s100, s100, 1", "s_cmp_lt_u32 s100, 100", "s_cbranch_scc1 L_dly")
    srd(a, SWS, 94, 95, WS_SIZE)
    srd(a, SK, 96, 97, 2 * MB)
    srd(a, SV, 98, 99, 2 * MB)
    srd(a, SWO, 92, 93, 512 * 512 * 2)
    c("s_load_dwordx4 s[88:91], s[0:1], 48",
      "s_load_dwordx4 s[92:95], s[0:1], 64",
      "s_load_dwordx2 s[96:97], s[0:1], 80")
    TK, TV, TS = 184, 204, 212
    KF, SF, VF, OF = 228, 238, 246, 250
    UP = 112
    c(f"s_lshr_b32 s{t}, s2, 3",
      f"s_lshl_b32 s{t}, s{t}, 16",
      f"s_and_b32 s{t+1}, s2, 7",
      f"s_lshl_b32 s{t+2}, s{t+1}, 7",
      f"s_add_u32 s{t}, s{t}, s{t+2}",
      "v_and_b32 v64, 7, v0",
      "v_lshrrev_b32 v65, 3, v0",
      "v_lshlrev_b32 v66, 11, v65",
      "v_lshl_add_u32 v66, v64, 4, v66",
      f"v_add_u32 v66, s{t}, v66",
      "v_add_u32 v67, 0xfffff400, v66",
      "v_add_u32 v68, 0xfffff800, v66",
      "v_add_u32 v69, 0xfffffc00, v66")
    for ins in (f"buffer_load_dwordx4 {vr(TK,4)}, v67, {sr(SK,4)}, 0 offen",
                f"buffer_load_dwordx4 {vr(TK+4,4)}, v68, {sr(SK,4)}, 0 offen",
                f"buffer_load_dwordx4 {vr(TK+8,4)}, v69, {sr(SK,4)}, 0 offen",
                f"buffer_load_dwordx4 {vr(TK+12,4)}, v66, {sr(SK,4)}, 0 offen",
                f"buffer_load_dwordx4 {vr(TK+16,4)}, v66, {sr(SK,4)}, 0 offen offset:1024",
                f"buffer_load_dwordx4 {vr(TV,4)}, v66, {sr(SV,4)}, 0 offen",
                f"buffer_load_dwordx4 {vr(TV+4,4)}, v66, {sr(SV,4)}, 0 offen offset:1024"):
        if "notl" not in EXP:
            c(("vm", "T", ins))
    c("s_waitcnt lgkmcnt(0)")
    srd(a, SSK, 88, 89, 4096)
    srd(a, SKK, 90, 91, 2 * MB)
    srd(a, SOUT, 94, 95, 2 * MB)
    srd(a, SDBG, 96, 97, 256)
    c(f"s_lshl_b32 s{t+3}, s2, 2",
      f"s_load_dword s{s_D}, s[92:93], s{t+3}",
      f"s_getreg_b32 s{s_xcc}, hwreg(HW_REG_XCC_ID)",
      f"s_and_b32 s{s_xcc}, s{s_xcc}, 15",
      f"s_lshl_b32 s{t+2}, s{t+1}, 9",
      "v_lshlrev_b32 v67, 6, v64")
    for d in range(4):
        c(("vm", "T", f"buffer_load_dwordx4 {vr(TS+4*d,4)}, v67, {sr(SSK,4)}, s{t+2} offen offset:{16*d}"))
    Lq = a.label("noep")
    c(f"s_or_b32 s{t}, s2, s{s_wave}",
      f"s_cmp_lg_u32 s{t}, 0",
      f"s_cbranch_scc1 {Lq}",
      f"s_memrealtime s[{t+4}:{t+5}]",
      "s_waitcnt lgkmcnt(0)",
      f"s_or_b32 s{t+4}, s{t+4}, 1",
      f"v_mov_b32 v70, s{t+4}",
      f"v_mov_b32 v71, s{t+5}",
      "s_mov_b64 exec, 1",
      f"buffer_store_dwordx2 v[70:71], v{V_Z}, {sr(SDBG,4)}, 0 offen sc1",
      "s_mov_b64 exec, -1",
      f"{Lq}:")
    if TF == 1:
        for i in range(5):
            c(xdma(0, i))
        c(wdma(0))
    elif TF == 2:
        for i in (0, 2, 3, 4):
            c(xdma(0, i))
    else:
        c(wdma(1))
    k = []
    k += [f"v_bfe_u32 v70, v{V_LANE}, 2, 2",
          f"v_and_b32 v71, 1, v{V_Q}",
          "v_lshlrev_b32 v71, 1, v71",
          "v_lshrrev_b32 v72, 1, v70",
          "v_or_b32 v71, v71, v72",
          f"v_xor_b32 v72, s{s_wave}, v71",
          "v_lshlrev_b32 v72, 5, v72",
          "v_lshl_add_u32 v72, v70, 7, v72",
          f"v_and_b32 v73, 3, v{V_LANE}",
          "v_lshl_add_u32 v72, v73, 3, v72",
          f"v_mul_u32_u24 v74, 3072, v{V_Q}",
          "v_add_u32 v72, v72, v74",
          f"v_add_u32 v{V_BB}, {L_R}, v72",
          f"v_lshl_add_u32 v72, v{V_Q}, 3, v70",
          "v_lshlrev_b32 v72, 7, v72",
          "v_lshl_add_u32 v72, v73, 3, v72",
          f"v_add_u32 v72, {L_R}, v72"]
    for nt in range(4):
        k += [f"v_xor_b32 v74, {nt}, v71", f"v_lshl_add_u32 v{V_WO+nt}, v74, 5, v72"]
    k += [f"s_lshl_b32 s{t+2}, s{s_wave}, 10"]
    for e4 in range(4):
        k += [f"s_add_u32 s{t+3}, s2, {e4}",
              f"s_and_b32 s{t+3}, s{t+3}, 3",
              f"s_lshl_b32 s{t+3}, s{t+3}, 2",
              f"v_add_u32 v70, s{t+3}, v{V_Q}",
              f"v_xor_b32 v70, v70, v{V_LAM}",
              "v_lshlrev_b32 v70, 4, v70",
              f"v_lshl_add_u32 v70, v{V_LAM}, 8, v70",
              f"v_subrev_u32 v70, s{t+2}, v70"]
        for qi in range(4):
            k.append(f"v_add_u32 v{VAE+4*qi+e4}, s{s_xl+qi}, v70")
    k += [f"v_lshlrev_b32 v{V_ROW}, 11, v{V_LAM}",
          f"v_lshl_add_u32 v{V_ROW}, v{V_Q}, 3, v{V_ROW}",
          f"v_lshlrev_b32 v{V_L8}, 3, v{V_LANE}",
          f"v_lshlrev_b32 v70, 2, v{V_Q}",
          f"v_mov_b32 v72, {NEG}",
          f"s_cmp_eq_u32 s{s_b}, 0",
          f"s_cselect_b32 s{t+2}, -1, 0",
          f"s_mov_b32 s{t+3}, s{t+2}"]
    for r in range(4):
        k += [f"v_add_u32 v71, {r}, v70",
              f"v_sub_u32 v71, v{V_LAM}, v71",
              "v_cmp_gt_u32 vcc, 8, v71",
              "v_add_u32 v71, 16, v71",
              f"v_cmp_gt_u32 {sr(t+4,2)}, 8, v71",
              f"v_cndmask_b32 v{BC+r}, v72, 0, vcc",
              f"v_cndmask_b32 v{74+r}, 0, -1, vcc",
              f"v_cndmask_b32 v{BP+r}, v72, 0, {sr(t+4,2)}",
              f"v_cndmask_b32 v{78+r}, 0, -1, {sr(t+4,2)}",
              f"v_cndmask_b32 v{BP1+r}, v{BP+r}, v72, {sr(t+2,2)}"]
    k.append(f"s_mov_b32 s{t+4}, 0xffff")
    for h in range(2):
        k += [f"v_bfi_b32 v{MC+h}, s{t+4}, v{74+2*h}, v{75+2*h}",
              f"v_bfi_b32 v{MP+h}, s{t+4}, v{78+2*h}, v{79+2*h}"]
    for r in range(4):
        k.append(f"v_mov_b32 v{ONES+r}, 0x3f803f80")
    k += [f"v_mul_u32_u24 v70, {XQ}, v{V_Q}",
          f"v_lshl_add_u32 v70, v{V_LAM}, 4, v70",
          f"ds_write_b128 v70, {vr(ONES,4)} offset:{L_X}"]
    k += [f"s_add_u32 s{s_stile}, s{s_wave}, 1",
          f"s_lshl_b32 s{s_stile}, s{s_stile}, 12",
          f"s_lshl_b32 s{s_flag}, s{s_rb}, 8",
          f"s_lshl_b32 s{t+2}, s{s_g}, 5",
          f"s_add_u32 s{s_flag}, s{s_flag}, s{t+2}",
          f"s_lshl_b32 s{t+2}, s{s_wave}, 3",
          f"s_add_u32 s{s_flag}, s{s_flag}, s{t+2}",
          f"s_lshr_b32 s{s_ch}, s{s_wave}, 1",
          f"s_and_b32 s{s_half}, s{s_wave}, 1",
          f"s_lshl_b32 s{s_c}, s2, 1",
          f"s_add_u32 s{s_c}, s{s_c}, s{s_ch}",
          f"s_lshl_b32 s{s_c}, s{s_c}, 12",
          f"s_mul_i32 s{s_cl}, s{s_ch}, {C_CH}"]
    c(k)
    if TF == 0:
        c(wdma(2))
    if "dly1" in EXP:
        c("s_mov_b32 s100, 0", "L_dly:", ["v_add_u32 v170, 1, v170"] * 50, "s_add_u32 s100, s100, 1", "s_cmp_lt_u32 s100, 100", "s_cbranch_scc1 L_dly")
    stamp("p1")
    c(("wait", ["T"]))
    stamp("p1")
    tc = []
    for d in range(4):
        for r in range(5):
            tc.append(f"v_lshlrev_b32 v{KF+2*r}, 16, v{TK+4*r+d}")
            tc.append(f"v_and_b32 v{KF+2*r+1}, 0xffff0000, v{TK+4*r+d}")
        for j in range(4):
            for cc in range(2):
                src = TS + 4 * d + 2 * cc + (j >> 1)
                tc.append(f"v_and_b32 v{SF+2*j+cc}, 0xffff0000, v{src}" if j & 1 else f"v_lshlrev_b32 v{SF+2*j+cc}, 16, v{src}")
        for tt in range(2):
            tc.append(f"v_lshlrev_b32 v{VF+2*tt}, 16, v{TV+4*tt+d}")
            tc.append(f"v_and_b32 v{VF+2*tt+1}, 0xffff0000, v{TV+4*tt+d}")
        for tt in range(2):
            o = OF + 2 * tt
            tc.append(f"v_pk_mul_f32 {vr(o,2)}, {vr(KF+2*(tt+0),2)}, {vr(SF+6,2)}")
            for j in (2, 1, 0):
                tc.append(f"v_pk_fma_f32 {vr(o,2)}, {vr(KF+2*(3+tt-j),2)}, {vr(SF+2*j,2)}, {vr(o,2)}")
            tc.append(f"v_pk_mul_f32 {vr(o,2)}, {vr(o,2)}, {vr(VF+2*tt,2)}")
        tc.append(f"v_cvt_pk_bf16_f32 v{UP+2*d}, v{OF+2}, v{OF}")
        tc.append(f"v_cvt_pk_bf16_f32 v{UP+2*d+1}, v{OF+3}, v{OF+1}")
    groups = ([wdma(1), wdma(2)] if TF else []) + [xdma(1, i) for i in range(5)] + [wdma(3), wdma(4)]
    per = len(tc) // (len(groups) + 1)
    for i, l in enumerate(tc):
        if "notc" not in EXP:
            c(l)
        if (i + 1) % per == 0 and groups:
            c(groups.pop(0))
    assert not groups
    c("v_sub_u32 v67, 31, v65",
      "v_lshrrev_b32 v68, 2, v67",
      "v_xor_b32 v68, v68, v64",
      "v_lshlrev_b32 v68, 4, v68",
      "v_and_b32 v67, 3, v67",
      "v_lshl_add_u32 v68, v67, 2, v68",
      "v_lshl_add_u32 v68, v64, 10, v68",
      f"v_add_u32 v68, {L_TB}, v68")
    for i in range(8):
        c(f"ds_write_b32 v68, v{UP+i} offset:{128*i}")
    c("v_lshrrev_b32 v67, 3, v0",
      "v_lshrrev_b32 v68, 3, v67",
      "v_xor_b32 v68, v68, v64",
      "v_lshlrev_b32 v68, 4, v68",
      "v_lshl_add_u32 v68, v67, 7, v68",
      f"v_add_u32 v68, {L_TB}, v68",
      "v_xor_b32 v69, 64, v68",
      f"s_and_b32 s{t}, s2, 7",
      f"s_lshl_b32 s{t}, s{t}, 18",
      f"s_lshr_b32 s{t+1}, s2, 3",
      f"s_lshl_b32 s{t+1}, s{t+1}, 7",
      f"s_sub_u32 s{t}, s{t}, s{t+1}",
      f"s_add_u32 s{t}, s{t}, {U_OFF + 3968}",
      f"s_add_u32 s{t+1}, s{t}, {32*4096}",
      "v_lshlrev_b32 v67, 12, v67",
      "v_lshl_add_u32 v67, v64, 4, v67",
      "s_nop 0")
    stamp("p1")
    c(("wait", ["x0", "w0"], 0),
      "s_barrier",
      f"ds_read_b128 {vr(UP,4)}, v68",
      f"ds_read_b128 {vr(UP+4,4)}, v69 offset:4096")

    XS = [64 + 8, 96]
    XS = [184, 208]
    ACC = 108
    AQ, AK, AV = ACC, ACC + 20, ACC + 40
    SA = 168
    V_SB = 172
    V_EP = 174
    SU = 232

    def p1_reads(P, e):
        l = []
        slot = (e % NS) * 12288
        l.append(f"v_add_u32 v{V_SB}, s{s_stile}, v{VAE+e}")
        for s in range(3):
            for ss in range(2):
                if "xnotr" not in EXP:
                    l.append(f"ds_read_b64_tr_b16 {ar(12*e+4*s+2*ss,2)}, v{V_BB} offset:{slot+1024*s+512*ss}")
        for tl in range(5):
            l.append(f"ds_read_b128 {vr(XS[P]+4*tl,4)}, v{VAE+e} offset:{4096*tl}")
        l.append(f"ds_read_b128 {vr(XS[P]+20,4)}, v{V_SB}")
        return l

    c(p1_reads(0, 0))
    c(f"v_mov_b32 v{SA}, 0", f"v_mov_b32 v{SA+1}, 0", "s_waitcnt lgkmcnt(12)")
    c(("vm", "Tst", f"buffer_store_dwordx4 {vr(UP,4)}, v67, {sr(SWS,4)}, s{t} offen sc1"),
      ("vm", "Tst", f"buffer_store_dwordx4 {vr(UP+4,4)}, v67, {sr(SWS,4)}, s{t+1} offen sc1"))
    stamp()
    V_WOD = 176
    wod = [f"v_lshrrev_b32 v{V_T0}, 3, v{V_LANE}",
           f"v_bfe_u32 v{V_T0+1}, v{V_T0}, 1, 1",
           f"s_lshl_b32 s{t+5}, s{s_half}, 1",
           f"v_or_b32 v{V_T0+1}, s{t+5}, v{V_T0+1}",
           f"v_bfe_u32 v{V_WOD}, v{V_LANE}, 1, 2",
           f"v_xor_b32 v{V_T0+1}, v{V_T0+1}, v{V_WOD}",
           f"v_lshlrev_b32 v{V_T0+1}, 5, v{V_T0+1}",
           f"v_and_b32 v{V_WOD}, 1, v{V_LANE}",
           f"v_lshl_add_u32 v{V_T0+1}, v{V_WOD}, 4, v{V_T0+1}",
           f"v_lshl_add_u32 v{V_WOD}, v{V_T0}, 10, v{V_T0+1}",
           f"s_lshl_b32 s{t+6}, s{s_g}, 7",
           f"s_lshl_b32 s{t+5}, s{s_wave}, 13",
           f"s_add_u32 s{t+6}, s{t+6}, s{t+5}",
           f"s_lshl_b32 s{t+7}, s{s_wave}, 10"]

    def wodma(n):
        return [f"s_add_u32 m0, s{t+7}, {L_R + n*4096}",
                f"s_add_u32 s{t}, s{t+6}, {n*32768}",
                ("vm", "wo", f"buffer_load_dwordx4 v{V_WOD}, {sr(SWO,4)}, s{t} offen lds")]

    xsched = {0: [(2, 0), (2, 1)], 1: [(2, 2), (2, 3), (2, 4)], 2: [(3, 0), (3, 1)], 3: [(3, 2), (3, 3), (3, 4)]}
    V_HL, V_FT = 178, 182
    for e in range(16):
        P = e & 1
        need = []
        if NS == 5:
            if e < 15:
                need = [f"w{e+1}"]
                if (e + 1) % 4 == 0:
                    need.append(f"x{(e+1)//4}")
        elif e % 2 == 0:
            need = [f"w{e+1}", f"w{e+2}"]
            if (e + 2) % 4 == 0:
                need.append(f"x{(e+2)//4}")
        if e == 4:
            need += ["Tst", "ep"]
        c(("wait", need, 0))
        if NS == 5 or e % 2 == 0:
            c("s_barrier")
        sx = XS[P] + 20
        st_ops = []
        if "xnodot" in EXP:
            pass
        elif "plain" not in EXP:
            for i in range(4):
                c(f"v_dot2_f32_bf16 v{SA}, v{sx+i}, v{ONES}, v{SA}",
                  f"v_dot2_f32_bf16 v{SA+1}, v{sx+i}, v{sx+i}, v{SA+1}")
        else:
            for i in range(4):
                st_ops += [f"v_lshlrev_b32 v{SU}, 16, v{sx+i}",
                           f"v_and_b32 v{SU+1}, 0xffff0000, v{sx+i}",
                           f"v_add_f32 v{SA}, v{SA}, v{SU}",
                           f"v_fmac_f32 v{SA+1}, v{SU}, v{SU}",
                           f"v_add_f32 v{SA}, v{SA}, v{SU+1}",
                           f"v_fmac_f32 v{SA+1}, v{SU+1}, v{SU+1}"]
        if e in (0, 2, 4, 6, 8, 10, 12, 14):
            stamp("p1")
        other = []
        if e < 15:
            other += p1_reads(1 - P, e + 1)
        if e == 0:
            other.append(("vm", "ep", f"buffer_load_dwordx2 {vr(V_EP,2)}, v{V_Z}, {sr(SDBG,4)}, 0 offen sc1"))
        if e + 5 < 16 and "xnodma" not in EXP:
            other += wdma(e + 5)
        for (qi, i) in xsched.get(e, []):
            other += xdma(qi, i)
        if e == 15:
            other += [f"s_lshl_b32 s{t+8}, s{s_rb}, 7",
                      f"s_add_u32 s{t+8}, s{t+8}, {F_HELLO}",
                      f"v_and_b32 v{V_T0}, 0x70, v{V_L16}",
                      ("vm", "hl", f"buffer_load_dwordx4 {vr(V_HL,4)}, v{V_T0}, {sr(SWS,4)}, s{t+8} offen sc1"),
                      f"s_lshr_b32 s{t+9}, s2, 5",
                      f"s_lshl_b32 s{t+9}, s{t+9}, 8",
                      f"s_add_u32 s{t+9}, s{t+9}, {F_T}",
                      f"v_and_b32 v{V_T0+1}, 0xf8, v{V_L8}",
                      ("vm", "hl", f"buffer_load_dwordx2 {vr(V_FT,2)}, v{V_T0+1}, {sr(SWS,4)}, s{t+9} offen sc1")]
        if e == 7 and "nopf2" not in EXP:
            other += [f"s_lshl_b32 s{t}, s2, 13",
                      f"s_lshl_b32 s{t+1}, s{s_wave}, 11",
                      f"s_add_u32 s{t}, s{t}, s{t+1}",
                      ("vm", "pf", f"buffer_load_dwordx4 v[240:243], v{V_L16}, {sr(SKK,4)}, s{t} offen"),
                      ("vm", "pf", f"buffer_load_dwordx4 v[240:243], v{V_L16}, {sr(SKK,4)}, s{t} offen offset:1024"),
                      f"v_lshlrev_b32 v236, 18, v{V_LANE}",
                      ("vm", "pf", f"buffer_load_dword v237, v236, {sr(SWS,4)}, 0 offen"),
                      ("vm", "pf", f"buffer_load_dword v237, v236, {sr(SOUT,4)}, 0 offen")]
        if e == 8 and "nopfl" not in EXP:
            other += [f"s_lshl_b32 s{t}, s{s_rb}, 8",
                      f"v_lshlrev_b32 v236, 13, v{V_Q}",
                      f"v_lshl_add_u32 v236, v{V_LAM}, 4, v236",
                      f"s_add_u32 s{t}, s{t}, {F_O1}",
                      ("vm", "pf", f"buffer_load_dword v237, v236, {sr(SWS,4)}, s{t} offen sc1"),
                      f"s_lshl_b32 s{t}, s{s_rb}, 13",
                      f"s_lshl_b32 s{t+1}, s{s_wave}, 11",
                      f"s_add_u32 s{t}, s{t}, s{t+1}",
                      f"v_lshlrev_b32 v236, 7, v{V_LAM}",
                      f"v_and_b32 v238, 1, v{V_Q}",
                      f"v_lshl_add_u32 v236, v238, 18, v236",
                      f"s_add_u32 s{t}, s{t}, {ST1_OFF}",
                      ("vm", "pf", f"buffer_load_dword v237, v236, {sr(SWS,4)}, s{t} offen sc1")]
        if e == 9 and "pfb" in EXP:
            other += [f"s_lshl_b32 s{t}, s{s_g}, 2",
                      f"s_add_u32 s{t}, s{t}, s{s_wave}",
                      f"s_lshl_b32 s{t}, s{t}, 9",
                      f"s_lshl_b32 s{t+1}, s{s_rb}, 16",
                      f"s_add_u32 s{t}, s{t}, s{t+1}",
                      f"v_and_b32 v236, 3, v{V_LANE}",
                      "v_lshlrev_b32 v236, 7, v236",
                      f"v_bfe_u32 v237, v{V_LANE}, 2, 2",
                      "v_lshl_add_u32 v236, v237, 14, v236",
                      f"v_and_b32 v237, 1, v{V_Q}",
                      "v_lshl_add_u32 v236, v237, 21, v236",
                      ("vm", "pf", f"buffer_load_dword v237, v236, {sr(SWS,4)}, s{t} offen"),
                      f"s_lshl_b32 s{t}, s{s_wave}, 15",
                      f"s_add_u32 s{t}, s{t}, s{s_rowbase}",
                      f"s_lshl_b32 s{t+1}, s{s_g}, 7",
                      f"s_add_u32 s{t}, s{t}, s{t+1}",
                      f"s_add_u32 s{t+1}, s{t}, {X2_OFF}",
                      ("vm", "pf", f"buffer_load_dword v237, v{V_ROW}, {sr(SWS,4)}, s{t+1} offen"),
                      ("vm", "pf", f"buffer_load_dword v237, v{V_ROW}, {sr(SOUT,4)}, s{t} offen")]
        if e == 10:
            other += wod
        if NS == 5:
            wsch = {11: [15], 12: [3, 4, 5], 13: [6, 7, 8], 14: [9, 10, 11], 15: [12, 13, 14]}
        else:
            wsch = {12: [12, 13, 14], 13: [15, 0, 1], 14: [2, 3, 4], 15: [5, 6, 7]}
        for n in wsch.get(e, []):
            if "xnodma" not in EXP:
                other += wodma(n)
        if e == 4:
            Lp, Lok, Lnf = a.label("ep"), a.label("epok"), a.label("nf")
            c(f"s_mov_b32 s{s_spin}, 0",
              f"{Lp}:",
              f"v_readfirstlane_b32 s{s_ep}, v{V_EP}",
              f"v_readfirstlane_b32 s{s_ep+1}, v{V_EP+1}",
              f"s_add_u32 s{s_spin}, s{s_spin}, 1",
              f"s_cmp_lg_u32 s{s_ep}, 0",
              f"s_cbranch_scc1 {Lok}",
              f"s_cmp_gt_u32 s{s_spin}, {SPIN_MAX}",
              f"s_cbranch_scc1 {Lok}",
              "s_sleep 2",
              f"buffer_load_dwordx2 {vr(V_EP,2)}, v{V_Z}, {sr(SDBG,4)}, 0 offen sc1",
              "s_waitcnt vmcnt(0)",
              f"s_branch {Lp}",
              f"{Lok}:",
              f"v_mov_b32 v{V_EPV}, s{s_ep}",
              f"v_mov_b32 v{V_EPV+1}, s{s_ep+1}",
              f"s_cmp_lg_u32 s{s_wave}, 0",
              f"s_cbranch_scc1 {Lnf}",
              f"v_mov_b32 v{V_HL}, s{s_ep}",
              f"v_mov_b32 v{V_HL+1}, s{s_ep+1}",
              f"v_mov_b32 v{V_HL+2}, s{s_xcc}",
              f"v_mov_b32 v{V_HL+3}, 0",
              f"s_and_b32 s{t}, s2, 7",
              f"s_lshl_b32 s{t}, s{t}, 8",
              f"s_and_b32 s{t+1}, s2, 0xf8",
              f"s_add_u32 s{t}, s{t}, s{t+1}",
              f"s_add_u32 s{t}, s{t}, {F_T}",
              f"s_lshl_b32 s{t+1}, s{s_rb}, 7",
              f"s_lshl_b32 s{t+2}, s{s_g}, 4",
              f"s_add_u32 s{t+1}, s{t+1}, s{t+2}",
              f"s_add_u32 s{t+1}, s{t+1}, {F_HELLO}",
              "s_mov_b64 exec, 1",
              f"buffer_store_dwordx2 {vr(V_HL,2)}, v{V_Z}, {sr(SWS,4)}, s{t} offen sc1",
              f"buffer_store_dwordx4 {vr(V_HL,4)}, v{V_Z}, {sr(SWS,4)}, s{t+1} offen sc1",
              "s_mov_b64 exec, -1",
              f"{Lnf}:")
        mf = []
        wq, wk, wv = ar(12 * e, 4), ar(12 * e + 4, 4), ar(12 * e + 8, 4)
        for tl in range(5):
            x = vr(XS[P] + 4 * tl, 4)
            for (acc, A_, B_) in ((AQ + 4 * tl, wq, x), (AK + 4 * tl, wk, x), (AV + 4 * tl, x, wv)):
                mf.append(f"v_mfma_f32_16x16x32_bf16 {vr(acc,4)}, {A_}, {B_}, {vr(acc,4) if e else 0}")
        mix = []
        no, ns = len(other), len(st_ops)
        io = 0
        for j, so in enumerate(st_ops):
            while io < (j + 1) * no // max(ns, 1):
                mix.append(other[io])
                io += 1
            mix.append(so)
        mix += other[io:]
        c.merge(mf, mix)
    stamp()
    HR = 64
    c(f"v_lshrrev_b32 v72, 5, v{V_LANE}",
      f"s_lshl_b32 s{t}, s{s_wave}, 1",
      f"s_add_u32 s{t}, s{t}, 8",
      f"v_add_u32 v72, s{t}, v72",
      "v_lshlrev_b32 v72, 8, v72",
      f"v_lshl_add_u32 v72, v{V_LAM}, 4, v72",
      f"v_and_b32 v73, 1, v{V_Q}",
      f"v_mul_u32_u24 v73, {XQ}, v73",
      "v_add_u32 v72, v72, v73",
      f"ds_read_b128 {vr(HR,4)}, v72 offset:{L_X}",
      f"ds_read_b128 {vr(HR+4,4)}, v72 offset:{L_X+2*XQ}",
      f"v_mov_b32 v{SA+2}, 0",
      f"v_mov_b32 v{SA+3}, 0",
      f"v_lshlrev_b32 v74, 2, v{V_LAM}")
    for r in range(4):
        c(f"v_mov_b32_dpp v{CSQ+r}, v{AQ+r} row_newbcast:0 row_mask:0xf bank_mask:0xf",
          f"v_mov_b32_dpp v{CSK+r}, v{AK+r} row_newbcast:0 row_mask:0xf bank_mask:0xf")
    c(f"ds_bpermute_b32 v{CSV}, v74, v{AV}",
      "s_waitcnt lgkmcnt(0)",
      "s_barrier")
    STA, STB = 94, 196
    QP, KP, VP = 64, 74, 84
    def read_stats(vlam8):
        l = [f"ds_read_b64 {vr(STA+2*tl,2)}, v{vlam8} offset:{128*tl}" for tl in range(5)]
        l += [f"v_lshlrev_b32 v{V_T0}, 5, v{V_Q}", f"v_add_u32 v{V_T0}, {L_ST}, v{V_T0}"]
        for tl in range(5):
            l += [f"ds_read_b128 {vr(STB+8*tl,4)}, v{V_T0} offset:{128*tl}",
                  f"ds_read_b128 {vr(STB+8*tl+4,4)}, v{V_T0} offset:{128*tl+16}"]
        return l

    def poll(check_lines, reload_lines, name, sleep=1):
        Lp, Ld = a.label(name), a.label(name + "d")
        c(f"s_mov_b32 s{s_spin}, 0", f"{Lp}:")
        c(check_lines)
        c(f"s_add_u32 s{s_spin}, s{s_spin}, 1",
          f"s_cmp_gt_u32 s{s_spin}, {SPIN_MAX}",
          f"s_cbranch_scc1 {Ld}",
          "s_nop 1",
          f"s_cbranch_vccz {Ld}",
          f"s_sleep {sleep}")
        c(reload_lines)
        c("s_waitcnt vmcnt(0)", f"s_branch {Lp}", f"{Ld}:")

    def chk_ep(regs_lo, tmp):
        l = []
        for n, lo in enumerate(regs_lo):
            if n == 0:
                l.append(f"v_xor_b32 v{tmp}, s{s_ep}, v{lo}")
            else:
                l.append(f"v_xor_b32 v{tmp+1}, s{s_ep}, v{lo}")
                l.append(f"v_or_b32 v{tmp}, v{tmp}, v{tmp+1}")
            l.append(f"v_xor_b32 v{tmp+1}, s{s_ep+1}, v{lo+1}")
            l.append(f"v_or_b32 v{tmp}, v{tmp}, v{tmp+1}")
        l.append(f"v_cmp_ne_u32 vcc, 0, v{tmp}")
        return l

    PT = 104
    c(f"v_and_b32 v{PT}, 0x70, v{V_L16}", f"v_and_b32 v{PT+1}, 0xf8, v{V_L8}")
    c(("wait", ["hl"]))
    poll(chk_ep([V_HL, V_FT], 106),
         [f"buffer_load_dwordx4 {vr(V_HL,4)}, v{PT}, {sr(SWS,4)}, s{t+8} offen sc1",
          f"buffer_load_dwordx2 {vr(V_FT,2)}, v{PT+1}, {sr(SWS,4)}, s{t+9} offen sc1"], "phl")
    c(f"v_cmp_ne_u32 vcc, s{s_xcc}, v{V_HL+2}",
      f"s_lshl_b32 s{t+3}, s{s_half}, 11",
      f"s_add_u32 s{t+4}, s{s_c}, s{t+3}",
      f"s_add_u32 s{t+4}, s{t+4}, {U_OFF}",
      f"s_add_u32 m0, s{s_cl}, s{t+3}",
      "s_nop 0",
      ("vm", "cu", f"buffer_load_dwordx4 v{V_L16}, {sr(SWS,4)}, s{t+4} offen sc1 lds"),
      ("vm", "cu", f"buffer_load_dwordx4 v{V_L16}, {sr(SWS,4)}, s{t+4} offen offset:1024 sc1 lds"),
      "s_cmp_eq_u64 vcc, 0",
      f"s_cselect_b32 s{s_loc}, 1, 0")
    V_FX, V_FI = 184, 185
    dm = []
    for i in range(2):
        g0 = [f"s_lshl_b32 s{t+3}, s{s_half}, 1",
              f"s_add_u32 s{t+3}, s{t+3}, {i}",
              f"s_mul_i32 s{t+5}, s{t+3}, {C_KS}",
              f"s_add_u32 s{t+5}, s{t+5}, s{s_cl}",
              f"s_add_u32 s{t+10+i}, s{t+5}, {C_K+32}",
              f"s_lshl_b32 s{t+3}, s{t+3}, 1",
              f"s_add_u32 s{t+12+i}, s{s_c}, s{t+3}"]
        c(g0)
        for n in range(4):
            dm.append([f"s_mov_b32 m0, s{t+10+i}", "s_nop 0",
                       ("vm", "ck", f"buffer_load_dwordx4 v{V_L16}, {sr(SKK,4)}, s{t+12+i} offen offset:{1024*n} lds")])
    for n in ((0, 1, 2) if NS == 5 else (8, 9, 10, 11)):
        dm.append(wodma(n))
    c(f"v_add_u32 v{V_FI}, v{V_LAM}, v{V_Q}",
      f"v_subrev_u32 v{V_FI}, 16, v{V_FI}",
      f"v_max_i32 v74, 0, v{V_FI}",
      "v_lshlrev_b32 v74, 1, v74",
      ("vm", "ck", f"buffer_load_ushort v{V_FX}, v74, {sr(SKK,4)}, s{s_c} offen"))

    def with_dmas(main, groups, every):
        n = 0
        for it in main:
            c(it)
            n += 1
            if n % every == 0 and groups:
                c(groups.pop(0))

    TT = 72
    ep = []
    for i in range(8):
        ep.append(f"v_dot2_f32_bf16 v{SA+2}, v{HR+i}, v{ONES}, v{SA+2}")
        ep.append(f"v_dot2_f32_bf16 v{SA+3}, v{HR+i}, v{HR+i}, v{SA+3}")
    ep.append(("gap", 3))
    for sh in (8, 4, 2, 1):
        ep += [f"v_add_f32_dpp v{SA+2}, v{SA+2}, v{SA+2} row_ror:{sh} row_mask:0xf bank_mask:0xf",
               f"v_add_f32_dpp v{SA+3}, v{SA+3}, v{SA+3} row_ror:{sh} row_mask:0xf bank_mask:0xf",
               ("gap", 1)]
    ep += xq_reduce("v_add_f32", [SA, SA + 1, SA + 2, SA + 3], [TT, TT + 1, TT + 2, TT + 3], ("v_permlane16_swap_b32",))
    ep += xq_reduce("v_add_f32", [SA, SA + 1], [TT, TT + 1], ("v_permlane32_swap_b32",))
    ep += stats_fin([(SA, SA + 1), (SA + 2, SA + 3)], [TT, TT + 1])
    ep += [f"v_lshlrev_b32 v{TT}, 3, v{V_LAM}",
           f"s_lshr_b32 s{t+1}, s{s_stile}, 5",
           f"s_add_u32 s{t+1}, s{t+1}, {L_ST}",
           f"v_add_u32 v{TT+1}, s{t+1}, v{TT}",
           f"ds_write_b64 v{TT+1}, {vr(SA,2)}",
           f"v_lshrrev_b32 v{TT+1}, 5, v{V_LANE}",
           f"v_lshlrev_b32 v{TT+1}, 3, v{TT+1}",
           f"s_lshl_b32 s{t+1}, s{s_wave}, 4",
           f"s_add_u32 s{t+1}, s{t+1}, {L_ST + 64}",
           f"v_add_u32 v{TT+1}, s{t+1}, v{TT+1}",
           f"ds_write_b64 v{TT+1}, {vr(SA+2,2)}",
           f"v_and_b32 v{TT+1}, 0x38, v{TT}",
           f"v_add_u32 v{TT+1}, {L_ST}, v{TT+1}",
           f"v_mov_b32 v{TT+2}, 0",
           f"v_mov_b32 v{TT+3}, 1.0",
           f"ds_write_b64 v{TT+1}, {vr(TT+2,2)}",
           f"v_add_u32 v{TT}, {L_ST}, v{TT}"]
    with_dmas(ep, dm, 12)
    c("s_waitcnt lgkmcnt(0)", "s_barrier")

    c(read_stats(TT), "s_waitcnt lgkmcnt(0)")

    def normalize(tl, pk, VP):
        l = []
        mean, rstd = STA + 2 * tl, STA + 2 * tl + 1
        for (acc, cs, dst, on) in ((AQ + 4 * tl, CSQ, QP + 2 * tl, tl > 0), (AK + 4 * tl, CSK, KP + 2 * tl, True)):
            if not on:
                continue
            if pk:
                for h in range(2):
                    l.append(f"v_pk_fma_f32 {vr(acc+2*h,2)}, {vr(cs+2*h,2)}, {vr(mean,2)}, {vr(acc+2*h,2)} op_sel_hi:[1,0,1] neg_lo:[0,1,0] neg_hi:[0,1,0]")
                for h in range(2):
                    l.append(f"v_pk_mul_f32 {vr(acc+2*h,2)}, {vr(acc+2*h,2)}, {vr(mean,2)} op_sel:[0,1]")
            else:
                for r in range(4):
                    l.append(f"v_fma_f32 v{acc+r}, -v{mean}, v{cs+r}, v{acc+r}")
                for r in range(4):
                    l.append(f"v_mul_f32 v{acc+r}, v{rstd}, v{acc+r}")
            l.append(f"v_cvt_pk_bf16_f32 v{dst}, v{acc}, v{acc+1}")
            l.append(f"v_cvt_pk_bf16_f32 v{dst+1}, v{acc+2}, v{acc+3}")
        acc = AV + 4 * tl
        for r in range(4):
            l.append(f"v_fma_f32 v{acc+r}, -v{STB+8*tl+2*r}, v{CSV}, v{acc+r}")
        for r in range(4):
            l.append(f"v_mul_f32 v{acc+r}, v{STB+8*tl+2*r+1}, v{acc+r}")
        l.append(f"v_cvt_pk_bf16_f32 v{VP+2*tl}, v{acc}, v{acc+1}")
        l.append(f"v_cvt_pk_bf16_f32 v{VP+2*tl+1}, v{acc+2}, v{acc+3}")
        return l

    V_OA = 254
    s_oa = 20
    oaddr = [f"s_lshl_b32 s{t}, s{s_g}, 2",
             f"s_add_u32 s{t}, s{t}, s{s_wave}",
             f"s_lshr_b32 s{t+1}, s{t}, 1",
             f"s_lshl_b32 s{t+1}, s{t+1}, 10",
             f"s_and_b32 s{t}, s{t}, 1",
             f"s_lshl_b32 s{t}, s{t}, 9",
             f"s_add_u32 s{t}, s{t}, s{t+1}",
             f"s_lshl_b32 s{t+1}, s{s_rb}, 16",
             f"s_add_u32 s{s_oa}, s{t}, s{t+1}",
             f"v_lshrrev_b32 v{V_OA}, 1, v{V_Q}",
             f"v_lshlrev_b32 v{V_OA}, 8, v{V_OA}",
             f"v_lshl_add_u32 v{V_OA}, v{V_LAM}, 4, v{V_OA}",
             f"v_and_b32 v{V_T0+1}, 1, v{V_Q}",
             f"v_lshl_add_u32 v{V_OA}, v{V_T0+1}, 3, v{V_OA}"]

    def attn_tiles(tiles, VP, regs, pk):
        SC, SP, MX, MT, PP, OO, LL = (regs[k_] for k_ in ("SC", "SP", "MX", "MT", "PP", "OO", "LL"))
        n = len(tiles)
        l = [("gap", 2)]
        for j, i in enumerate(tiles):
            l.append(f"v_mfma_f32_16x16x16_bf16 {vr(SC+4*j,4)}, {vr(KP+2*i,2)}, {vr(QP+2*i,2)}, {vr(BC,4)}")
            l.append(f"v_mfma_f32_16x16x16_bf16 {vr(SP+4*j,4)}, {vr(KP+2*(i-1),2)}, {vr(QP+2*i,2)}, {vr(BP1 if i == 1 else BP,4)}")
        l.append(("gap", max(8 - 2 * (n - 1), 1) if n < 4 else 2))
        if n >= 2:
            pass
        for j in range(n):
            if j == n - 1 and n > 1:
                l.append(("gap", 2))
            for r in range(4):
                l.append(f"v_max_f32 v{SC+4*j+r}, v{SC+4*j+r}, v{SP+4*j+r}")
            l.append(f"v_max3_f32 v{MX+j}, v{SC+4*j}, v{SC+4*j+1}, v{SC+4*j+2}")
            l.append(f"v_max_f32 v{MX+j}, v{MX+j}, v{SC+4*j+3}")
        l += xq_reduce("v_max_f32", [MX + j for j in range(n)], [MT + j for j in range(n)])
        for j in range(n):
            l.append(f"v_mul_f32 v{MX+j}, 0x3eb8aa3b, v{MX+j}")
        for j in range(n):
            for r in range(4):
                l.append(f"v_fma_f32 v{SC+4*j+r}, v{SC+4*j+r}, s{s_cexp}, -v{MX+j}")
        for j in range(n):
            for r in range(4):
                l.append(f"v_exp_f32 v{SC+4*j+r}, v{SC+4*j+r}")
        l.append(("gap", 1))
        for j in range(n):
            l += [f"v_cvt_pk_bf16_f32 v{SP+4*j}, v{SC+4*j}, v{SC+4*j+1}",
                  f"v_cvt_pk_bf16_f32 v{SP+4*j+1}, v{SC+4*j+2}, v{SC+4*j+3}",
                  f"v_and_b32 v{PP+4*j}, v{MP}, v{SP+4*j}",
                  f"v_and_b32 v{PP+4*j+1}, v{MP+1}, v{SP+4*j+1}",
                  f"v_and_b32 v{PP+4*j+2}, v{MC}, v{SP+4*j}",
                  f"v_and_b32 v{PP+4*j+3}, v{MC+1}, v{SP+4*j+1}"]
        l.append(("gap", 2))
        for j, i in enumerate(tiles):
            l.append(f"v_mfma_f32_16x16x32_bf16 {vr(LL+4*j,4)}, {vr(ONES,4)}, {vr(PP+4*j,4)}, 0")
            l.append(f"v_mfma_f32_16x16x32_bf16 {vr(OO+4*j,4)}, {vr(VP+2*(i-1),4)}, {vr(PP+4*j,4)}, 0")
        l.append(("gap", 8))
        for j in range(n):
            l.append(f"v_rcp_f32 v{LL+4*j}, v{LL+4*j}")
        l.append(("gap", 1))
        for j in range(n):
            if pk:
                l += [f"v_pk_mul_f32 {vr(OO+4*j,2)}, {vr(OO+4*j,2)}, {vr(LL+4*j,2)} op_sel_hi:[1,0]",
                      f"v_pk_mul_f32 {vr(OO+4*j+2,2)}, {vr(OO+4*j+2,2)}, {vr(LL+4*j,2)} op_sel_hi:[1,0]"]
            else:
                l += [f"v_mul_f32 v{OO+4*j+r}, v{LL+4*j}, v{OO+4*j+r}" for r in range(4)]
            l += [f"v_cvt_pk_bf16_f32 v{OO+4*j}, v{OO+4*j}, v{OO+4*j+1}",
                  f"v_cvt_pk_bf16_f32 v{OO+4*j+1}, v{OO+4*j+2}, v{OO+4*j+3}"]
        return l

    def dual_store(lines_fn, tag, nops):
        Lg, Lj = a.label("sg"), a.label("sj")
        c(f"s_cmp_eq_u32 s{s_loc}, 0", f"s_cbranch_scc1 {Lg}")
        c(lines_fn(""))
        c(f"s_branch {Lj}", f"{Lg}:")
        c(lines_fn(" sc1"))
        c(f"{Lj}:")
        c.q += [tag] * nops

    def wave_flag(f_off, sc1_only=False):
        c(f"s_add_u32 s{t}, s{s_flag}, {f_off}", "s_mov_b64 exec, 1")
        if sc1_only:
            c(("vm", "fl", f"buffer_store_dwordx2 {vr(V_EPV,2)}, v{V_Z}, {sr(SWS,4)}, s{t} offen sc1"))
        else:
            dual_store(lambda fl: [f"buffer_store_dwordx2 {vr(V_EPV,2)}, v{V_Z}, {sr(SWS,4)}, s{t} offen{fl}"], "fl", 1)
        c("s_mov_b64 exec, -1")

    s_cexp = 17
    c(f"s_mov_b32 s{s_cexp}, 0x3eb8aa3b")
    R1 = dict(SC=108, SP=124, MX=140, MT=144, PP=148, OO=196, LL=212)
    main = []
    for tl in range(5):
        main += normalize(tl, True, VP)
    with_dmas(main, dm, 16)
    assert not dm

    def o_stores(o_off, OO, tiles):
        def f(fl):
            l = []
            for j, i in enumerate(tiles):
                l += [f"s_add_u32 s{t+1}, s{s_oa}, {(O1_OFF if (fl == '' and 'noalias' not in EXP) else o_off) + (i-1)*16384}",
                      f"buffer_store_dwordx2 {vr(OO+4*j,2)}, v{V_OA}, {sr(SWS,4)}, s{t+1} offen{fl}"]
            return l
        dual_store(f, "ost", len(tiles))

    stamp()
    CA, CB, C2, C3, C4, C5, C6 = 94, 95, 96, 97, 98, 99, 100
    c(f"v_add_u32 v{V_T0}, s{s_cl}, v{V_L8}",
      f"v_mov_b32 v{C2}, 0",
      f"v_mov_b32 v{C3}, 0",
      f"ds_write_b64 v{V_T0}, {vr(C2,2)} offset:{C_U+4096}",
      f"v_mul_u32_u24 v{C4}, {C_KS}, v{V_Q}",
      f"v_lshl_add_u32 v{C4}, v{V_LAM}, 1, v{C4}",
      f"s_add_u32 s{t+5}, s{s_cl}, {C_K}",
      f"v_add_u32 v{C4}, s{t+5}, v{C4}",
      f"v_cmp_gt_i32 vcc, 0, v{V_FI}",
      f"v_add_u32 v{CA}, 1, v{V_LAM}",
      f"v_and_b32 v{CB}, 3, v{CA}",
      f"v_mul_u32_u24 v{CB}, {C_KS}, v{CB}",
      f"v_and_b32 v{CA}, 0x1c, v{CA}",
      f"v_lshl_add_u32 v{CB}, v{CA}, 1, v{CB}",
      f"v_lshl_add_u32 v{CB}, v{V_Q}, 4, v{CB}",
      f"s_lshl_b32 s{t+3}, s{s_half}, 8",
      f"s_add_u32 s{t+3}, s{t+3}, s{s_cl}",
      f"s_add_u32 s{t+5}, s{t+3}, {C_K}",
      f"v_add_u32 v{CA}, s{t+5}, v{CB}",
      f"v_lshlrev_b32 v{CB}, 5, v{V_LAM}",
      f"v_sub_u32 v{CB}, 480, v{CB}",
      f"v_lshl_add_u32 v{CB}, v{V_Q}, 4, v{CB}",
      f"v_add_u32 v{CB}, s{t+3}, v{CB}",
      ("wait", ["ck", "cu"]),
      f"v_cndmask_b32 v{V_FX}, v{V_FX}, 0, vcc",
      f"ds_write_b16 v{C4}, v{V_FX}",
      "s_waitcnt lgkmcnt(0)", "s_barrier")
    CACC = 104
    V_FO = 232
    V_FA = 236

    def creg(P, off, n):
        return vr(136 + off, n) if P == 0 else ar(192 + off, n)

    def creads(P, rp):
        l = []
        for j in range(8):
            l.append(f"ds_read_b128 {creg(P,32+4*j,4)}, v{CB} offset:{64*rp+512*(7-j)}")
            l.append(f"ds_read_b64 {creg(P,4*j,2)}, v{CA} offset:{64*rp+512*j}")
            l.append(f"ds_read_b64 {creg(P,4*j+2,2)}, v{CA} offset:{64*rp+512*j+8}")
        return l

    def flags_load(f_off, rb_sgpr, dst, sreg):
        return [f"s_lshl_b32 s{sreg}, s{rb_sgpr}, 8",
                f"s_add_u32 s{sreg}, s{sreg}, {f_off}",
                ("vm", "fo", f"buffer_load_dwordx2 {vr(dst,2)}, v{V_FA}, {sr(SWS,4)}, s{sreg} offen sc1")]

    def flags_poll(dst, sreg, tmp, name):
        c(("wait", ["fo"]))
        poll(chk_ep([dst], tmp), [f"buffer_load_dwordx2 {vr(dst,2)}, v{V_FA}, {sr(SWS,4)}, s{sreg} offen sc1"], name)

    c(creads(0, 0))
    KEEP, UU, PR, UF = 136, 152, 160, 176
    pre_ep = [
        f"s_lshl_b32 s{t+3}, s{s_wave}, 12",
        f"s_add_u32 s{t+3}, s{t+3}, {C_RED}",
        f"v_add_u32 v{C2}, s{t+3}, v{V_L16}",
        f"s_xor_b32 s{t+3}, s{s_wave}, 1",
        f"s_lshl_b32 s{t+3}, s{t+3}, 12",
        f"s_add_u32 s{t+3}, s{t+3}, {C_RED}",
        f"v_add_u32 v{C3}, s{t+3}, v{V_L16}",
        f"v_lshlrev_b32 v{C4}, 5, v{V_LAM}",
        f"v_lshl_add_u32 v{C4}, v{V_Q}, 3, v{C4}",
        f"s_lshl_b32 s{t+3}, s{s_half}, 11",
        f"s_sub_u32 s{t+3}, s{s_cl}, s{t+3}",
        f"s_add_u32 s{t+3}, s{t+3}, {C_U + 4088 - 1536}",
        f"v_sub_u32 v{C4}, s{t+3}, v{C4}",
        f"s_lshl_b32 s{t+3}, s{s_wave}, 11",
        f"s_add_u32 s{t+3}, s{t+3}, {C_TR}",
        f"v_lshlrev_b32 v{C5}, 4, v{V_LAM}",
        f"v_lshl_add_u32 v{C5}, v{V_Q}, 2, v{C5}",
        f"v_add_u32 v{C5}, s{t+3}, v{C5}",
        f"v_add_u32 v{C6}, s{t+3}, v{V_L16}",
        f"v_lshrrev_b32 v101, 5, v{V_LANE}",
        "v_lshlrev_b32 v101, 8, v101",
        f"v_and_b32 v102, 1, v{V_Q}",
        "v_lshl_add_u32 v101, v102, 11, v101",
        f"v_lshl_add_u32 v101, v{V_LAM}, 4, v101",
        f"s_lshl_b32 s{t+4}, s{s_half}, 10",
        f"s_add_u32 s{t+4}, s{t+4}, s{s_c}",
        f"s_add_u32 s{t+4}, s{t+4}, {Y_OFF}",
        f"s_lshl_b32 s{t+3}, s{s_D}, 16",
        f"s_and_b32 s{t+5}, s{s_D}, 0xffff0000",
        f"s_cmp_eq_u32 s{s_ch}, 0",
        f"s_cselect_b32 s{t+3}, s{t+3}, s{t+5}"]
    pre_ep += [f"ds_read_b64 {vr(UU+2*i,2)}, v{C4} offset:{512*(3-i)}" for i in range(4)]
    pre_ep += ["s_waitcnt lgkmcnt(0)"]
    for i in range(4):
        pre_ep += [f"v_and_b32 v{UF+4*i}, 0xffff0000, v{UU+2*i+1}",
                   f"v_lshlrev_b32 v{UF+4*i+1}, 16, v{UU+2*i+1}",
                   f"v_and_b32 v{UF+4*i+2}, 0xffff0000, v{UU+2*i}",
                   f"v_lshlrev_b32 v{UF+4*i+3}, 16, v{UU+2*i}"]
    pre_ep += [f"v_mul_f32 v{UF+r}, s{t+3}, v{UF+r}" for r in range(16)]
    RA = dict(SC=200, SP=208, MX=216, MT=218, PP=220, OO=238, LL=246)
    opt = [f"v_and_b32 v{V_FA}, 0xf8, v{V_L8}"] + oaddr
    for pr in ([1, 2], [3, 4]):
        opt += attn_tiles(pr, VP, RA, False)
        opt.append(lambda pr=pr: o_stores(O1_OFF, RA["OO"], pr))
        opt.append(("gap", 3))
    c._dist = 100
    for rp in range(4):
        P = rp & 1
        c("s_waitcnt lgkmcnt(0)")
        if rp == 3:
            opt += pre_ep
        mf = []
        for j in range(8):
            for i in range(j, 8):
                cc = vr(CACC + 4 * i, 4) if (rp or j) else 0
                mf.append(f"v_mfma_f32_16x16x32_bf16 {vr(CACC+4*i,4)}, {creg(P,4*j,4)}, {creg(P,32+4*(i-j),4)}, {cc}")
        opt = c.merge2(mf, creads(1 - P, rp + 1) if rp < 3 else [], opt, flush=(rp == 3))
    OFR = 192

    def o_loads(o_off):
        g = []
        for st in range(4):
            for i in range(4):
                e = 4 * st + i
                l = []
                if i == 0:
                    l.append(f"s_add_u32 s{t+11}, s{t+10}, {st*4096}")
                l.append(("vm", f"o{e}", f"buffer_load_dwordx4 {ar(OFR+4*e,4)}, v{V_L16}, {sr(SWS,4)}, s{t+11} offen offset:{1024*i} sc1"))
                g.append(l)
        pre = [f"s_lshl_b32 s{t+10}, s{s_rb}, 16",
               f"s_lshl_b32 s{t+11}, s{s_wave}, 14",
               f"s_add_u32 s{t+10}, s{t+10}, s{t+11}",
               f"s_cmp_eq_u32 s{s_loc}, 0",
               f"s_cselect_b32 s{t+11}, {o_off}, {o_off if 'noalias' in EXP else O1_OFF}",
               f"s_add_u32 s{t+10}, s{t+10}, s{t+11}"]
        return pre, g

    c(("wait", ["ost"]))
    wave_flag(F_O1)
    L1, L2 = a.label("cvh"), a.label("cvj")
    c("s_nop 1", f"s_cmp_eq_u32 s{s_half}, 0", f"s_cbranch_scc0 {L1}")
    for i in range(4):
        c(f"ds_write_b128 v{C2}, {vr(CACC+16+4*i,4)} offset:{1024*i}")
    for r in range(8):
        c(f"v_pk_add_f32 {vr(KEEP+2*r,2)}, {vr(CACC+2*r,2)}, {vr(UF+2*r,2)}")
    c(f"s_branch {L2}", f"{L1}:")
    for i in range(4):
        c(f"ds_write_b128 v{C2}, {vr(CACC+4*i,4)} offset:{1024*i}")
    for r in range(8):
        c(f"v_pk_add_f32 {vr(KEEP+2*r,2)}, {vr(CACC+16+2*r,2)}, {vr(UF+2*r,2)}")
    c(f"{L2}:", "s_waitcnt lgkmcnt(0)", "s_barrier")
    c([f"ds_read_b128 {vr(PR+4*i,4)}, v{C3} offset:{1024*i}" for i in range(4)])
    c(flags_load(F_O1, s_rb, V_FO, t + 8))
    for i in range(4):
        c(f"s_waitcnt lgkmcnt({3-i})" if i == 0 else f"s_waitcnt lgkmcnt({3-i+2*i})",
          f"v_pk_add_f32 {vr(KEEP+4*i,2)}, {vr(KEEP+4*i,2)}, {vr(PR+4*i,2)}",
          f"v_pk_add_f32 {vr(KEEP+4*i+2,2)}, {vr(KEEP+4*i+2,2)}, {vr(PR+4*i+2,2)}")
        for par in range(2):
            c(f"v_cvt_pk_bf16_f32 v{UF+2*i+par}, v{KEEP+4*i+par}, v{KEEP+4*i+2+par}",
              f"ds_write_b32 v{C5}, v{UF+2*i+par} offset:{(2*i+par)*256}")
    YS = 228
    c("s_waitcnt lgkmcnt(0)",
      f"ds_read_b128 {vr(YS,4)}, v{C6}",
      f"ds_read_b128 {vr(238,4)}, v{C6} offset:1024")
    c("s_waitcnt lgkmcnt(0)",
      ("vm", "yst", f"buffer_store_dwordx4 {vr(YS,4)}, v101, {sr(SWS,4)}, s{t+4} offen sc1"),
      ("vm", "yst", f"buffer_store_dwordx4 {vr(238,4)}, v101, {sr(SWS,4)}, s{t+4} offen offset:512 sc1"))
    stamp()
    c(f"s_lshl_b32 s{t}, s{s_g}, 7", f"s_add_u32 s{s_rowbase}, s{s_rowbase}, s{t}")
    pre, og = o_loads(O1_OFF)
    c(pre)
    c(f"s_lshl_b32 s{t+7}, s{s_g}, 8",
      f"s_add_u32 s{t+7}, s{t+7}, {F_Y}",
      f"s_lshl_b32 s{t+9}, s{s_g}, 18",
      f"s_lshl_b32 s{t+1}, s{s_p}, 11",
      f"s_add_u32 s{t+9}, s{t+9}, s{t+1}",
      f"s_lshl_b32 s{t+1}, s{s_b}, 7",
      f"s_add_u32 s{t+9}, s{t+9}, s{t+1}",
      f"s_lshl_b32 s{t+1}, s{s_wave}, 16",
      f"s_add_u32 s{t+9}, s{t+9}, s{t+1}",
      f"s_add_u32 s{t+9}, s{t+9}, {Y_OFF}",
      f"s_add_u32 s22, s{t+9}, 32768",
      f"v_lshrrev_b32 v75, 3, v{V_LANE}",
      "v_lshlrev_b32 v75, 12, v75",
      f"v_and_b32 v76, 0x70, v{V_L16}",
      "v_add_u32 v75, v75, v76",
      f"s_lshl_b32 s23, s{s_wave}, 11",
      f"s_add_u32 s23, s23, {P2_YT}",
      f"v_bfe_u32 v79, v{V_LANE}, 2, 2",
      f"v_lshl_add_u32 v79, v{V_Q}, 2, v79",
      "v_lshlrev_b32 v79, 7, v79",
      f"v_and_b32 v76, 3, v{V_LANE}",
      "v_lshl_add_u32 v79, v76, 3, v79",
      f"s_lshl_b32 s{t+1}, s{s_wave}, 5",
      f"s_add_u32 s{t+1}, s{t+1}, {P2_YT}",
      f"v_add_u32 v79, s{t+1}, v79")
    fyl = f"buffer_load_dwordx2 {vr(72,2)}, v{V_FA}, {sr(SWS,4)}, s{t+7} offen sc1"
    ylds = ["s_mov_b32 m0, s23", "s_nop 0",
            f"buffer_load_dwordx4 v75, {sr(SWS,4)}, s{t+9} offen sc1 lds",
            "s_add_u32 m0, s23, 1024", "s_nop 0",
            f"buffer_load_dwordx4 v75, {sr(SWS,4)}, s22 offen sc1 lds"]
    flags_poll(V_FO, t + 8, 68, "po1")
    for g_ in og[:OPRE]:
        c(g_)
    olate = [og[OPRE:]]
    stamp()

    def y_flag():
        Lny = a.label("nfy")
        c(("wait", ["yst"]),
          "s_barrier",
          f"s_cmp_lg_u32 s{s_wave}, 0",
          f"s_cbranch_scc1 {Lny}",
          f"s_lshl_b32 s{t}, s2, 3",
          f"s_add_u32 s{t}, s{t}, {F_Y}",
          "s_mov_b64 exec, 1",
          f"buffer_store_dwordx2 {vr(V_EPV,2)}, v{V_Z}, {sr(SWS,4)}, s{t} offen sc1",
          "s_mov_b64 exec, -1",
          f"{Lny}:")

    YP, X2K = 246, 238

    def wbl2():
        Lw = a.label("nowb")
        c(f"s_lshl_b32 s{t}, s{s_wave}, 8",
          f"s_or_b32 s{t}, s{t}, s2",
          f"s_cmp_gt_u32 s{t}, 7",
          f"s_cbranch_scc1 {Lw}",
          "buffer_wbl2 sc1",
          f"{Lw}:")

    def wo_phase(layer):
        first = layer == 0
        XR = 96
        c(f"s_lshl_b32 s{t+1}, s{s_wave}, 15", f"s_add_u32 s{t+5}, s{s_rowbase}, s{t+1}")
        if first:
            for nt in range(4):
                c(("vm", "xr", f"buffer_load_dwordx2 {vr(XR+2*nt,2)}, v{V_ROW}, {sr(SX,4)}, s{t+5} offen offset:{32*nt}"))
        WACC = 80
        WF = [112, 144, 176]

        def reads(P, e):
            return [f"ds_read_b64_tr_b16 {vr(WF[P]+4*nt+2*ss,2)}, v{V_WO+nt} offset:{4096*e+512*ss}"
                    for nt in range(4) for ss in range(2)]
        c(reads(0, 0), reads(1, 1))
        for e in range(16):
            P = e % 3
            if first and e == 0:
                y_flag()
            c(("wait", [f"o{e}"], 8 if e < 15 else 0))
            mf = [f"v_mfma_f32_16x16x32_bf16 {vr(WACC+4*nt,4)}, {vr(WF[P]+4*nt,4)}, {ar(OFR+4*e,4)}, {vr(WACC+4*nt,4) if e else 0}"
                  for nt in range(4)]
            sd = reads((e + 2) % 3, e + 2) if e < 14 else []
            if olate[0]:
                sd = olate[0].pop(0) + sd
            c.merge(mf, sd, 2)
        XF, X1P, G = 144, 160, 168
        if not first and "wb2" in EXP:
            wbl2()
        if not first:
            stamp("p4")
        if first and 'stamp' not in EXP:
            stamp()
        if first:
            c(("wait", ["xr"]))
            src = XR
        else:
            src = X2K
        for i in range(8):
            c(f"v_lshlrev_b32 v{XF+2*i}, 16, v{src+i}", f"v_and_b32 v{XF+2*i+1}, 0xffff0000, v{src+i}")
        c(f"v_mov_b32 v{G}, 0", f"v_mov_b32 v{G+1}, 0", f"v_mov_b32 v{G+2}, s{s_ep}", f"v_mov_b32 v{G+3}, s{s_ep+1}")
        for i in range(8):
            c(f"v_pk_add_f32 {vr(XF+2*i,2)}, {vr(XF+2*i,2)}, {vr(WACC+2*i,2)}",
              f"v_cvt_pk_bf16_f32 v{X1P+i}, v{XF+2*i}, v{XF+2*i+1}")
        for i in range(8):
            c(f"v_dot2_f32_bf16 v{G}, v{X1P+i}, v{ONES}, v{G}", f"v_dot2_f32_bf16 v{G+1}, v{X1P+i}, v{X1P+i}, v{G+1}")
        st_off = ST1_OFF if first else ST2_OFF
        c(f"s_lshl_b32 s{t+6}, s{s_rb}, 13",
          f"s_lshl_b32 s{t+1}, s{s_wave}, 11",
          f"s_add_u32 s{t+6}, s{t+6}, s{t+1}",
          f"s_add_u32 s{t+6}, s{t+6}, {st_off}",
          f"s_lshl_b32 s{t+1}, s{s_g}, 8",
          f"s_add_u32 s{t+1}, s{t+1}, s{t+6}")
        c(xq_reduce("v_add_f32", [G, G + 1], [G + 4, G + 5]))
        c("s_mov_b64 exec, 0xffff")
        dual_store(lambda fl: [f"buffer_store_dwordx4 {vr(G,4)}, v{V_L16}, {sr(SWS,4)}, s{t+1} offen{fl}"], "sst", 1)
        c("s_mov_b64 exec, -1")
        GR = 176
        if not first:
            stamp("p4")
        for i in range(8):
            c(f"v_lshlrev_b32 v{XF+2*i}, 16, v{X1P+i}", f"v_and_b32 v{XF+2*i+1}, 0xffff0000, v{X1P+i}")
        gl = [f"buffer_load_dwordx4 {vr(GR,4)}, v{V_L16}, {sr(SWS,4)}, s{t+6} offen sc1",
              f"buffer_load_dwordx4 {vr(GR+4,4)}, v{V_L16}, {sr(SWS,4)}, s{t+6} offen offset:1024 sc1"]
        if first:
            Lyd = a.label("yd")
            c(f"s_cmp_lg_u32 s{s_wave}, 0", f"s_cbranch_scc1 {Lyd}", fyl, "s_waitcnt vmcnt(0)")
            poll(chk_ep([72], 76), [fyl], "pfy", 3)
            c(f"{Lyd}:", "s_barrier")
            c(ylds)
            if 'stamp' not in EXP:
                stamp()
        for l in gl:
            c(("vm", "gr", l))
        if first:
            c("s_waitcnt vmcnt(2)", "s_barrier")
            for nt in range(4):
                c(f"ds_read_b64_tr_b16 {vr(YP+2*nt,2)}, v79 offset:{2048*nt}")
        c(("drain",))
        if first and 'stamp' not in EXP:
            stamp()
        if not first:
            stamp("p4")
        poll(chk_ep([GR + 2, GR + 6], 76), gl, "pst")
        stamp("p4" if not first else "x2")
        c(f"v_add_f32 v{G}, v{GR}, v{GR+4}", f"v_add_f32 v{G+1}, v{GR+1}, v{GR+5}")
        c(xq_reduce("v_add_f32", [G, G + 1], [G + 4, G + 5]))
        c(stats_fin([(G, G + 1)], [G + 4]))
        c("s_waitcnt lgkmcnt(0)")
        YF, D = 192, 208
        for i in range(8):
            c(f"v_lshlrev_b32 v{YF+2*i}, 16, v{YP+i}", f"v_and_b32 v{YF+2*i+1}, 0xffff0000, v{YP+i}")
        dst = X2K if first else X1P
        for i in range(8):
            c(f"v_pk_add_f32 {vr(D+2*i,2)}, {vr(XF+2*i,2)}, {vr(G,2)} op_sel_hi:[1,0] neg_lo:[0,1] neg_hi:[0,1]",
              f"v_pk_mul_f32 {vr(D+2*i,2)}, {vr(D+2*i,2)}, {vr(G,2)} op_sel:[0,1]",
              f"v_pk_fma_f32 {vr(D+2*i,2)}, {vr(D+2*i,2)}, {vr(YF+2*i,2)}, {vr(XF+2*i,2)}",
              f"v_cvt_pk_bf16_f32 v{dst+i}, v{D+2*i}, v{D+2*i+1}")
        stamp("p4" if not first else "x2")
        WS4 = D
        for i in range(8):
            c(f"v_mov_b32 v{WS4+i}, v{dst+i}")
        if first:
            c(f"v_and_b32 v237, 1, v{V_Q}",
              "v_lshlrev_b32 v237, 5, v237",
              f"v_lshl_add_u32 v237, v{V_LAM}, 11, v237",
              f"v_lshrrev_b32 v76, 1, v{V_Q}",
              "v_lshl_add_u32 v237, v76, 4, v237")
        else:
            c("s_nop 1")
        for pr in range(2):
            for d_ in range(2):
                c(f"v_permlane16_swap_b32 v{WS4+4*pr+d_}, v{WS4+4*pr+2+d_}")
        c("s_nop 0")
        if not first:
            for pr in range(2):
                c(f"buffer_store_dwordx4 {vr(WS4+4*pr,4)}, v237, {sr(SOUT,4)}, s{t+5} offen offset:{64*pr}" + (" sc1" if "outsc1" in EXP else "") + (" nt" if "outnt" in EXP else ""))
            c("s_waitcnt vmcnt(0)" if FINE == "p4" else "s_nop 0")
            stamp("p4")
            return
        c(f"s_add_u32 s{t+5}, s{t+5}, {X2_OFF}", f"v_mov_b32 v{G}, 0", f"v_mov_b32 v{G+1}, 0")
        dual_store(lambda fl: [f"buffer_store_dwordx4 {vr(WS4+4*pr,4)}, v237, {sr(SWS,4)}, s{t+5} offen offset:{64*pr}{fl}"
                               for pr in range(2)], "x2st", 2)
        for i in range(8):
            c(f"v_dot2_f32_bf16 v{G}, v{dst+i}, v{ONES}, v{G}", f"v_dot2_f32_bf16 v{G+1}, v{dst+i}, v{dst+i}, v{G+1}")
        c(f"s_lshl_b32 s{t}, s{s_rb}, 12",
          f"s_lshl_b32 s{t+1}, s{s_wave}, 10",
          f"s_add_u32 s{t}, s{t}, s{t+1}",
          f"s_lshl_b32 s{t+1}, s{s_g}, 7",
          f"s_add_u32 s{t}, s{t}, s{t+1}",
          f"s_add_u32 s{t}, s{t}, {XS_OFF}")
        c(xq_reduce("v_add_f32", [G, G + 1], [G + 4, G + 5]))
        c("s_mov_b64 exec, 0xffff")
        dual_store(lambda fl: [f"buffer_store_dwordx2 {vr(G,2)}, v{V_L8}, {sr(SWS,4)}, s{t} offen{fl}"], "x2st", 1)
        c("s_mov_b64 exec, -1")
        stamp("x2")
        c(("drain",))
        stamp("x2")
        wave_flag(F_X2)
        Lh = a.label("nh")
        c(f"s_cmp_lg_u32 s{s_wave}, 3",
          f"s_cbranch_scc1 {Lh}",
          "v_lshrrev_b32 v75, 1, v237",
          "v_and_b32 v75, 0xfc00, v75",
          "v_and_b32 v76, 0x30, v237",
          "v_or_b32 v75, v75, v76",
          f"s_lshl_b32 s{t}, s{s_rb}, 13",
          f"s_lshl_b32 s{t+1}, s{s_g}, 7",
          f"s_add_u32 s{t}, s{t}, s{t+1}",
          f"s_add_u32 s{t}, s{t}, {HALO_OFF - 8192}",
          f"s_lshl_b32 s{t+2}, s{s_rb}, 9",
          f"s_lshl_b32 s{t+1}, s{s_g}, 6",
          f"s_add_u32 s{t+2}, s{t+2}, s{t+1}",
          f"s_add_u32 s{t+2}, s{t+2}, {HS_OFF - 64}",
          f"s_mov_b32 s{t+8}, 0xff00ff00",
          f"s_mov_b32 s{t+9}, 0xff00ff00",
          f"s_mov_b64 exec, {sr(t+8,2)}")
        for pr in range(2):
            c(f"buffer_store_dwordx4 {vr(WS4+4*pr,4)}, v75, {sr(SWS,4)}, s{t} offen offset:{64*pr} sc1")
        c("s_mov_b64 exec, 0xff00",
          f"buffer_store_dwordx2 {vr(G,2)}, v{V_L8}, {sr(SWS,4)}, s{t+2} offen sc1",
          "s_mov_b64 exec, -1",
          f"{Lh}:")

    wo_phase(0)
    stamp()

    c(flags_load(F_X2, s_rb, V_FO, t + 8))
    for qi in range(4):
        c(f"s_add_u32 s{s_xq+qi}, s{s_xq+qi}, {X2_OFF}")
    stamp("x2")
    flags_poll(V_FO, t + 8, 68, "px2")
    stamp("x2")
    Lh2 = a.label("nh2")
    c(f"s_cmp_lg_u32 s{s_wave}, 3",
      f"s_cbranch_scc1 {Lh2}",
      f"s_lshl_b32 s{t}, s{s_rb}, 7",
      f"s_lshl_b32 s{t+1}, s{s_g}, 3",
      f"s_add_u32 s{t}, s{t}, s{t+1}",
      f"s_add_u32 s{t}, s{t}, {F_H}",
      "s_mov_b64 exec, 1",
      f"buffer_store_dwordx2 {vr(V_EPV,2)}, v{V_Z}, {sr(SWS,4)}, s{t} offen sc1",
      "s_mov_b64 exec, -1",
      f"{Lh2}:")

    def x2dma(qi, i):
        return [f"s_add_u32 m0, s{s_xl+qi}, {L_X + i*4096}",
                f"s_add_u32 s{t}, s{s_xq+qi}, {i*32768}",
                ("vm", f"x2q{qi}" if KMAJ else f"x2t{i}", f"buffer_load_dwordx4 v{V_XD}, {sr(SWS,4)}, s{t} offen sc1 lds")]
    PS = 184
    c(f"s_lshl_b32 s{t+1}, s{s_rb}, 12",
      f"s_lshl_b32 s{t+2}, s{s_wave}, 10",
      f"s_add_u32 s{t+1}, s{t+1}, s{t+2}",
      f"s_add_u32 s{t+1}, s{t+1}, {XS_OFF}")
    for qi in range(4):
        c(x2dma(0, qi + 1) if KMAJ else x2dma(qi, 1))
    c(("vm", "ps", f"buffer_load_dwordx2 {vr(PS,2)}, v{V_L8}, {sr(SWS,4)}, s{t+1} offen sc1"),
      ("vm", "ps", f"buffer_load_dwordx2 {vr(PS+2,2)}, v{V_L8}, {sr(SWS,4)}, s{t+1} offen offset:512 sc1"))
    late = []
    for i in range(2, 5):
        for qi in range(4):
            late += x2dma(i - 1, qi + 1) if KMAJ else x2dma(qi, i)
    c(late[:12])
    late = late[12:]
    V_HF = 190
    c(f"s_sub_u32 s{t+9}, s{s_rb}, 1",
      f"s_lshl_b32 s{t+9}, s{t+9}, 7",
      f"s_add_u32 s{t+9}, s{t+9}, {F_H}",
      f"v_and_b32 v192, 0x38, v{V_L8}")
    hld = f"buffer_load_dwordx2 {vr(V_HF,2)}, v192, {sr(SWS,4)}, s{t+9} offen sc1"
    S3 = 188 if KMAJ else SA
    own = [("wait", ["ps"]),
           f"v_add_f32 v{S3}, v{PS}, v{PS+2}",
           f"v_add_f32 v{S3+1}, v{PS+1}, v{PS+3}"]
    own += xq_reduce("v_add_f32", [S3, S3 + 1], [104, 105])
    own += stats_fin([(S3, S3 + 1)], [104])
    own += [f"v_lshlrev_b32 v193, 3, v{V_LAM}",
            f"s_lshl_b32 s{t+3}, s{s_wave}, 7",
            f"s_add_u32 s{t+3}, s{t+3}, {L_ST + 128}",
            f"v_add_u32 v195, s{t+3}, v193",
            f"ds_write_b64 v195, {vr(S3,2)}",
            f"v_add_u32 v193, {L_ST}, v193",
            f"v_lshlrev_b32 v194, 5, v{V_Q}",
            f"v_add_u32 v194, {L_ST}, v194"]
    if not KMAJ:
        c(own)
    V_S8, V_S32 = 193, 194

    def stat_reads(tl):
        return [f"ds_read_b64 {vr(STA+2*tl,2)}, v{V_S8} offset:{128*tl}",
                f"ds_read_b128 {vr(STB+8*tl,4)}, v{V_S32} offset:{128*tl}",
                f"ds_read_b128 {vr(STB+8*tl+4,4)}, v{V_S32} offset:{128*tl+16}"]

    XF3 = [168, 176]

    def tile_stream(tl):
        m = []
        def rd(e):
            return f"ds_read_b128 {vr(168+4*(e&3),4)}, v{VAE+e} offset:{4096*tl}"
        m += [rd(0), rd(1)]
        for e in range(16):
            if e % 2 == 0:
                if e + 2 < 16:
                    m += [rd(e + 2), rd(e + 3), "s_waitcnt lgkmcnt(2)"]
                else:
                    m.append("s_waitcnt lgkmcnt(0)")
            x = vr(168 + 4 * (e & 3), 4)
            wq, wk, wv = ar(12 * e, 4), ar(12 * e + 4, 4), ar(12 * e + 8, 4)
            for (acc, A_, B_, on) in ((AQ + 4 * tl, wq, x, tl > 0), (AK + 4 * tl, wk, x, True), (AV + 4 * tl, x, wv, True)):
                if on:
                    m.append(f"v_mfma_f32_16x16x32_bf16 {vr(acc,4)}, {A_}, {B_}, {vr(acc,4) if e else 0}")
        return m

    def R3(qt):
        return dict(SC=AQ + 4 * qt, SP=AK + 4 * qt, PP=AV + 4 * qt, LL=STB + 8 * qt, MX=STB + 8 * qt + 4, MT=STB + 8 * qt + 5, OO=108)

    PSH = 184
    s_hd = 21

    def halo_try(n, blocking):
        Lskip, Lgo = a.label("hskip"), a.label("hgo")
        c(f"s_cmp_lg_u32 s{s_hd}, 0", f"s_cbranch_scc1 {Lskip}")
        qs = list(c.q)
        c(f"s_cmp_eq_u32 s{s_b}, 0", f"s_cbranch_scc1 {Lgo}")
        c(("wait", [f"hf{n}"]))
        if not blocking:
            c(chk_ep([V_HF], PSH), "s_nop 4", f"s_cbranch_vccnz {Lskip}")
        else:
            poll(chk_ep([V_HF], PSH), [hld], "ph", 2)
        c(f"{Lgo}:")
        c(f"s_mov_b32 s{s_hd}, 1",
          f"v_lshrrev_b32 v{PSH}, 11, v{V_XD}",
          f"v_and_b32 v{PSH+1}, 0xff, v{V_XD}",
          f"v_lshl_add_u32 v{PSH}, v{PSH}, 10, v{PSH+1}",
          f"s_lshl_b32 s{t+2}, s{s_wave}, 10",
          f"s_lshl_b32 s{t}, s{s_rb}, 13",
          f"s_lshl_b32 s{t+1}, s{s_wave}, 12",
          f"s_add_u32 s{t}, s{t}, s{t+1}",
          f"s_add_u32 s{t}, s{t}, {HALO_OFF - 8192 - 8192}",
          f"s_cmp_lt_u32 s{s_wave}, 2",
          f"s_cselect_b32 s{t}, {OOB}, s{t}",
          f"s_cmp_eq_u32 s{s_b}, 0",
          f"s_cselect_b32 s{t}, {OOB}, s{t}")
        for qd in range(4):
            c(f"s_add_u32 m0, s{t+2}, {L_X + qd*XQ}",
              f"s_add_u32 s{t+1}, s{t}, {qd*256}",
              f"buffer_load_dwordx4 v{PSH}, {sr(SWS,4)}, s{t+1} offen sc1 lds")
        c(f"v_and_b32 v{PSH+1}, 7, v{V_LAM}",
          f"v_lshlrev_b32 v{PSH+1}, 3, v{PSH+1}",
          f"v_lshl_add_u32 v195, v{V_Q}, 6, v{PSH+1}",
          f"s_lshl_b32 s{t}, s{s_rb}, 9",
          f"s_add_u32 s{t}, s{t}, {HS_OFF - 512}",
          f"s_cmp_eq_u32 s{s_b}, 0",
          f"s_cselect_b32 s{t}, {OOB}, s{t}",
          "s_nop 1",
          f"buffer_load_dwordx2 {vr(PSH,2)}, v195, {sr(SWS,4)}, s{t} offen sc1",
          f"buffer_load_dwordx2 {vr(PSH+2,2)}, v195, {sr(SWS,4)}, s{t} offen offset:256 sc1",
          f"{Lskip}:")
        c.q = qs

    c(f"s_mov_b32 s{s_hd}, 0")
    stamp()

    if KMAJ:
        XK = [168, 64]

        def kreads(P, e):
            return [f"ds_read_b128 {vr(XK[P]+4*(tl-1),4)}, v{VAE+e} offset:{4096*tl}" for tl in range(1, 5)]
        stamp("p3")
        c(("wait", ["x2q0"]), "s_barrier")
        stamp("p3")
        c(kreads(0, 0))
        for e in range(16):
            P = e & 1
            if e == 3:
                c(("wait", ["x2q1"], 0), "s_barrier")
            elif e == 6:
                c(("wait", ["x2q3"], 0), "s_barrier")
            else:
                c("s_waitcnt lgkmcnt(0)")
            if e in (3, 7, 12):
                stamp("p3")
            must = kreads(1 - P, e + 1) if e < 15 else []
            opt = []
            if e < 2:
                must += late[12 * e:12 * e + 12]
            if e == 2:
                opt = own
                must.append(("vm", "hf1", hld))
            if 8 <= e < 12:
                must += stat_reads(e - 7)
            mf = []
            wq, wk, wv = ar(12 * e, 4), ar(12 * e + 4, 4), ar(12 * e + 8, 4)
            for tl in range(1, 5):
                x = vr(XK[P] + 4 * (tl - 1), 4)
                for (acc, A_, B_) in ((AQ + 4 * tl, wq, x), (AK + 4 * tl, wk, x), (AV + 4 * tl, x, wv)):
                    mf.append(f"v_mfma_f32_16x16x32_bf16 {vr(acc,4)}, {A_}, {B_}, {vr(acc,4) if e else 0}")
            c.merge(mf, must + opt)
            if e == 9 and "wb1" in EXP:
                wbl2()
            if e == 7:
                halo_try(1, False)
                c(("vm", "hf2", hld))
            if e == 12:
                halo_try(2, False)
                c(("vm", "hf3", hld))
        stamp("p3")
        halo_try(3, True)
        c(("drain",), "s_barrier")
        stamp("p3")
        HS2 = 188
        side = [f"v_add_f32 v{HS2}, v{PSH}, v{PSH+2}", f"v_add_f32 v{HS2+1}, v{PSH+1}, v{PSH+3}"]
        side += xq_reduce("v_add_f32", [HS2, HS2 + 1], [PSH, PSH + 1])
        side += stats_fin([(HS2, HS2 + 1)], [PSH])
        side += [f"v_and_b32 v{PSH}, 0x38, v{V_S8}", f"v_add_u32 v{PSH}, {(L_ST & ~0x3f) + 64}, v{PSH}"]
        side += normalize(1, False, VP)
        c.merge(tile_stream(0), side)
        stamp("p3")
        c(f"ds_write_b64 v{PSH}, {vr(HS2,2)}", "s_waitcnt lgkmcnt(0)")
        c(stat_reads(0))
        for tl in (2, 3, 4):
            c(normalize(tl, True, VP))
        c("s_waitcnt lgkmcnt(0)")
        c(normalize(0, True, VP))
        stamp("p3")
        c(attn_tiles([1, 2, 3, 4], VP, R1, True))
        o_stores(O2_OFF, R1["OO"], [1, 2, 3, 4])
    else:
        order = [1, 2, 3, 4, 0]
        for n, tl in enumerate(order):
            side = []
            if n == 0:
                stamp("x2")
                c(("wait", ["x2t1"], 0), "s_barrier")
                stamp("x2")
                for t2 in range(1, 5):
                    c(stat_reads(t2))
                side += late
                side.append(("vm", "hf1", hld))
            elif n == 1:
                c(("wait", ["x2t4"]), "s_barrier")
            elif n == 4:
                c(("drain",), "s_barrier")
            if n >= 1:
                side += [("gap", 8)] + normalize(order[n - 1], False, VP)
            if n >= 2:
                side += attn_tiles([order[n - 1]], VP, R3(order[n - 1]), False)
            if n == 4:
                HS2 = 188
                side += [f"v_add_f32 v{HS2}, v{PSH}, v{PSH+2}", f"v_add_f32 v{HS2+1}, v{PSH+1}, v{PSH+3}"]
                side += xq_reduce("v_add_f32", [HS2, HS2 + 1], [PSH, PSH + 1])
                side += stats_fin([(HS2, HS2 + 1)], [PSH])
                side += [f"v_and_b32 v{PSH}, 0x38, v{V_S8}", f"v_add_u32 v{PSH}, {(L_ST & ~0x3f) + 64}, v{PSH}"]
            stamp("p3")
            c.merge(tile_stream(tl), side)
            stamp("p3")
            if n >= 2:
                o_stores(O2_OFF, 108, [order[n - 1]])
            if n in (1, 2, 3):
                halo_try(n, n == 3)
                if n < 3:
                    c(("vm", f"hf{n+1}", hld))
        c(f"ds_write_b64 v{PSH}, {vr(HS2,2)}", "s_waitcnt lgkmcnt(0)")
        c(stat_reads(0), "s_waitcnt lgkmcnt(0)")
        stamp("p3")
        c(normalize(0, True, VP))
        c(attn_tiles([1], VP, R3(1), True))
        o_stores(O2_OFF, 108, [1])
    stamp()
    stamp("p3")
    stamp("p4")
    c(("drain",))
    stamp("p4")
    wave_flag(F_O2)
    c(flags_load(F_O2, s_rb, V_FO, t + 8))
    pre, og = o_loads(O2_OFF)
    c(pre)
    flags_poll(V_FO, t + 8, 68, "po2")
    stamp("p4")
    for g_ in og[:OPRE]:
        c(g_)
    olate[0] = og[OPRE:]
    stamp("p4")
    wo_phase(1)
    if STAMP:
        c("s_waitcnt vmcnt(0) lgkmcnt(0)")
        stamp()
        c("s_memrealtime s[100:101]",
          f"s_mov_b32 s{SWS+2}, {16*MB}",
          f"s_lshl_b32 s{t}, s2, 8",
          f"s_lshl_b32 s{t+1}, s{s_wave}, 6",
          f"s_add_u32 s{t}, s{t}, s{t+1}",
          f"s_add_u32 s{t}, s{t}, {STAMP_OFF}",
          "s_waitcnt lgkmcnt(0)",
          "v_writelane_b32 v255, s100, 1",
          f"v_lshlrev_b32 v64, 2, v{V_LANE}",
          "s_mov_b64 exec, 0xffff",
          f"buffer_store_dword v255, v64, {sr(SWS,4)}, s{t} offen")
    a(f"{L_end}:")
    a("s_endpgm")
    a(f".set CODE_LIMIT, {L_end} - {label}")


def main(out_path):
    a = Asm()
    label = NAME + "_kernel"
    a('.amdgcn_target "amdgcn-amd-amdhsa--gfx950"')
    a(".text")
    gen(a, label)
    desc = f""".section .rodata,"a"
.p2align 6
.amdhsa_kernel {label}
  .amdhsa_next_free_vgpr 512
  .amdhsa_next_free_sgpr 102
  .amdhsa_accum_offset 256
  .amdhsa_group_segment_fixed_size 0
  .amdhsa_kernarg_size 96
  .amdhsa_user_sgpr_count 2
  .amdhsa_user_sgpr_kernarg_segment_ptr 1
  .amdhsa_system_sgpr_workgroup_id_x 1
.end_amdhsa_kernel
"""
    hdr = f"; @launch grid=(256,1,1) block=(256,1,1) lds={LDS_SIZE}\n"
    open(out_path, "w").write(hdr + a.text() + desc)


if __name__ == "__main__":
    if len(sys.argv) > 2:
        STAMP = True
    main(sys.argv[1])
```
